```python
import torch

def _softmax(x, axis=-1):
    return torch.softmax(x, dim=axis)
def _gelu(x):
    return torch.nn.functional.gelu(x, approximate="tanh")
def _silu(x):
    return torch.nn.functional.silu(x)
def _sigmoid(x):
    return torch.sigmoid(x)
def _layernorm(x, axis=-1, eps=1e-5):
    m = x.mean(dim=axis, keepdim=True)
    v = x.var(dim=axis, keepdim=True, unbiased=False)
    return (x - m) / torch.sqrt(v + eps)
def _scatter_add(tgt, idx, src, axis=0):
    return tgt.clone().index_add_(axis, idx, src)
def _segment_sum(src, seg, n):
    out = torch.zeros((n,) + src.shape[1:], dtype=src.dtype)
    return out.index_add_(0, seg, src)
def _pad(x, pw):
    flat = tuple(v for pair in reversed(pw) for v in pair)
    return torch.nn.functional.pad(x, flat)

kernel_name = 'parallel_sum__linear_attn_block__dense_activation_gelu__prompt'

def setup_inputs():

    _w = (lambda a: (lambda t: t.to(torch.bfloat16) if t.is_floating_point() else t)(torch.as_tensor(a)))
    def _A_setup():
        B, S, D = 1, 2048, 640
        return {
            "x": _w((lambda *s: torch.randn(*s, dtype=torch.bfloat16) * 0.05)(B, S, D)),
            "wqkv": _w((lambda *s: torch.randn(*s, dtype=torch.bfloat16) * 0.05)(D, 3 * D)),
            "wo": _w((lambda *s: torch.randn(*s, dtype=torch.bfloat16) * 0.05)(D, D)),
        }
    _A_in = _A_setup()

    def _B_setup():
        B, S, D, F = 1, 2048, 640, 1536
        return {
            "x": _w((lambda *s: torch.randn(*s, dtype=torch.bfloat16) * 0.05)(B, S, D)),
            "w1": _w((lambda *s: torch.randn(*s, dtype=torch.bfloat16) * 0.4)(D, F) * (D ** -0.5)),
            "b1": _w((lambda *s: torch.randn(*s, dtype=torch.bfloat16) * 12.8)(F) * 0.01),
            "w2": _w((lambda *s: torch.randn(*s, dtype=torch.bfloat16) * 0.1)(F, D) * (F ** -0.5)),
            "b2": _w((lambda *s: torch.randn(*s, dtype=torch.bfloat16) * 1.6)(D) * 0.01),
        }
    _B_in = _B_setup()

    return {
        "A_x": _A_in["x"],
        "A_wqkv": _A_in["wqkv"],
        "A_wo": _A_in["wo"],
        "B_x": _B_in["x"],
        "B_w1": _B_in["w1"],
        "B_b1": _B_in["b1"],
        "B_w2": _B_in["w2"],
        "B_b2": _B_in["b2"],
    }

def reference(A_x, A_wqkv, A_wo, B_x, B_w1, B_b1, B_w2, B_b2):
    def _A_ref(x, wqkv, wo):
        B, S, D = x.shape
        H = 32; Dh = D // H
        qkv = (lambda x, *d: x.permute(*d))((x @ wqkv).reshape(B, S, 3, H, Dh), 2, 0, 3, 1, 4)
        q, k, v = qkv[0], qkv[1], qkv[2]
        phi = lambda t: torch.where(t > 0, t + 1, torch.exp(t)) + 1e-6
        pq, pk = phi(q), phi(k)
        kv = torch.einsum("bhsd,bhse->bhde", pk, v)
        z = torch.einsum("bhsd->bhd", pk)
        num = torch.einsum("bhqd,bhde->bhqe", pq, kv)
        den = torch.einsum("bhqd,bhd->bhq", pq, z)[..., None] + 1e-6
        o = num / den
        return (lambda x, *d: x.permute(*d))(o, 0, 2, 1, 3).reshape(B, S, D) @ wo

    def _B_ref(x, w1, b1, w2, b2):
        h = torch.einsum("bsd,df->bsf", x, w1) + b1
        h = _gelu(h)
        return torch.einsum("bsf,fd->bsd", h, w2) + b2

    x = A_x
    xn = _layernorm(x, axis=-1)
    return x + _A_ref(xn, A_wqkv, A_wo) + _B_ref(xn, B_w1, B_b1, B_w2, B_b2)
```

```python
import re

TRANS = ("v_exp_f32", "v_log_f32", "v_rcp_f32", "v_rsq_f32", "v_sqrt_f32", "v_sin_f32", "v_cos_f32", "v_rcp_iflag_f32")

def split_ops(s):
    out, depth, cur = [], 0, ""
    for ch in s:
        if ch == "[": depth += 1
        if ch == "]": depth -= 1
        if ch == "," and depth == 0:
            out.append(cur.strip()); cur = ""
        else:
            cur += ch
    if cur.strip(): out.append(cur.strip())
    return out

def regs_of(op):
    op = op.strip()
    op = op.split()[0] if op else op
    op = op.lstrip("-")
    if op.startswith("abs("): op = op[4:-1]
    if op.startswith("|"): op = op.strip("|")
    m = re.fullmatch(r"([vas])(\d+)", op)
    if m: return {(m.group(1), int(m.group(2)))}
    m = re.fullmatch(r"([vas])\[(\d+):(\d+)\]", op)
    if m: return {(m.group(1), i) for i in range(int(m.group(2)), int(m.group(3)) + 1)}
    if op in ("vcc", "vcc_lo", "vcc_hi"): return {("vcc", 0)}
    if op in ("exec", "exec_lo", "exec_hi"): return {("exec", 0)}
    if op == "m0": return {("m0", 0)}
    return set()

class Ins:
    __slots__ = ("text", "mn", "cls", "w", "r", "srcC", "srcAB", "passes", "ws", "dpp", "wide_store", "lds_dma", "trans")
    def __init__(self, text):
        self.text = text
        t = text.split(";")[0].strip()
        parts = t.split(None, 1)
        mn = parts[0]
        ops = split_ops(parts[1]) if len(parts) > 1 else []
        base = re.sub(r"_(e32|e64|dpp|sdwa)$", "", mn)
        self.mn = base
        self.w, self.r, self.srcC, self.srcAB = set(), set(), set(), set()
        self.passes = 0; self.ws = 1; self.wide_store = set(); self.lds_dma = False
        self.dpp = ("_dpp" in mn) or ("quad_perm" in t) or ("row_" in t)
        self.trans = base in TRANS
        R = regs_of
        if base.startswith("v_mfma"):
            self.cls = "mfma"
            self.w = R(ops[0]); self.srcAB = R(ops[1]) | R(ops[2]); self.srcC = R(ops[3])
            self.r = self.srcAB | self.srcC
            self.passes = 8 if "32x32" in base else 4
        elif base.startswith("v_"):
            self.cls = "valu"
            if base.startswith("v_permlane") and "swap" in base:
                self.w = R(ops[0]) | R(ops[1]); self.r = set(self.w)
            elif base in ("v_add_co_u32", "v_sub_co_u32", "v_addc_co_u32", "v_subb_co_u32"):
                self.w = R(ops[0]) | R(ops[1])
                for o in ops[2:]: self.r |= R(o)
            elif base == "v_nop":
                pass
            else:
                self.w = R(ops[0])
                for o in ops[1:]: self.r |= R(o)
                if base in ("v_fmac_f32", "v_dot2c_f32_bf16", "v_writelane_b32") or self.dpp: self.r |= R(ops[0])
                if base.startswith("v_cmpx"): self.w |= {("exec", 0)}
        elif base.startswith("ds_"):
            self.cls = "ds"
            if base.startswith("ds_read") or "permute" in base or "swizzle" in base:
                self.w = R(ops[0])
                for o in ops[1:]: self.r |= R(o)
            else:
                for o in ops: self.r |= R(o)
        elif base.startswith("buffer_") or base.startswith("global_"):
            self.cls = "vmem"
            toks = t.split()
            if base in ("buffer_wbl2", "buffer_inv"):
                pass
            elif "load" in base:
                if toks[-1] == "lds" or " lds" in t or "load_lds" in base:
                    self.lds_dma = True
                    for o in ops: self.r |= R(o)
                    self.r |= {("m0", 0)}
                else:
                    self.w = R(ops[0])
                    for o in ops[1:]: self.r |= R(o)
            else:
                for o in ops: self.r |= R(o)
                if "atomic" in base and " sc0" in t:
                    self.w = R(ops[0])
                if "store" in base and (base.endswith("x4") or base.endswith("x3")):
                    self.wide_store = R(ops[0]) if base.startswith("buffer_") else R(ops[1])
        elif base.startswith("s_"):
            self.cls = "salu"
            if base == "s_nop":
                self.ws = int(ops[0], 0) + 1
            elif base in ("s_waitcnt", "s_barrier", "s_endpgm", "s_sleep", "s_setprio") or base.startswith("s_cbranch") or base == "s_branch":
                pass
            elif base.startswith("s_cmp") or base.startswith("s_bitcmp") or base.startswith("s_atomic"):
                for o in ops: self.r |= R(o)
            else:
                if ops: self.w = R(ops[0])
                for o in ops[1:]: self.r |= R(o)
                if "saveexec" in base: self.w |= {("exec", 0)}
        else:
            raise ValueError("unknown instr: " + text)

def vregs(s): return {x for x in s if x[0] in "va" and x[0] != "vcc"}
def sregs(s): return {x for x in s if x[0] in ("s", "vcc")}

def need(prev, cur):
    n = 0
    p, c = prev, cur
    if p.cls == "valu":
        wv = vregs(p.w); wsr = sregs(p.w)
        if c.cls == "mfma" and wv & c.r: n = max(n, 2)
        if c.cls == "valu":
            if c.mn.startswith("v_permlane") and wv & c.r: n = max(n, 2)
            if c.dpp and wv & c.r: n = max(n, 2)
            if c.mn in ("v_readlane_b32", "v_readfirstlane_b32") and wv & c.r: n = max(n, 1)
            if p.trans and not c.trans and wv & c.r: n = max(n, 1)
            if p.trans and c.trans and wv & c.r: n = max(n, 1)
            if wsr & c.r: n = max(n, 4 if c.mn in ("v_readlane_b32", "v_writelane_b32") else 2)
            if ("exec", 0) in p.w: n = max(n, 5 if c.dpp else 4)
        if c.cls == "vmem" and wsr & c.r: n = max(n, 5)
        if c.cls == "salu" and wsr & c.r: n = max(n, 1)
        if c.cls == "mfma" and ("exec", 0) in p.w: n = max(n, 4)
        if p.trans and c.cls in ("vmem", "ds") and wv & c.r: n = max(n, 1)
    if p.cls == "valu" and p.mn.startswith("v_dot"):
        if vregs(p.w) & (c.r | c.w) and not (c.mn == p.mn): n = max(n, 3)
    if p.cls == "salu":
        if ("m0", 0) in p.w and c.cls == "vmem" and c.lds_dma: n = max(n, 1)
    if p.cls == "vmem" and p.wide_store:
        if c.cls == "valu" and p.wide_store & c.w: n = max(n, 2)
        elif p.wide_store & c.w: n = max(n, 1)
    if p.cls == "mfma":
        big = {4: 8, 8: 12}[p.passes]
        if c.cls == "mfma":
            if p.w & c.srcAB: n = max(n, big)
            if p.w & c.srcC:
                if not (p.w == c.srcC and p.passes == c.passes): n = max(n, {4: 6, 8: 10}[p.passes])
            elif p.w & c.w: n = max(n, big)
        else:
            if p.w & (c.r | c.w): n = max(n, big)
            if c.cls == "valu" and p.srcC & c.w: n = max(n, {4: 3, 8: 7}[p.passes])
    return n

class Asm:
    def __init__(self):
        self.items = []
    def I(self, text):
        for ln in text.strip().split("\n"):
            ln = ln.strip()
            if ln: self.items.append(("i", ln))
    def L(self, label): self.items.append(("l", label))
    def C(self, text): self.items.append(("c", "; " + text))
    def raw(self, text): self.items.append(("c", text))
    def fixed(self, verbose=False):
        out = []; hist = []
        nins = 0
        for kind, text in self.items:
            if kind == "i":
                ins = Ins(text)
                dist = 0; req = 0
                for p in reversed(hist[-24:]):
                    r = need(p, ins) - dist
                    if r > req: req = r
                    dist += p.ws
                    if dist >= 20: break
                if req > 0:
                    nop = Ins(f"s_nop {req-1}")
                    out.append(f"    s_nop {req-1}")
                    hist.append(nop); nins += 1
                    if verbose: print("nop", req, "before", text)
                out.append("    " + text)
                hist.append(ins)
            elif kind == "l":
                out.append(text + ":")
            else:
                out.append(text)
        return "\n".join(out) + "\n", nins
```

```python
import sys, math, struct
sys.path.insert(0, "gen")
from asmlib import Asm

NAME = "parallel_sum__linear_attn_block__dense_activation_gelu__prompt"
HQ_OFF   = 0x000000
B2_OFF   = 0x900000
STAT_OFF = 0xC00000
CS_OFF   = 0xC10000
KV_OFF   = 0xC40000
CNT_OFF  = 0xC60000
WS_SIZE  = 0xD00000
KV_BYTES = 32 * 21 * 20 * 4

def f32(x): return struct.unpack("<I", struct.pack("<f", x))[0]
def hx(x): return hex(x & 0xFFFFFFFF)

S_X, S_WQKV, S_WO, S_W1, S_B1, S_W2, S_B2, S_OUT, S_DBG, S_WS = 4, 6, 8, 12, 14, 16, 18, 20, 22, 24
S_WAVE, S_GW = 26, 27
SRD_X, SRD_W, SRD_WS, SRD_T, SRD_U = 28, 32, 36, 40, 44
def srd(n): return f"s[{n}:{n+3}]"

def mk_srd(a, d, ptr, size):
    a.I(f"s_mov_b32 s{d}, s{ptr}\ns_mov_b32 s{d+1}, s{ptr+1}")
    a.I(f"s_mov_b32 s{d+2}, {size if isinstance(size, str) else hx(size)}\ns_mov_b32 s{d+3}, 0x20000")

def prologue(a, kname, endlabel, V_LANE):
    a.raw(f".globl {kname}\n.p2align 8\n.type {kname},@function")
    a.L(kname)
    a.I(f"s_cmp_ge_u32 s2, 256\ns_cbranch_scc1 {endlabel}")
    a.I("s_load_dwordx16 s[4:19], s[0:1], 0\ns_load_dwordx4 s[20:23], s[0:1], 64\ns_load_dwordx2 s[24:25], s[0:1], 80")
    a.I(f"v_lshrrev_b32 v1, 6, v0\nv_and_b32 v{V_LANE}, 63, v0")
    a.I(f"v_readfirstlane_b32 s{S_WAVE}, v1")
    a.I(f"s_lshl_b32 s{S_GW}, s2, 2\ns_add_u32 s{S_GW}, s{S_GW}, s{S_WAVE}")
    a.I("s_waitcnt lgkmcnt(0)")
    mk_srd(a, SRD_X, S_X, 2048 * 1280)
    mk_srd(a, SRD_WS, S_WS, WS_SIZE)

def desc(kname, nv, acc_off):
    return f""".amdhsa_kernel {kname}
  .amdhsa_next_free_vgpr {nv}
  .amdhsa_next_free_sgpr 96
  .amdhsa_accum_offset {acc_off}
  .amdhsa_group_segment_fixed_size 0
  .amdhsa_kernarg_size 88
  .amdhsa_user_sgpr_count 2
  .amdhsa_user_sgpr_kernarg_segment_ptr 1
  .amdhsa_system_sgpr_workgroup_id_x 1
.end_amdhsa_kernel
"""

P0_LDS = 143360
P0_CS_LDS = P0_LDS + 16384

def phase0(a, VL, vb, sc=""):
    X = vb
    CW = vb + 12
    T = vb + 32
    t0, t1, t2, t3 = T, T + 1, T + 2, T + 3
    U = T + 4
    a.C("---- phase0: issue loads ----")
    a.I(f"v_lshrrev_b32 v{t0}, 5, v{VL}\nv_and_b32 v{t1}, 31, v{VL}")
    a.I(f"v_mul_u32_u24 v{t0}, 1280, v{t0}")
    a.I(f"v_lshl_add_u32 v{t2}, v{t1}, 4, v{t0}\nv_lshl_add_u32 v{t3}, v{t1}, 3, v{t0}")
    a.I(f"s_mul_i32 s48, s{S_GW}, 2560")
    a.I(f"buffer_load_dwordx4 v[{X}:{X+3}], v{t2}, {srd(SRD_X)}, s48 offen")
    a.I(f"buffer_load_dwordx4 v[{X+4}:{X+7}], v{t2}, {srd(SRD_X)}, s48 offen offset:512")
    a.I(f"buffer_load_dwordx2 v[{X+8}:{X+9}], v{t3}, {srd(SRD_X)}, s48 offen offset:1024")
    a.I("s_lshr_b32 s49, s2, 2\ns_and_b32 s50, s2, 3")
    a.I("s_cmp_ge_u32 s49, 30")
    a.I(f"s_cselect_b32 s{SRD_T}, s{S_W1}, s{S_WQKV}\ns_cselect_b32 s{SRD_T+1}, s{S_W1+1}, s{S_WQKV+1}")
    a.I("s_mov_b32 s51, 3840\ns_cselect_b32 s51, 3072, s51\ns_cselect_b32 s52, 30, 0")
    a.I(f"s_mul_i32 s{SRD_T+2}, s51, 640\ns_mov_b32 s{SRD_T+3}, 0x20000")
    a.I(f"s_cselect_b32 s{SRD_U+2}, 3072, 0")
    a.I(f"s_mov_b32 s{SRD_U}, s{S_B1}\ns_mov_b32 s{SRD_U+1}, s{S_B1+1}\ns_mov_b32 s{SRD_U+3}, 0x20000")
    a.I("s_sub_u32 s52, s49, s52\ns_lshl_b32 s52, s52, 7")
    a.I(f"s_cmp_ge_u32 s2, 216\ns_cselect_b32 s{SRD_T+2}, 0, s{SRD_T+2}")
    a.I(f"s_mul_i32 s53, s50, 160\ns_mul_i32 s54, s{S_WAVE}, 40\ns_add_u32 s53, s53, s54")
    a.I("s_mul_i32 s53, s53, s51\ns_add_u32 s53, s53, s52\ns_lshl_b32 s54, s51, 3")
    a.I(f"v_lshrrev_b32 v{t0}, 3, v{VL}\nv_and_b32 v{t1}, 7, v{VL}")
    a.I(f"v_mul_lo_u32 v{t2}, v{t0}, s51\nv_lshl_add_u32 v{t2}, v{t1}, 4, v{t2}")
    for it in range(5):
        a.I(f"buffer_load_dwordx4 v[{CW+4*it}:{CW+4*it+3}], v{t2}, {srd(SRD_T)}, s53 offen")
        if it < 4: a.I("s_add_u32 s53, s53, s54")
    BIAS = vb + 10
    a.I(f"v_lshlrev_b32 v{t3}, 1, v{VL}")
    a.I(f"buffer_load_ushort v{BIAS}, v{t3}, {srd(SRD_U)}, s52 offen")
    a.I(f"s_mul_hi_u32 s55, s{S_GW}, {hx((1<<32)//10+1)}")
    a.I(f"s_mul_i32 s56, s55, 10\ns_sub_u32 s56, s{S_GW}, s56")
    a.I(f"s_cmp_ge_u32 s{S_GW}, 680\ns_cbranch_scc1 L_p0_noc")
    VO, VI = T + 24, T + 25
    a.I("s_cmp_ge_u32 s55, 48\ns_cbranch_scc1 L_p0_att")
    mk_srd(a, SRD_T, S_W2, 1536 * 1280)
    a.I(f"v_lshrrev_b32 v{t2}, 2, v{t0}\nv_and_b32 v{t3}, 3, v{t0}\nv_lshl_add_u32 v{VO}, v{t2}, 4, v{t3}")
    a.I(f"v_mov_b32 v{VI}, {4*1280}\ns_lshl_b32 s57, s55, 5\ns_branch L_p0_cgo")
    a.L("L_p0_att")
    mk_srd(a, SRD_T, S_WO, 640 * 1280)
    a.I(f"s_sub_u32 s58, s55, 48\ns_mul_i32 s59, s58, 205\ns_lshr_b32 s59, s59, 10")
    a.I("s_mul_i32 s57, s59, 5\ns_sub_u32 s58, s58, s57\ns_lshl_b32 s58, s58, 3")
    a.I("s_mul_i32 s57, s59, 160")
    a.I(f"v_add_u32 v{t2}, s58, v{t0}")
    a.I(f"v_mul_u32_u24 v{t3}, 205, v{t2}\nv_lshrrev_b32 v{t3}, 10, v{t3}")
    a.I(f"v_mul_u32_u24 v{VO}, 5, v{t3}\nv_sub_u32 v{t2}, v{t2}, v{VO}")
    a.I(f"v_cmp_eq_u32 vcc, 4, v{t2}\nv_mov_b32 v{VO}, 16\nv_mov_b32 v{VI}, 1280")
    a.I(f"v_cndmask_b32 v{t2}, v{t2}, v{VO}, vcc\nv_mov_b32 v{VO}, {4*1280}")
    a.I(f"v_cndmask_b32 v{VI}, v{VO}, v{VI}, vcc")
    a.I(f"v_mad_u32_u24 v{VO}, v{t3}, 20, v{t2}")
    a.L("L_p0_cgo")
    a.I(f"v_mul_u32_u24 v{VO}, 1280, v{VO}\nv_lshl_add_u32 v{VO}, v{t1}, 4, v{VO}")
    a.I("s_mul_i32 s57, s57, 1280\ns_lshl_b32 s58, s56, 7\ns_add_u32 s57, s57, s58")
    a.I(f"s_lshl_b32 s58, s{S_WAVE}, 12\ns_add_u32 s58, s58, {P0_LDS}")
    for it in range(4):
        a.I(f"s_add_u32 m0, s58, {it*1024}")
        a.I("s_nop 0")
        a.I(f"buffer_load_dwordx4 v{VO}, {srd(SRD_T)}, s57 offen lds")
        if it < 3: a.I(f"v_add_u32 v{VO}, v{VO}, v{VI}")
    a.I("s_branch L_p0_cdone")
    a.L("L_p0_noc")
    a.I(f"s_sub_u32 s57, s{S_GW}, 680\ns_cmp_ge_u32 s57, 53\ns_cbranch_scc1 L_p0_cdone")
    a.I(f"s_lshl_b32 s57, s57, 10\ns_add_u32 s57, s57, {KV_OFF}")
    a.I(f"v_mov_b32 v{U}, 0\nv_mov_b32 v{U+1}, 0\nv_mov_b32 v{U+2}, 0\nv_mov_b32 v{U+3}, 0\nv_lshlrev_b32 v{t2}, 4, v{VL}")
    a.I(f"buffer_store_dwordx4 v[{U}:{U+3}], v{t2}, {srd(SRD_WS)}, s57 offen {sc}")
    a.L("L_p0_cdone")
    a.I("s_nop 1")
    return dict(X=X, CW=CW, T=T, U=U, BIAS=BIAS)

def red32(a, v, tmp):
    for m in ("quad_perm:[1,0,3,2]", "quad_perm:[2,3,0,1]", "row_half_mirror", "row_mirror"):
        a.I(f"v_add_f32_dpp v{v}, v{v}, v{v} {m} row_mask:0xf bank_mask:0xf")
    a.I(f"v_mov_b32 v{tmp}, v{v}")
    a.I(f"v_permlane16_swap_b32 v{v}, v{tmp}")
    a.I(f"v_add_f32 v{v}, v{v}, v{tmp}")

def phase0_compute(a, VL, R, sc="", wait_all=True):
    X, CW, T, U, BIAS = R["X"], R["CW"], R["T"], R["U"], R["BIAS"]
    t0, t1, t2, t3 = T, T + 1, T + 2, T + 3
    a.C("---- phase0: compute ----")
    if wait_all: a.I("s_waitcnt vmcnt(0)")
    a.I("s_mov_b32 s60, 0xffff0000")
    for i in range(10):
        a.I(f"v_lshlrev_b32 v{U+2*i}, 16, v{X+i}\nv_and_b32 v{U+2*i+1}, s60, v{X+i}")
    a.I(f"v_pk_add_f32 v[{t0}:{t1}], v[{U}:{U+1}], v[{U+2}:{U+3}]")
    for i in range(2, 10):
        a.I(f"v_pk_add_f32 v[{t0}:{t1}], v[{t0}:{t1}], v[{U+2*i}:{U+2*i+1}]")
    a.I(f"v_add_f32 v{t0}, v{t0}, v{t1}")
    red32(a, t0, t1)
    a.I(f"v_mul_f32 v{t0}, {hx(f32(-1.0/640))}, v{t0}")
    for i in range(10):
        a.I(f"v_pk_add_f32 v[{U+2*i}:{U+2*i+1}], v[{U+2*i}:{U+2*i+1}], v[{t0}:{t1}] op_sel_hi:[1,0]")
    a.I(f"v_pk_mul_f32 v[{t2}:{t3}], v[{U}:{U+1}], v[{U}:{U+1}]")
    for i in range(1, 10):
        a.I(f"v_pk_fma_f32 v[{t2}:{t3}], v[{U+2*i}:{U+2*i+1}], v[{U+2*i}:{U+2*i+1}], v[{t2}:{t3}]")
    a.I(f"v_add_f32 v{t2}, v{t2}, v{t3}")
    red32(a, t2, t3)
    a.I(f"v_mul_f32 v{t2}, {hx(f32(1.0/640))}, v{t2}")
    a.I(f"v_cvt_pk_bf16_f32 v{t2}, v{t2}, v{t2}\nv_and_b32 v{t2}, s60, v{t2}")
    a.I(f"v_add_f32 v{t2}, {hx(f32(1e-5))}, v{t2}")
    a.I(f"v_cvt_pk_bf16_f32 v{t2}, v{t2}, v{t2}\nv_and_b32 v{t2}, s60, v{t2}")
    a.I(f"v_sqrt_f32 v{t2}, v{t2}")
    a.I(f"v_cvt_pk_bf16_f32 v{U}, v{t0}, v{t2}")
    a.I(f"v_and_b32 v{t2}, s60, v{U}")
    a.I(f"v_rcp_f32 v{U+1}, v{t2}")
    a.I(f"v_lshrrev_b32 v{t1}, 2, v{VL}\nv_and_b32 v{t3}, 31, v{VL}")
    a.I(f"s_lshl_b32 s48, s{S_GW}, 4\ns_add_u32 s48, s48, {STAT_OFF}")
    a.I(f"v_cmp_eq_u32 vcc, 0, v{t3}\ns_and_saveexec_b64 s[62:63], vcc")
    a.I(f"buffer_store_dwordx2 v[{U}:{U+1}], v{t1}, {srd(SRD_WS)}, s48 offen {sc}")
    a.I("s_mov_b64 exec, s[62:63]")
    AC = U + 2
    E = U + 10
    for it in range(5):
        dst = AC if it == 0 else E
        for i in range(4):
            a.I(f"v_lshlrev_b32 v{dst+2*i}, 16, v{CW+4*it+i}\nv_and_b32 v{dst+2*i+1}, s60, v{CW+4*it+i}")
        if it:
            for i in range(4):
                a.I(f"v_pk_add_f32 v[{AC+2*i}:{AC+2*i+1}], v[{AC+2*i}:{AC+2*i+1}], v[{E+2*i}:{E+2*i+1}]")
    for i in range(4): a.I(f"v_permlane32_swap_b32 v{AC+i}, v{AC+i+4}")
    for i in range(4): a.I(f"v_add_f32 v{AC+i}, v{AC+i}, v{AC+i+4}")
    for i in range(2): a.I(f"v_permlane16_swap_b32 v{AC+i}, v{AC+i+2}")
    for i in range(2): a.I(f"v_add_f32 v{AC+i}, v{AC+i}, v{AC+i+2}")
    for i in range(2): a.I(f"v_add_f32_dpp v{AC+i}, v{AC+i}, v{AC+i} row_ror:8 row_mask:0xf bank_mask:0xf")
    a.I(f"v_and_b32 v{t0}, 7, v{VL}\nv_lshrrev_b32 v{t1}, 4, v{VL}\nv_lshlrev_b32 v{t0}, 5, v{t0}")
    a.I(f"v_lshl_add_u32 v{t0}, v{t1}, 3, v{t0}")
    a.I(f"s_lshl_b32 s48, s{S_WAVE}, 8\ns_add_u32 s48, s48, {P0_CS_LDS}\nv_add_u32 v{t0}, s48, v{t0}")
    a.I(f"ds_write_b64 v{t0}, v[{AC}:{AC+1}]")
    a.I(f"s_cmp_ge_u32 s{S_GW}, 680\ns_cbranch_scc1 L_p0_c2done")
    a.I(f"v_lshrrev_b32 v{t0}, 4, v{VL}\nv_bfe_u32 v{t1}, v{VL}, 2, 2\nv_and_b32 v{t2}, 3, v{VL}")
    a.I(f"v_lshl_add_u32 v{t0}, v{t0}, 3, v{t1}\nv_lshlrev_b32 v{t0}, 7, v{t0}\nv_lshl_add_u32 v{t0}, v{t2}, 3, v{t0}")
    a.I(f"v_add_u32 v{t0}, s58, v{t0}\nv_lshlrev_b32 v{t1}, 4, v{VL}")
    FR = CW
    for i in range(4):
        a.I(f"ds_read_b64_tr_b16 v[{FR+4*i}:{FR+4*i+1}], v{t0} offset:{32*i}")
        a.I(f"ds_read_b64_tr_b16 v[{FR+4*i+2}:{FR+4*i+3}], v{t0} offset:{32*i+512}")
    a.I("s_lshl_b32 s56, s56, 2\ns_mul_i32 s55, s55, 5")
    for i in range(4):
        a.I("s_mul_i32 s57, s56, 205\ns_lshr_b32 s57, s57, 10")
        a.I(f"s_mul_i32 s57, s57, {68*5-5}\ns_add_u32 s57, s57, s56\ns_add_u32 s57, s57, s55")
        a.I(f"s_lshl_b32 s57, s57, 10\ns_add_u32 s57, s57, {B2_OFF}")
        a.I(f"s_waitcnt lgkmcnt({6-2*i})")
        a.I(f"buffer_store_dwordx4 v[{FR+4*i}:{FR+4*i+3}], v{t1}, {srd(SRD_WS)}, s57 offen {sc}")
        a.I("s_add_u32 s56, s56, 1")
    a.L("L_p0_c2done")
    a.I("s_waitcnt lgkmcnt(0)\ns_barrier")
    a.I(f"s_cmp_lg_u32 s{S_WAVE}, 0\ns_cbranch_scc1 L_p0_end\ns_cmp_ge_u32 s2, 216\ns_cbranch_scc1 L_p0_end")
    a.I(f"v_lshlrev_b32 v{t0}, 2, v{VL}\nv_add_u32 v{t0}, {P0_CS_LDS}, v{t0}")
    a.I(f"ds_read2st64_b32 v[{U}:{U+1}], v{t0} offset0:0 offset1:1\nds_read2st64_b32 v[{U+2}:{U+3}], v{t0} offset0:2 offset1:3")
    a.I(f"s_lshl_b32 s48, s49, 11\ns_add_u32 s48, s48, {CS_OFF}\ns_lshl_b32 s57, s50, 2\ns_add_u32 s57, s57, s48")
    a.I(f"v_lshlrev_b32 v{t1}, 5, v{VL}")
    a.I("s_waitcnt lgkmcnt(0)")
    a.I(f"v_add_f32 v{U}, v{U}, v{U+1}\nv_add_f32 v{U+2}, v{U+2}, v{U+3}\nv_add_f32 v{U}, v{U}, v{U+2}")
    a.I(f"v_cvt_pk_bf16_f32 v{t2}, v{U}, v{U}\nv_and_b32 v{t2}, s60, v{t2}\nv_sub_f32 v{t2}, v{U}, v{t2}")
    a.I(f"v_cvt_pk_bf16_f32 v{t2}, v{U}, v{t2}")
    a.I(f"buffer_store_dword v{t2}, v{t1}, {srd(SRD_WS)}, s57 offen {sc}")
    a.I("s_cmp_lg_u32 s50, 0\ns_cbranch_scc1 L_p0_end")
    a.I(f"v_mov_b32 v{U+4}, v{BIAS}\nv_mov_b32 v{U+5}, 0\nv_mov_b32 v{U+6}, 0\nv_mov_b32 v{U+7}, 0")
    a.I(f"buffer_store_dwordx4 v[{U+4}:{U+7}], v{t1}, {srd(SRD_WS)}, s48 offen offset:16 {sc}")
    a.L("L_p0_end")

def k0(a):
    VL = 2
    prologue(a, "k0_kernel", "L_k0_end", VL)
    R = phase0(a, VL, 4)
    phase0_compute(a, VL, R)
    a.L("L_k0_end")
    a.I("s_endpgm")


class VM:
    def __init__(self): self.q = []
    def issue(self, tag): self.q.append(tag)
    def wait(self, a, tag, extra=""):
        idx = max(i for i, t in enumerate(self.q) if t == tag)
        n = len(self.q) - 1 - idx
        assert n <= 63, n
        a.I(f"s_waitcnt vmcnt({n}){extra}")
        self.q = self.q[idx + 1:]

ACC, XR, BF = 0, 112, 192
NB, PD = 6, 4
V_LANE, V_WOFF, V_WOFFM, V_XOFF, V_TR = 216, 217, 218, 219, 220
V_CSO, V_CSOM, V_STAT = 223, 224, 226
V_T = 228
S_RB, S_CG, S_STR, S_STR64, S_TOFF, S_M0B, S_X0, S_X1, S_TYPE, S_KS0 = 64, 65, 66, 67, 68, 75, 76, 77, 78, 79
S_CSB, S_JA, S_TMP = 80, 81, 82
CHUNK_LDS = 28672
KV_RS = 344

def g1_setup(a):
    L = V_LANE; t0, t1, t2 = V_T, V_T + 1, V_T + 2
    a.C("---- gemm1 setup ----")
    a.I(f"s_and_b32 s{S_TMP}, s2, 1\ns_lshl_b32 s{S_TMP}, s{S_TMP}, 3\ns_bfe_u32 s{S_RB}, s2, 0x30003\ns_add_u32 s{S_RB}, s{S_RB}, s{S_TMP}")
    a.I(f"s_and_b32 s{S_TMP}, s2, 6\ns_lshl_b32 s{S_TMP}, s{S_TMP}, 1\ns_lshr_b32 s{S_CG}, s2, 6\ns_add_u32 s{S_CG}, s{S_CG}, s{S_TMP}")
    B, JB = S_TMP + 1, S_TMP + 2
    a.I(f"s_cmp_lt_u32 s{S_CG}, 8\ns_cbranch_scc1 L_g1_kvq\ns_cmp_eq_u32 s{S_CG}, 15\ns_cbranch_scc1 L_g1_qx")
    a.I(f"s_mov_b32 s{S_TYPE}, 1\ns_sub_u32 s{S_TMP}, s{S_CG}, 8\ns_mul_i32 s{B}, s{S_TMP}, 448\ns_mul_i32 s{S_KS0}, s{S_TMP}, 7")
    a.I(f"s_mov_b32 s{S_JA}, 0\ns_mov_b32 s{JB}, 0\ns_mov_b32 s{S_STR}, 3072\ns_mov_b32 s{S_CSB}, {CS_OFF + 1920*32}")
    a.I(f"s_mov_b32 s{SRD_W}, s{S_W1}\ns_mov_b32 s{SRD_W+1}, s{S_W1+1}\ns_mov_b32 s{SRD_W+2}, {640*3072}\ns_branch L_g1_tdone")
    a.L("L_g1_qx")
    a.I(f"s_mov_b32 s{S_TYPE}, 2\ns_mov_b32 s{B}, 1024\ns_mov_b32 s{S_KS0}, 64\ns_mov_b32 s{S_JA}, 0\ns_mov_b32 s{JB}, 0\ns_branch L_g1_qkvm")
    a.L("L_g1_kvq")
    a.I(f"s_mov_b32 s{S_TYPE}, 0\ns_mul_i32 s{B}, s{S_CG}, 160\ns_add_u32 s{B}, s{B}, 1280\ns_mov_b32 s{S_JA}, 1120")
    a.I(f"s_lshl_b32 s{JB}, s{S_CG}, 5\ns_sub_u32 s{JB}, {hx(-2720)}, s{JB}")
    a.I(f"s_lshl_b32 s{S_KS0}, s{S_CG}, 1\ns_add_u32 s{S_KS0}, s{S_KS0}, {48-5}")
    a.L("L_g1_qkvm")
    a.I(f"s_mov_b32 s{S_STR}, 3840\ns_mov_b32 s{S_CSB}, {CS_OFF}")
    a.I(f"s_mov_b32 s{SRD_W}, s{S_WQKV}\ns_mov_b32 s{SRD_W+1}, s{S_WQKV+1}\ns_mov_b32 s{SRD_W+2}, {640*3840}")
    a.L("L_g1_tdone")
    a.I(f"s_mov_b32 s{SRD_W+3}, 0x20000\ns_lshl_b32 s{S_STR64}, s{S_STR}, 6")
    for t in range(7):
        if t == 0: a.I(f"s_mov_b32 s{S_TOFF}, s{B}")
        else:
            a.I(f"s_add_u32 s{S_TOFF+t}, s{S_TOFF+t-1}, 64")
            if t == 3: a.I(f"s_add_u32 s{S_TOFF+t}, s{S_TOFF+t}, s{S_JA}")
            if t == 5: a.I(f"s_add_u32 s{S_TOFF+t}, s{S_TOFF+t}, s{JB}")
    a.I(f"v_lshrrev_b32 v{t0}, 2, v{L}\ns_lshl_b32 s{S_TMP}, s{S_WAVE}, 4\nv_add_u32 v{t0}, s{S_TMP}, v{t0}")
    a.I(f"v_mul_lo_u32 v{t0}, v{t0}, s{S_STR}\nv_and_b32 v{t1}, 3, v{L}\nv_lshl_add_u32 v{V_WOFF}, v{t1}, 4, v{t0}")
    a.I(f"v_lshrrev_b32 v{t1}, 1, v{t1}\nv_mul_lo_u32 v{t1}, v{t1}, s{S_JA}\nv_add_u32 v{V_WOFFM}, v{V_WOFF}, v{t1}")
    a.I(f"s_lshr_b32 s{S_TMP}, s{S_WAVE}, 1\ns_mul_i32 s{S_M0B}, s{S_TMP}, 14336\ns_and_b32 s{S_TMP}, s{S_WAVE}, 1")
    a.I(f"s_lshl_b32 s{S_TMP}, s{S_TMP}, 10\ns_add_u32 s{S_M0B}, s{S_M0B}, s{S_TMP}")
    a.I(f"v_and_b32 v{t0}, 15, v{L}\nv_mul_u32_u24 v{t0}, 1280, v{t0}\nv_lshrrev_b32 v{t1}, 4, v{L}\nv_lshl_add_u32 v{V_XOFF}, v{t1}, 4, v{t0}")
    a.I(f"s_lshl_b32 s{S_TMP}, s{S_RB}, 2\ns_add_u32 s{S_TMP}, s{S_TMP}, s{S_WAVE}\ns_mul_i32 s{S_X0}, s{S_TMP}, {32*1280}\ns_add_u32 s{S_X1}, s{S_X0}, {16*1280}")

def g1_setup2(a):
    L = V_LANE; t0, t1, t2 = V_T, V_T + 1, V_T + 2
    a.I(f"v_lshrrev_b32 v{t0}, 5, v{L}\nv_bfe_u32 v{t1}, v{L}, 2, 2\nv_lshl_add_u32 v{t0}, v{t0}, 4, v{t1}\nv_lshlrev_b32 v{t0}, 6, v{t0}")
    a.I(f"v_and_b32 v{t1}, 1, v{L}\nv_lshl_add_u32 v{t0}, v{t1}, 3, v{t0}")
    a.I(f"v_bfe_u32 v{t1}, v{L}, 1, 1\nv_lshl_add_u32 v{t0}, v{t1}, 5, v{t0}")
    a.I(f"v_bfe_u32 v{t1}, v{L}, 4, 1\nv_lshl_add_u32 v{V_TR}, v{t1}, 4, v{t0}")
    a.I(f"v_add_u32 v{V_TR+1}, {2*CHUNK_LDS}, v{V_TR}\nv_add_u32 v{V_TR+2}, {4*CHUNK_LDS}, v{V_TR}")
    a.I(f"v_and_b32 v{t0}, 7, v{L}\nv_bfe_u32 v{t1}, v{L}, 4, 1\nv_lshl_add_u32 v{t0}, v{t1}, 3, v{t0}")
    a.I(f"v_bfe_u32 v{t1}, v{L}, 3, 1\nv_lshl_add_u32 v{t0}, v{t1}, 4, v{t0}\nv_lshlrev_b32 v{t0}, 5, v{t0}")
    a.I(f"v_lshrrev_b32 v{t2}, 5, v{L}\nv_lshl_add_u32 v{V_CSO}, v{t2}, 4, v{t0}")
    a.I(f"s_lshl_b32 s{S_TMP}, s{S_JA}, 4\nv_mul_lo_u32 v{t1}, v{t1}, s{S_TMP}\nv_add_u32 v{V_CSOM}, v{V_CSO}, v{t1}")

def g1_loads(c, vm):
    out = []
    slot = c % 5
    def wl(t):
        def f(a):
            a.I(f"s_add_u32 m0, s{S_M0B}, {slot*CHUNK_LDS + t*2048}")
            a.I(f"buffer_load_dwordx4 v{V_WOFFM if t == 2 else V_WOFF}, {srd(SRD_W)}, s{S_TOFF+t} offen lds")
            vm.issue(("c", c))
            if t == 6:
                a.I(f"v_add_u32 v{V_WOFF}, s{S_STR64}, v{V_WOFF}\nv_add_u32 v{V_WOFFM}, s{S_STR64}, v{V_WOFFM}")
        return f
    def xl(span, b):
        def f(a):
            r = XR + slot * 16 + span * 8 + b * 4
            a.I(f"buffer_load_dwordx4 v[{r}:{r+3}], v{V_XOFF}, {srd(SRD_X)}, s{S_X1 if b else S_X0} offen offset:{c*128+span*64}")
            vm.issue(("c", c))
        return f
    out += [xl(0, 0), xl(1, 0), xl(0, 1), xl(1, 1)]
    out += [wl(t) for t in range(7)]
    return out

def g1_ext_loads(vm, sc):
    out = []
    def cs(t):
        def f(a):
            a.I(f"s_lshl_b32 s{S_TMP}, s{S_TOFF+t}, 4\ns_add_u32 s{S_TMP}, s{S_TMP}, s{S_CSB}")
            r = XR + 4 * t
            a.I(f"buffer_load_dwordx4 v[{r}:{r+3}], v{V_CSOM if t == 2 else V_CSO}, {srd(SRD_WS)}, s{S_TMP} offen {sc}")
            vm.issue("ext")
        return f
    def st(a):
        a.I(f"s_lshl_b32 s{S_TMP}, s{S_RB}, 2\ns_add_u32 s{S_TMP}, s{S_TMP}, s{S_WAVE}\ns_lshl_b32 s{S_TMP}, s{S_TMP}, 8\ns_add_u32 s{S_TMP}, s{S_TMP}, {STAT_OFF}")
        a.I(f"v_and_b32 v{V_T}, 31, v{V_LANE}\nv_lshlrev_b32 v{V_T}, 3, v{V_T}")
        a.I(f"buffer_load_dwordx2 v[{V_STAT}:{V_STAT+1}], v{V_T}, {srd(SRD_WS)}, s{S_TMP} offen {sc}")
        vm.issue("ext")
    out.append(st)
    out += [cs(t) for t in range(7)]
    return out

def g1_main(a, vm, extra_fill, sc=""):
    NM = 280
    def decode(m):
        c, r = divmod(m, 28); ks, t = divmod(r, 7)
        return c, ks >> 1, ks & 1, t
    def reads(m):
        c, span, par, t = decode(m)
        slot = c % 5
        off = (slot & 1) * CHUNK_LDS + span * 14336 + t * 2048 + par * 512
        r = BF + (m % NB) * 4
        a.I(f"ds_read_b64_tr_b16 v[{r}:{r+1}], v{V_TR + (slot >> 1)} offset:{off}")
        a.I(f"ds_read_b64_tr_b16 v[{r+2}:{r+3}], v{V_TR + (slot >> 1)} offset:{off+256}")
    def swaps(c, span):
        r = XR + (c % 5) * 16 + span * 8
        return [(lambda a, i=i: a.I(f"v_permlane16_swap_b32 v{r+i}, v{r+4+i}")) for i in range(4)]
    fill = []
    def P(c):
        a.C(f"P{c}")
        assert not fill, (c, len(fill))
        vm.wait(a, ("c", c))
        a.I("s_barrier")
        s0 = swaps(c, 0)
        fill.append(lambda a: (s0[0](a), s0[1](a)))
        fill.append(lambda a: (s0[2](a), s0[3](a)))
        ld = g1_loads(c + 3, vm) if 2 <= c <= 6 else []
        ld = ld + extra_fill.get(c, [])
        s1 = swaps(c, 1)
        fill.append(lambda a: (s1[0](a), s1[1](a)))
        fill.append(lambda a: (s1[2](a), s1[3](a)))
        room = 28 - len(fill) - 1
        step = max(1, room // max(1, len(ld)))
        for f in ld:
            fill.append(f)
            for _ in range(step - 1): fill.append(None)
        while fill and fill[-1] is None: fill.pop()
        assert len(fill) <= 28, len(fill)
    P(0)
    for m in range(PD):
        reads(m)
        f = fill.pop(0)
        if f: f(a)
    for m in range(NM):
        c, span, par, t = decode(m)
        pend = min(PD - 1, NM - 1 - m)
        a.I(f"s_waitcnt lgkmcnt({2*pend})")
        x = XR + (c % 5) * 16 + span * 8 + par * 4
        b = BF + (m % NB) * 4
        d = ACC + 16 * t
        cin = "0" if m < 7 else f"v[{d}:{d+15}]"
        a.I(f"v_mfma_f32_32x32x16_bf16 v[{d}:{d+15}], v[{b}:{b+3}], v[{x}:{x+3}], {cin}")
        if m + PD < NM:
            if (m + PD) % 28 == 0: P((m + PD) // 28)
            reads(m + PD)
        if fill:
            f = fill.pop(0)
            if f: f(a)
    assert not fill

K0C = -2.0 * math.sqrt(2.0 / math.pi) * math.log2(math.e)
K1C = K0C * 0.044715
V_R, V_R2, V_SD, V_C0, V_C1, V_EPS, V_HQO, V_KVW = 228, 230, 232, 234, 236, 238, 240, 241
V_E = 242
def pk(r): return f"v[{r}:{r+1}]"

def g1_ext(a, vm):
    a.C("---- LN mean / bias correction as one extra k-step ----")
    XE = XR + 32
    vm.wait(a, "ext")
    a.I(f"v_cmp_gt_u32 vcc, 32, v{V_LANE}")
    a.I(f"v_and_b32 v{XE+1}, 0xffff, v{V_STAT}\nv_lshl_or_b32 v{XE+1}, v{XE+1}, 16, v{XE+1}")
    a.I(f"v_lshrrev_b32 v{XE}, 16, v{V_STAT}")
    a.I(f"v_cndmask_b32 v{XE}, v{XE}, v{XE+1}, vcc\nv_cndmask_b32 v{XE+1}, 0, v{XE+1}, vcc")
    a.I(f"v_mov_b32 v{XE+2}, v{XE+1}\nv_mov_b32 v{XE+3}, v{XE+1}")
    a.I(f"v_mov_b32 v{V_R}, v{V_STAT+1}\nv_and_b32 v{V_SD}, 0xffff0000, v{V_STAT}")
    for t in range(7):
        d = ACC + 16 * t; w = XR + 4 * t
        a.I(f"v_mfma_f32_32x32x16_bf16 v[{d}:{d+15}], v[{w}:{w+3}], v[{XE}:{XE+3}], v[{d}:{d+15}]")
        if t == 0:
            a.I(f"v_mul_f32 v{V_R2}, {hx(f32(math.log2(math.e)))}, v{V_R}\nv_mul_f32 v{V_C0}, {hx(f32(K0C))}, v{V_R}")
            a.I(f"v_mul_f32 v{V_C1}, v{V_R}, v{V_R}\nv_mul_f32 v{V_C1}, v{V_C1}, v{V_R}")
        if t == 1:
            a.I(f"v_mul_f32 v{V_C1}, {hx(f32(K1C))}, v{V_C1}\nv_mov_b32 v{V_EPS}, {hx(f32(1e-6))}")
            a.I(f"v_bfe_u32 v{V_E}, v{V_LANE}, 4, 1\nv_mul_u32_u24 v{V_E}, {68*1024}, v{V_E}")
        if t == 2:
            a.I(f"v_and_b32 v{V_E+1}, 15, v{V_LANE}\nv_lshl_add_u32 v{V_E}, v{V_E+1}, 4, v{V_E}")
            a.I(f"v_lshrrev_b32 v{V_E+1}, 5, v{V_LANE}\nv_lshl_add_u32 v{V_HQO}, v{V_E+1}, 8, v{V_E}")
    a.I(f"s_lshl_b32 s{S_TMP}, s{S_RB}, 2\ns_add_u32 s{S_TMP}, s{S_TMP}, s{S_WAVE}\ns_mul_i32 s{S_TMP}, s{S_TMP}, {2*68}")
    a.I(f"s_add_u32 s{S_TMP}, s{S_TMP}, s{S_KS0}\ns_lshl_b32 s{S_TMP+1}, s{S_TMP}, 10")

def ep_gelu(a, r0, n, out):
    T = V_E
    P = range(0, n, 2)
    for i in P: a.I(f"v_pk_mul_f32 {pk(T+i)}, {pk(r0+i)}, {pk(r0+i)}")
    for i in P: a.I(f"v_pk_fma_f32 {pk(T+i)}, {pk(T+i)}, {pk(V_C1)}, {pk(V_C0)} op_sel_hi:[1,0,0]")
    for i in P: a.I(f"v_pk_mul_f32 {pk(T+i)}, {pk(T+i)}, {pk(r0+i)}")
    for i in range(n): a.I(f"v_exp_f32 v{T+i}, v{T+i}")
    for i in P: a.I(f"v_pk_fma_f32 {pk(T+i)}, {pk(T+i)}, {pk(V_SD)}, {pk(V_SD)} op_sel_hi:[1,0,0]")
    for i in range(n): a.I(f"v_rcp_f32 v{T+i}, v{T+i}")
    for i in P: a.I(f"v_pk_mul_f32 {pk(T+i)}, {pk(T+i)}, {pk(r0+i)}")
    for i in P: a.I(f"v_cvt_pk_bf16_f32 v{out+i//2}, v{T+i}, v{T+i+1}")

def ep_phi(a, r0, n, out):
    T = V_E
    P = range(0, n, 2)
    for i in P: a.I(f"v_pk_mul_f32 {pk(T+i)}, {pk(r0+i)}, {pk(V_R2)} op_sel_hi:[1,0]")
    for i in P: a.I(f"v_pk_fma_f32 {pk(r0+i)}, {pk(r0+i)}, {pk(V_R)}, {pk(V_EPS)} op_sel_hi:[1,0,0]")
    for i in range(n): a.I(f"v_exp_f32_e64 v{T+i}, v{T+i} clamp")
    for i in range(n): a.I(f"v_max_f32 v{r0+i}, v{r0+i}, v{V_EPS}")
    for i in P: a.I(f"v_pk_add_f32 {pk(T+i)}, {pk(T+i)}, {pk(r0+i)}")
    for i in P: a.I(f"v_cvt_pk_bf16_f32 v{out+i//2}, v{T+i}, v{T+i+1}")

def ep_lin(a, r0, n, out):
    P = range(0, n, 2)
    for i in P: a.I(f"v_pk_mul_f32 {pk(r0+i)}, {pk(r0+i)}, {pk(V_R)} op_sel_hi:[1,0]")
    for i in P: a.I(f"v_cvt_pk_bf16_f32 v{out+i//2}, v{r0+i}, v{r0+i+1}")

def ep_store_tile(a, vm, t, fn, sc):
    for u in range(2):
        r0 = ACC + 16 * t + 8 * u
        fn(a, r0, 8, r0)
        if u == 0: a.I(f"s_add_u32 s{S_TMP+2}, s{S_TMP+1}, {t*1024}")
        a.I(f"buffer_store_dwordx4 v[{r0}:{r0+3}], v{V_HQO}, {srd(SRD_WS)}, s{S_TMP+2} offen offset:{u*512} {sc}")

def g1_epilogue(a, vm, sc=""):
    a.I(f"s_cmp_eq_u32 s{S_TYPE}, 0\ns_cbranch_scc1 L_ep_kvq\ns_cmp_eq_u32 s{S_TYPE}, 2\ns_cbranch_scc1 L_ep_qx")
    a.I("s_nop 7")
    a.C("---- F epilogue ----")
    for t in range(7):
        if t == 6: a.I(f"s_cmp_eq_u32 s{S_CG}, 14\ns_cbranch_scc1 L_ep_done")
        ep_store_tile(a, vm, t, ep_gelu, sc)
    a.I("s_branch L_ep_done")
    a.L("L_ep_qx")
    a.I("s_nop 7")
    for t in range(4): ep_store_tile(a, vm, t, ep_phi, sc)
    a.I("s_branch L_ep_done")
    a.L("L_ep_kvq")
    a.C("---- KVQ epilogue ----")
    L = V_LANE
    a.I(f"v_and_b32 v{V_E}, 31, v{L}\ns_lshl_b32 s{S_TMP+3}, s{S_WAVE}, 5\nv_add_u32 v{V_E}, s{S_TMP+3}, v{V_E}")
    a.I(f"v_mul_u32_u24 v{V_E}, {KV_RS}, v{V_E}\nv_lshrrev_b32 v{V_E+1}, 5, v{L}\nv_lshl_add_u32 v{V_KVW}, v{V_E+1}, 3, v{V_E}")
    a.I(f"v_mov_b32 v{V_E}, 0x3f803f80\nv_mov_b32 v{V_E+1}, 0x3f803f80")
    a.I(f"ds_write_b64 v{V_KVW}, {pk(V_E)} offset:320")
    a.I("s_nop 3")
    for t in range(5):
        for u in range(2):
            r0 = ACC + 16 * t + 8 * u
            if t < 2: ep_phi(a, r0, 8, r0)
            elif t == 2:
                ep_phi(a, r0, 4, r0); ep_lin(a, r0 + 4, 4, r0 + 2)
            else: ep_lin(a, r0, 8, r0)
            o = 8 * t + 2 * u
            a.I(f"ds_write2_b64 v{V_KVW}, {pk(r0)}, {pk(r0+2)} offset0:{o} offset1:{o+4}")
    AK, AV, C = XR + 40, XR + 41, XR + 42
    a.I(f"v_lshrrev_b32 v{AK}, 5, v{L}\nv_bfe_u32 v{AV}, v{L}, 2, 2\nv_lshl_add_u32 v{AK}, v{AK}, 3, v{AV}\nv_mul_u32_u24 v{AK}, {KV_RS}, v{AK}")
    a.I(f"v_bfe_u32 v{C}, v{L}, 4, 1\nv_and_b32 v{AV}, 3, v{L}\nv_lshl_add_u32 v{C}, v{C}, 2, v{AV}")
    a.I(f"s_mul_i32 s{S_TMP+3}, s{S_WAVE}, 40\nv_lshlrev_b32 v{C+1}, 3, v{C}\nv_add_u32 v{C+1}, s{S_TMP+3}, v{C+1}")
    a.I(f"v_cmp_gt_u32 vcc, 5, v{C}\nv_add_u32 v{C+2}, 160, v{C+1}\nv_mov_b32 v{C+3}, 320")
    a.I(f"v_cndmask_b32 v{C+2}, v{C+3}, v{C+2}, vcc")
    a.I(f"v_add_u32 v{AV}, v{AK}, v{C+2}\nv_add_u32 v{AK}, v{AK}, v{C+1}")
    ep_store_tile(a, vm, 5, ep_phi, sc)
    a.I("s_waitcnt lgkmcnt(0)\ns_barrier")
    FK, FV = 0, 32
    for kp in range(8):
        o = kp * 16 * KV_RS
        a.I(f"ds_read_b64_tr_b16 v[{FK+4*kp}:{FK+4*kp+1}], v{AK} offset:{o}")
        a.I(f"ds_read_b64_tr_b16 v[{FK+4*kp+2}:{FK+4*kp+3}], v{AK} offset:{o+4*KV_RS}")
        a.I(f"ds_read_b64_tr_b16 v[{FV+4*kp}:{FV+4*kp+1}], v{AV} offset:{o}")
        a.I(f"ds_read_b64_tr_b16 v[{FV+4*kp+2}:{FV+4*kp+3}], v{AV} offset:{o+4*KV_RS}")
        if kp >= 2: a.I("s_waitcnt lgkmcnt(8)")
    D = 64
    a.I(f"v_lshrrev_b32 v{C}, 5, v{L}\nv_mul_u32_u24 v{C}, 320, v{C}\nv_and_b32 v{C+1}, 31, v{L}\nv_lshl_add_u32 v{C}, v{C+1}, 2, v{C}")
    a.I(f"s_lshl_b32 s{S_TMP+3}, s{S_CG}, 2\ns_add_u32 s{S_TMP+3}, s{S_TMP+3}, s{S_WAVE}\ns_mul_i32 s{S_TMP+3}, s{S_TMP+3}, 1680\ns_add_u32 s{S_TMP+3}, s{S_TMP+3}, {KV_OFF}")
    a.I("s_waitcnt lgkmcnt(0)")
    for kp in range(8):
        cin = "0" if kp == 0 else f"v[{D}:{D+15}]"
        a.I(f"v_mfma_f32_32x32x16_bf16 v[{D}:{D+15}], v[{FV+4*kp}:{FV+4*kp+3}], v[{FK+4*kp}:{FK+4*kp+3}], {cin}")
    ep_store_tile(a, vm, 6, ep_phi, sc)
    a.I("s_mov_b32 exec_lo, 0xfffff\ns_mov_b32 exec_hi, 0xfffff")
    for r in range(12):
        if r == 9: a.I("s_mov_b32 exec_hi, 0")
        e = 8 * (r >> 2) + (r & 3)
        a.I(f"buffer_atomic_add_f32 v{D+r}, v{C}, {srd(SRD_WS)}, s{S_TMP+3} offen offset:{e*80}")
    a.I("s_mov_b64 exec, -1")
    a.L("L_ep_done")

def k1(a):
    prologue(a, "k1_kernel", "L_k1_end", V_LANE)
    vm = VM()
    g1_setup(a)
    for c in range(5):
        for f in g1_loads(c, vm): f(a)
    g1_setup2(a)
    g1_main(a, vm, {8: g1_ext_loads(vm, "")})
    g1_ext(a, vm)
    g1_epilogue(a, vm)
    a.L("L_k1_end")
    a.I("s_endpgm")

A2, AR = 0, 80
W_L16, W_KVW, W_KVG, W_KT0, W_KT1, W_STG, W_OUTO, W_B2O = 240, 241, 242, 243, 244, 245, 246, 247
W_T = 248
W_LANE = 255
S_A = 64
S_BB, S_RB2, S_CG2, S_T2 = 68, 69, 70, 72
STG_LDS = 0
KVI_LDS = 102400

def g2_setup(a):
    L = W_LANE; t0, t1, t2 = W_T, W_T + 1, W_T + 2
    a.C("---- gemm2 setup ----")
    a.I(f"s_and_b32 s{S_RB2}, s2, 7\ns_lshl_b32 s{S_RB2}, s{S_RB2}, 2\ns_bfe_u32 s{S_T2}, s2, 0x20003\ns_add_u32 s{S_RB2}, s{S_RB2}, s{S_T2}")
    a.I(f"s_lshr_b32 s{S_CG2}, s2, 5")
    a.I(f"v_lshlrev_b32 v{W_L16}, 4, v{L}")
    a.I(f"s_mul_i32 s{S_BB}, s{S_CG2}, {68*5*1024}\ns_add_u32 s{S_BB}, s{S_BB}, {B2_OFF}")
    for sg in range(4):
        a.I(f"s_add_u32 s{S_T2}, s{S_WAVE}, {sg}\ns_and_b32 s{S_T2}, s{S_T2}, 3\ns_lshl_b32 s{S_T2+1}, s{S_RB2}, 2\ns_add_u32 s{S_T2}, s{S_T2}, s{S_T2+1}")
        a.I(f"s_mul_i32 s{S_A+sg}, s{S_T2}, {68*1024}")
    a.I(f"s_mul_i32 s{S_T2}, s{S_WAVE}, 25600\nv_add_u32 v{W_STG}, s{S_T2}, v{W_L16}")

def g2_b_loads(vm, sc, stage_regs):
    out = []
    def att(i):
        def f(a):
            if i % 4 == 0:
                a.I(f"s_mul_i32 s{S_T2}, s{S_WAVE}, {25*1024}\ns_add_u32 s{S_T2}, s{S_T2}, s{S_BB}\ns_add_u32 s{S_T2}, s{S_T2}, {48*5*1024 + i*1024}")
            r = stage_regs + 4 * i
            a.I(f"buffer_load_dwordx4 v[{r}:{r+3}], v{W_L16}, {srd(SRD_WS)}, s{S_T2} offen offset:{(i%4)*1024} {sc}")
            vm.issue("b2a")
        return f
    def ffn(i):
        def f(a):
            if i % 4 == 0:
                a.I(f"s_mul_i32 s{S_T2}, s{S_WAVE}, {60*1024}\ns_add_u32 s{S_T2}, s{S_T2}, s{S_BB}\ns_add_u32 s{S_T2}, s{S_T2}, {i*1024}")
            a.I(f"buffer_load_dwordx4 a[{4*i}:{4*i+3}], v{W_L16}, {srd(SRD_WS)}, s{S_T2} offen offset:{(i%4)*1024} {sc}")
            vm.issue("b2f")
        return f
    return [att(i) for i in range(25)], [ffn(i) for i in range(60)]

def g2_setup2(a):
    L = W_LANE; t0, t1, t2, t3 = W_T, W_T + 1, W_T + 2, W_T + 3
    a.I(f"s_mul_i32 s{S_T2+2}, s{S_WAVE}, 11264\ns_add_u32 s{S_T2+2}, s{S_T2+2}, {KVI_LDS}")
    a.I(f"v_add_u32 v{W_KVW}, s{S_T2+2}, v{W_L16}")
    for i in range(4): a.I(f"v_mov_b32 v{t0+i}, 0")
    for i in range(11): a.I(f"ds_write_b128 v{W_KVW}, v[{t0}:{t3}] offset:{i*1024}")
    a.I("s_nop 1")
    a.I(f"v_mul_u32_u24 v{t0}, 205, v{L}\nv_lshrrev_b32 v{t0}, 10, v{t0}\nv_mul_u32_u24 v{t1}, 5, v{t0}\nv_sub_u32 v{t1}, v{L}, v{t1}")
    a.I(f"v_lshlrev_b32 v{t0}, 6, v{t0}\nv_lshl_add_u32 v{t0}, v{t1}, 3, v{t0}\nv_add_u32 v{W_KVW}, s{S_T2+2}, v{t0}")
    a.I(f"v_and_b32 v{t0}, 15, v{L}\nv_lshrrev_b32 v{t1}, 4, v{L}\nv_lshlrev_b32 v{t1}, 3, v{t1}\nv_add_u32 v{t1}, s{S_T2+2}, v{t1}")
    a.I(f"v_lshl_add_u32 v{W_KT0}, v{t0}, 6, v{t1}")
    a.I(f"v_and_b32 v{t2}, 3, v{L}\nv_cmp_eq_u32 vcc, 0, v{t2}\nv_lshrrev_b32 v{t0}, 2, v{t0}\nv_add_u32 v{t0}, 16, v{t0}\nv_mov_b32 v{t2}, 20")
    a.I(f"v_cndmask_b32 v{t0}, v{t2}, v{t0}, vcc")
    a.I(f"v_lshl_add_u32 v{W_KT1}, v{t0}, 6, v{t1}")
    a.I(f"v_and_b32 v{t0}, 15, v{L}\nv_mul_u32_u24 v{t0}, 1280, v{t0}\nv_lshrrev_b32 v{t1}, 4, v{L}\nv_lshlrev_b32 v{W_B2O}, 3, v{t1}")
    a.I(f"v_add_u32 v{W_OUTO}, v{t0}, v{W_B2O}")

def g2_main(a, vm, sc=""):
    def a_load(j, slot):
        for sg in range(4):
            r = AR + slot * 16 + 4 * sg
            a.I(f"s_add_u32 s{S_T2}, s{S_A+sg}, s{S_T2+3}")
            a.I(f"buffer_load_dwordx4 v[{r}:{r+3}], v{W_L16}, {srd(SRD_WS)}, s{S_T2} offen offset:{(j%4)*1024} {sc}")
            vm.issue(("F", j))
        if j % 4 == 3: a.I(f"s_add_u32 s{S_T2+3}, s{S_T2+3}, 4096")
    def q_load(sg):
        a.I(f"s_mul_i32 s{S_T2}, s{S_WAVE}, {5*1024}\ns_add_u32 s{S_T2}, s{S_T2}, {48*1024}\ns_add_u32 s{S_T2}, s{S_T2}, s{S_A+sg}")
        for t in range(5):
            if t == 4: a.I(f"s_add_u32 s{S_T2}, s{S_T2}, 4096")
            r = 20 * sg + 4 * t
            a.I(f"buffer_load_dwordx4 a[{r}:{r+3}], v{W_L16}, {srd(SRD_WS)}, s{S_T2} offen offset:{(t%4)*1024} {sc}")
            vm.issue("Q")
    KVRAW = AR + 2 * 16
    def kv_load(i0, i1):
        for i in range(i0, i1):
            if i % 4 == 0:
                a.I(f"s_mul_i32 s{S_T2}, s{S_WAVE}, {8*1680}\ns_add_u32 s{S_T2}, s{S_T2}, {KV_OFF + i*960}")
            r = KVRAW + 4 * i
            a.I(f"buffer_load_dwordx4 v[{r}:{r+3}], v{W_L16}, {srd(SRD_WS)}, s{S_T2} offen offset:{(i%4)*960} {sc}")
            vm.issue("KV")
    a.C("---- gemm2 FFN part ----")
    a.I(f"s_mul_i32 s{S_T2+3}, s{S_WAVE}, {12*1024}")
    for j in range(10): a_load(j, j)
    for j in range(12):
        vm.wait(a, ("F", j))
        slot = j % 10
        for sg in range(4):
            for ct in range(5):
                d = A2 + (sg * 5 + ct) * 4; b = (j * 5 + ct) * 4; x = AR + slot * 16 + 4 * sg
                cin = "0" if j == 0 else f"v[{d}:{d+3}]"
                a.I(f"v_mfma_f32_16x16x32_bf16 v[{d}:{d+3}], a[{b}:{b+3}], v[{x}:{x+3}], {cin}")
        if j < 2: a_load(10 + j, j)
        if j < 4: q_load(j)
        if 2 <= j <= 5: kv_load(4 * (j - 2), min(14, 4 * (j - 1)))
    a.C("---- kv -> bf16 fragments ----")
    XRES, B2R = AR + 16 * 6, AR + 16 * 6 + 10
    a.I(f"s_lshl_b32 s{S_T2}, s{S_RB2}, 2\ns_add_u32 s{S_T2}, s{S_T2}, s{S_WAVE}\ns_mul_i32 s{S_T2+4}, s{S_T2}, {16*1280}")
    a.I(f"s_mul_i32 s{S_T2+5}, s{S_CG2}, 160\ns_add_u32 s{S_T2+4}, s{S_T2+4}, s{S_T2+5}")
    mk_srd(a, SRD_T, S_B2, 1280)
    mk_srd(a, SRD_U, S_OUT, 2048 * 1280)
    vm.wait(a, "KV")
    for i in range(14):
        r = KVRAW + 4 * i
        a.I(f"v_cvt_pk_bf16_f32 v{r}, v{r}, v{r+1}\nv_cvt_pk_bf16_f32 v{r+1}, v{r+2}, v{r+3}")
        a.I(f"ds_write_b64 v{W_KVW}, v[{r}:{r+1}] offset:{24 + i*768}")
    for ct in range(5):
        a.I(f"buffer_load_dwordx2 v[{XRES+2*ct}:{XRES+2*ct+1}], v{W_OUTO}, {srd(SRD_X)}, s{S_T2+4} offen offset:{ct*32}")
        a.I(f"buffer_load_dwordx2 v[{B2R+2*ct}:{B2R+2*ct+1}], v{W_B2O}, {srd(SRD_T)}, s{S_T2+5} offen offset:{ct*32}")
        vm.issue("R"); vm.issue("R")
    a.I("s_waitcnt lgkmcnt(0)")
    KT, WO = 80, 144
    n = 0
    for h in range(8):
        for tau in range(2):
            for b in range(2):
                r = KT + (h * 2 + tau) * 4 + 2 * b
                a.I(f"ds_read_b64 a[{r}:{r+1}], v{W_KT1 if tau else W_KT0} offset:{h*1344 + 24 - 8*(h&3) + 32*b}")
                n += 1
        if h >= 2: a.I("s_waitcnt lgkmcnt(8)")
    for i in range(25):
        a.I(f"ds_read_b128 a[{WO+4*i}:{WO+4*i+3}], v{W_STG} offset:{STG_LDS + i*1024}")
        if i >= 6: a.I("s_waitcnt lgkmcnt(14)")
    a.I("s_waitcnt lgkmcnt(0)")
    a.C("---- attention: num/den, o ----")
    O = AR
    ND = AR + 16 * 8
    for hp in range(4):
        for sp in range(2):
            for s2 in range(2):
                sg = sp * 2 + s2
                for hh in range(2):
                    h = 2 * hp + hh
                    p = h + (h >> 2)
                    for tau in range(2):
                        d = ND + ((s2 * 2 + hh) * 2 + tau) * 4
                        k = KT + (h * 2 + tau) * 4
                        q = 20 * sg + 2 * p
                        a.I(f"v_mfma_f32_16x16x32_bf16 v[{d}:{d+3}], a[{k}:{k+3}], a[{q}:{q+3}], 0")
            combos = [(s2, hh) for s2 in range(2) for hh in range(2)]
            for s2, hh in combos:
                d = ND + (s2 * 2 + hh) * 8
                a.I(f"v_add_f32 v{d+6}, {hx(f32(1e-6))}, v{d+5}")
            for s2, hh in combos:
                d = ND + (s2 * 2 + hh) * 8
                a.I(f"v_rcp_f32 v{d+6}, v{d+6}")
            for s2, hh in combos:
                d = ND + (s2 * 2 + hh) * 8
                a.I(f"v_pk_mul_f32 {pk(d)}, {pk(d)}, {pk(d+6)} op_sel_hi:[1,0]\nv_pk_mul_f32 {pk(d+2)}, {pk(d+2)}, {pk(d+6)} op_sel_hi:[1,0]")
                a.I(f"v_mul_f32 v{d+4}, v{d+4}, v{d+6}")
            for s2 in range(2):
                sg = sp * 2 + s2
                d0 = ND + (s2 * 2) * 8; d1 = d0 + 8
                vals = [d0 + i for i in range(5)] + [d1 + i for i in range(5)]
                for i in range(5):
                    a.I(f"v_cvt_pk_bf16_f32 v{O + 20*sg + 5*hp + i}, v{vals[2*i]}, v{vals[2*i+1]}")
    for t in range(5):
        for sg in range(4):
            for ct in range(5):
                d = A2 + (sg * 5 + ct) * 4; b = WO + (t * 5 + ct) * 4; x = O + 20 * sg + 4 * t
                a.I(f"v_mfma_f32_16x16x32_bf16 v[{d}:{d+3}], a[{b}:{b+3}], v[{x}:{x+3}], v[{d}:{d+3}]")
    a.C("---- cross-wave reduction + output ----")
    for sg in range(1, 4):
        a.I(f"s_sub_u32 s{S_T2}, s{S_WAVE}, {sg}\ns_and_b32 s{S_T2}, s{S_T2}, 3\ns_mul_i32 s{S_T2}, s{S_T2}, 25600")
        a.I(f"v_add_u32 v{W_T+sg}, s{S_T2}, v{W_L16}")
    for sg in range(1, 4):
        for ct in range(5):
            d = A2 + (sg * 5 + ct) * 4
            a.I(f"ds_write_b128 v{W_STG}, v[{d}:{d+3}] offset:{STG_LDS + ((sg-1)*5+ct)*1024}")
    a.I("s_waitcnt lgkmcnt(0)\ns_barrier")
    for sg in range(1, 4):
        for ct in range(5):
            d = A2 + (sg * 5 + ct) * 4
            a.I(f"ds_read_b128 v[{d}:{d+3}], v{W_T+sg} offset:{STG_LDS + ((sg-1)*5+ct)*1024}")
    vm.wait(a, "R")
    U = AR
    for ct in range(5):
        for src, o in ((XRES, 0), (B2R, 4)):
            for i in range(2):
                a.I(f"v_lshlrev_b32 v{U+8*ct+o+2*i}, 16, v{src+2*ct+i}\nv_and_b32 v{U+8*ct+o+2*i+1}, 0xffff0000, v{src+2*ct+i}")
        for i in (0, 2):
            a.I(f"v_pk_add_f32 {pk(U+8*ct+i)}, {pk(U+8*ct+i)}, {pk(U+8*ct+4+i)}")
            a.I(f"v_pk_add_f32 {pk(A2+4*ct+i)}, {pk(A2+4*ct+i)}, {pk(U+8*ct+i)}")
    for sg in range(1, 4):
        a.I(f"s_waitcnt lgkmcnt({(3-sg)*5})")
        for ct in range(5):
            d = A2 + (sg * 5 + ct) * 4
            for i in (0, 2): a.I(f"v_pk_add_f32 {pk(A2+4*ct+i)}, {pk(A2+4*ct+i)}, {pk(d+i)}")
    for ct in range(5):
        d = A2 + 4 * ct
        a.I(f"v_cvt_pk_bf16_f32 v{d}, v{d}, v{d+1}\nv_cvt_pk_bf16_f32 v{d+1}, v{d+2}, v{d+3}")
        a.I(f"buffer_store_dwordx2 v[{d}:{d+1}], v{W_OUTO}, {srd(SRD_U)}, s{S_T2+4} offen offset:{ct*32}")

def k2(a):
    prologue(a, "k2_kernel", "L_k2_end", W_LANE)
    vm = VM()
    g2_setup(a)
    att, ffn = g2_b_loads(vm, "", AR)
    for f in att: f(a)
    for f in ffn[:36]: f(a)
    g2_setup2(a)
    vm.wait(a, "b2a")
    for i in range(25):
        a.I(f"ds_write_b128 v{W_STG}, v[{AR+4*i}:{AR+4*i+3}] offset:{STG_LDS + i*1024}")
        if i >= 3: a.I("s_waitcnt lgkmcnt(12)")
    for f in ffn[36:]: f(a)
    a.I("s_waitcnt lgkmcnt(0)")
    vm.wait(a, "b2f")
    g2_main(a, vm)
    a.L("L_k2_end")
    a.I("s_endpgm")

def header(launches):
    ref = open(f"cdna_kernels/{NAME}.s.ref").read().split("\n")
    out = [l for l in ref if l.startswith(";") and "@launch" not in l and "Override launch" not in l and "grid=ceil" not in l]
    out += launches
    out += ['.amdgcn_target "amdgcn-amd-amdhsa--gfx950"', ".text"]
    return "\n".join(out) + "\n"

def build3(path):
    txt = header([f"; @launch kernel=k{i}_kernel grid=(256,1,1) block=(256,1,1) lds=163840" for i in range(3)])
    tot = 0
    for fn in (k0, k1, k2):
        a = Asm(); fn(a)
        t, n = a.fixed(verbose=False); txt += t; tot += n
    txt += '.section .rodata,"a"\n'
    for k, nv, ao in (("k0_kernel", 96, 96), ("k1_kernel", 256, 256), ("k2_kernel", 512, 256)):
        txt += ".p2align 6\n" + desc(k, nv, ao)
    open(path, "w").write(txt)
    print("written", path, "nops inserted:", tot)

if __name__ == "__main__":
    build3(sys.argv[1] if len(sys.argv) > 1 else f"cdna_kernels/{NAME}.s")
```

```python
import sys, math, struct
sys.path.insert(0, "gen")
from asmlib import Asm

NAME = "parallel_sum__linear_attn_block__dense_activation_gelu__prompt"
HQ_OFF   = 0x000000
B2_OFF   = 0x900000
STAT_OFF = 0xC00000
CS_OFF   = 0xC10000
KV_OFF   = 0xC40000
CNT_OFF  = 0xC60000
WS_SIZE  = 0xE00000
KV_BYTES = 32 * 21 * 20 * 4

def f32(x): return struct.unpack("<I", struct.pack("<f", x))[0]
def hx(x): return hex(x & 0xFFFFFFFF)

S_X, S_WQKV, S_WO, S_W1, S_B1, S_W2, S_B2, S_OUT, S_DBG, S_WS = 4, 6, 8, 12, 14, 16, 18, 20, 22, 24
S_WAVE, S_GW = 26, 27
SRD_X, SRD_W, SRD_WS, SRD_T, SRD_U = 28, 32, 36, 40, 44
def srd(n): return f"s[{n}:{n+3}]"

def mk_srd(a, d, ptr, size):
    a.I(f"s_mov_b32 s{d}, s{ptr}\ns_mov_b32 s{d+1}, s{ptr+1}")
    a.I(f"s_mov_b32 s{d+2}, {size if isinstance(size, str) else hx(size)}\ns_mov_b32 s{d+3}, 0x20000")

def prologue(a, kname, endlabel, V_LANE):
    a.raw(f".globl {kname}\n.p2align 8\n.type {kname},@function")
    a.L(kname)
    a.I(f"s_cmp_ge_u32 s2, 256\ns_cbranch_scc1 {endlabel}")
    a.I("s_load_dwordx16 s[4:19], s[0:1], 0\ns_load_dwordx4 s[20:23], s[0:1], 64\ns_load_dwordx2 s[24:25], s[0:1], 80")
    a.I(f"v_lshrrev_b32 v1, 6, v0\nv_and_b32 v{V_LANE}, 63, v0")
    a.I(f"v_readfirstlane_b32 s{S_WAVE}, v1")
    a.I(f"s_lshl_b32 s{S_GW}, s2, 2\ns_add_u32 s{S_GW}, s{S_GW}, s{S_WAVE}")
    a.I("s_waitcnt lgkmcnt(0)")
    mk_srd(a, SRD_X, S_X, 2048 * 1280)
    mk_srd(a, SRD_WS, S_WS, WS_SIZE)

def desc(kname, nv, acc_off):
    return f""".amdhsa_kernel {kname}
  .amdhsa_next_free_vgpr {nv}
  .amdhsa_next_free_sgpr 96
  .amdhsa_accum_offset {acc_off}
  .amdhsa_group_segment_fixed_size 0
  .amdhsa_kernarg_size 88
  .amdhsa_user_sgpr_count 2
  .amdhsa_user_sgpr_kernarg_segment_ptr 1
  .amdhsa_system_sgpr_workgroup_id_x 1
.end_amdhsa_kernel
"""

STAMPS = False
STAMP_OFF = 0xC80000
class Stamp:
    def __init__(self, vreg, kidx):
        self.v = vreg; self.n = 0; self.k = kidx; self.names = []
    def __call__(self, a, name, real=False):
        if not STAMPS: return
        a.I(f"{'s_memrealtime' if real else 's_memtime'} s[92:93]\ns_waitcnt lgkmcnt(0)\nv_writelane_b32 v{self.v}, s92, {self.n}")
        self.names.append(name); self.n += 1
    def dump(self, a, vlane, vt):
        if not STAMPS: return
        a.I(f"s_lshl_b32 s92, s{S_GW}, 8\ns_add_u32 s92, s92, {STAMP_OFF + self.k*0x40000}\nv_lshlrev_b32 v{vt}, 2, v{vlane}")
        a.I(f"buffer_store_dword v{self.v}, v{vt}, {srd(SRD_WS)}, s92 offen")
        STAMP_NAMES[self.k] = self.names
ST = None
STAMP_NAMES = {}
P0_LDS = 143360
P0_CS_LDS = P0_LDS + 16384

def phase0(a, VL, vb, sc=""):
    X = vb
    CW = vb + 12
    T = vb + 32
    t0, t1, t2, t3 = T, T + 1, T + 2, T + 3
    U = T + 4
    a.C("---- phase0: issue loads ----")
    a.I(f"v_lshrrev_b32 v{t0}, 5, v{VL}\nv_and_b32 v{t1}, 31, v{VL}")
    a.I(f"v_mul_u32_u24 v{t0}, 1280, v{t0}")
    a.I(f"v_lshl_add_u32 v{t2}, v{t1}, 4, v{t0}\nv_lshl_add_u32 v{t3}, v{t1}, 3, v{t0}")
    a.I(f"s_mul_i32 s48, s{S_GW}, 2560")
    a.I(f"buffer_load_dwordx4 v[{X}:{X+3}], v{t2}, {srd(SRD_X)}, s48 offen")
    a.I(f"buffer_load_dwordx4 v[{X+4}:{X+7}], v{t2}, {srd(SRD_X)}, s48 offen offset:512")
    a.I(f"buffer_load_dwordx2 v[{X+8}:{X+9}], v{t3}, {srd(SRD_X)}, s48 offen offset:1024")
    a.I("s_lshr_b32 s49, s2, 2\ns_and_b32 s50, s2, 3")
    a.I("s_cmp_ge_u32 s49, 30")
    a.I(f"s_cselect_b32 s{SRD_T}, s{S_W1}, s{S_WQKV}\ns_cselect_b32 s{SRD_T+1}, s{S_W1+1}, s{S_WQKV+1}")
    a.I("s_mov_b32 s51, 3840\ns_cselect_b32 s51, 3072, s51\ns_cselect_b32 s52, 30, 0")
    a.I(f"s_mul_i32 s{SRD_T+2}, s51, 640\ns_mov_b32 s{SRD_T+3}, 0x20000")
    a.I(f"s_cselect_b32 s{SRD_U+2}, 3072, 0")
    a.I(f"s_mov_b32 s{SRD_U}, s{S_B1}\ns_mov_b32 s{SRD_U+1}, s{S_B1+1}\ns_mov_b32 s{SRD_U+3}, 0x20000")
    a.I("s_sub_u32 s52, s49, s52\ns_lshl_b32 s52, s52, 7")
    a.I(f"s_cmp_ge_u32 s2, 216\ns_cselect_b32 s{SRD_T+2}, 0, s{SRD_T+2}")
    a.I(f"s_mul_i32 s53, s50, 160\ns_mul_i32 s54, s{S_WAVE}, 40\ns_add_u32 s53, s53, s54")
    a.I("s_mul_i32 s53, s53, s51\ns_add_u32 s53, s53, s52\ns_lshl_b32 s54, s51, 3")
    a.I(f"v_lshrrev_b32 v{t0}, 3, v{VL}\nv_and_b32 v{t1}, 7, v{VL}")
    a.I(f"v_mul_lo_u32 v{t2}, v{t0}, s51\nv_lshl_add_u32 v{t2}, v{t1}, 4, v{t2}")
    for it in range(5):
        a.I(f"buffer_load_dwordx4 v[{CW+4*it}:{CW+4*it+3}], v{t2}, {srd(SRD_T)}, s53 offen")
        if it < 4: a.I("s_add_u32 s53, s53, s54")
    BIAS = vb + 10
    a.I(f"v_lshlrev_b32 v{t3}, 1, v{VL}")
    a.I(f"buffer_load_ushort v{BIAS}, v{t3}, {srd(SRD_U)}, s52 offen")
    a.I(f"s_mul_hi_u32 s55, s{S_GW}, {hx((1<<32)//10+1)}")
    a.I(f"s_mul_i32 s56, s55, 10\ns_sub_u32 s56, s{S_GW}, s56")
    a.I(f"s_cmp_ge_u32 s{S_GW}, 680\ns_cbranch_scc1 L_p0_noc")
    VO, VI = T + 24, T + 25
    a.I("s_cmp_ge_u32 s55, 48\ns_cbranch_scc1 L_p0_att")
    mk_srd(a, SRD_T, S_W2, 1536 * 1280)
    a.I(f"v_lshrrev_b32 v{t2}, 2, v{t0}\nv_and_b32 v{t3}, 3, v{t0}\nv_lshl_add_u32 v{VO}, v{t2}, 4, v{t3}")
    a.I(f"v_mov_b32 v{VI}, {4*1280}\ns_lshl_b32 s57, s55, 5\ns_branch L_p0_cgo")
    a.L("L_p0_att")
    mk_srd(a, SRD_T, S_WO, 640 * 1280)
    a.I(f"s_sub_u32 s58, s55, 48\ns_mul_i32 s59, s58, 205\ns_lshr_b32 s59, s59, 10")
    a.I("s_mul_i32 s57, s59, 5\ns_sub_u32 s58, s58, s57\ns_lshl_b32 s58, s58, 3")
    a.I("s_mul_i32 s57, s59, 160")
    a.I(f"v_add_u32 v{t2}, s58, v{t0}")
    a.I(f"v_mul_u32_u24 v{t3}, 205, v{t2}\nv_lshrrev_b32 v{t3}, 10, v{t3}")
    a.I(f"v_mul_u32_u24 v{VO}, 5, v{t3}\nv_sub_u32 v{t2}, v{t2}, v{VO}")
    a.I(f"v_cmp_eq_u32 vcc, 4, v{t2}\nv_mov_b32 v{VO}, 16\nv_mov_b32 v{VI}, 1280")
    a.I(f"v_cndmask_b32 v{t2}, v{t2}, v{VO}, vcc\nv_mov_b32 v{VO}, {4*1280}")
    a.I(f"v_cndmask_b32 v{VI}, v{VO}, v{VI}, vcc")
    a.I(f"v_mad_u32_u24 v{VO}, v{t3}, 20, v{t2}")
    a.L("L_p0_cgo")
    a.I(f"v_mul_u32_u24 v{VO}, 1280, v{VO}\nv_lshl_add_u32 v{VO}, v{t1}, 4, v{VO}")
    a.I("s_mul_i32 s57, s57, 1280\ns_lshl_b32 s58, s56, 7\ns_add_u32 s57, s57, s58")
    a.I(f"s_lshl_b32 s58, s{S_WAVE}, 12\ns_add_u32 s58, s58, {P0_LDS}")
    for it in range(4):
        a.I(f"s_add_u32 m0, s58, {it*1024}")
        a.I("s_nop 0")
        a.I(f"buffer_load_dwordx4 v{VO}, {srd(SRD_T)}, s57 offen lds")
        if it < 3: a.I(f"v_add_u32 v{VO}, v{VO}, v{VI}")
    a.I("s_branch L_p0_cdone")
    a.L("L_p0_noc")
    a.I(f"s_sub_u32 s57, s{S_GW}, 680\ns_cmp_ge_u32 s57, 53\ns_cbranch_scc1 L_p0_cdone")
    a.I(f"s_lshl_b32 s57, s57, 10\ns_add_u32 s57, s57, {KV_OFF}")
    a.I(f"v_mov_b32 v{U}, 0\nv_mov_b32 v{U+1}, 0\nv_mov_b32 v{U+2}, 0\nv_mov_b32 v{U+3}, 0\nv_lshlrev_b32 v{t2}, 4, v{VL}")
    a.I(f"buffer_store_dwordx4 v[{U}:{U+3}], v{t2}, {srd(SRD_WS)}, s57 offen {sc}")
    a.L("L_p0_cdone")
    a.I("s_nop 1")
    return dict(X=X, CW=CW, T=T, U=U, BIAS=BIAS)

def red32(a, v, tmp):
    for m in ("quad_perm:[1,0,3,2]", "quad_perm:[2,3,0,1]", "row_half_mirror", "row_mirror"):
        a.I(f"v_add_f32_dpp v{v}, v{v}, v{v} {m} row_mask:0xf bank_mask:0xf")
    a.I(f"v_mov_b32 v{tmp}, v{v}")
    a.I(f"v_permlane16_swap_b32 v{v}, v{tmp}")
    a.I(f"v_add_f32 v{v}, v{v}, v{tmp}")

def phase0_compute(a, VL, R, sc="", wait_all=True):
    X, CW, T, U, BIAS = R["X"], R["CW"], R["T"], R["U"], R["BIAS"]
    t0, t1, t2, t3 = T, T + 1, T + 2, T + 3
    a.C("---- phase0: compute ----")
    if wait_all: a.I("s_waitcnt vmcnt(0)")
    a.I("s_mov_b32 s60, 0xffff0000")
    for i in range(10):
        a.I(f"v_lshlrev_b32 v{U+2*i}, 16, v{X+i}\nv_and_b32 v{U+2*i+1}, s60, v{X+i}")
    a.I(f"v_pk_add_f32 v[{t0}:{t1}], v[{U}:{U+1}], v[{U+2}:{U+3}]")
    for i in range(2, 10):
        a.I(f"v_pk_add_f32 v[{t0}:{t1}], v[{t0}:{t1}], v[{U+2*i}:{U+2*i+1}]")
    a.I(f"v_add_f32 v{t0}, v{t0}, v{t1}")
    red32(a, t0, t1)
    a.I(f"v_mul_f32 v{t0}, {hx(f32(-1.0/640))}, v{t0}")
    for i in range(10):
        a.I(f"v_pk_add_f32 v[{U+2*i}:{U+2*i+1}], v[{U+2*i}:{U+2*i+1}], v[{t0}:{t1}] op_sel_hi:[1,0]")
    a.I(f"v_pk_mul_f32 v[{t2}:{t3}], v[{U}:{U+1}], v[{U}:{U+1}]")
    for i in range(1, 10):
        a.I(f"v_pk_fma_f32 v[{t2}:{t3}], v[{U+2*i}:{U+2*i+1}], v[{U+2*i}:{U+2*i+1}], v[{t2}:{t3}]")
    a.I(f"v_add_f32 v{t2}, v{t2}, v{t3}")
    red32(a, t2, t3)
    a.I(f"v_mul_f32 v{t2}, {hx(f32(1.0/640))}, v{t2}")
    a.I(f"v_cvt_pk_bf16_f32 v{t2}, v{t2}, v{t2}\nv_and_b32 v{t2}, s60, v{t2}")
    a.I(f"v_add_f32 v{t2}, {hx(f32(1e-5))}, v{t2}")
    a.I(f"v_cvt_pk_bf16_f32 v{t2}, v{t2}, v{t2}\nv_and_b32 v{t2}, s60, v{t2}")
    a.I(f"v_sqrt_f32 v{t2}, v{t2}")
    a.I(f"v_cvt_pk_bf16_f32 v{U}, v{t0}, v{t2}")
    a.I(f"v_and_b32 v{t2}, s60, v{U}")
    a.I(f"v_rcp_f32 v{U+1}, v{t2}")
    a.I(f"v_lshrrev_b32 v{t1}, 2, v{VL}\nv_and_b32 v{t3}, 31, v{VL}")
    a.I(f"s_lshl_b32 s48, s{S_GW}, 4\ns_add_u32 s48, s48, {STAT_OFF}")
    a.I(f"v_cmp_eq_u32 vcc, 0, v{t3}\ns_and_saveexec_b64 s[62:63], vcc")
    a.I(f"buffer_store_dwordx2 v[{U}:{U+1}], v{t1}, {srd(SRD_WS)}, s48 offen {sc}")
    a.I("s_mov_b64 exec, s[62:63]")
    AC = U + 2
    E = U + 10
    for it in range(5):
        dst = AC if it == 0 else E
        for i in range(4):
            a.I(f"v_lshlrev_b32 v{dst+2*i}, 16, v{CW+4*it+i}\nv_and_b32 v{dst+2*i+1}, s60, v{CW+4*it+i}")
        if it:
            for i in range(4):
                a.I(f"v_pk_add_f32 v[{AC+2*i}:{AC+2*i+1}], v[{AC+2*i}:{AC+2*i+1}], v[{E+2*i}:{E+2*i+1}]")
    for i in range(4): a.I(f"v_permlane32_swap_b32 v{AC+i}, v{AC+i+4}")
    for i in range(4): a.I(f"v_add_f32 v{AC+i}, v{AC+i}, v{AC+i+4}")
    for i in range(2): a.I(f"v_permlane16_swap_b32 v{AC+i}, v{AC+i+2}")
    for i in range(2): a.I(f"v_add_f32 v{AC+i}, v{AC+i}, v{AC+i+2}")
    for i in range(2): a.I(f"v_add_f32_dpp v{AC+i}, v{AC+i}, v{AC+i} row_ror:8 row_mask:0xf bank_mask:0xf")
    a.I(f"v_and_b32 v{t0}, 7, v{VL}\nv_lshrrev_b32 v{t1}, 4, v{VL}\nv_lshlrev_b32 v{t0}, 5, v{t0}")
    a.I(f"v_lshl_add_u32 v{t0}, v{t1}, 3, v{t0}")
    a.I(f"s_lshl_b32 s48, s{S_WAVE}, 8\ns_add_u32 s48, s48, {P0_CS_LDS}\nv_add_u32 v{t0}, s48, v{t0}")
    a.I(f"ds_write_b64 v{t0}, v[{AC}:{AC+1}]")
    a.I(f"s_cmp_ge_u32 s{S_GW}, 680\ns_cbranch_scc1 L_p0_c2done")
    a.I(f"v_lshrrev_b32 v{t0}, 4, v{VL}\nv_bfe_u32 v{t1}, v{VL}, 2, 2\nv_and_b32 v{t2}, 3, v{VL}")
    a.I(f"v_lshl_add_u32 v{t0}, v{t0}, 3, v{t1}\nv_lshlrev_b32 v{t0}, 7, v{t0}\nv_lshl_add_u32 v{t0}, v{t2}, 3, v{t0}")
    a.I(f"v_add_u32 v{t0}, s58, v{t0}\nv_lshlrev_b32 v{t1}, 4, v{VL}")
    FR = CW
    for i in range(4):
        a.I(f"ds_read_b64_tr_b16 v[{FR+4*i}:{FR+4*i+1}], v{t0} offset:{32*i}")
        a.I(f"ds_read_b64_tr_b16 v[{FR+4*i+2}:{FR+4*i+3}], v{t0} offset:{32*i+512}")
    a.I("s_lshl_b32 s56, s56, 2\ns_mul_i32 s55, s55, 5")
    for i in range(4):
        a.I("s_mul_i32 s57, s56, 205\ns_lshr_b32 s57, s57, 10")
        a.I(f"s_mul_i32 s57, s57, {68*5-5}\ns_add_u32 s57, s57, s56\ns_add_u32 s57, s57, s55")
        a.I(f"s_lshl_b32 s57, s57, 10\ns_add_u32 s57, s57, {B2_OFF}")
        a.I(f"s_waitcnt lgkmcnt({6-2*i})")
        a.I(f"buffer_store_dwordx4 v[{FR+4*i}:{FR+4*i+3}], v{t1}, {srd(SRD_WS)}, s57 offen {sc}")
        a.I("s_add_u32 s56, s56, 1")
    a.L("L_p0_c2done")
    a.I("s_waitcnt lgkmcnt(0)\ns_barrier")
    a.I(f"s_cmp_lg_u32 s{S_WAVE}, 0\ns_cbranch_scc1 L_p0_end\ns_cmp_ge_u32 s2, 216\ns_cbranch_scc1 L_p0_end")
    a.I(f"v_lshlrev_b32 v{t0}, 2, v{VL}\nv_add_u32 v{t0}, {P0_CS_LDS}, v{t0}")
    a.I(f"ds_read2st64_b32 v[{U}:{U+1}], v{t0} offset0:0 offset1:1\nds_read2st64_b32 v[{U+2}:{U+3}], v{t0} offset0:2 offset1:3")
    a.I(f"s_lshl_b32 s48, s49, 11\ns_add_u32 s48, s48, {CS_OFF}\ns_lshl_b32 s57, s50, 2\ns_add_u32 s57, s57, s48")
    a.I(f"v_lshlrev_b32 v{t1}, 5, v{VL}")
    a.I("s_waitcnt lgkmcnt(0)")
    a.I(f"v_add_f32 v{U}, v{U}, v{U+1}\nv_add_f32 v{U+2}, v{U+2}, v{U+3}\nv_add_f32 v{U}, v{U}, v{U+2}")
    a.I(f"v_cvt_pk_bf16_f32 v{t2}, v{U}, v{U}\nv_and_b32 v{t2}, s60, v{t2}\nv_sub_f32 v{t2}, v{U}, v{t2}")
    a.I(f"v_cvt_pk_bf16_f32 v{t2}, v{U}, v{t2}")
    a.I(f"buffer_store_dword v{t2}, v{t1}, {srd(SRD_WS)}, s57 offen {sc}")
    a.I("s_cmp_lg_u32 s50, 0\ns_cbranch_scc1 L_p0_end")
    a.I(f"v_mov_b32 v{U+4}, v{BIAS}\nv_mov_b32 v{U+5}, 0\nv_mov_b32 v{U+6}, 0\nv_mov_b32 v{U+7}, 0")
    a.I(f"buffer_store_dwordx4 v[{U+4}:{U+7}], v{t1}, {srd(SRD_WS)}, s48 offen offset:16 {sc}")
    a.L("L_p0_end")

def code_prefetch(a, kname, kb, vlane, vt, vm):
    if not CODEPF: return
    a.I(f"s_getpc_b64 s[94:95]")
    a.I(f"s_and_b32 s94, s94, 0xffffff00")
    a.I(f"s_lshr_b32 s92, s2, 3\ns_lshl_b32 s92, s92, 2\ns_add_u32 s92, s92, s{S_WAVE}\ns_lshl_b32 s92, s92, 8")
    a.I(f"v_lshlrev_b32 v{vt}, 7, v{vlane}\nv_add_u32 v{vt}, s92, v{vt}")
    a.I(f"s_mov_b64 exec, 3")
    a.I(f"global_load_dword v{vt+1}, v{vt}, s[94:95]")
    a.I(f"s_mov_b64 exec, -1")
    vm.issue("code")
CODEPF = True

def k0(a):
    VL = 2
    prologue(a, "k0_kernel", "L_k0_end", VL)
    R = phase0(a, VL, 4)
    phase0_compute(a, VL, R)
    a.L("L_k0_end")
    a.I("s_endpgm")


class VM:
    def __init__(self): self.q = []
    def issue(self, tag): self.q.append(tag)
    def wait(self, a, tag, extra=""):
        idx = max(i for i, t in enumerate(self.q) if t == tag)
        n = len(self.q) - 1 - idx
        assert n <= 63, n
        a.I(f"s_waitcnt vmcnt({n}){extra}")
        self.q = self.q[idx + 1:]

ACC, XR, BF = 0, 112, 192
LA, NINIT, PFD = 3, 3, 5
NB, PD = 6, 4
V_LANE, V_WOFF, V_WOFFM, V_XOFF, V_TR = 216, 217, 218, 219, 220
V_CSO, V_CSOM, V_STAT = 223, 224, 226
V_PF, V_PFD = 254, 255
SRD_PF, S_PFS, S_PFO = 48, 52, 53
V_T = 228
S_RB, S_CG, S_STR, S_STR64, S_TOFF, S_M0B, S_X0, S_X1, S_TYPE, S_KS0 = 64, 65, 66, 67, 68, 75, 76, 77, 78, 79
S_CSB, S_JA, S_TMP = 80, 81, 82
CHUNK_LDS = 28672
KV_RS = 344

def g1_setup(a):
    L = V_LANE; t0, t1, t2 = V_T, V_T + 1, V_T + 2
    a.C("---- gemm1 setup ----")
    a.I(f"s_and_b32 s{S_TMP}, s2, 1\ns_lshl_b32 s{S_TMP}, s{S_TMP}, 3\ns_bfe_u32 s{S_RB}, s2, 0x30003\ns_add_u32 s{S_RB}, s{S_RB}, s{S_TMP}")
    a.I(f"s_and_b32 s{S_TMP}, s2, 6\ns_lshl_b32 s{S_TMP}, s{S_TMP}, 1\ns_lshr_b32 s{S_CG}, s2, 6\ns_add_u32 s{S_CG}, s{S_CG}, s{S_TMP}")
    B, JB = S_TMP + 1, S_TMP + 2
    a.I(f"s_cmp_lt_u32 s{S_CG}, 8\ns_cbranch_scc1 L_g1_kvq\ns_cmp_eq_u32 s{S_CG}, 15\ns_cbranch_scc1 L_g1_qx")
    a.I(f"s_mov_b32 s{S_TYPE}, 1\ns_sub_u32 s{S_TMP}, s{S_CG}, 8\ns_mul_i32 s{B}, s{S_TMP}, 448\ns_mul_i32 s{S_KS0}, s{S_TMP}, 7")
    a.I(f"s_mov_b32 s{S_JA}, 0\ns_mov_b32 s{JB}, 0\ns_mov_b32 s{S_STR}, 3072\ns_mov_b32 s{S_CSB}, {CS_OFF + 1920*32}")
    a.I(f"s_mov_b32 s{SRD_W}, s{S_W1}\ns_mov_b32 s{SRD_W+1}, s{S_W1+1}\ns_mov_b32 s{SRD_W+2}, {640*3072}\ns_branch L_g1_tdone")
    a.L("L_g1_qx")
    a.I(f"s_mov_b32 s{S_TYPE}, 2\ns_mov_b32 s{B}, 1024\ns_mov_b32 s{S_KS0}, 64\ns_mov_b32 s{S_JA}, 0\ns_mov_b32 s{JB}, -256\ns_branch L_g1_qkvm")
    a.L("L_g1_kvq")
    a.I(f"s_mov_b32 s{S_TYPE}, 0\ns_mul_i32 s{B}, s{S_CG}, 160\ns_add_u32 s{B}, s{B}, 1280\ns_mov_b32 s{S_JA}, 1120")
    a.I(f"s_lshl_b32 s{JB}, s{S_CG}, 5\ns_sub_u32 s{JB}, {hx(-2720)}, s{JB}")
    a.I(f"s_lshl_b32 s{S_KS0}, s{S_CG}, 1\ns_add_u32 s{S_KS0}, s{S_KS0}, {48-5}")
    a.L("L_g1_qkvm")
    a.I(f"s_mov_b32 s{S_STR}, 3840\ns_mov_b32 s{S_CSB}, {CS_OFF}")
    a.I(f"s_mov_b32 s{SRD_W}, s{S_WQKV}\ns_mov_b32 s{SRD_W+1}, s{S_WQKV+1}\ns_mov_b32 s{SRD_W+2}, {640*3840}")
    a.L("L_g1_tdone")
    a.I(f"s_mov_b32 s{SRD_W+3}, 0x20000\ns_lshl_b32 s{S_STR64}, s{S_STR}, 6")
    for t in range(7):
        if t == 0: a.I(f"s_mov_b32 s{S_TOFF}, s{B}")
        else:
            a.I(f"s_add_u32 s{S_TOFF+t}, s{S_TOFF+t-1}, 64")
            if t == 3: a.I(f"s_add_u32 s{S_TOFF+t}, s{S_TOFF+t}, s{S_JA}")
            if t == 5: a.I(f"s_add_u32 s{S_TOFF+t}, s{S_TOFF+t}, s{JB}")
    a.I(f"s_cmp_lt_u32 s{S_WAVE}, 2")
    a.I(f"s_cselect_b32 s{SRD_PF}, s{SRD_W}, s{SRD_X}\ns_cselect_b32 s{SRD_PF+1}, s{SRD_W+1}, s{SRD_X+1}")
    a.I(f"s_cselect_b32 s{SRD_PF+2}, s{SRD_W+2}, s{SRD_X+2}\ns_mov_b32 s{SRD_PF+3}, 0x20000\ns_cselect_b32 s{S_PFS}, s{S_STR64}, 128")
    a.I(f"s_cbranch_scc1 L_pf_w")
    a.I(f"s_and_b32 s{S_TMP}, s{S_CG}, 3\ns_lshl_b32 s{S_TMP+3}, s{S_RB}, 2\ns_add_u32 s{S_TMP}, s{S_TMP}, s{S_TMP+3}\ns_lshl_b32 s{S_TMP}, s{S_TMP}, 1")
    a.I(f"s_and_b32 s{S_TMP+3}, s{S_WAVE}, 1\ns_add_u32 s{S_TMP}, s{S_TMP}, s{S_TMP+3}\ns_lshl_b32 s{S_TMP}, s{S_TMP}, 4")
    a.I(f"v_add_u32 v{t0}, s{S_TMP}, v{L}\nv_mul_u32_u24 v{V_PF}, 1280, v{t0}\nv_cmp_gt_u32 vcc, 16, v{L}\ns_branch L_pf_done")
    a.L("L_pf_w")
    a.I(f"s_and_b32 s{S_TMP}, s{S_RB}, 7\ns_lshl_b32 s{S_TMP}, s{S_TMP}, 1\ns_add_u32 s{S_TMP}, s{S_TMP}, s{S_WAVE}\ns_lshl_b32 s{S_TMP}, s{S_TMP}, 2")
    a.I(f"v_lshrrev_b32 v{t0}, 3, v{L}\nv_add_u32 v{t0}, s{S_TMP}, v{t0}\nv_mul_lo_u32 v{t0}, v{t0}, s{S_STR}")
    a.I(f"v_and_b32 v{t1}, 7, v{L}\nv_lshlrev_b32 v{t2}, 7, v{t1}\nv_add_u32 v{t2}, s{B}, v{t2}")
    a.I(f"s_and_b32 s{S_TMP}, s{S_JA}, 1024\nv_lshrrev_b32 v{V_PF}, 1, v{t1}\nv_mul_lo_u32 v{V_PF}, v{V_PF}, s{S_TMP}\nv_add_u32 v{t2}, v{t2}, v{V_PF}")
    a.I(f"v_cmp_eq_u32 vcc, 4, v{t1}\nv_mov_b32 v{V_PF}, s{S_TOFF+5}")
    a.I(f"v_cndmask_b32 v{t2}, v{t2}, v{V_PF}, vcc")
    a.I(f"v_add_u32 v{V_PF}, v{t0}, v{t2}")
    a.I(f"v_and_b32 v{t1}, 39, v{L}\nv_cmp_gt_u32 vcc, 5, v{t1}")
    a.L("L_pf_done")
    a.I(f"v_mov_b32 v{t0}, 0x40000000\ns_nop 1\nv_cndmask_b32 v{V_PF}, v{t0}, v{V_PF}, vcc")
    a.I(f"v_lshrrev_b32 v{t0}, 2, v{L}\ns_lshl_b32 s{S_TMP}, s{S_WAVE}, 4\nv_add_u32 v{t0}, s{S_TMP}, v{t0}")
    a.I(f"v_mul_lo_u32 v{t0}, v{t0}, s{S_STR}\nv_and_b32 v{t1}, 3, v{L}\nv_lshl_add_u32 v{V_WOFF}, v{t1}, 4, v{t0}")
    a.I(f"v_lshrrev_b32 v{t1}, 1, v{t1}\nv_mul_lo_u32 v{t1}, v{t1}, s{S_JA}\nv_add_u32 v{V_WOFFM}, v{V_WOFF}, v{t1}")
    a.I(f"s_lshr_b32 s{S_TMP}, s{S_WAVE}, 1\ns_mul_i32 s{S_M0B}, s{S_TMP}, 14336\ns_and_b32 s{S_TMP}, s{S_WAVE}, 1")
    a.I(f"s_lshl_b32 s{S_TMP}, s{S_TMP}, 10\ns_add_u32 s{S_M0B}, s{S_M0B}, s{S_TMP}")
    a.I(f"v_and_b32 v{t0}, 15, v{L}\nv_mul_u32_u24 v{t0}, 1280, v{t0}\nv_lshrrev_b32 v{t1}, 4, v{L}\nv_lshl_add_u32 v{V_XOFF}, v{t1}, 4, v{t0}")
    a.I(f"s_lshl_b32 s{S_TMP}, s{S_RB}, 2\ns_add_u32 s{S_TMP}, s{S_TMP}, s{S_WAVE}\ns_mul_i32 s{S_X0}, s{S_TMP}, {32*1280}\ns_add_u32 s{S_X1}, s{S_X0}, {16*1280}")

def g1_setup2(a):
    L = V_LANE; t0, t1, t2 = V_T, V_T + 1, V_T + 2
    a.I(f"v_lshrrev_b32 v{t0}, 5, v{L}\nv_bfe_u32 v{t1}, v{L}, 2, 2\nv_lshl_add_u32 v{t0}, v{t0}, 4, v{t1}\nv_lshlrev_b32 v{t0}, 6, v{t0}")
    a.I(f"v_and_b32 v{t1}, 1, v{L}\nv_lshl_add_u32 v{t0}, v{t1}, 3, v{t0}")
    a.I(f"v_bfe_u32 v{t1}, v{L}, 1, 1\nv_lshl_add_u32 v{t0}, v{t1}, 5, v{t0}")
    a.I(f"v_bfe_u32 v{t1}, v{L}, 4, 1\nv_lshl_add_u32 v{V_TR}, v{t1}, 4, v{t0}")
    a.I(f"v_add_u32 v{V_TR+1}, {2*CHUNK_LDS}, v{V_TR}\nv_add_u32 v{V_TR+2}, {4*CHUNK_LDS}, v{V_TR}")
    a.I(f"v_and_b32 v{t0}, 7, v{L}\nv_bfe_u32 v{t1}, v{L}, 4, 1\nv_lshl_add_u32 v{t0}, v{t1}, 3, v{t0}")
    a.I(f"v_bfe_u32 v{t1}, v{L}, 3, 1\nv_lshl_add_u32 v{t0}, v{t1}, 4, v{t0}\nv_lshlrev_b32 v{t0}, 5, v{t0}")
    a.I(f"v_lshrrev_b32 v{t2}, 5, v{L}\nv_lshl_add_u32 v{V_CSO}, v{t2}, 4, v{t0}")
    a.I(f"s_lshl_b32 s{S_TMP}, s{S_JA}, 4\nv_mul_lo_u32 v{t1}, v{t1}, s{S_TMP}\nv_add_u32 v{V_CSOM}, v{V_CSO}, v{t1}")

def g1_loads(c, vm):
    out = []
    slot = c % 5
    def wl(t):
        def f(a):
            a.I(f"s_add_u32 m0, s{S_M0B}, {slot*CHUNK_LDS + t*2048}")
            a.I(f"buffer_load_dwordx4 v{V_WOFFM if t == 2 else V_WOFF}, {srd(SRD_W)}, s{S_TOFF+t} offen lds")
            vm.issue(("c", c))
            if t == 6:
                a.I(f"v_add_u32 v{V_WOFF}, s{S_STR64}, v{V_WOFF}\nv_add_u32 v{V_WOFFM}, s{S_STR64}, v{V_WOFFM}")
        return f
    def xl(span, b):
        def f(a):
            r = XR + slot * 16 + span * 8 + b * 4
            a.I(f"buffer_load_dwordx4 v[{r}:{r+3}], v{V_XOFF}, {srd(SRD_X)}, s{S_X1 if b else S_X0} offen offset:{c*128+span*64}")
            vm.issue(("c", c))
        return f
    out += [xl(0, 0), xl(1, 0), xl(0, 1), xl(1, 1)]
    out += [wl(t) for t in range(7)]
    return out

def g1_pf(c, vm):
    def f(a):
        a.I(f"s_mul_i32 s{S_PFO}, s{S_PFS}, {c}")
        a.I(f"buffer_load_dword v{V_PFD}, v{V_PF}, {srd(SRD_PF)}, s{S_PFO} offen")
        vm.issue("pf")
    return f

def g1_ext_loads(vm, sc):
    out = []
    def cs(t):
        def f(a):
            a.I(f"s_lshl_b32 s{S_TMP}, s{S_TOFF+t}, 4\ns_add_u32 s{S_TMP}, s{S_TMP}, s{S_CSB}")
            r = XR + 4 * t
            a.I(f"buffer_load_dwordx4 v[{r}:{r+3}], v{V_CSOM if t == 2 else V_CSO}, {srd(SRD_WS)}, s{S_TMP} offen {sc}")
            vm.issue("ext")
        return f
    def st(a):
        a.I(f"s_lshl_b32 s{S_TMP}, s{S_RB}, 2\ns_add_u32 s{S_TMP}, s{S_TMP}, s{S_WAVE}\ns_lshl_b32 s{S_TMP}, s{S_TMP}, 8\ns_add_u32 s{S_TMP}, s{S_TMP}, {STAT_OFF}")
        a.I(f"v_and_b32 v{V_T}, 31, v{V_LANE}\nv_lshlrev_b32 v{V_T}, 3, v{V_T}")
        a.I(f"buffer_load_dwordx2 v[{V_STAT}:{V_STAT+1}], v{V_T}, {srd(SRD_WS)}, s{S_TMP} offen {sc}")
        vm.issue("ext")
    out.append(st)
    out += [cs(t) for t in range(7)]
    return out

def g1_main(a, vm, extra_fill, sc=""):
    NM = 280
    def decode(m):
        c, r = divmod(m, 28); ks, t = divmod(r, 7)
        return c, ks >> 1, ks & 1, t
    def reads(m):
        c, span, par, t = decode(m)
        slot = c % 5
        off = (slot & 1) * CHUNK_LDS + span * 14336 + t * 2048 + par * 512
        r = BF + (m % NB) * 4
        a.I(f"ds_read_b64_tr_b16 v[{r}:{r+1}], v{V_TR + (slot >> 1)} offset:{off}")
        a.I(f"ds_read_b64_tr_b16 v[{r+2}:{r+3}], v{V_TR + (slot >> 1)} offset:{off+256}")
    def swaps(c, span):
        r = XR + (c % 5) * 16 + span * 8
        return [(lambda a, i=i: a.I(f"v_permlane16_swap_b32 v{r+i}, v{r+4+i}")) for i in range(4)]
    fill = []
    def P(c):
        a.C(f"P{c}")
        assert not fill, (c, len(fill))
        vm.wait(a, ("c", c))
        ST(a, f"P{c}w")
        a.I("s_barrier")
        ST(a, f"P{c}b")
        s0 = swaps(c, 0)
        fill.append(lambda a: (s0[0](a), s0[1](a)))
        fill.append(lambda a: (s0[2](a), s0[3](a)))
        ld = []
        if PFD and c + PFD <= 9: ld.append(g1_pf(c + PFD, vm))
        if c + LA <= 9 and c + LA >= NINIT: ld += g1_loads(c + LA, vm)
        ld = ld + extra_fill.get(c, [])
        s1 = swaps(c, 1)
        fill.append(lambda a: (s1[0](a), s1[1](a)))
        fill.append(lambda a: (s1[2](a), s1[3](a)))
        room = 28 - len(fill) - 1
        step = max(1, room // max(1, len(ld)))
        for f in ld:
            fill.append(f)
            for _ in range(step - 1): fill.append(None)
        while fill and fill[-1] is None: fill.pop()
        assert len(fill) <= 28, len(fill)
    P(0)
    for m in range(PD):
        reads(m)
        f = fill.pop(0)
        if f: f(a)
    for m in range(NM):
        c, span, par, t = decode(m)
        pend = min(PD - 1, NM - 1 - m)
        a.I(f"s_waitcnt lgkmcnt({2*pend})")
        x = XR + (c % 5) * 16 + span * 8 + par * 4
        b = BF + (m % NB) * 4
        d = ACC + 16 * t
        cin = "0" if m < 7 else f"v[{d}:{d+15}]"
        a.I(f"v_mfma_f32_32x32x16_bf16 v[{d}:{d+15}], v[{b}:{b+3}], v[{x}:{x+3}], {cin}")
        if m + PD < NM:
            if (m + PD) % 28 == 0: P((m + PD) // 28)
            reads(m + PD)
        if fill:
            f = fill.pop(0)
            if f: f(a)
    assert not fill

K0C = -2.0 * math.sqrt(2.0 / math.pi) * math.log2(math.e)
K1C = K0C * 0.044715
V_R, V_R2, V_SD, V_C0, V_C1, V_EPS, V_HQO, V_KVW = 228, 230, 232, 234, 236, 238, 240, 241
V_E = 242
def pk(r): return f"v[{r}:{r+1}]"

def g1_ext(a, vm):
    a.C("---- LN mean / bias correction as one extra k-step ----")
    XE = XR + 32
    vm.wait(a, "ext")
    a.I(f"v_cmp_gt_u32 vcc, 32, v{V_LANE}")
    a.I(f"v_and_b32 v{XE+1}, 0xffff, v{V_STAT}\nv_lshl_or_b32 v{XE+1}, v{XE+1}, 16, v{XE+1}")
    a.I(f"v_lshrrev_b32 v{XE}, 16, v{V_STAT}")
    a.I(f"v_cndmask_b32 v{XE}, v{XE}, v{XE+1}, vcc\nv_cndmask_b32 v{XE+1}, 0, v{XE+1}, vcc")
    a.I(f"v_mov_b32 v{XE+2}, v{XE+1}\nv_mov_b32 v{XE+3}, v{XE+1}")
    a.I(f"v_mov_b32 v{V_R}, v{V_STAT+1}\nv_and_b32 v{V_SD}, 0xffff0000, v{V_STAT}")
    for t in range(7):
        d = ACC + 16 * t; w = XR + 4 * t
        a.I(f"v_mfma_f32_32x32x16_bf16 v[{d}:{d+15}], v[{w}:{w+3}], v[{XE}:{XE+3}], v[{d}:{d+15}]")
        if t == 0:
            a.I(f"v_mul_f32 v{V_R2}, {hx(f32(math.log2(math.e)))}, v{V_R}\nv_mul_f32 v{V_C0}, {hx(f32(K0C))}, v{V_R}")
            a.I(f"v_mul_f32 v{V_C1}, v{V_R}, v{V_R}\nv_mul_f32 v{V_C1}, v{V_C1}, v{V_R}")
        if t == 1:
            a.I(f"v_mul_f32 v{V_C1}, {hx(f32(K1C))}, v{V_C1}\nv_mov_b32 v{V_EPS}, {hx(f32(1e-6))}")
            a.I(f"v_bfe_u32 v{V_E}, v{V_LANE}, 4, 1\nv_mul_u32_u24 v{V_E}, {68*1024}, v{V_E}")
        if t == 2:
            a.I(f"v_and_b32 v{V_E+1}, 15, v{V_LANE}\nv_lshl_add_u32 v{V_E}, v{V_E+1}, 4, v{V_E}")
            a.I(f"v_lshrrev_b32 v{V_E+1}, 5, v{V_LANE}\nv_lshl_add_u32 v{V_HQO}, v{V_E+1}, 8, v{V_E}")
    a.I(f"s_lshl_b32 s{S_TMP}, s{S_RB}, 2\ns_add_u32 s{S_TMP}, s{S_TMP}, s{S_WAVE}\ns_mul_i32 s{S_TMP}, s{S_TMP}, {2*68}")
    a.I(f"s_add_u32 s{S_TMP}, s{S_TMP}, s{S_KS0}\ns_lshl_b32 s{S_TMP+1}, s{S_TMP}, 10")

def ep_gelu(a, r0, n, out):
    T = V_E
    P = range(0, n, 2)
    for i in P: a.I(f"v_pk_mul_f32 {pk(T+i)}, {pk(r0+i)}, {pk(r0+i)}")
    for i in P: a.I(f"v_pk_fma_f32 {pk(T+i)}, {pk(T+i)}, {pk(V_C1)}, {pk(V_C0)} op_sel_hi:[1,0,0]")
    for i in P: a.I(f"v_pk_mul_f32 {pk(T+i)}, {pk(T+i)}, {pk(r0+i)}")
    for i in range(n): a.I(f"v_exp_f32 v{T+i}, v{T+i}")
    for i in P: a.I(f"v_pk_fma_f32 {pk(T+i)}, {pk(T+i)}, {pk(V_SD)}, {pk(V_SD)} op_sel_hi:[1,0,0]")
    for i in range(n): a.I(f"v_rcp_f32 v{T+i}, v{T+i}")
    for i in P: a.I(f"v_pk_mul_f32 {pk(T+i)}, {pk(T+i)}, {pk(r0+i)}")
    for i in P: a.I(f"v_cvt_pk_bf16_f32 v{out+i//2}, v{T+i}, v{T+i+1}")

def ep_phi(a, r0, n, out):
    T = V_E
    P = range(0, n, 2)
    for i in P: a.I(f"v_pk_mul_f32 {pk(T+i)}, {pk(r0+i)}, {pk(V_R2)} op_sel_hi:[1,0]")
    for i in P: a.I(f"v_pk_fma_f32 {pk(r0+i)}, {pk(r0+i)}, {pk(V_R)}, {pk(V_EPS)} op_sel_hi:[1,0,0]")
    for i in range(n): a.I(f"v_exp_f32_e64 v{T+i}, v{T+i} clamp")
    for i in range(n): a.I(f"v_max_f32 v{r0+i}, v{r0+i}, v{V_EPS}")
    for i in P: a.I(f"v_pk_add_f32 {pk(T+i)}, {pk(T+i)}, {pk(r0+i)}")
    for i in P: a.I(f"v_cvt_pk_bf16_f32 v{out+i//2}, v{T+i}, v{T+i+1}")

def ep_lin(a, r0, n, out):
    P = range(0, n, 2)
    for i in P: a.I(f"v_pk_mul_f32 {pk(r0+i)}, {pk(r0+i)}, {pk(V_R)} op_sel_hi:[1,0]")
    for i in P: a.I(f"v_cvt_pk_bf16_f32 v{out+i//2}, v{r0+i}, v{r0+i+1}")

def ep_store_tile(a, vm, t, fn, sc):
    for u in range(2):
        r0 = ACC + 16 * t + 8 * u
        fn(a, r0, 8, r0)
        if u == 0: a.I(f"s_add_u32 s{S_TMP+2}, s{S_TMP+1}, {t*1024}")
        a.I(f"buffer_store_dwordx4 v[{r0}:{r0+3}], v{V_HQO}, {srd(SRD_WS)}, s{S_TMP+2} offen offset:{u*512} {sc}")

def g1_epilogue(a, vm, sc=""):
    a.I(f"s_cmp_eq_u32 s{S_TYPE}, 0\ns_cbranch_scc1 L_ep_kvq\ns_cmp_eq_u32 s{S_TYPE}, 2\ns_cbranch_scc1 L_ep_qx")
    a.I("s_nop 7")
    a.C("---- F epilogue ----")
    for t in range(7):
        if t == 6: a.I(f"s_cmp_eq_u32 s{S_CG}, 14\ns_cbranch_scc1 L_ep_done")
        ep_store_tile(a, vm, t, ep_gelu, sc)
    a.I("s_branch L_ep_done")
    a.L("L_ep_qx")
    a.I("s_nop 7")
    for t in range(4): ep_store_tile(a, vm, t, ep_phi, sc)
    a.I("s_branch L_ep_done")
    a.L("L_ep_kvq")
    a.C("---- KVQ epilogue ----")
    L = V_LANE
    a.I(f"v_and_b32 v{V_E}, 31, v{L}\ns_lshl_b32 s{S_TMP+3}, s{S_WAVE}, 5\nv_add_u32 v{V_E}, s{S_TMP+3}, v{V_E}")
    a.I(f"v_mul_u32_u24 v{V_E}, {KV_RS}, v{V_E}\nv_lshrrev_b32 v{V_E+1}, 5, v{L}\nv_lshl_add_u32 v{V_KVW}, v{V_E+1}, 3, v{V_E}")
    a.I(f"v_mov_b32 v{V_E}, 0x3f803f80\nv_mov_b32 v{V_E+1}, 0x3f803f80")
    a.I(f"ds_write_b64 v{V_KVW}, {pk(V_E)} offset:320")
    a.I("s_nop 3")
    for t in range(5):
        for u in range(2):
            r0 = ACC + 16 * t + 8 * u
            if t < 2: ep_phi(a, r0, 8, r0)
            elif t == 2:
                ep_phi(a, r0, 4, r0); ep_lin(a, r0 + 4, 4, r0 + 2)
            else: ep_lin(a, r0, 8, r0)
            o = 8 * t + 2 * u
            a.I(f"ds_write2_b64 v{V_KVW}, {pk(r0)}, {pk(r0+2)} offset0:{o} offset1:{o+4}")
    AK, AV, C = XR + 40, XR + 41, XR + 42
    a.I(f"v_lshrrev_b32 v{AK}, 5, v{L}\nv_bfe_u32 v{AV}, v{L}, 2, 2\nv_lshl_add_u32 v{AK}, v{AK}, 3, v{AV}\nv_mul_u32_u24 v{AK}, {KV_RS}, v{AK}")
    a.I(f"v_bfe_u32 v{C}, v{L}, 4, 1\nv_and_b32 v{AV}, 3, v{L}\nv_lshl_add_u32 v{C}, v{C}, 2, v{AV}")
    a.I(f"s_mul_i32 s{S_TMP+3}, s{S_WAVE}, 40\nv_lshlrev_b32 v{C+1}, 3, v{C}\nv_add_u32 v{C+1}, s{S_TMP+3}, v{C+1}")
    a.I(f"v_cmp_gt_u32 vcc, 5, v{C}\nv_add_u32 v{C+2}, 160, v{C+1}\nv_mov_b32 v{C+3}, 320")
    a.I(f"v_cndmask_b32 v{C+2}, v{C+3}, v{C+2}, vcc")
    a.I(f"v_add_u32 v{AV}, v{AK}, v{C+2}\nv_add_u32 v{AK}, v{AK}, v{C+1}")
    ep_store_tile(a, vm, 5, ep_phi, sc)
    a.I("s_waitcnt lgkmcnt(0)\ns_barrier")
    FK, FV = 0, 32
    for kp in range(8):
        o = kp * 16 * KV_RS
        a.I(f"ds_read_b64_tr_b16 v[{FK+4*kp}:{FK+4*kp+1}], v{AK} offset:{o}")
        a.I(f"ds_read_b64_tr_b16 v[{FK+4*kp+2}:{FK+4*kp+3}], v{AK} offset:{o+4*KV_RS}")
        a.I(f"ds_read_b64_tr_b16 v[{FV+4*kp}:{FV+4*kp+1}], v{AV} offset:{o}")
        a.I(f"ds_read_b64_tr_b16 v[{FV+4*kp+2}:{FV+4*kp+3}], v{AV} offset:{o+4*KV_RS}")
        if kp >= 2: a.I("s_waitcnt lgkmcnt(8)")
    D = 64
    a.I(f"v_lshrrev_b32 v{C}, 5, v{L}\nv_mul_u32_u24 v{C}, 320, v{C}\nv_and_b32 v{C+1}, 31, v{L}\nv_lshl_add_u32 v{C}, v{C+1}, 2, v{C}")
    a.I(f"s_lshl_b32 s{S_TMP+3}, s{S_CG}, 2\ns_add_u32 s{S_TMP+3}, s{S_TMP+3}, s{S_WAVE}\ns_mul_i32 s{S_TMP+3}, s{S_TMP+3}, 1680\ns_add_u32 s{S_TMP+3}, s{S_TMP+3}, {KV_OFF}")
    a.I("s_waitcnt lgkmcnt(0)")
    for kp in range(8):
        cin = "0" if kp == 0 else f"v[{D}:{D+15}]"
        a.I(f"v_mfma_f32_32x32x16_bf16 v[{D}:{D+15}], v[{FV+4*kp}:{FV+4*kp+3}], v[{FK+4*kp}:{FK+4*kp+3}], {cin}")
    ep_store_tile(a, vm, 6, ep_phi, sc)
    a.I("s_mov_b32 exec_lo, 0xfffff\ns_mov_b32 exec_hi, 0xfffff")
    for r in range(12):
        if r == 9: a.I("s_mov_b32 exec_hi, 0")
        e = 8 * (r >> 2) + (r & 3)
        a.I(f"buffer_atomic_add_f32 v{D+r}, v{C}, {srd(SRD_WS)}, s{S_TMP+3} offen offset:{e*80}")
    a.I("s_mov_b64 exec, -1")
    a.L("L_ep_done")

def k1(a):
    prologue(a, "k1_kernel", "L_k1_end", V_LANE)
    vm = VM()
    global ST
    ST = Stamp(225, 0)
    ST(a, "rt0", True); ST(a, "start")
    g1_setup(a)
    code_prefetch(a, "k1_kernel", 24, V_LANE, V_T, vm)
    for c in range(NINIT):
        for f in g1_loads(c, vm): f(a)
        if c == 0 and PFD:
            for cc in range(1, PFD): g1_pf(cc, vm)(a)
    ST(a, "issued")
    g1_setup2(a)
    g1_main(a, vm, {8: g1_ext_loads(vm, "")})
    ST(a, "mainend")
    g1_ext(a, vm)
    ST(a, "ext")
    g1_epilogue(a, vm)
    ST(a, "epi")
    if STAMPS: a.I("s_waitcnt vmcnt(0)")
    ST(a, "drain"); ST(a, "rt1", True)
    ST.dump(a, V_LANE, V_T)
    a.L("L_k1_end")
    a.I("s_endpgm")

A2, AR = 0, 80
W_L16, W_KVW, W_KVG, W_KT0, W_KT1, W_STG, W_OUTO, W_B2O = 240, 241, 242, 243, 244, 245, 246, 247
W_T = 248
W_LANE = 255
S_A = 64
S_BB, S_RB2, S_CG2, S_T2 = 68, 69, 70, 72
STG_LDS = 0
KVI_LDS = 102400

def g2_setup(a):
    L = W_LANE; t0, t1, t2 = W_T, W_T + 1, W_T + 2
    a.C("---- gemm2 setup ----")
    a.I(f"s_and_b32 s{S_RB2}, s2, 7\ns_lshl_b32 s{S_RB2}, s{S_RB2}, 2\ns_bfe_u32 s{S_T2}, s2, 0x20003\ns_add_u32 s{S_RB2}, s{S_RB2}, s{S_T2}")
    a.I(f"s_lshr_b32 s{S_CG2}, s2, 5")
    a.I(f"v_lshlrev_b32 v{W_L16}, 4, v{L}")
    a.I(f"s_mul_i32 s{S_BB}, s{S_CG2}, {68*5*1024}\ns_add_u32 s{S_BB}, s{S_BB}, {B2_OFF}")
    for sg in range(4):
        a.I(f"s_add_u32 s{S_T2}, s{S_WAVE}, {sg}\ns_and_b32 s{S_T2}, s{S_T2}, 3\ns_lshl_b32 s{S_T2+1}, s{S_RB2}, 2\ns_add_u32 s{S_T2}, s{S_T2}, s{S_T2+1}")
        a.I(f"s_mul_i32 s{S_A+sg}, s{S_T2}, {68*1024}")
    a.I(f"s_mul_i32 s{S_T2}, s{S_WAVE}, 25600\nv_add_u32 v{W_STG}, s{S_T2}, v{W_L16}")

def g2_b_loads(vm, sc, stage_regs):
    out = []
    def att(i):
        def f(a):
            if i % 4 == 0:
                a.I(f"s_mul_i32 s{S_T2}, s{S_WAVE}, {25*1024}\ns_add_u32 s{S_T2}, s{S_T2}, s{S_BB}\ns_add_u32 s{S_T2}, s{S_T2}, {48*5*1024 + i*1024}")
            r = stage_regs + 4 * i
            a.I(f"buffer_load_dwordx4 v[{r}:{r+3}], v{W_L16}, {srd(SRD_WS)}, s{S_T2} offen offset:{(i%4)*1024} {sc}")
            vm.issue("b2a")
        return f
    def ffn(i):
        def f(a):
            if i % 4 == 0:
                a.I(f"s_mul_i32 s{S_T2}, s{S_WAVE}, {60*1024}\ns_add_u32 s{S_T2}, s{S_T2}, s{S_BB}\ns_add_u32 s{S_T2}, s{S_T2}, {i*1024}")
            a.I(f"buffer_load_dwordx4 a[{4*i}:{4*i+3}], v{W_L16}, {srd(SRD_WS)}, s{S_T2} offen offset:{(i%4)*1024} {sc}")
            vm.issue("b2f")
        return f
    return [att(i) for i in range(25)], [ffn(i) for i in range(60)]

def g2_setup2(a):
    L = W_LANE; t0, t1, t2, t3 = W_T, W_T + 1, W_T + 2, W_T + 3
    a.I(f"s_mul_i32 s{S_T2+2}, s{S_WAVE}, 11264\ns_add_u32 s{S_T2+2}, s{S_T2+2}, {KVI_LDS}")
    a.I(f"v_add_u32 v{W_KVW}, s{S_T2+2}, v{W_L16}")
    for i in range(4): a.I(f"v_mov_b32 v{t0+i}, 0")
    for i in range(11): a.I(f"ds_write_b128 v{W_KVW}, v[{t0}:{t3}] offset:{i*1024}")
    a.I("s_nop 1")
    a.I(f"v_mul_u32_u24 v{t0}, 205, v{L}\nv_lshrrev_b32 v{t0}, 10, v{t0}\nv_mul_u32_u24 v{t1}, 5, v{t0}\nv_sub_u32 v{t1}, v{L}, v{t1}")
    a.I(f"v_lshlrev_b32 v{t0}, 6, v{t0}\nv_lshl_add_u32 v{t0}, v{t1}, 3, v{t0}\nv_add_u32 v{W_KVW}, s{S_T2+2}, v{t0}")
    a.I(f"v_and_b32 v{t0}, 15, v{L}\nv_lshrrev_b32 v{t1}, 4, v{L}\nv_lshlrev_b32 v{t1}, 3, v{t1}\nv_add_u32 v{t1}, s{S_T2+2}, v{t1}")
    a.I(f"v_lshl_add_u32 v{W_KT0}, v{t0}, 6, v{t1}")
    a.I(f"v_and_b32 v{t2}, 3, v{L}\nv_cmp_eq_u32 vcc, 0, v{t2}\nv_lshrrev_b32 v{t0}, 2, v{t0}\nv_add_u32 v{t0}, 16, v{t0}\nv_mov_b32 v{t2}, 20")
    a.I(f"v_cndmask_b32 v{t0}, v{t2}, v{t0}, vcc")
    a.I(f"v_lshl_add_u32 v{W_KT1}, v{t0}, 6, v{t1}")
    a.I(f"v_and_b32 v{t0}, 15, v{L}\nv_mul_u32_u24 v{t0}, 1280, v{t0}\nv_lshrrev_b32 v{t1}, 4, v{L}\nv_lshlrev_b32 v{W_B2O}, 3, v{t1}")
    a.I(f"v_add_u32 v{W_OUTO}, v{t0}, v{W_B2O}")

def g2_main(a, vm, sc=""):
    def a_load(j, slot):
        for sg in range(4):
            r = AR + slot * 16 + 4 * sg
            a.I(f"s_add_u32 s{S_T2}, s{S_A+sg}, s{S_T2+3}")
            a.I(f"buffer_load_dwordx4 v[{r}:{r+3}], v{W_L16}, {srd(SRD_WS)}, s{S_T2} offen offset:{(j%4)*1024} {sc}")
            vm.issue(("F", j))
        if j % 4 == 3: a.I(f"s_add_u32 s{S_T2+3}, s{S_T2+3}, 4096")
    def q_load(sg):
        a.I(f"s_mul_i32 s{S_T2}, s{S_WAVE}, {5*1024}\ns_add_u32 s{S_T2}, s{S_T2}, {48*1024}\ns_add_u32 s{S_T2}, s{S_T2}, s{S_A+sg}")
        for t in range(5):
            if t == 4: a.I(f"s_add_u32 s{S_T2}, s{S_T2}, 4096")
            r = 20 * sg + 4 * t
            a.I(f"buffer_load_dwordx4 a[{r}:{r+3}], v{W_L16}, {srd(SRD_WS)}, s{S_T2} offen offset:{(t%4)*1024} {sc}")
            vm.issue("Q")
    KVRAW = AR + 2 * 16
    def kv_load(i0, i1):
        for i in range(i0, i1):
            if i % 4 == 0:
                a.I(f"s_mul_i32 s{S_T2}, s{S_WAVE}, {8*1680}\ns_add_u32 s{S_T2}, s{S_T2}, {KV_OFF + i*960}")
            r = KVRAW + 4 * i
            a.I(f"buffer_load_dwordx4 v[{r}:{r+3}], v{W_L16}, {srd(SRD_WS)}, s{S_T2} offen offset:{(i%4)*960} {sc}")
            vm.issue("KV")
    a.C("---- gemm2 FFN part ----")
    a.I(f"s_mul_i32 s{S_T2+3}, s{S_WAVE}, {12*1024}")
    for j in range(10): a_load(j, j)
    for j in range(12):
        vm.wait(a, ("F", j))
        ST(a, f"F{j}")
        slot = j % 10
        for sg in range(4):
            for ct in range(5):
                d = A2 + (sg * 5 + ct) * 4; b = (j * 5 + ct) * 4; x = AR + slot * 16 + 4 * sg
                cin = "0" if j == 0 else f"v[{d}:{d+3}]"
                a.I(f"v_mfma_f32_16x16x32_bf16 v[{d}:{d+3}], a[{b}:{b+3}], v[{x}:{x+3}], {cin}")
        if j < 2: a_load(10 + j, j)
        if j < 4: q_load(j)
        if 2 <= j <= 5: kv_load(4 * (j - 2), min(14, 4 * (j - 1)))
    ST(a, "ffnend")
    a.C("---- kv -> bf16 fragments ----")
    XRES, B2R = AR + 16 * 6, AR + 16 * 6 + 10
    a.I(f"s_lshl_b32 s{S_T2}, s{S_RB2}, 2\ns_add_u32 s{S_T2}, s{S_T2}, s{S_WAVE}\ns_mul_i32 s{S_T2+4}, s{S_T2}, {16*1280}")
    a.I(f"s_mul_i32 s{S_T2+5}, s{S_CG2}, 160\ns_add_u32 s{S_T2+4}, s{S_T2+4}, s{S_T2+5}")
    mk_srd(a, SRD_T, S_B2, 1280)
    mk_srd(a, SRD_U, S_OUT, 2048 * 1280)
    vm.wait(a, "KV")
    for i in range(14):
        r = KVRAW + 4 * i
        a.I(f"v_cvt_pk_bf16_f32 v{r}, v{r}, v{r+1}\nv_cvt_pk_bf16_f32 v{r+1}, v{r+2}, v{r+3}")
        a.I(f"ds_write_b64 v{W_KVW}, v[{r}:{r+1}] offset:{24 + i*768}")
    for ct in range(5):
        a.I(f"buffer_load_dwordx2 v[{XRES+2*ct}:{XRES+2*ct+1}], v{W_OUTO}, {srd(SRD_X)}, s{S_T2+4} offen offset:{ct*32}")
        a.I(f"buffer_load_dwordx2 v[{B2R+2*ct}:{B2R+2*ct+1}], v{W_B2O}, {srd(SRD_T)}, s{S_T2+5} offen offset:{ct*32}")
        vm.issue("R"); vm.issue("R")
    a.I("s_waitcnt lgkmcnt(0)")
    KT, WO = 80, 144
    n = 0
    for h in range(8):
        for tau in range(2):
            for b in range(2):
                r = KT + (h * 2 + tau) * 4 + 2 * b
                a.I(f"ds_read_b64 a[{r}:{r+1}], v{W_KT1 if tau else W_KT0} offset:{h*1344 + 24 - 8*(h&3) + 32*b}")
                n += 1
        if h >= 2: a.I("s_waitcnt lgkmcnt(8)")
    for i in range(25):
        a.I(f"ds_read_b128 a[{WO+4*i}:{WO+4*i+3}], v{W_STG} offset:{STG_LDS + i*1024}")
        if i >= 6: a.I("s_waitcnt lgkmcnt(14)")
    a.I("s_waitcnt lgkmcnt(0)")
    ST(a, "kvfrag")
    a.C("---- attention: num/den, o ----")
    O = AR
    ND = AR + 16 * 8
    for hp in range(4):
        for sp in range(2):
            for s2 in range(2):
                sg = sp * 2 + s2
                for hh in range(2):
                    h = 2 * hp + hh
                    p = h + (h >> 2)
                    for tau in range(2):
                        d = ND + ((s2 * 2 + hh) * 2 + tau) * 4
                        k = KT + (h * 2 + tau) * 4
                        q = 20 * sg + 2 * p
                        a.I(f"v_mfma_f32_16x16x32_bf16 v[{d}:{d+3}], a[{k}:{k+3}], a[{q}:{q+3}], 0")
            combos = [(s2, hh) for s2 in range(2) for hh in range(2)]
            for s2, hh in combos:
                d = ND + (s2 * 2 + hh) * 8
                a.I(f"v_add_f32 v{d+6}, {hx(f32(1e-6))}, v{d+5}")
            for s2, hh in combos:
                d = ND + (s2 * 2 + hh) * 8
                a.I(f"v_rcp_f32 v{d+6}, v{d+6}")
            for s2, hh in combos:
                d = ND + (s2 * 2 + hh) * 8
                a.I(f"v_pk_mul_f32 {pk(d)}, {pk(d)}, {pk(d+6)} op_sel_hi:[1,0]\nv_pk_mul_f32 {pk(d+2)}, {pk(d+2)}, {pk(d+6)} op_sel_hi:[1,0]")
                a.I(f"v_mul_f32 v{d+4}, v{d+4}, v{d+6}")
            for s2 in range(2):
                sg = sp * 2 + s2
                d0 = ND + (s2 * 2) * 8; d1 = d0 + 8
                vals = [d0 + i for i in range(5)] + [d1 + i for i in range(5)]
                for i in range(5):
                    a.I(f"v_cvt_pk_bf16_f32 v{O + 20*sg + 5*hp + i}, v{vals[2*i]}, v{vals[2*i+1]}")
    ST(a, "odone")
    for t in range(5):
        for sg in range(4):
            for ct in range(5):
                d = A2 + (sg * 5 + ct) * 4; b = WO + (t * 5 + ct) * 4; x = O + 20 * sg + 4 * t
                a.I(f"v_mfma_f32_16x16x32_bf16 v[{d}:{d+3}], a[{b}:{b+3}], v[{x}:{x+3}], v[{d}:{d+3}]")
    ST(a, "attend")
    a.C("---- cross-wave reduction + output ----")
    for sg in range(1, 4):
        a.I(f"s_sub_u32 s{S_T2}, s{S_WAVE}, {sg}\ns_and_b32 s{S_T2}, s{S_T2}, 3\ns_mul_i32 s{S_T2}, s{S_T2}, 25600")
        a.I(f"v_add_u32 v{W_T+sg}, s{S_T2}, v{W_L16}")
    for sg in range(1, 4):
        for ct in range(5):
            d = A2 + (sg * 5 + ct) * 4
            a.I(f"ds_write_b128 v{W_STG}, v[{d}:{d+3}] offset:{STG_LDS + ((sg-1)*5+ct)*1024}")
    a.I("s_waitcnt lgkmcnt(0)\ns_barrier")
    for sg in range(1, 4):
        for ct in range(5):
            d = A2 + (sg * 5 + ct) * 4
            a.I(f"ds_read_b128 v[{d}:{d+3}], v{W_T+sg} offset:{STG_LDS + ((sg-1)*5+ct)*1024}")
    vm.wait(a, "R")
    U = AR
    for ct in range(5):
        for src, o in ((XRES, 0), (B2R, 4)):
            for i in range(2):
                a.I(f"v_lshlrev_b32 v{U+8*ct+o+2*i}, 16, v{src+2*ct+i}\nv_and_b32 v{U+8*ct+o+2*i+1}, 0xffff0000, v{src+2*ct+i}")
        for i in (0, 2):
            a.I(f"v_pk_add_f32 {pk(U+8*ct+i)}, {pk(U+8*ct+i)}, {pk(U+8*ct+4+i)}")
            a.I(f"v_pk_add_f32 {pk(A2+4*ct+i)}, {pk(A2+4*ct+i)}, {pk(U+8*ct+i)}")
    for sg in range(1, 4):
        a.I(f"s_waitcnt lgkmcnt({(3-sg)*5})")
        for ct in range(5):
            d = A2 + (sg * 5 + ct) * 4
            for i in (0, 2): a.I(f"v_pk_add_f32 {pk(A2+4*ct+i)}, {pk(A2+4*ct+i)}, {pk(d+i)}")
    for ct in range(5):
        d = A2 + 4 * ct
        a.I(f"v_cvt_pk_bf16_f32 v{d}, v{d}, v{d+1}\nv_cvt_pk_bf16_f32 v{d+1}, v{d+2}, v{d+3}")
        a.I(f"buffer_store_dwordx2 v[{d}:{d+1}], v{W_OUTO}, {srd(SRD_U)}, s{S_T2+4} offen offset:{ct*32}")

def k2(a):
    prologue(a, "k2_kernel", "L_k2_end", W_LANE)
    vm = VM()
    global ST
    ST = Stamp(254, 1)
    ST(a, "rt0", True); ST(a, "start")
    code_prefetch(a, "k2_kernel", 24, W_LANE, W_T, vm)
    g2_setup(a)
    att, ffn = g2_b_loads(vm, "", AR)
    for f in att: f(a)
    for f in ffn[:36]: f(a)
    g2_setup2(a)
    vm.wait(a, "b2a")
    for i in range(25):
        a.I(f"ds_write_b128 v{W_STG}, v[{AR+4*i}:{AR+4*i+3}] offset:{STG_LDS + i*1024}")
        if i >= 3: a.I("s_waitcnt lgkmcnt(12)")
    for f in ffn[36:]: f(a)
    a.I("s_waitcnt lgkmcnt(0)")
    vm.wait(a, "b2f")
    ST(a, "b2done")
    g2_main(a, vm)
    ST(a, "end")
    if STAMPS: a.I("s_waitcnt vmcnt(0)")
    ST(a, "drain"); ST(a, "rt1", True)
    ST.dump(a, W_LANE, W_T)
    a.L("L_k2_end")
    a.I("s_endpgm")

def header(launches):
    ref = open(f"cdna_kernels/{NAME}.s.ref").read().split("\n")
    out = [l for l in ref if l.startswith(";") and "@launch" not in l and "Override launch" not in l and "grid=ceil" not in l]
    out += launches
    out += ['.amdgcn_target "amdgcn-amd-amdhsa--gfx950"', ".text"]
    return "\n".join(out) + "\n"

def build3(path):
    txt = header([f"; @launch kernel=k{i}_kernel grid=(256,1,1) block=(256,1,1) lds=163840" for i in range(3)])
    tot = 0
    for fn in (k0, k1, k2):
        a = Asm(); fn(a)
        t, n = a.fixed(verbose=False); txt += t; tot += n
    txt += ".p2align 8\n.fill 8192, 4, 0xbf800000\n"
    txt += '.section .rodata,"a"\n'
    for k, nv, ao in (("k0_kernel", 96, 96), ("k1_kernel", 256, 256), ("k2_kernel", 512, 256)):
        txt += ".p2align 6\n" + desc(k, nv, ao)
    open(path, "w").write(txt)
    if STAMPS: open(path + ".names", "w").write(repr(STAMP_NAMES))
    print("written", path, "nops inserted:", tot)

if __name__ == "__main__":
    if "--stamps" in sys.argv:
        STAMPS = True; sys.argv.remove("--stamps")
    for arg in list(sys.argv):
        if "=" in arg:
            k_, v_ = arg.split("="); globals()[k_] = int(v_); sys.argv.remove(arg)
    build3(sys.argv[1] if len(sys.argv) > 1 else f"cdna_kernels/{NAME}.s")
```

```python
import sys, math, struct
sys.path.insert(0, "gen")
from asmlib import Asm

NAME = "parallel_sum__linear_attn_block__dense_activation_gelu__prompt"
KN = NAME + "_kernel"
HQ_OFF   = 0x000000
B2_OFF   = 0x900000
STAT_OFF = 0xC00000
CS_OFF   = 0xC10000
KV_OFF   = 0xC40000
CNT_OFF  = KV_OFF + 53 * 1024
ZERO_KB  = 58
STAMP_OFF = 0xC80000
WS_SIZE  = 0xE00000

STAMPS = 0
CODEPF = 1
ROT1 = 1
ROT2 = 1
PD = 4
NB = 6
MPRIO = 1
SPIN = 40000

def f32(x): return struct.unpack("<I", struct.pack("<f", x))[0]
def hx(x): return hex(x & 0xFFFFFFFF)
def srd(n): return f"s[{n}:{n+3}]"
def pk(r): return f"v[{r}:{r+1}]"
def q4(r): return f"v[{r}:{r+3}]"
SC = "sc1"

S_X, S_WQKV, S_WO, S_W1, S_B1, S_W2, S_B2, S_OUT, S_DBG, S_WS = 4, 6, 8, 12, 14, 16, 18, 20, 22, 24
S_WAVE, S_I = 26, 27
SRD_X, SRD_W, SRD_WS, SRD_T, SRD_U = 28, 32, 36, 40, 44
S_RB, S_CG, S_TYPE, S_STR, S_BASE, S_JA, S_JB, S_NP, S_KS0, S_CSB, S_RB2, S_CG2 = range(48, 60)
T = 60
S_A = 80
S_SPIN = 84
S_M16 = 85
V_LANE, V_L16, V_STAMP = 255, 254, 253

WSLOT = 14336
XRING = 6 * WSLOT
P0_LDS = XRING + 3 * 16384
EXT_LDS = P0_LDS + 16384
SYNC_LDS = EXT_LDS + 8192
KVIMG = 2 * WSLOT
KV_RS = 344
def blds(k): return 0 if k == 0 else 73728 + 25600 * (k - 1)

class Q:
    def __init__(self, name, mx): self.q = []; self.name = name; self.mx = mx
    def issue(self, tag): self.q.append(tag)
    def wait(self, a, tag):
        idx = [i for i, t in enumerate(self.q) if t == tag]
        if not idx: return
        n = len(self.q) - 1 - idx[-1]
        assert n <= self.mx, (self.name, n)
        a.I(f"s_waitcnt {self.name}({n})")
        self.q = self.q[idx[-1] + 1:]
    def drain(self, a):
        a.I(f"s_waitcnt {self.name}(0)"); self.q = []

STAMP_NAMES = {}
class Stamp:
    def __init__(self, role): self.n = 0; self.names = []; STAMP_NAMES[role] = self.names
    def __call__(self, a, name, real=False):
        if not STAMPS: return
        a.I(f"{'s_memrealtime' if real else 's_memtime'} s[92:93]\ns_waitcnt lgkmcnt(0)\nv_writelane_b32 v{V_STAMP}, s92, {self.n}")
        self.names.append(name); self.n += 1
def stamp_dump(a, vt):
    if not STAMPS: return
    a.I(f"s_lshl_b32 s92, s2, 3\ns_add_u32 s92, s92, s{S_WAVE}\ns_lshl_b32 s92, s92, 8\ns_add_u32 s92, s92, {STAMP_OFF}\nv_lshlrev_b32 v{vt}, 2, v{V_LANE}")
    a.I(f"buffer_store_dword v{V_STAMP}, v{vt}, {srd(SRD_WS)}, s92 offen")

def mk_srd(a, d, ptr, size):
    a.I(f"s_mov_b32 s{d}, s{ptr}\ns_mov_b32 s{d+1}, s{ptr+1}")
    a.I(f"s_mov_b32 s{d+2}, {hx(size)}\ns_mov_b32 s{d+3}, 0x20000")

_lbl = [0]
def newlabel(p):
    _lbl[0] += 1; return f"L_{p}{_lbl[0]}"

def lds_wait_ge(a, word, val, vt):
    l = newlabel("lw"); e = newlabel("lwe")
    a.I(f"s_mov_b32 s{S_SPIN}, {SPIN*8}\nv_mov_b32 v{vt}, {SYNC_LDS + 4*word}")
    a.L(l)
    a.I(f"ds_read_b32 v{vt+1}, v{vt}\ns_waitcnt lgkmcnt(0)\nv_readfirstlane_b32 s{T}, v{vt+1}")
    a.I(f"s_cmp_ge_u32 s{T}, {val}\ns_cbranch_scc1 {e}\ns_sleep 1\ns_sub_u32 s{S_SPIN}, s{S_SPIN}, 1\ns_cmp_lg_u32 s{S_SPIN}, 0\ns_cbranch_scc1 {l}")
    a.L(e)

def lds_add(a, word, vt, rtn=False):
    a.I(f"v_mov_b32 v{vt}, {SYNC_LDS + 4*word}\nv_mov_b32 v{vt+1}, 1\ns_mov_b64 exec, 1")
    if rtn: a.I(f"ds_add_rtn_u32 v{vt+1}, v{vt}, v{vt+1}")
    else: a.I(f"ds_add_u32 v{vt}, v{vt+1}")
    a.I("s_mov_b64 exec, -1")

def poll(a, srdn, voff, vexp, vt, nlanes):
    l = newlabel("pl"); e = newlabel("ple")
    a.I(f"s_mov_b32 s{S_SPIN}, {SPIN}\ns_mov_b64 exec, {(1 << nlanes) - 1}")
    a.L(l)
    a.I(f"buffer_load_dword v{vt}, v{voff}, {srd(srdn)}, 0 offen {SC}\ns_waitcnt vmcnt(0)")
    a.I(f"v_cmp_ne_u32 vcc, v{vt}, v{vexp}\ns_nop 4\ns_cbranch_vccz {e}")
    a.I(f"s_sleep 2\ns_sub_u32 s{S_SPIN}, s{S_SPIN}, 1\ns_cmp_lg_u32 s{S_SPIN}, 0\ns_cbranch_scc1 {l}")
    a.L(e)
    a.I("s_mov_b64 exec, -1")

def common(a):
    a.raw(f".globl {KN}\n.p2align 8\n.type {KN},@function")
    a.L(KN)
    a.I("s_cmp_ge_u32 s2, 256\ns_cbranch_scc1 L_end")
    a.I("s_load_dwordx16 s[4:19], s[0:1], 0\ns_load_dwordx4 s[20:23], s[0:1], 64\ns_load_dwordx2 s[24:25], s[0:1], 80")
    a.I(f"v_lshrrev_b32 v1, 6, v0\nv_and_b32 v{V_LANE}, 63, v0")
    a.I(f"v_readfirstlane_b32 s{S_WAVE}, v1\nv_lshlrev_b32 v{V_L16}, 4, v{V_LANE}")
    if CODEPF:
        a.I("s_getpc_b64 s[94:95]\ns_and_b32 s94, s94, 0xffffff00")
        a.I(f"s_and_b32 s92, s2, 0xf8\ns_add_u32 s92, s92, s{S_WAVE}\ns_lshl_b32 s92, s92, 8")
        a.I(f"v_lshlrev_b32 v2, 7, v{V_LANE}\nv_add_u32 v2, s92, v2\ns_mov_b64 exec, 3")
        a.I("global_load_dword v252, v2, s[94:95]\ns_mov_b64 exec, -1")
    a.I(f"s_and_b32 s{S_I}, s{S_WAVE}, 3\ns_mov_b32 s{S_M16}, 0xffff0000")
    a.I(f"s_and_b32 s{T}, s2, 1\ns_lshl_b32 s{T}, s{T}, 3\ns_bfe_u32 s{S_RB}, s2, 0x30003\ns_add_u32 s{S_RB}, s{S_RB}, s{T}")
    a.I(f"s_and_b32 s{T}, s2, 6\ns_lshl_b32 s{T}, s{T}, 1\ns_lshr_b32 s{S_CG}, s2, 6\ns_add_u32 s{S_CG}, s{S_CG}, s{T}")
    a.I(f"s_and_b32 s{S_RB2}, s2, 7\ns_lshl_b32 s{S_RB2}, s{S_RB2}, 2\ns_bfe_u32 s{T}, s2, 0x20003\ns_add_u32 s{S_RB2}, s{S_RB2}, s{T}")
    a.I(f"s_lshr_b32 s{S_CG2}, s2, 5")
    a.I(f"s_mov_b32 s{S_JA}, 0\ns_mov_b32 s{S_JB}, 0\ns_mov_b32 s{S_STR}, 3840\ns_mov_b32 s{S_CSB}, {CS_OFF}\ns_mov_b32 s{S_NP}, 28")
    a.I(f"s_cmp_lt_u32 s{S_CG}, 8\ns_cbranch_scc1 L_t_kvq\ns_cmp_eq_u32 s{S_CG}, 15\ns_cbranch_scc1 L_t_qx")
    a.I(f"s_mov_b32 s{S_TYPE}, 1\ns_sub_u32 s{T}, s{S_CG}, 8\ns_mul_i32 s{S_BASE}, s{T}, 448\ns_mul_i32 s{S_KS0}, s{T}, 7")
    a.I(f"s_mov_b32 s{S_STR}, 3072\ns_mov_b32 s{S_CSB}, {CS_OFF + 1920*32}\ns_cmp_eq_u32 s{S_CG}, 14\ns_cselect_b32 s{S_NP}, 24, 28\ns_branch L_t_done")
    a.L("L_t_qx")
    a.I(f"s_mov_b32 s{S_TYPE}, 2\ns_mov_b32 s{S_BASE}, 1024\ns_mov_b32 s{S_KS0}, 64\ns_mov_b32 s{S_NP}, 16\ns_branch L_t_done")
    a.L("L_t_kvq")
    a.I(f"s_mov_b32 s{S_TYPE}, 0\ns_mul_i32 s{S_BASE}, s{S_CG}, 160\ns_add_u32 s{S_BASE}, s{S_BASE}, 1280\ns_mov_b32 s{S_JA}, 1120")
    a.I(f"s_lshl_b32 s{S_JB}, s{S_CG}, 5\ns_sub_u32 s{S_JB}, {hx(-2720)}, s{S_JB}")
    a.I(f"s_lshl_b32 s{S_KS0}, s{S_CG}, 1\ns_add_u32 s{S_KS0}, s{S_KS0}, {48-5}")
    a.L("L_t_done")
    a.I(f"s_cmp_lt_u32 s{S_WAVE}, 4\ns_cbranch_scc1 L_M\ns_cmp_ge_u32 s{S_WAVE}, 6\ns_cbranch_scc1 L_AUX")

def base_srds(a):
    a.I("s_waitcnt lgkmcnt(0)")
    mk_srd(a, SRD_X, S_X, 2048 * 1280)
    mk_srd(a, SRD_WS, S_WS, WS_SIZE)

def loader(a):
    ST = Stamp("L")
    vm = Q("vmcnt", 63)
    if CODEPF: vm.issue("code")
    VW, VX, t0, t1, t2 = 4, 12, 16, 17, 18
    S_XK, S_WK, S_XB, S_MW, S_MX, S_W32, S_WEND = T + 2, T + 3, T + 4, T + 5, T + 6, T + 7, T + 8
    a.C("==== loader ====")
    ST(a, "rt0", True); ST(a, "start")
    a.I(f"v_lshrrev_b32 v{t0}, 3, v{V_LANE}\nv_and_b32 v{t1}, 7, v{V_LANE}\nv_lshrrev_b32 v{t2}, 1, v{t0}\nv_xor_b32 v{t1}, v{t1}, v{t2}")
    a.I(f"v_mul_u32_u24 v{t0}, 1280, v{t0}\nv_lshl_add_u32 v{VX}, v{t1}, 4, v{t0}\nv_xor_b32 v{VX+1}, 64, v{VX}")
    if ROT1 == 0: a.I(f"s_mov_b32 s{T}, 0")
    else:
        a.I(f"s_and_b32 s{T}, s{S_RB}, 7\ns_and_b32 s{T+1}, s{S_CG}, 3")
        if ROT1 == 1: a.I(f"s_lshl_b32 s{T+1}, s{T+1}, 1\ns_add_u32 s{T}, s{T}, s{T+1}\ns_and_b32 s{T}, s{T}, 7\ns_mul_i32 s{T}, s{T}, 5\ns_lshr_b32 s{T}, s{T}, 2")
        else: a.I(f"s_add_u32 s{T}, s{T}, s{T+1}\ns_and_b32 s{T}, s{T}, 3\ns_mul_i32 s{T}, s{T}, 5\ns_lshr_b32 s{T}, s{T}, 1")
    a.I(f"s_lshl_b32 s{S_XK}, s{T}, 7\ns_lshl_b32 s{S_W32}, s{S_STR}, 5\ns_mul_i32 s{S_WK}, s{T}, s{S_W32}\ns_lshl_b32 s{S_WK}, s{S_WK}, 1")
    a.I(f"s_mul_i32 s{S_WEND}, s{S_STR}, 640")
    a.I(f"s_lshl_b32 s{S_XB}, s{S_RB}, 1\ns_add_u32 s{S_XB}, s{S_XB}, s{S_I}\ns_mul_i32 s{S_XB}, s{S_XB}, {64*1280}")
    a.I(f"s_mul_i32 s{S_MW}, s{S_I}, 7168\ns_lshl_b32 s{S_MX}, s{S_I}, 13\ns_add_u32 s{S_MX}, s{S_MX}, {XRING}")
    base_srds(a)
    def xl(c, half):
        if half == 0: a.I(f"s_add_u32 s{T+9}, s{S_XB}, s{S_XK}")
        for i in range(4 * half, 4 * half + 4):
            a.I(f"s_add_u32 m0, s{S_MX}, {(c%3)*16384 + i*1024}")
            a.I(f"s_add_u32 s{T}, s{T+9}, {i*10240}")
            a.I(f"buffer_load_dwordx4 v{VX+(i&1)}, {srd(SRD_X)}, s{T} offen lds")
            vm.issue(("x", c))
        if half == 0:
            a.I(f"s_add_u32 s{S_XK}, s{S_XK}, 128\ns_cmp_eq_u32 s{S_XK}, 1280\ns_cselect_b32 s{S_XK}, 0, s{S_XK}")
    def wl(h):
        for it in range(7):
            a.I(f"s_add_u32 m0, s{S_MW}, {(h%6)*WSLOT + it*1024}")
            a.I("s_nop 0")
            a.I(f"buffer_load_dwordx4 v{VW+it}, {srd(SRD_W)}, s{S_WK} offen lds")
            vm.issue(("W", h))
        a.I(f"s_add_u32 s{S_WK}, s{S_WK}, s{S_W32}\ns_cmp_eq_u32 s{S_WK}, s{S_WEND}\ns_cselect_b32 s{S_WK}, 0, s{S_WK}")
    xl(0, 0); xl(0, 1)
    a.I(f"s_cmp_eq_u32 s{S_TYPE}, 1\ns_cselect_b32 s{SRD_W}, s{S_W1}, s{S_WQKV}\ns_cselect_b32 s{SRD_W+1}, s{S_W1+1}, s{S_WQKV+1}")
    a.I(f"s_mov_b32 s{SRD_W+2}, s{S_WEND}\ns_mov_b32 s{SRD_W+3}, 0x20000")
    a.I(f"s_lshl_b32 s{T}, s{S_I}, 4\ns_mul_i32 s{T}, s{T}, s{S_STR}\ns_add_u32 s{T}, s{T}, s{S_BASE}")
    a.I(f"v_mov_b32 v20, s{S_JA}\nv_mov_b32 v21, s{S_JB}\nv_mov_b32 v22, 0x40000000")
    for it in range(7):
        a.I(f"v_add_u32 v{t0}, {64*it}, v{V_LANE}\nv_mul_u32_u24 v{t1}, 2341, v{t0}\nv_lshrrev_b32 v{t1}, 16, v{t1}")
        a.I(f"v_mul_u32_u24 v{t2}, 28, v{t1}\nv_sub_u32 v{t0}, v{t0}, v{t2}")
        a.I(f"v_mul_lo_u32 v{t1}, v{t1}, s{S_STR}\nv_lshl_add_u32 v{t1}, v{t0}, 4, v{t1}")
        a.I(f"v_cmp_le_u32 vcc, 10, v{t0}\nv_add_u32 v{t1}, s{T}, v{t1}")
        a.I(f"v_cndmask_b32 v{t2}, 0, v20, vcc\nv_cmp_le_u32 vcc, 20, v{t0}\nv_add_u32 v{t1}, v{t1}, v{t2}")
        a.I(f"v_cndmask_b32 v{t2}, 0, v21, vcc\nv_cmp_le_u32 vcc, s{S_NP}, v{t0}\nv_add_u32 v{t1}, v{t1}, v{t2}")
        a.I(f"v_cndmask_b32 v{VW+it}, v{t1}, v22, vcc")
    def step(h):
        if h > 19: return
        if h == 0: wl(0)
        elif h & 1:
            wl(h)
            if (h + 1) // 2 < 10: xl((h + 1) // 2, 0)
        else:
            xl(h // 2, 1); wl(h)
    step(0); step(1)
    for h in range(20):
        vm.wait(a, ("W", h))
        if h % 2 == 0: ST(a, f"P{h}w")
        a.I("s_barrier")
        step(h + 2)
    ST(a, "ringend")
    a.I("s_branch L_H2")
    return ST

def aux(a):
    ST = Stamp("A")
    vm = Q("vmcnt", 63)
    if CODEPF: vm.issue("code")
    L = V_LANE
    X, CW, U = 4, 24, 64
    t0, t1, t2, t3 = 104, 105, 106, 107
    BIAS = 108
    S_AL, S_ROW, S_L, S_P, S_CB, S_ST = T + 2, T + 3, T + 4, T + 5, T + 6, T + 7
    a.L("L_AUX")
    a.C("==== aux ====")
    ST(a, "rt0", True); ST(a, "start")
    a.I(f"s_sub_u32 s{S_AL}, s{S_WAVE}, 6")
    a.I(f"s_and_b32 s{T}, s2, 1\ns_lshl_b32 s{S_ROW}, s{T}, 10\ns_and_b32 s{T}, s2, 6\ns_lshl_b32 s{T}, s{T}, 7\ns_add_u32 s{S_ROW}, s{S_ROW}, s{T}")
    a.I(f"s_and_b32 s{T}, s2, 0xf8\ns_add_u32 s{S_ROW}, s{S_ROW}, s{T}\ns_lshl_b32 s{T}, s{S_AL}, 2\ns_add_u32 s{S_ROW}, s{S_ROW}, s{T}")
    a.I(f"v_lshrrev_b32 v{t0}, 4, v{L}\nv_mul_u32_u24 v{t0}, 1280, v{t0}\nv_and_b32 v{t1}, 15, v{L}\nv_lshl_add_u32 v{t0}, v{t1}, 4, v{t0}")
    LAM, QD = T + 8, T + 9
    a.I(f"s_lshr_b32 s{LAM}, s2, 4\ns_bfe_u32 s{QD}, s2, 0x20001\ns_and_b32 s{S_P}, s2, 1\ns_lshl_b32 s{S_P}, s{S_P}, 1\ns_bfe_u32 s{T}, s2, 0x10003\ns_add_u32 s{S_P}, s{S_P}, s{T}")
    a.I(f"s_cmp_ge_u32 s{QD}, 2\ns_cbranch_scc1 L_cs_f")
    a.I(f"s_mul_i32 s{S_L}, s{QD}, 5\ns_add_u32 s{S_L}, s{S_L}, s{LAM}\ns_add_u32 s{S_L}, s{S_L}, 10")
    a.I(f"s_cmp_ge_u32 s{LAM}, 5\ns_cselect_b32 s{T}, 5, 0\ns_add_u32 s{S_L}, s{S_L}, s{T}")
    a.I(f"s_lshl_b32 s{T}, s{QD}, 2\ns_add_u32 s{T}, s{T}, s{LAM}\ns_sub_u32 s{T}, s{T}, 10")
    a.I(f"s_cmp_ge_u32 s{LAM}, 10\ns_cselect_b32 s{S_L}, s{T}, s{S_L}\ns_cmp_ge_u32 s{LAM}, 14\ns_cselect_b32 s{S_L}, 64, s{S_L}\ns_branch L_cs_d")
    a.L("L_cs_f")
    a.I(f"s_mul_i32 s{S_L}, s{QD}, 14\ns_add_u32 s{S_L}, s{S_L}, s{LAM}\ns_add_u32 s{S_L}, s{S_L}, 2")
    a.I(f"s_cmp_ge_u32 s{LAM}, 14\ns_cselect_b32 s{S_L}, 64, s{S_L}")
    a.I(f"s_sub_u32 s{T}, s{S_L}, 46\ns_cmp_ge_u32 s{S_L}, 54\ns_cselect_b32 s{T+1}, s{T}, s{S_L}")
    a.I(f"s_cmp_ge_u32 s{S_L}, 56\ns_cselect_b32 s{S_L}, 64, s{T+1}")
    a.L("L_cs_d")
    base_srds(a)
    a.I(f"s_mul_i32 s{T}, s{S_ROW}, 1280")
    for i in range(5):
        a.I(f"buffer_load_dwordx4 {q4(X+4*i)}, v{t0}, {srd(SRD_X)}, s{T} offen offset:{256*i}")
        vm.issue("x")
    a.I(f"s_cmp_ge_u32 s{S_L}, 30")
    a.I(f"s_cselect_b32 s{SRD_T}, s{S_W1}, s{S_WQKV}\ns_cselect_b32 s{SRD_T+1}, s{S_W1+1}, s{S_WQKV+1}")
    a.I(f"s_mov_b32 s{S_ST}, 3840\ns_cselect_b32 s{S_ST}, 3072, s{S_ST}\ns_cselect_b32 s{S_CB}, 30, 0\ns_cselect_b32 s{SRD_U+2}, 3072, 0")
    a.I(f"s_mul_i32 s{SRD_T+2}, s{S_ST}, 640\ns_mov_b32 s{SRD_T+3}, 0x20000")
    a.I(f"s_mov_b32 s{SRD_U}, s{S_B1}\ns_mov_b32 s{SRD_U+1}, s{S_B1+1}\ns_mov_b32 s{SRD_U+3}, 0x20000")
    a.I(f"s_cmp_ge_u32 s{S_L}, 54\ns_cselect_b32 s{SRD_T+2}, 0, s{SRD_T+2}")
    a.I(f"s_sub_u32 s{S_CB}, s{S_L}, s{S_CB}\ns_lshl_b32 s{S_CB}, s{S_CB}, 7\ns_lshl_b32 s{T}, s{S_AL}, 6\ns_add_u32 s{S_CB}, s{S_CB}, s{T}")
    a.I(f"s_mul_i32 s{T}, s{S_P}, 160\ns_mul_i32 s{T}, s{T}, s{S_ST}\ns_add_u32 s{T}, s{T}, s{S_CB}\ns_lshl_b32 s{T+1}, s{S_ST}, 4")
    a.I(f"v_lshrrev_b32 v{t1}, 2, v{L}\nv_mul_lo_u32 v{t1}, v{t1}, s{S_ST}\nv_and_b32 v{t2}, 3, v{L}\nv_lshl_add_u32 v{t1}, v{t2}, 4, v{t1}")
    for it in range(10):
        a.I(f"buffer_load_dwordx4 {q4(CW+4*it)}, v{t1}, {srd(SRD_T)}, s{T} offen")
        vm.issue("w")
        if it < 9: a.I(f"s_add_u32 s{T}, s{T}, s{T+1}")
    a.I(f"v_lshlrev_b32 v{t3}, 1, v{L}")
    a.I(f"buffer_load_ushort v{BIAS}, v{t3}, {srd(SRD_U)}, s{S_CB} offen")
    vm.issue("w")
    a.I(f"v_mov_b32 v{t2}, 0\nv_lshlrev_b32 v{t3}, 2, v{L}\nv_add_u32 v{t3}, {SYNC_LDS}, v{t3}\nds_write_b32 v{t3}, v{t2}\ns_waitcnt lgkmcnt(0)")
    bar = [0]
    def B(n=1):
        for _ in range(n): a.I("s_barrier"); bar[0] += 1
    B()
    ST(a, "P0")
    vm.wait(a, "x")
    def red16(v):
        for m in ("quad_perm:[1,0,3,2]", "quad_perm:[2,3,0,1]", "row_half_mirror", "row_mirror"):
            a.I(f"v_add_f32_dpp v{v}, v{v}, v{v} {m} row_mask:0xf bank_mask:0xf")
    for i in range(20):
        a.I(f"v_lshlrev_b32 v{U+2*i}, 16, v{X+i}\nv_and_b32 v{U+2*i+1}, s{S_M16}, v{X+i}")
    a.I(f"v_pk_add_f32 {pk(t0)}, {pk(U)}, {pk(U+2)}\nv_pk_add_f32 {pk(t2)}, {pk(U+4)}, {pk(U+6)}")
    for i in range(4, 20):
        r = t0 if i % 2 == 0 else t2
        a.I(f"v_pk_add_f32 {pk(r)}, {pk(r)}, {pk(U+2*i)}")
    a.I(f"v_pk_add_f32 {pk(t0)}, {pk(t0)}, {pk(t2)}\nv_add_f32 v{t0}, v{t0}, v{t1}")
    red16(t0)
    a.I(f"v_mul_f32 v{t0}, {hx(f32(-1.0/640))}, v{t0}")
    for i in range(20):
        a.I(f"v_pk_add_f32 {pk(U+2*i)}, {pk(U+2*i)}, {pk(t0)} op_sel_hi:[1,0]")
    a.I(f"v_pk_mul_f32 {pk(t2)}, {pk(U)}, {pk(U)}\nv_pk_mul_f32 {pk(X)}, {pk(U+2)}, {pk(U+2)}")
    for i in range(2, 20):
        r = t2 if i % 2 == 0 else X
        a.I(f"v_pk_fma_f32 {pk(r)}, {pk(U+2*i)}, {pk(U+2*i)}, {pk(r)}")
    a.I(f"v_pk_add_f32 {pk(t2)}, {pk(t2)}, {pk(X)}\nv_add_f32 v{t2}, v{t2}, v{t3}")
    red16(t2)
    a.I(f"v_mul_f32 v{t2}, {hx(f32(1.0/640))}, v{t2}")
    a.I(f"v_cvt_pk_bf16_f32 v{t2}, v{t2}, v{t2}\nv_and_b32 v{t2}, s{S_M16}, v{t2}")
    a.I(f"v_add_f32 v{t2}, {hx(f32(1e-5))}, v{t2}")
    a.I(f"v_cvt_pk_bf16_f32 v{t2}, v{t2}, v{t2}\nv_and_b32 v{t2}, s{S_M16}, v{t2}")
    a.I(f"v_sqrt_f32 v{t2}, v{t2}")
    a.I(f"v_cvt_pk_bf16_f32 v{X}, v{t0}, v{t2}")
    a.I(f"v_and_b32 v{t2}, s{S_M16}, v{X}")
    a.I(f"v_rcp_f32 v{X+1}, v{t2}")
    a.I(f"v_lshrrev_b32 v{t1}, 1, v{L}\ns_lshl_b32 s{T}, s{S_ROW}, 3\ns_add_u32 s{T}, s{T}, {STAT_OFF}")
    a.I("s_mov_b32 exec_lo, 0x00010001\ns_mov_b32 exec_hi, 0x00010001")
    a.I(f"buffer_store_dwordx2 {pk(X)}, v{t1}, {srd(SRD_WS)}, s{T} offen {SC}")
    vm.issue("st")
    a.I("s_mov_b64 exec, -1")
    B()
    vm.wait(a, "w")
    AC, E = U, U + 8
    for it in range(10):
        dst = AC if it == 0 else E + 8 * (it & 1)
        for i in range(4):
            a.I(f"v_lshlrev_b32 v{dst+2*i}, 16, v{CW+4*it+i}\nv_and_b32 v{dst+2*i+1}, s{S_M16}, v{CW+4*it+i}")
        if it:
            for i in range(4): a.I(f"v_pk_add_f32 {pk(AC+2*i)}, {pk(AC+2*i)}, {pk(dst+2*i)}")
        if it == 5: B()
    for i in range(4): a.I(f"v_permlane32_swap_b32 v{AC+i}, v{AC+i+4}")
    for i in range(4): a.I(f"v_add_f32 v{AC+i}, v{AC+i}, v{AC+i+4}")
    for i in range(2): a.I(f"v_permlane16_swap_b32 v{AC+i}, v{AC+i+2}")
    for i in range(2): a.I(f"v_add_f32 v{AC+i}, v{AC+i}, v{AC+i+2}")
    for m in ("row_ror:8", "row_ror:4"):
        for i in range(2): a.I(f"v_add_f32_dpp v{AC+i}, v{AC+i}, v{AC+i} {m} row_mask:0xf bank_mask:0xf")
    a.I(f"v_bfe_u32 v{t0}, v{L}, 2, 1\nv_cmp_eq_u32 vcc, 1, v{t0}\nv_and_b32 v{t1}, 3, v{L}\nv_lshl_add_u32 v{t0}, v{t1}, 3, v{t0}")
    a.I(f"v_cndmask_b32 v{AC}, v{AC}, v{AC+1}, vcc\nv_lshrrev_b32 v{t1}, 4, v{L}\nv_lshl_add_u32 v{t0}, v{t1}, 1, v{t0}\nv_lshlrev_b32 v{t0}, 5, v{t0}")
    a.I(f"v_cvt_pk_bf16_f32 v{t2}, v{AC}, v{AC}\nv_and_b32 v{t2}, s{S_M16}, v{t2}\nv_sub_f32 v{t2}, v{AC}, v{t2}\nv_cvt_pk_bf16_f32 v{t2}, v{AC}, v{t2}")
    a.I(f"s_cmp_ge_u32 s{S_L}, 54\ns_cbranch_scc1 L_cs_skip")
    a.I(f"s_lshl_b32 s{T}, s{S_L}, 11\ns_lshl_b32 s{T+1}, s{S_AL}, 10\ns_add_u32 s{T}, s{T}, s{T+1}\ns_add_u32 s{T}, s{T}, {CS_OFF}")
    a.I(f"s_lshl_b32 s{T+1}, s{S_P}, 2\ns_add_u32 s{T+1}, s{T+1}, s{T}")
    a.I("s_mov_b32 exec_lo, 0x00ff00ff\ns_mov_b32 exec_hi, 0x00ff00ff")
    a.I(f"buffer_store_dword v{t2}, v{t0}, {srd(SRD_WS)}, s{T+1} offen {SC}")
    a.I(f"s_mov_b64 exec, -1\ns_cmp_lg_u32 s{S_P}, 0\ns_cbranch_scc1 L_cs_skip")
    a.I(f"v_mov_b32 v{BIAS+1}, 0\nv_mov_b32 v{BIAS+2}, 0\nv_mov_b32 v{BIAS+3}, 0\nv_lshlrev_b32 v{t1}, 5, v{L}\ns_mov_b32 exec_hi, 0")
    a.I(f"buffer_store_dwordx4 {q4(BIAS)}, v{t1}, {srd(SRD_WS)}, s{T} offen offset:16 {SC}")
    a.I("s_mov_b64 exec, -1")
    a.L("L_cs_skip")
    ST(a, "p0done")
    B()
    vm.drain(a)
    B()
    ST(a, "P4")
    mk_srd(a, SRD_T, S_DBG, 256)
    a.I(f"s_cmp_lg_u32 s{S_AL}, 0\ns_cbranch_scc1 L_s1_skip")
    a.I(f"s_and_b32 s{T}, s2, 3\ns_lshl_b32 s{T}, s{T}, 6\nv_mov_b32 v{t0}, s{T}\nv_mov_b32 v{t1}, 1\ns_mov_b64 exec, 1")
    a.I(f"buffer_atomic_add v{t1}, v{t0}, {srd(SRD_T)}, 0 offen\ns_mov_b64 exec, -1")
    a.L("L_s1_skip")
    CSO, CSOM = 110, 111
    a.I(f"v_and_b32 v{t0}, 7, v{L}\nv_bfe_u32 v{t1}, v{L}, 4, 1\nv_lshl_add_u32 v{t0}, v{t1}, 3, v{t0}")
    a.I(f"v_bfe_u32 v{t1}, v{L}, 3, 1\nv_lshl_add_u32 v{t0}, v{t1}, 4, v{t0}\nv_lshlrev_b32 v{t0}, 5, v{t0}")
    a.I(f"v_lshrrev_b32 v{t2}, 5, v{L}\nv_lshl_add_u32 v{CSO}, v{t2}, 4, v{t0}")
    a.I(f"s_lshl_b32 s{T}, s{S_JA}, 4\nv_mul_lo_u32 v{t1}, v{t1}, s{T}\nv_add_u32 v{CSOM}, v{CSO}, v{t1}")
    a.I(f"v_lshlrev_b32 v{t0}, 6, v{L}\nv_mov_b32 v{t1}, 64")
    B(S1BAR - bar[0])
    ST(a, "prepoll")
    poll(a, SRD_T, t0, t1, t2, 4)
    ST(a, "S1")
    a.I(f"s_cmp_lg_u32 s{S_AL}, 0\ns_cbranch_scc1 L_ext_b")
    def cs(t, r):
        a.I(f"s_add_u32 s{T}, s{S_BASE}, {64*t}")
        if t >= 3: a.I(f"s_add_u32 s{T}, s{T}, s{S_JA}")
        if t >= 5: a.I(f"s_add_u32 s{T}, s{T}, s{S_JB}")
        a.I(f"s_lshl_b32 s{T}, s{T}, 4\ns_add_u32 s{T}, s{T}, s{S_CSB}")
        a.I(f"buffer_load_dwordx4 {q4(r)}, v{CSOM if t == 2 else CSO}, {srd(SRD_WS)}, s{T} offen {SC}")
    for t in range(4): cs(t, X + 4 * t)
    a.I("s_branch L_ext_c")
    a.L("L_ext_b")
    for t in range(4, 7): cs(t, X + 4 * (t - 4))
    a.I(f"s_lshl_b32 s{T}, s{S_RB}, 10\ns_add_u32 s{T}, s{T}, {STAT_OFF}")
    a.I(f"buffer_load_dwordx4 {q4(X+12)}, v{V_L16}, {srd(SRD_WS)}, s{T} offen {SC}")
    a.L("L_ext_c")
    a.I(f"s_lshl_b32 s{T}, s{S_AL}, 12\ns_add_u32 s{T}, s{T}, {EXT_LDS}\nv_add_u32 v{t0}, s{T}, v{V_L16}")
    B(2)
    a.I("s_waitcnt vmcnt(0)")
    for i in range(4): a.I(f"ds_write_b128 v{t0}, {q4(X+4*i)} offset:{1024*i}")
    a.I("s_waitcnt lgkmcnt(0)")
    B(20 - bar[0])
    ST(a, "ringend")
    return ST
S1BAR = 14

def g2_common(a):
    for sg in range(4):
        a.I(f"s_add_u32 s{T}, s{S_I}, {sg}")
        if ROT2: a.I(f"s_add_u32 s{T}, s{T}, s{S_CG2}")
        a.I(f"s_and_b32 s{T}, s{T}, 3\ns_lshl_b32 s{T+1}, s{S_RB2}, 2\ns_add_u32 s{T}, s{T}, s{T+1}")
        a.I(f"s_mul_i32 s{S_A+sg}, s{T}, {68*1024}")
        if sg == 0: a.I(f"s_mul_i32 s{S_OUTS}, s{T}, {16*1280}\ns_mul_i32 s{S_B2S}, s{S_CG2}, 160\ns_add_u32 s{S_OUTS}, s{S_OUTS}, s{S_B2S}")
S_OUTS, S_B2S, S_BB = 86, 87, 88

def final_reduce(a, vm, ST, ACC, role, cts, RES, TMP, VA):
    VW_, VO, VB = VA + 4, VA + 5, VA + 6
    a.C("---- cross-wave reduction + output ----")
    a.I("s_waitcnt lgkmcnt(0)\ns_barrier")
    ST(a, "barA")
    for sg in range(4):
        for ct in range(5):
            if sg == 0 and ct in cts: continue
            a.I(f"ds_write_b128 v{VA}, {q4(ACC+(sg*5+ct)*4)} offset:{role*20480 + (sg*5+ct)*1024}")
        if sg == 2: a.I("s_waitcnt lgkmcnt(8)")
    vm.wait(a, "R")
    n = len(cts)
    for k, ct in enumerate(cts):
        for src, o in ((RES + 4 * k, 0), (RES + 4 * k + 2, 4)):
            for i in range(2):
                a.I(f"v_lshlrev_b32 v{TMP+o+2*i}, 16, v{src+i}\nv_and_b32 v{TMP+o+2*i+1}, s{S_M16}, v{src+i}")
        for i in (0, 2):
            a.I(f"v_pk_add_f32 {pk(TMP+i)}, {pk(TMP+i)}, {pk(TMP+4+i)}")
        for i in (0, 2):
            a.I(f"v_pk_add_f32 {pk(ACC+4*ct+i)}, {pk(ACC+4*ct+i)}, {pk(TMP+i)}")
    a.I("s_waitcnt lgkmcnt(0)\ns_barrier")
    ST(a, "barB")
    lg = Q("lgkmcnt", 15)
    srcs = [(sg, r) for sg in range(4) for r in range(2) if not (sg == 0 and r == role)]
    dst = {}
    free = [ACC + 20 + 4 * i for i in range(15)] + [TMP + 4 * i for i in range(6)]
    k = 0
    def rd(j):
        sg, r = srcs[j]
        for ct in cts:
            d = free[(j * n + cts.index(ct)) % len(free)]
            a.I(f"ds_read_b128 {q4(d)}, v{VA+sg} offset:{r*20480 + (sg*5+ct)*1024}")
            lg.issue(j); dst[(j, ct)] = d
    ahead = 15 // n
    for j in range(min(ahead, 7)): rd(j)
    for j in range(7):
        lg.wait(a, j)
        for ct in cts:
            for i in (0, 2): a.I(f"v_pk_add_f32 {pk(ACC+4*ct+i)}, {pk(ACC+4*ct+i)}, {pk(dst[(j,ct)]+i)}")
        if j + ahead < 7: rd(j + ahead)
    for ct in cts:
        d = ACC + 4 * ct
        a.I(f"v_cvt_pk_bf16_f32 v{d}, v{d}, v{d+1}\nv_cvt_pk_bf16_f32 v{d+1}, v{d+2}, v{d+3}")
        a.I(f"buffer_store_dwordx2 {pk(d)}, v{VO}, {srd(SRD_U)}, s{S_OUTS} offen offset:{ct*32}")

def reduce_setup(a, vm, cts, RES, VA, t0):
    VO, VB = VA + 5, VA + 6
    for sg in range(4):
        a.I(f"s_sub_u32 s{T}, s{S_I}, {sg}\ns_and_b32 s{T}, s{T}, 3\ns_mul_i32 s{T}, s{T}, 40960\nv_add_u32 v{VA+sg}, s{T}, v{V_L16}")
    a.I(f"v_and_b32 v{t0}, 15, v{V_LANE}\nv_mul_u32_u24 v{t0}, 1280, v{t0}\nv_lshrrev_b32 v{VB}, 4, v{V_LANE}\nv_lshlrev_b32 v{VB}, 3, v{VB}")
    a.I(f"v_add_u32 v{VO}, v{t0}, v{VB}")
    mk_srd(a, SRD_T, S_B2, 1280)
    mk_srd(a, SRD_U, S_OUT, 2048 * 1280)
    for k, ct in enumerate(cts):
        a.I(f"buffer_load_dwordx2 {pk(RES+4*k)}, v{VO}, {srd(SRD_X)}, s{S_OUTS} offen offset:{ct*32}")
        a.I(f"buffer_load_dwordx2 {pk(RES+4*k+2)}, v{VB}, {srd(SRD_T)}, s{S_B2S} offen offset:{ct*32}")
        vm.issue("R"); vm.issue("R")

def h2(a, STs):
    class Both:
        def __call__(self, a_, name, real=False):
            if not STAMPS: return
            n = max(s.n for s in STs)
            for s in STs:
                while s.n < n: s.names.append("-"); s.n += 1
            a_.I(f"{'s_memrealtime' if real else 's_memtime'} s[92:93]\ns_waitcnt lgkmcnt(0)\nv_writelane_b32 v{V_STAMP}, s92, {n}")
            for s in STs: s.names.append(name); s.n += 1
    ST = Both()
    vm = Q("vmcnt", 63); lg = Q("lgkmcnt", 15)
    ACC, BR, AR = 0, 80, 200
    VT = 248
    S_KK = 64
    a.L("L_H2")
    a.C("==== gemm2, FFN part (waves 4..7) ====")
    g2_common(a)
    if ROT2:
        a.I(f"s_and_b32 s{T}, s{S_RB2}, 3\ns_mul_i32 s{T}, s{T}, 3\ns_mul_i32 s{T+1}, s{S_CG2}, 3\ns_lshr_b32 s{T+1}, s{T+1}, 1\ns_add_u32 s{T}, s{T}, s{T+1}")
        a.I(f"s_cmp_ge_u32 s{T}, 12\ns_cselect_b32 s{T+1}, 12, 0\ns_sub_u32 s{T}, s{T}, s{T+1}")
    else: a.I(f"s_mov_b32 s{T}, 0")
    a.I(f"s_mul_i32 s{T+2}, s{S_I}, 12")
    for j in range(12):
        a.I(f"s_add_u32 s{S_KK+j}, s{T}, s{T+2}\ns_lshl_b32 s{S_KK+j}, s{S_KK+j}, 10")
        if j < 11: a.I(f"s_add_u32 s{T}, s{T}, 1\ns_cmp_eq_u32 s{T}, 12\ns_cselect_b32 s{T}, 0, s{T}")
    a.I(f"s_mul_i32 s{S_BB}, s{S_CG2}, {68*5*1024}\ns_add_u32 s{S_BB}, s{S_BB}, {B2_OFF}")
    def bload(j, regs, tag):
        a.I(f"s_mul_i32 s{T}, s{S_KK+j}, 5\ns_add_u32 s{T}, s{T}, s{S_BB}\ns_add_u32 s{T+1}, s{T}, 4096")
        for ct in range(5):
            a.I(f"buffer_load_dwordx4 {q4(regs[ct])}, v{V_L16}, {srd(SRD_WS)}, s{T + (ct >> 2)} offen offset:{(ct&3)*1024} {SC}")
            vm.issue(tag)
    for j in range(6): bload(j, [BR + 20 * j + 4 * ct for ct in range(5)], "br")
    stg = [4 * i for i in range(20)] + [AR + 4 * i for i in range(5)]
    for j in range(6, 11): bload(j, stg[5 * (j - 6):5 * (j - 5)], ("bl", j))
    ST(a, "bissued")
    lds_wait_ge(a, 0, 4, VT)
    a.I(f"s_sub_u32 s{T}, s{S_I}, 1\ns_mul_i32 s{T}, s{T}, 25600\ns_add_u32 s{T}, s{T}, 73728\ns_cmp_eq_u32 s{S_I}, 0\ns_cselect_b32 s{T}, 0, s{T}")
    VBL = VT + 4
    a.I(f"v_add_u32 v{VBL}, s{T}, v{V_L16}")
    for j in range(6, 11):
        vm.wait(a, ("bl", j))
        for ct in range(5):
            a.I(f"ds_write_b128 v{VBL}, {q4(stg[5*(j-6)+ct])} offset:{(5*(j-6)+ct)*1024}")
        a.I("s_waitcnt lgkmcnt(5)")
    a.I("s_waitcnt lgkmcnt(0)")
    ST(a, "bdone")
    a.I(f"s_lshr_b32 s{T}, s{S_RB2}, 1\ns_lshl_b32 s{T}, s{T}, 7\ns_add_u32 s{T}, s{T}, {CNT_OFF}\nv_mov_b32 v{VT}, s{T}\nv_mov_b32 v{VT+1}, 7")
    poll(a, SRD_WS, VT, VT + 1, VT + 2, 1)
    ST(a, "S2F")
    def aload(j):
        for sg in range(4):
            a.I(f"s_add_u32 s{T}, s{S_A+sg}, s{S_KK+j}")
            a.I(f"buffer_load_dwordx4 {q4(AR + (j%3)*16 + 4*sg)}, v{V_L16}, {srd(SRD_WS)}, s{T} offen {SC}")
            vm.issue(("A", j))
    def bslot(j): return BR + 20 * (j if j < 6 else (0 if j == 11 else j - 5))
    for j in range(3): aload(j)
    for j in range(12):
        if 6 <= j + 1 <= 10:
            for ct in range(5):
                a.I(f"ds_read_b128 {q4(bslot(j+1)+4*ct)}, v{VBL} offset:{(5*(j+1-6)+ct)*1024}")
                lg.issue(j + 1)
        vm.wait(a, ("A", j))
        lg.wait(a, j)
        if j in (0, 3, 6, 9): ST(a, f"A{j}")
        for sg in range(4):
            for ct in range(5):
                d = ACC + (sg * 5 + ct) * 4
                cin = "0" if j == 0 else q4(d)
                a.I(f"v_mfma_f32_16x16x32_bf16 {q4(d)}, {q4(bslot(j)+4*ct)}, {q4(AR+(j%3)*16+4*sg)}, {cin}")
        if j + 3 < 12: aload(j + 3)
        if j == 0: bload(11, [BR + 4 * ct for ct in range(5)], "b11")
        if j == 9:
            RES, VA = AR, AR + 8
            reduce_setup(a, vm, [3, 4], RES, VA, VT)
    ST(a, "ffnend")
    final_reduce(a, vm, ST, ACC, 1, [3, 4], RES, BR, VA)
    ST(a, "end")
    if STAMPS: a.I("s_waitcnt vmcnt(0)")
    ST(a, "rt1", True)
    stamp_dump(a, VT)
    a.I("s_endpgm")

K0C = -2.0 * math.sqrt(2.0 / math.pi) * math.log2(math.e)
K1C = K0C * 0.044715
ACC1, AF, BF = 0, 112, 120
V_E = 144
V_R, V_R2, V_SD, V_C0, V_C1, V_EPS = 160, 162, 164, 166, 168, 170
V_TRA, V_VA, V_HQO, V_KVW = 240, 242, 246, 247

def ep_gelu(a, r0, n, out):
    Tm = V_E; P = range(0, n, 2)
    for i in P: a.I(f"v_pk_mul_f32 {pk(Tm+i)}, {pk(r0+i)}, {pk(r0+i)}")
    for i in P: a.I(f"v_pk_fma_f32 {pk(Tm+i)}, {pk(Tm+i)}, {pk(V_C1)}, {pk(V_C0)} op_sel_hi:[1,0,0]")
    for i in P: a.I(f"v_pk_mul_f32 {pk(Tm+i)}, {pk(Tm+i)}, {pk(r0+i)}")
    for i in range(n): a.I(f"v_exp_f32 v{Tm+i}, v{Tm+i}")
    for i in P: a.I(f"v_pk_fma_f32 {pk(Tm+i)}, {pk(Tm+i)}, {pk(V_SD)}, {pk(V_SD)} op_sel_hi:[1,0,0]")
    for i in range(n): a.I(f"v_rcp_f32 v{Tm+i}, v{Tm+i}")
    for i in P: a.I(f"v_pk_mul_f32 {pk(Tm+i)}, {pk(Tm+i)}, {pk(r0+i)}")
    for i in P: a.I(f"v_cvt_pk_bf16_f32 v{out+i//2}, v{Tm+i}, v{Tm+i+1}")
def ep_phi(a, r0, n, out):
    Tm = V_E; P = range(0, n, 2)
    for i in P: a.I(f"v_pk_mul_f32 {pk(Tm+i)}, {pk(r0+i)}, {pk(V_R2)} op_sel_hi:[1,0]")
    for i in P: a.I(f"v_pk_fma_f32 {pk(r0+i)}, {pk(r0+i)}, {pk(V_R)}, {pk(V_EPS)} op_sel_hi:[1,0,0]")
    for i in range(n): a.I(f"v_exp_f32_e64 v{Tm+i}, v{Tm+i} clamp")
    for i in range(n): a.I(f"v_max_f32 v{r0+i}, v{r0+i}, v{V_EPS}")
    for i in P: a.I(f"v_pk_add_f32 {pk(Tm+i)}, {pk(Tm+i)}, {pk(r0+i)}")
    for i in P: a.I(f"v_cvt_pk_bf16_f32 v{out+i//2}, v{Tm+i}, v{Tm+i+1}")
def ep_lin(a, r0, n, out):
    P = range(0, n, 2)
    for i in P: a.I(f"v_pk_mul_f32 {pk(r0+i)}, {pk(r0+i)}, {pk(V_R)} op_sel_hi:[1,0]")
    for i in P: a.I(f"v_cvt_pk_bf16_f32 v{out+i//2}, v{r0+i}, v{r0+i+1}")
S_HQ = T + 10
def ep_store_tile(a, t, fn):
    for u in range(2):
        r0 = ACC1 + 16 * t + 8 * u
        fn(a, r0, 8, r0)
        if u == 0: a.I(f"s_add_u32 s{T+1}, s{S_HQ}, {t*1024}")
        a.I(f"buffer_store_dwordx4 {q4(r0)}, v{V_HQO}, {srd(SRD_WS)}, s{T+1} offen offset:{u*512} {SC}")

def mwave(a):
    ST = Stamp("M")
    L = V_LANE
    t0, t1, t2, t3 = V_E, V_E + 1, V_E + 2, V_E + 3
    a.L("L_M")
    a.C("==== M waves: phase 0 (re-layout of w2 / wo, zeroing) ====")
    ST(a, "rt0", True); ST(a, "start")
    GW, KS, LC, SO, LB = T + 2, T + 3, T + 4, T + 5, T + 6
    VO, VI = V_E + 4, V_E + 5
    a.I(f"s_lshl_b32 s{GW}, s2, 2\ns_add_u32 s{GW}, s{GW}, s{S_WAVE}")
    a.I(f"s_mul_hi_u32 s{KS}, s{GW}, {hx((1<<32)//10+1)}\ns_mul_i32 s{LC}, s{KS}, 10\ns_sub_u32 s{LC}, s{GW}, s{LC}")
    a.I(f"v_lshrrev_b32 v{t0}, 3, v{L}\nv_and_b32 v{t1}, 7, v{L}")
    base_srds(a)
    a.I(f"s_cmp_ge_u32 s{GW}, 680\ns_cbranch_scc1 L_p0_noc")
    a.I(f"s_cmp_ge_u32 s{KS}, 48\ns_cbranch_scc1 L_p0_att")
    mk_srd(a, SRD_T, S_W2, 1536 * 1280)
    a.I(f"v_lshrrev_b32 v{t2}, 2, v{t0}\nv_and_b32 v{t3}, 3, v{t0}\nv_lshl_add_u32 v{VO}, v{t2}, 4, v{t3}")
    a.I(f"v_mov_b32 v{VI}, {4*1280}\ns_lshl_b32 s{SO}, s{KS}, 5\ns_branch L_p0_cgo")
    a.L("L_p0_att")
    mk_srd(a, SRD_T, S_WO, 640 * 1280)
    a.I(f"s_sub_u32 s{T}, s{KS}, 48\ns_mul_i32 s{T+1}, s{T}, 205\ns_lshr_b32 s{T+1}, s{T+1}, 10")
    a.I(f"s_mul_i32 s{SO}, s{T+1}, 5\ns_sub_u32 s{T}, s{T}, s{SO}\ns_lshl_b32 s{T}, s{T}, 3\ns_mul_i32 s{SO}, s{T+1}, 160")
    a.I(f"v_add_u32 v{t2}, s{T}, v{t0}")
    a.I(f"v_mul_u32_u24 v{t3}, 205, v{t2}\nv_lshrrev_b32 v{t3}, 10, v{t3}")
    a.I(f"v_mul_u32_u24 v{VO}, 5, v{t3}\nv_sub_u32 v{t2}, v{t2}, v{VO}")
    a.I(f"v_cmp_eq_u32 vcc, 4, v{t2}\nv_mov_b32 v{VO}, 16\nv_mov_b32 v{VI}, 1280")
    a.I(f"v_cndmask_b32 v{t2}, v{t2}, v{VO}, vcc\nv_mov_b32 v{VO}, {4*1280}")
    a.I(f"v_cndmask_b32 v{VI}, v{VO}, v{VI}, vcc")
    a.I(f"v_mad_u32_u24 v{VO}, v{t3}, 20, v{t2}")
    a.L("L_p0_cgo")
    a.I(f"v_mul_u32_u24 v{VO}, 1280, v{VO}\nv_lshl_add_u32 v{VO}, v{t1}, 4, v{VO}")
    a.I(f"s_mul_i32 s{SO}, s{SO}, 1280\ns_lshl_b32 s{T}, s{LC}, 7\ns_add_u32 s{SO}, s{SO}, s{T}")
    a.I(f"s_lshl_b32 s{LB}, s{S_WAVE}, 12\ns_add_u32 s{LB}, s{LB}, {P0_LDS}")
    for it in range(4):
        a.I(f"s_add_u32 m0, s{LB}, {it*1024}\ns_nop 0")
        a.I(f"buffer_load_dwordx4 v{VO}, {srd(SRD_T)}, s{SO} offen lds")
        if it < 3: a.I(f"v_add_u32 v{VO}, v{VO}, v{VI}")
    a.I(f"v_lshrrev_b32 v{t0}, 4, v{L}\nv_bfe_u32 v{t1}, v{L}, 2, 2\nv_and_b32 v{t2}, 3, v{L}")
    a.I(f"v_lshl_add_u32 v{t0}, v{t0}, 3, v{t1}\nv_lshlrev_b32 v{t0}, 7, v{t0}\nv_lshl_add_u32 v{t0}, v{t2}, 3, v{t0}\nv_add_u32 v{t0}, s{LB}, v{t0}")
    a.I(f"s_lshl_b32 s{LC}, s{LC}, 2\ns_mul_i32 s{KS}, s{KS}, 5")
    for i in range(4):
        a.I(f"s_mul_i32 s{T}, s{LC}, 205\ns_lshr_b32 s{T}, s{T}, 10\ns_mul_i32 s{T}, s{T}, 335\ns_add_u32 s{T}, s{T}, s{LC}\ns_add_u32 s{T}, s{T}, s{KS}")
        a.I(f"s_lshl_b32 s{T}, s{T}, 10\ns_add_u32 s{T+10+i}, s{T}, {B2_OFF}\ns_add_u32 s{LC}, s{LC}, 1")
    FR = 172
    a.I("s_waitcnt vmcnt(0)")
    for i in range(4):
        a.I(f"ds_read_b64_tr_b16 {pk(FR+4*i)}, v{t0} offset:{32*i}\nds_read_b64_tr_b16 {pk(FR+4*i+2)}, v{t0} offset:{32*i+512}")
    for i in range(4):
        a.I(f"s_waitcnt lgkmcnt({6-2*i})")
        a.I(f"buffer_store_dwordx4 {q4(FR+4*i)}, v{V_L16}, {srd(SRD_WS)}, s{T+10+i} offen {SC}")
    a.I("s_branch L_p0_cdone")
    a.L("L_p0_noc")
    a.I(f"s_sub_u32 s{T}, s{GW}, 680\ns_cmp_ge_u32 s{T}, {ZERO_KB}\ns_cbranch_scc1 L_p0_cdone")
    a.I(f"s_lshl_b32 s{T}, s{T}, 10\ns_add_u32 s{T}, s{T}, {KV_OFF}")
    for i in range(4): a.I(f"v_mov_b32 v{FR+i}, 0")
    a.I(f"buffer_store_dwordx4 {q4(FR)}, v{V_L16}, {srd(SRD_WS)}, s{T} offen {SC}")
    a.L("L_p0_cdone")
    a.C("==== gemm1 main loop ====")
    a.I(f"v_lshrrev_b32 v{t0}, 5, v{L}\nv_bfe_u32 v{t1}, v{L}, 2, 2\nv_lshl_add_u32 v{t0}, v{t0}, 3, v{t1}\nv_mul_u32_u24 v{t0}, 448, v{t0}")
    a.I(f"v_and_b32 v{t1}, 1, v{L}\nv_lshl_add_u32 v{t0}, v{t1}, 3, v{t0}\nv_bfe_u32 v{t1}, v{L}, 1, 1\nv_lshl_add_u32 v{t0}, v{t1}, 5, v{t0}")
    a.I(f"v_bfe_u32 v{t1}, v{L}, 4, 1\nv_lshl_add_u32 v{V_TRA}, v{t1}, 4, v{t0}\nv_add_u32 v{V_TRA+1}, {3*WSLOT}, v{V_TRA}")
    a.I(f"v_and_b32 v{t0}, 31, v{L}\nv_bfe_u32 v{t1}, v{L}, 1, 3\nv_lshrrev_b32 v{t2}, 5, v{L}\nv_xor_b32 v{t1}, v{t1}, v{t2}")
    a.I(f"v_lshlrev_b32 v{t0}, 7, v{t0}\nv_lshl_add_u32 v{t0}, v{t1}, 4, v{t0}\ns_lshl_b32 s{T}, s{S_WAVE}, 12\ns_add_u32 s{T}, s{T}, {XRING}")
    a.I(f"v_add_u32 v{V_VA}, s{T}, v{t0}")
    for ks in range(1, 4): a.I(f"v_xor_b32 v{V_VA+ks}, {32*ks}, v{V_VA}")
    if MPRIO: a.I(f"s_setprio {MPRIO}")
    ST(a, "p0done")
    lg = Q("lgkmcnt", 15)
    NM = 280
    def reads(m):
        h, r = divmod(m, 14); ks2, t = divmod(r, 7); g = m // 7
        if t == 0:
            c, ks = divmod(g, 4)
            a.I(f"ds_read_b128 {q4(AF+4*(g&1))}, v{V_VA+ks} offset:{(c%3)*16384}")
            lg.issue(m)
        slot = h % 6
        off = (slot % 3) * WSLOT + ks2 * 7168 + t * 64
        b = BF + (m % NB) * 4
        a.I(f"ds_read_b64_tr_b16 {pk(b)}, v{V_TRA + slot//3} offset:{off}")
        a.I(f"ds_read_b64_tr_b16 {pk(b+2)}, v{V_TRA + slot//3} offset:{off+1792}")
        lg.issue(m); lg.issue(m)
    def P(h):
        if h == 4: a.I("s_waitcnt vmcnt(0)")
        a.I("s_barrier")
        if h % 2 == 0: ST(a, f"P{h}")
    P(0)
    for m in range(PD): reads(m)
    for m in range(NM):
        t = m % 7; g = m // 7
        lg.wait(a, m)
        d = ACC1 + 16 * t
        cin = "0" if m < 7 else f"v[{d}:{d+15}]"
        a.I(f"v_mfma_f32_32x32x16_bf16 v[{d}:{d+15}], {q4(BF+(m%NB)*4)}, {q4(AF+4*(g&1))}, {cin}")
        if m + PD < NM:
            if (m + PD) % 14 == 0: P((m + PD) // 14)
            reads(m + PD)
        elif m + PD == NM:
            a.I(f"v_and_b32 v{t0}, 31, v{L}\ns_lshl_b32 s{T}, s{S_WAVE}, 8\ns_add_u32 s{T}, s{T}, {EXT_LDS+7168}")
            a.I(f"v_lshl_add_u32 v{t0}, v{t0}, 3, s{T}\nv_add_u32 v{t1}, {EXT_LDS}, v{V_L16}")
            a.I(f"ds_read_b64 {pk(t2)}, v{t0}"); lg.issue("st")
        elif m + PD == NM + 1:
            for tt in range(7):
                a.I(f"ds_read_b128 {q4(172+4*tt)}, v{t1} offset:{tt*1024}"); lg.issue(("e", tt))
    lds_add(a, 0, V_E + 4)
    lg.issue("add")
    ST(a, "mainend")
    XE = 200
    lg.wait(a, "st")
    a.I(f"v_cmp_gt_u32 vcc, 32, v{L}")
    a.I(f"v_and_b32 v{XE+1}, 0xffff, v{t2}\nv_lshl_or_b32 v{XE+1}, v{XE+1}, 16, v{XE+1}\nv_lshrrev_b32 v{XE}, 16, v{t2}")
    a.I(f"v_cndmask_b32 v{XE}, v{XE}, v{XE+1}, vcc\nv_cndmask_b32 v{XE+1}, 0, v{XE+1}, vcc")
    a.I(f"v_mov_b32 v{XE+2}, v{XE+1}\nv_mov_b32 v{XE+3}, v{XE+1}")
    a.I(f"v_mov_b32 v{V_R}, v{t3}\nv_and_b32 v{V_SD}, s{S_M16}, v{t2}")
    for t in range(7):
        d = ACC1 + 16 * t
        lg.wait(a, ("e", t))
        a.I(f"v_mfma_f32_32x32x16_bf16 v[{d}:{d+15}], {q4(172+4*t)}, {q4(XE)}, v[{d}:{d+15}]")
        if t == 0:
            a.I(f"v_mul_f32 v{V_R2}, {hx(f32(math.log2(math.e)))}, v{V_R}\nv_mul_f32 v{V_C0}, {hx(f32(K0C))}, v{V_R}")
            a.I(f"v_mul_f32 v{V_C1}, v{V_R}, v{V_R}\nv_mul_f32 v{V_C1}, v{V_C1}, v{V_R}")
        if t == 1:
            a.I(f"v_mul_f32 v{V_C1}, {hx(f32(K1C))}, v{V_C1}\nv_mov_b32 v{V_EPS}, {hx(f32(1e-6))}")
            a.I(f"v_bfe_u32 v{t0}, v{L}, 4, 1\nv_mul_u32_u24 v{t0}, {68*1024}, v{t0}")
        if t == 2:
            a.I(f"v_and_b32 v{t1}, 15, v{L}\nv_lshl_add_u32 v{t0}, v{t1}, 4, v{t0}")
            a.I(f"v_lshrrev_b32 v{t1}, 5, v{L}\nv_lshl_add_u32 v{V_HQO}, v{t1}, 8, v{t0}")
    a.I(f"s_lshl_b32 s{T}, s{S_RB}, 2\ns_add_u32 s{T}, s{T}, s{S_WAVE}\ns_mul_i32 s{T}, s{T}, {2*68}")
    a.I(f"s_add_u32 s{T}, s{T}, s{S_KS0}\ns_lshl_b32 s{S_HQ}, s{T}, 10")
    ST(a, "ext")
    SIG, SIGX = T + 11, T + 12
    a.I(f"s_lshl_b32 s{SIG}, s{S_RB}, 7\ns_add_u32 s{SIG}, s{SIG}, {CNT_OFF}\ns_mov_b32 s{SIGX}, 1")
    a.I(f"s_cmp_eq_u32 s{S_TYPE}, 0\ns_cbranch_scc1 L_ep_kvq\ns_cmp_eq_u32 s{S_TYPE}, 2\ns_cbranch_scc1 L_ep_qx")
    a.I("s_nop 3")
    for t in range(7):
        if t == 6: a.I(f"s_cmp_eq_u32 s{S_CG}, 14\ns_cbranch_scc1 L_ep_done")
        ep_store_tile(a, t, ep_gelu)
    a.I("s_branch L_ep_done")
    a.L("L_ep_qx")
    a.I(f"s_add_u32 s{SIG}, s{SIG}, 2048\ns_nop 3")
    for t in range(4): ep_store_tile(a, t, ep_phi)
    a.I("s_branch L_ep_done")
    a.L("L_ep_kvq")
    a.I(f"s_add_u32 s{SIG}, s{SIG}, 2048\ns_mov_b32 s{SIGX}, 3")
    a.I(f"v_and_b32 v{t0}, 31, v{L}\ns_lshl_b32 s{T}, s{S_WAVE}, 5\nv_add_u32 v{t0}, s{T}, v{t0}")
    a.I(f"v_mul_u32_u24 v{t0}, {KV_RS}, v{t0}\nv_lshrrev_b32 v{t1}, 5, v{L}\nv_lshl_add_u32 v{V_KVW}, v{t1}, 3, v{t0}\nv_add_u32 v{V_KVW}, {KVIMG}, v{V_KVW}")
    a.I(f"v_mov_b32 v{XE}, 0x3f803f80\nv_mov_b32 v{XE+1}, 0x3f803f80")
    a.I(f"ds_write_b64 v{V_KVW}, {pk(XE)} offset:320")
    for t in range(5):
        for u in range(2):
            r0 = ACC1 + 16 * t + 8 * u
            if t < 2: ep_phi(a, r0, 8, r0)
            elif t == 2:
                ep_phi(a, r0, 4, r0); ep_lin(a, r0 + 4, 4, r0 + 2)
            else: ep_lin(a, r0, 8, r0)
            o = 8 * t + 2 * u
            a.I(f"ds_write2_b64 v{V_KVW}, {pk(r0)}, {pk(r0+2)} offset0:{o} offset1:{o+4}")
    a.I("s_waitcnt lgkmcnt(0)")
    lds_add(a, 1, 112)
    AK, AV, C = 114, 115, 116
    a.I(f"v_lshrrev_b32 v{AK}, 5, v{L}\nv_bfe_u32 v{AV}, v{L}, 2, 2\nv_lshl_add_u32 v{AK}, v{AK}, 3, v{AV}\nv_mul_u32_u24 v{AK}, {KV_RS}, v{AK}")
    a.I(f"v_add_u32 v{AK}, {KVIMG}, v{AK}")
    a.I(f"v_bfe_u32 v{C}, v{L}, 4, 1\nv_and_b32 v{AV}, 3, v{L}\nv_lshl_add_u32 v{C}, v{C}, 2, v{AV}")
    a.I(f"s_mul_i32 s{T}, s{S_WAVE}, 40\nv_lshlrev_b32 v{C+1}, 3, v{C}\nv_add_u32 v{C+1}, s{T}, v{C+1}")
    a.I(f"v_cmp_gt_u32 vcc, 5, v{C}\nv_add_u32 v{C+2}, 160, v{C+1}\nv_mov_b32 v{C+3}, 320")
    a.I(f"v_cndmask_b32 v{C+2}, v{C+3}, v{C+2}, vcc")
    a.I(f"v_add_u32 v{AV}, v{AK}, v{C+2}\nv_add_u32 v{AK}, v{AK}, v{C+1}")
    a.I(f"v_lshrrev_b32 v{C}, 5, v{L}\nv_mul_u32_u24 v{C}, 320, v{C}\nv_and_b32 v{C+1}, 31, v{L}\nv_lshl_add_u32 v{C}, v{C+1}, 2, v{C}")
    lds_wait_ge(a, 1, 4, 112)
    FK, FV, D = 0, 32, 64
    for kp in range(8):
        o = kp * 16 * KV_RS
        a.I(f"ds_read_b64_tr_b16 {pk(FK+4*kp)}, v{AK} offset:{o}\nds_read_b64_tr_b16 {pk(FK+4*kp+2)}, v{AK} offset:{o+4*KV_RS}")
        a.I(f"ds_read_b64_tr_b16 {pk(FV+4*kp)}, v{AV} offset:{o}\nds_read_b64_tr_b16 {pk(FV+4*kp+2)}, v{AV} offset:{o+4*KV_RS}")
        if kp >= 2:
            a.I("s_waitcnt lgkmcnt(8)")
            k2 = kp - 2
            a.I(f"v_mfma_f32_32x32x16_bf16 v[{D}:{D+15}], {q4(FV+4*k2)}, {q4(FK+4*k2)}, {'0' if k2 == 0 else f'v[{D}:{D+15}]'}")
    for k2 in (6, 7):
        a.I(f"s_waitcnt lgkmcnt({4*(7-k2)})")
        a.I(f"v_mfma_f32_32x32x16_bf16 v[{D}:{D+15}], {q4(FV+4*k2)}, {q4(FK+4*k2)}, v[{D}:{D+15}]")
    a.I(f"s_lshl_b32 s{T+2}, s{S_CG}, 2\ns_add_u32 s{T+2}, s{T+2}, s{S_WAVE}\ns_mul_i32 s{T+2}, s{T+2}, 1680\ns_add_u32 s{T+2}, s{T+2}, {KV_OFF}")
    a.I("s_mov_b32 exec_lo, 0xfffff\ns_mov_b32 exec_hi, 0xfffff")
    for r in range(12):
        if r == 9: a.I("s_mov_b32 exec_hi, 0")
        e = 8 * (r >> 2) + (r & 3)
        a.I(f"buffer_atomic_add_f32 v{D+r}, v{C}, {srd(SRD_WS)}, s{T+2} offen offset:{e*80}")
    a.I("s_mov_b64 exec, -1")
    ep_store_tile(a, 5, ep_phi)
    ep_store_tile(a, 6, ep_phi)
    a.L("L_ep_done")
    ST(a, "epi")
    a.C("---- publish ----")
    a.I(f"s_lshl_b32 s{T}, s{S_CG}, 7\ns_add_u32 s{T}, s{T}, {CNT_OFF+4096}\nv_mov_b32 v114, s{SIG}\nv_mov_b32 v115, 1")
    a.I(f"v_writelane_b32 v114, s{T}, 1")
    a.I("s_waitcnt vmcnt(0)")
    ST(a, "drain")
    lds_add(a, 2, 112, rtn=True)
    a.I(f"s_waitcnt lgkmcnt(0)\nv_readfirstlane_b32 s{T}, v113\ns_cmp_lg_u32 s{T}, 3\ns_cbranch_scc1 L_nosig")
    a.I(f"s_mov_b32 exec_lo, s{SIGX}\ns_mov_b32 exec_hi, 0")
    a.I(f"buffer_atomic_add v115, v114, {srd(SRD_WS)}, 0 offen\ns_mov_b64 exec, -1")
    a.L("L_nosig")
    if MPRIO: a.I("s_setprio 0")
    a.C("==== gemm2, attention part (waves 0..3) ====")
    vm = Q("vmcnt", 63)
    PQ, AC2, WO = 0, 80, 160
    VT = 240
    W_KVW, W_KT0, W_KT1 = 250, 251, 252
    g2_common(a)
    a.I(f"s_mul_i32 s{S_BB}, s{S_CG2}, {68*5*1024}\ns_mul_i32 s{T}, s{S_WAVE}, {25*1024}\ns_add_u32 s{S_BB}, s{S_BB}, s{T}\ns_add_u32 s{S_BB}, s{S_BB}, {B2_OFF + 48*5*1024}")
    def woload(t, slot):
        a.I(f"s_add_u32 s{T}, s{S_BB}, {t*5120}\ns_add_u32 s{T+1}, s{T}, 4096")
        for ct in range(5):
            a.I(f"buffer_load_dwordx4 {q4(WO+20*slot+4*ct)}, v{V_L16}, {srd(SRD_WS)}, s{T+(ct>>2)} offen offset:{(ct&3)*1024} {SC}")
            vm.issue(("wo", t))
    for t in range(4): woload(t, t)
    lds_wait_ge(a, 2, 4, VT)
    u0, u1, u2, u3 = VT, VT + 1, VT + 2, VT + 3
    KB = T + 13
    a.I(f"s_mul_i32 s{KB}, s{S_WAVE}, 11264\ns_add_u32 s{KB}, s{KB}, {KVIMG}\nv_add_u32 v{W_KVW}, s{KB}, v{V_L16}")
    for i in range(4): a.I(f"v_mov_b32 v{AC2+i}, 0")
    for i in range(11): a.I(f"ds_write_b128 v{W_KVW}, {q4(AC2)} offset:{i*1024}")
    a.I(f"v_mul_u32_u24 v{u0}, 205, v{L}\nv_lshrrev_b32 v{u0}, 10, v{u0}\nv_mul_u32_u24 v{u1}, 5, v{u0}\nv_sub_u32 v{u1}, v{L}, v{u1}")
    a.I(f"v_lshlrev_b32 v{u0}, 6, v{u0}\nv_lshl_add_u32 v{u0}, v{u1}, 3, v{u0}")
    a.I("s_waitcnt lgkmcnt(0)")
    a.I(f"v_add_u32 v{W_KVW}, s{KB}, v{u0}")
    a.I(f"v_and_b32 v{u0}, 15, v{L}\nv_lshrrev_b32 v{u1}, 4, v{L}\nv_lshlrev_b32 v{u1}, 3, v{u1}\nv_add_u32 v{u1}, s{KB}, v{u1}")
    a.I(f"v_lshl_add_u32 v{W_KT0}, v{u0}, 6, v{u1}")
    a.I(f"v_and_b32 v{u2}, 3, v{L}\nv_cmp_eq_u32 vcc, 0, v{u2}\nv_lshrrev_b32 v{u0}, 2, v{u0}\nv_add_u32 v{u0}, 16, v{u0}\nv_mov_b32 v{u2}, 20")
    a.I(f"v_cndmask_b32 v{u0}, v{u2}, v{u0}, vcc")
    a.I(f"v_lshl_add_u32 v{W_KT1}, v{u0}, 6, v{u1}")
    a.I(f"s_lshl_b32 s{T}, s{S_WAVE}, 8\ns_add_u32 s{T}, s{T}, {CNT_OFF+4096-128}\nv_lshlrev_b32 v{u0}, 7, v{L}\nv_add_u32 v{u0}, s{T}, v{u0}\nv_mov_b32 v{u1}, 16")
    a.I(f"s_lshr_b32 s{T}, s{S_RB2}, 1\ns_lshl_b32 s{T}, s{T}, 7\ns_add_u32 s{T}, s{T}, {CNT_OFF+2048}\ns_mov_b32 s{T+1}, 9")
    a.I(f"v_writelane_b32 v{u0}, s{T}, 0\nv_writelane_b32 v{u1}, s{T+1}, 0")
    ST(a, "prepoll")
    poll(a, SRD_WS, u0, u1, u2, 3)
    vm.q = []
    ST(a, "S3")
    KVRAW = AC2
    for i in range(14):
        if i % 4 == 0: a.I(f"s_mul_i32 s{T}, s{S_WAVE}, {8*1680}\ns_add_u32 s{T}, s{T}, {KV_OFF + i*960}")
        a.I(f"buffer_load_dwordx4 {q4(KVRAW+4*i)}, v{V_L16}, {srd(SRD_WS)}, s{T} offen offset:{(i%4)*960} {SC}")
        vm.issue(("kv", i))
    for sg in range(4):
        a.I(f"s_mul_i32 s{T}, s{S_WAVE}, {5*1024}\ns_add_u32 s{T}, s{T}, {48*1024}\ns_add_u32 s{T}, s{T}, s{S_A+sg}\ns_add_u32 s{T+1}, s{T}, 4096")
        for t in range(5):
            a.I(f"buffer_load_dwordx4 {q4(PQ+20*sg+4*t)}, v{V_L16}, {srd(SRD_WS)}, s{T+(t>>2)} offen offset:{(t&3)*1024} {SC}")
            vm.issue(("pq", sg))
    for i in range(14):
        r = KVRAW + 4 * i
        vm.wait(a, ("kv", i))
        a.I(f"v_cvt_pk_bf16_f32 v{r}, v{r}, v{r+1}\nv_cvt_pk_bf16_f32 v{r+1}, v{r+2}, v{r+3}")
        a.I(f"ds_write_b64 v{W_KVW}, {pk(r)} offset:{24 + i*768}")
    a.I("s_waitcnt lgkmcnt(0)")
    ST(a, "kvlds")
    KT, ND = AC2, AC2 + 32
    for qd in range(2):
        for hq in range(4):
            h = 4 * qd + hq
            for tau in range(2):
                for b in range(2):
                    a.I(f"ds_read_b64 {pk(KT+(hq*2+tau)*4+2*b)}, v{W_KT1 if tau else W_KT0} offset:{h*1344 + 24 - 8*hq + 32*b}")
            if hq == 2: a.I("s_waitcnt lgkmcnt(8)")
        a.I("s_waitcnt lgkmcnt(0)")
        for sg in range(4):
            vm.wait(a, ("pq", sg))
            for hq in range(4):
                for tau in range(2):
                    a.I(f"v_mfma_f32_16x16x32_bf16 {q4(ND+(hq*2+tau)*4)}, {q4(KT+(hq*2+tau)*4)}, {q4(PQ+20*sg+10*qd+2*hq)}, 0")
            for hq in range(4): a.I(f"v_add_f32 v{ND+8*hq+6}, {hx(f32(1e-6))}, v{ND+8*hq+5}")
            for hq in range(4): a.I(f"v_rcp_f32 v{ND+8*hq+6}, v{ND+8*hq+6}")
            for hq in range(4):
                d = ND + 8 * hq
                a.I(f"v_pk_mul_f32 {pk(d)}, {pk(d)}, {pk(d+6)} op_sel_hi:[1,0]\nv_pk_mul_f32 {pk(d+2)}, {pk(d+2)}, {pk(d+6)} op_sel_hi:[1,0]")
                a.I(f"v_mul_f32 v{d+4}, v{d+4}, v{d+6}")
            vals = [ND + 8 * hq + i for hq in range(4) for i in range(5)]
            for i in range(10):
                a.I(f"v_cvt_pk_bf16_f32 v{PQ+20*sg+10*qd+i}, v{vals[2*i]}, v{vals[2*i+1]}")
    ST(a, "odone")
    RES, VA = 0, VT
    for t in range(5):
        if t == 4: vm.wait(a, ("wo", 4))
        for sg in range(4):
            for ct in range(5):
                d = AC2 + (sg * 5 + ct) * 4
                a.I(f"v_mfma_f32_16x16x32_bf16 {q4(d)}, {q4(WO+20*(t%4)+4*ct)}, {q4(PQ+20*sg+4*t)}, {'0' if t == 0 else q4(d)}")
        if t == 0: woload(4, 0)
        if t == 2: reduce_setup(a, vm, [0, 1, 2], RES, VA, VT + 8)
    ST(a, "attend")
    final_reduce(a, vm, ST, AC2, 0, [0, 1, 2], RES, WO, VA)
    ST(a, "end")
    if STAMPS: a.I("s_waitcnt vmcnt(0)")
    ST(a, "rt1", True)
    stamp_dump(a, VT + 8)
    a.L("L_end")
    a.I("s_endpgm")

def header(launches):
    ref = open(f"cdna_kernels/{NAME}.s.ref").read().split("\n")
    out = [l for l in ref if l.startswith(";") and "@launch" not in l]
    out += launches
    out += ['.amdgcn_target "amdgcn-amd-amdhsa--gfx950"', ".text"]
    return "\n".join(out) + "\n"

def build(path, listform):
    ln = f"; @launch kernel={KN} grid=(256,1,1) block=(512,1,1) lds=163840" if listform else "; @launch grid=(256,1,1) block=(512,1,1) lds=163840"
    txt = header([ln])
    a = Asm()
    common(a)
    s1 = loader(a)
    s2 = aux(a)
    h2(a, [s1, s2])
    mwave(a)
    t, n = a.fixed()
    txt += t
    txt += ".p2align 8\n.fill 16384, 4, 0xbf800000\n"
    txt += f""".section .rodata,"a"
.p2align 6
.amdhsa_kernel {KN}
  .amdhsa_next_free_vgpr 256
  .amdhsa_next_free_sgpr 96
  .amdhsa_accum_offset 256
  .amdhsa_group_segment_fixed_size 0
  .amdhsa_kernarg_size 88
  .amdhsa_user_sgpr_count 2
  .amdhsa_user_sgpr_kernarg_segment_ptr 1
  .amdhsa_system_sgpr_workgroup_id_x 1
.end_amdhsa_kernel
"""
    open(path, "w").write(txt)
    if STAMPS: open(path + ".names", "w").write(repr(STAMP_NAMES))
    print("written", path, "nops inserted:", n)

if __name__ == "__main__":
    LIST = 0
    for arg in list(sys.argv):
        if "=" in arg:
            k_, v_ = arg.split("="); globals()[k_] = int(v_); sys.argv.remove(arg)
    build(sys.argv[1] if len(sys.argv) > 1 else f"cdna_kernels/{NAME}.s", LIST)
```

```python
import sys, math, struct
sys.path.insert(0, "gen")
from asmlib import Asm

NAME = "parallel_sum__linear_attn_block__dense_activation_gelu__prompt"
KN = NAME + "_kernel"
HQ_OFF   = 0x000000
B2_OFF   = 0x900000
STAT_OFF = 0xC00000
CS_OFF   = 0xC10000
KV_OFF   = 0xC40000
CNT_OFF  = KV_OFF + 53 * 1024
ZERO_KB  = 58
STAMP_OFF = 0xC80000
WS_SIZE  = 0xE00000

STAMPS = 0
CODEPF = 1
ROT1 = 1
ROT2 = 1
PD = 4
NB = 6
MPRIO = 1
SPIN = 40000
DIAG = 0

def f32(x): return struct.unpack("<I", struct.pack("<f", x))[0]
def hx(x): return hex(x & 0xFFFFFFFF)
def srd(n): return f"s[{n}:{n+3}]"
def pk(r): return f"v[{r}:{r+1}]"
def q4(r): return f"v[{r}:{r+3}]"
SC = "sc1"

S_X, S_WQKV, S_WO, S_W1, S_B1, S_W2, S_B2, S_OUT, S_DBG, S_WS = 4, 6, 8, 12, 14, 16, 18, 20, 22, 24
S_WAVE, S_I = 26, 27
SRD_X, SRD_W, SRD_WS, SRD_T, SRD_U = 28, 32, 36, 40, 44
S_RB, S_CG, S_TYPE, S_STR, S_BASE, S_JA, S_JB, S_NP, S_KS0, S_CSB, S_RB2, S_CG2 = range(48, 60)
T = 60
S_A = 80
S_SPIN = 84
S_M16 = 85
V_LANE, V_L16, V_STAMP = 255, 254, 253

WSLOT = 14336
XRING = 6 * WSLOT
P0_LDS = XRING + 3 * 16384
EXT_LDS = P0_LDS + 16384
SYNC_LDS = EXT_LDS + 8192
KVIMG = 2 * WSLOT
KV_RS = 344
def blds(k): return 0 if k == 0 else 73728 + 25600 * (k - 1)

class Q:
    def __init__(self, name, mx): self.q = []; self.name = name; self.mx = mx
    def issue(self, tag): self.q.append(tag)
    def wait(self, a, tag):
        idx = [i for i, t in enumerate(self.q) if t == tag]
        if not idx: return
        n = len(self.q) - 1 - idx[-1]
        assert n <= self.mx, (self.name, n)
        a.I(f"s_waitcnt {self.name}({n})")
        self.q = self.q[idx[-1] + 1:]
    def drain(self, a):
        a.I(f"s_waitcnt {self.name}(0)"); self.q = []

STAMP_NAMES = {}
class Stamp:
    def __init__(self, role): self.n = 0; self.names = []; STAMP_NAMES[role] = self.names
    def __call__(self, a, name, real=False):
        if not STAMPS: return
        a.I(f"{'s_memrealtime' if real else 's_memtime'} s[92:93]\ns_waitcnt lgkmcnt(0)\nv_writelane_b32 v{V_STAMP}, s92, {self.n}")
        self.names.append(name); self.n += 1
def stamp_dump(a, vt):
    if not STAMPS: return
    a.I(f"s_lshl_b32 s92, s2, 3\ns_add_u32 s92, s92, s{S_WAVE}\ns_lshl_b32 s92, s92, 8\ns_add_u32 s92, s92, {STAMP_OFF}\nv_lshlrev_b32 v{vt}, 2, v{V_LANE}")
    a.I(f"buffer_store_dword v{V_STAMP}, v{vt}, {srd(SRD_WS)}, s92 offen")

def mk_srd(a, d, ptr, size):
    a.I(f"s_mov_b32 s{d}, s{ptr}\ns_mov_b32 s{d+1}, s{ptr+1}")
    a.I(f"s_mov_b32 s{d+2}, {hx(size)}\ns_mov_b32 s{d+3}, 0x20000")

_lbl = [0]
def newlabel(p):
    _lbl[0] += 1; return f"L_{p}{_lbl[0]}"

def lds_wait_ge(a, word, val, vt):
    l = newlabel("lw"); e = newlabel("lwe")
    a.I(f"s_mov_b32 s{S_SPIN}, {SPIN*8}\nv_mov_b32 v{vt}, {SYNC_LDS + 4*word}")
    a.L(l)
    a.I(f"ds_read_b32 v{vt+1}, v{vt}\ns_waitcnt lgkmcnt(0)\nv_readfirstlane_b32 s{T}, v{vt+1}")
    a.I(f"s_cmp_ge_u32 s{T}, {val}\ns_cbranch_scc1 {e}\ns_sleep 1\ns_sub_u32 s{S_SPIN}, s{S_SPIN}, 1\ns_cmp_lg_u32 s{S_SPIN}, 0\ns_cbranch_scc1 {l}")
    a.L(e)

def lds_add(a, word, vt, rtn=False):
    a.I(f"v_mov_b32 v{vt}, {SYNC_LDS + 4*word}\nv_mov_b32 v{vt+1}, 1\ns_mov_b64 exec, 1")
    if rtn: a.I(f"ds_add_rtn_u32 v{vt+1}, v{vt}, v{vt+1}")
    else: a.I(f"ds_add_u32 v{vt}, v{vt+1}")
    a.I("s_mov_b64 exec, -1")

def poll(a, srdn, voff, vexp, vt, nlanes):
    l = newlabel("pl"); e = newlabel("ple")
    a.I(f"s_mov_b32 s{S_SPIN}, {SPIN}\ns_mov_b64 exec, {(1 << nlanes) - 1}")
    a.L(l)
    a.I(f"buffer_load_dword v{vt}, v{voff}, {srd(srdn)}, 0 offen {SC}\ns_waitcnt vmcnt(0)")
    a.I(f"v_cmp_lt_u32 vcc, v{vt}, v{vexp}\ns_nop 4\ns_cbranch_vccz {e}")
    a.I(f"s_sleep 2\ns_sub_u32 s{S_SPIN}, s{S_SPIN}, 1\ns_cmp_lg_u32 s{S_SPIN}, 0\ns_cbranch_scc1 {l}")
    a.L(e)
    a.I("s_mov_b64 exec, -1")

def common(a):
    a.raw(f".globl {KN}\n.p2align 8\n.type {KN},@function")
    a.L(KN)
    a.I("s_cmp_ge_u32 s2, 256\ns_cbranch_scc1 L_end")
    a.I("s_load_dwordx16 s[4:19], s[0:1], 0\ns_load_dwordx4 s[20:23], s[0:1], 64\ns_load_dwordx2 s[24:25], s[0:1], 80")
    a.I(f"v_lshrrev_b32 v1, 6, v0\nv_and_b32 v{V_LANE}, 63, v0")
    a.I(f"v_readfirstlane_b32 s{S_WAVE}, v1\nv_lshlrev_b32 v{V_L16}, 4, v{V_LANE}")
    if CODEPF:
        a.I("s_getpc_b64 s[94:95]\ns_and_b32 s94, s94, 0xffffff00")
        a.I(f"s_and_b32 s92, s2, 0xf8\ns_add_u32 s92, s92, s{S_WAVE}\ns_lshl_b32 s92, s92, 8")
        a.I(f"v_lshlrev_b32 v2, 7, v{V_LANE}\nv_add_u32 v2, s92, v2\ns_mov_b64 exec, 3")
        a.I("global_load_dword v252, v2, s[94:95]\ns_mov_b64 exec, -1")
    a.I(f"s_and_b32 s{S_I}, s{S_WAVE}, 3\ns_mov_b32 s{S_M16}, 0xffff0000")
    a.I(f"s_and_b32 s{T}, s2, 1\ns_lshl_b32 s{T}, s{T}, 3\ns_bfe_u32 s{S_RB}, s2, 0x30003\ns_add_u32 s{S_RB}, s{S_RB}, s{T}")
    a.I(f"s_and_b32 s{T}, s2, 6\ns_lshl_b32 s{T}, s{T}, 1\ns_lshr_b32 s{S_CG}, s2, 6\ns_add_u32 s{S_CG}, s{S_CG}, s{T}")
    a.I(f"s_and_b32 s{S_RB2}, s2, 7\ns_lshl_b32 s{S_RB2}, s{S_RB2}, 2\ns_bfe_u32 s{T}, s2, 0x20003\ns_add_u32 s{S_RB2}, s{S_RB2}, s{T}")
    a.I(f"s_lshr_b32 s{S_CG2}, s2, 5")
    a.I(f"s_mov_b32 s{S_JA}, 0\ns_mov_b32 s{S_JB}, 0\ns_mov_b32 s{S_STR}, 3840\ns_mov_b32 s{S_CSB}, {CS_OFF}\ns_mov_b32 s{S_NP}, 28")
    a.I(f"s_cmp_lt_u32 s{S_CG}, 8\ns_cbranch_scc1 L_t_kvq\ns_cmp_eq_u32 s{S_CG}, 15\ns_cbranch_scc1 L_t_qx")
    a.I(f"s_mov_b32 s{S_TYPE}, 1\ns_sub_u32 s{T}, s{S_CG}, 8\ns_mul_i32 s{S_BASE}, s{T}, 448\ns_mul_i32 s{S_KS0}, s{T}, 7")
    a.I(f"s_mov_b32 s{S_STR}, 3072\ns_mov_b32 s{S_CSB}, {CS_OFF + 1920*32}\ns_cmp_eq_u32 s{S_CG}, 14\ns_cselect_b32 s{S_NP}, 24, 28\ns_branch L_t_done")
    a.L("L_t_qx")
    a.I(f"s_mov_b32 s{S_TYPE}, 2\ns_mov_b32 s{S_BASE}, 1024\ns_mov_b32 s{S_KS0}, 64\ns_mov_b32 s{S_NP}, 16\ns_branch L_t_done")
    a.L("L_t_kvq")
    a.I(f"s_mov_b32 s{S_TYPE}, 0\ns_mul_i32 s{S_BASE}, s{S_CG}, 160\ns_add_u32 s{S_BASE}, s{S_BASE}, 1280\ns_mov_b32 s{S_JA}, 1120")
    a.I(f"s_lshl_b32 s{S_JB}, s{S_CG}, 5\ns_sub_u32 s{S_JB}, {hx(-2720)}, s{S_JB}")
    a.I(f"s_lshl_b32 s{S_KS0}, s{S_CG}, 1\ns_add_u32 s{S_KS0}, s{S_KS0}, {48-5}")
    a.L("L_t_done")
    a.I(f"s_cmp_lt_u32 s{S_WAVE}, 4\ns_cbranch_scc1 L_M\ns_cmp_ge_u32 s{S_WAVE}, 6\ns_cbranch_scc1 L_AUX")

def base_srds(a):
    a.I("s_waitcnt lgkmcnt(0)")
    mk_srd(a, SRD_X, S_X, 2048 * 1280)
    mk_srd(a, SRD_WS, S_WS, WS_SIZE)

def loader(a):
    ST = Stamp("L")
    vm = Q("vmcnt", 63)
    if CODEPF: vm.issue("code")
    VW, VX, t0, t1, t2 = 4, 12, 16, 17, 18
    S_XK, S_WK, S_XB, S_MW, S_MX, S_W32, S_WEND = T + 2, T + 3, T + 4, T + 5, T + 6, T + 7, T + 8
    a.C("==== loader ====")
    ST(a, "rt0", True); ST(a, "start")
    a.I(f"v_lshrrev_b32 v{t0}, 3, v{V_LANE}\nv_and_b32 v{t1}, 7, v{V_LANE}\nv_lshrrev_b32 v{t2}, 1, v{t0}\nv_xor_b32 v{t1}, v{t1}, v{t2}")
    a.I(f"v_mul_u32_u24 v{t0}, 1280, v{t0}\nv_lshl_add_u32 v{VX}, v{t1}, 4, v{t0}\nv_xor_b32 v{VX+1}, 64, v{VX}")
    if ROT1 == 0: a.I(f"s_mov_b32 s{T}, 0")
    else:
        a.I(f"s_and_b32 s{T}, s{S_RB}, 7\ns_and_b32 s{T+1}, s{S_CG}, 3")
        if ROT1 == 1: a.I(f"s_lshl_b32 s{T+1}, s{T+1}, 1\ns_add_u32 s{T}, s{T}, s{T+1}\ns_and_b32 s{T}, s{T}, 7\ns_mul_i32 s{T}, s{T}, 5\ns_lshr_b32 s{T}, s{T}, 2")
        else: a.I(f"s_add_u32 s{T}, s{T}, s{T+1}\ns_and_b32 s{T}, s{T}, 3\ns_mul_i32 s{T}, s{T}, 5\ns_lshr_b32 s{T}, s{T}, 1")
    a.I(f"s_lshl_b32 s{S_XK}, s{T}, 7\ns_lshl_b32 s{S_W32}, s{S_STR}, 5\ns_mul_i32 s{S_WK}, s{T}, s{S_W32}\ns_lshl_b32 s{S_WK}, s{S_WK}, 1")
    a.I(f"s_mul_i32 s{S_WEND}, s{S_STR}, 640")
    a.I(f"s_lshl_b32 s{S_XB}, s{S_RB}, 1\ns_add_u32 s{S_XB}, s{S_XB}, s{S_I}\ns_mul_i32 s{S_XB}, s{S_XB}, {64*1280}")
    a.I(f"s_mul_i32 s{S_MW}, s{S_I}, 7168\ns_lshl_b32 s{S_MX}, s{S_I}, 13\ns_add_u32 s{S_MX}, s{S_MX}, {XRING}")
    base_srds(a)
    def xl(c, half):
        if half == 0: a.I(f"s_add_u32 s{T+9}, s{S_XB}, s{S_XK}")
        for i in range(4 * half, 4 * half + 4):
            a.I(f"s_add_u32 m0, s{S_MX}, {(c%3)*16384 + i*1024}")
            a.I(f"s_add_u32 s{T}, s{T+9}, {i*10240}")
            a.I(f"buffer_load_dwordx4 v{VX+(i&1)}, {srd(SRD_X)}, s{T} offen lds")
            vm.issue(("x", c))
        if half == 0:
            a.I(f"s_add_u32 s{S_XK}, s{S_XK}, 128\ns_cmp_eq_u32 s{S_XK}, 1280\ns_cselect_b32 s{S_XK}, 0, s{S_XK}")
    def wl(h):
        for it in range(7):
            a.I(f"s_add_u32 m0, s{S_MW}, {(h%6)*WSLOT + it*1024}")
            a.I("s_nop 0")
            a.I(f"buffer_load_dwordx4 v{VW+it}, {srd(SRD_W)}, s{S_WK} offen lds")
            vm.issue(("W", h))
        a.I(f"s_add_u32 s{S_WK}, s{S_WK}, s{S_W32}\ns_cmp_eq_u32 s{S_WK}, s{S_WEND}\ns_cselect_b32 s{S_WK}, 0, s{S_WK}")
    xl(0, 0); xl(0, 1)
    a.I(f"s_cmp_eq_u32 s{S_TYPE}, 1\ns_cselect_b32 s{SRD_W}, s{S_W1}, s{S_WQKV}\ns_cselect_b32 s{SRD_W+1}, s{S_W1+1}, s{S_WQKV+1}")
    a.I(f"s_mov_b32 s{SRD_W+2}, s{S_WEND}\ns_mov_b32 s{SRD_W+3}, 0x20000")
    a.I(f"s_lshl_b32 s{T}, s{S_I}, 4\ns_mul_i32 s{T}, s{T}, s{S_STR}\ns_add_u32 s{T}, s{T}, s{S_BASE}")
    a.I(f"v_mov_b32 v20, s{S_JA}\nv_mov_b32 v21, s{S_JB}\nv_mov_b32 v22, 0x40000000")
    for it in range(7):
        a.I(f"v_add_u32 v{t0}, {64*it}, v{V_LANE}\nv_mul_u32_u24 v{t1}, 2341, v{t0}\nv_lshrrev_b32 v{t1}, 16, v{t1}")
        a.I(f"v_mul_u32_u24 v{t2}, 28, v{t1}\nv_sub_u32 v{t0}, v{t0}, v{t2}")
        a.I(f"v_mul_lo_u32 v{t1}, v{t1}, s{S_STR}\nv_lshl_add_u32 v{t1}, v{t0}, 4, v{t1}")
        a.I(f"v_cmp_le_u32 vcc, 10, v{t0}\nv_add_u32 v{t1}, s{T}, v{t1}")
        a.I(f"v_cndmask_b32 v{t2}, 0, v20, vcc\nv_cmp_le_u32 vcc, 20, v{t0}\nv_add_u32 v{t1}, v{t1}, v{t2}")
        a.I(f"v_cndmask_b32 v{t2}, 0, v21, vcc\nv_cmp_le_u32 vcc, s{S_NP}, v{t0}\nv_add_u32 v{t1}, v{t1}, v{t2}")
        a.I(f"v_cndmask_b32 v{VW+it}, v{t1}, v22, vcc")
    def step(h):
        if h > 19: return
        if h == 0: wl(0)
        elif h & 1:
            wl(h)
            if (h + 1) // 2 < 10: xl((h + 1) // 2, 0)
        else:
            xl(h // 2, 1); wl(h)
    step(0); step(1)
    for h in range(20):
        vm.wait(a, ("W", h))
        if h % 2 == 0: ST(a, f"P{h}w")
        a.I("s_barrier")
        step(h + 2)
    ST(a, "ringend")
    a.I("s_branch L_H2")
    return ST

def aux(a):
    ST = Stamp("A")
    vm = Q("vmcnt", 63)
    if CODEPF: vm.issue("code")
    L = V_LANE
    X, CW, U = 4, 24, 64
    t0, t1, t2, t3 = 104, 105, 106, 107
    BIAS = 108
    S_AL, S_ROW, S_L, S_P, S_CB, S_ST = T + 2, T + 3, T + 4, T + 5, T + 6, T + 7
    a.L("L_AUX")
    a.C("==== aux ====")
    ST(a, "rt0", True); ST(a, "start")
    a.I(f"s_sub_u32 s{S_AL}, s{S_WAVE}, 6")
    a.I(f"s_and_b32 s{T}, s2, 1\ns_lshl_b32 s{S_ROW}, s{T}, 10\ns_and_b32 s{T}, s2, 6\ns_lshl_b32 s{T}, s{T}, 7\ns_add_u32 s{S_ROW}, s{S_ROW}, s{T}")
    a.I(f"s_and_b32 s{T}, s2, 0xf8\ns_add_u32 s{S_ROW}, s{S_ROW}, s{T}\ns_lshl_b32 s{T}, s{S_AL}, 2\ns_add_u32 s{S_ROW}, s{S_ROW}, s{T}")
    a.I(f"v_lshrrev_b32 v{t0}, 4, v{L}\nv_mul_u32_u24 v{t0}, 1280, v{t0}\nv_and_b32 v{t1}, 15, v{L}\nv_lshl_add_u32 v{t0}, v{t1}, 4, v{t0}")
    LAM, QD = T + 8, T + 9
    a.I(f"s_lshr_b32 s{LAM}, s2, 4\ns_bfe_u32 s{QD}, s2, 0x20001\ns_and_b32 s{S_P}, s2, 1\ns_lshl_b32 s{S_P}, s{S_P}, 1\ns_bfe_u32 s{T}, s2, 0x10003\ns_add_u32 s{S_P}, s{S_P}, s{T}")
    a.I(f"s_cmp_ge_u32 s{QD}, 2\ns_cbranch_scc1 L_cs_f")
    a.I(f"s_mul_i32 s{S_L}, s{QD}, 5\ns_add_u32 s{S_L}, s{S_L}, s{LAM}\ns_add_u32 s{S_L}, s{S_L}, 10")
    a.I(f"s_cmp_ge_u32 s{LAM}, 5\ns_cselect_b32 s{T}, 5, 0\ns_add_u32 s{S_L}, s{S_L}, s{T}")
    a.I(f"s_lshl_b32 s{T}, s{QD}, 2\ns_add_u32 s{T}, s{T}, s{LAM}\ns_sub_u32 s{T}, s{T}, 10")
    a.I(f"s_cmp_ge_u32 s{LAM}, 10\ns_cselect_b32 s{S_L}, s{T}, s{S_L}\ns_cmp_ge_u32 s{LAM}, 14\ns_cselect_b32 s{S_L}, 64, s{S_L}\ns_branch L_cs_d")
    a.L("L_cs_f")
    a.I(f"s_mul_i32 s{S_L}, s{QD}, 14\ns_add_u32 s{S_L}, s{S_L}, s{LAM}\ns_add_u32 s{S_L}, s{S_L}, 2")
    a.I(f"s_cmp_ge_u32 s{LAM}, 14\ns_cselect_b32 s{S_L}, 64, s{S_L}")
    a.I(f"s_sub_u32 s{T}, s{S_L}, 46\ns_cmp_ge_u32 s{S_L}, 54\ns_cselect_b32 s{T+1}, s{T}, s{S_L}")
    a.I(f"s_cmp_ge_u32 s{S_L}, 56\ns_cselect_b32 s{S_L}, 64, s{T+1}")
    a.L("L_cs_d")
    base_srds(a)
    a.I(f"s_mul_i32 s{T}, s{S_ROW}, 1280")
    for i in range(5):
        a.I(f"buffer_load_dwordx4 {q4(X+4*i)}, v{t0}, {srd(SRD_X)}, s{T} offen offset:{256*i}")
        vm.issue("x")
    a.I(f"s_cmp_ge_u32 s{S_L}, 30")
    a.I(f"s_cselect_b32 s{SRD_T}, s{S_W1}, s{S_WQKV}\ns_cselect_b32 s{SRD_T+1}, s{S_W1+1}, s{S_WQKV+1}")
    a.I(f"s_mov_b32 s{S_ST}, 3840\ns_cselect_b32 s{S_ST}, 3072, s{S_ST}\ns_cselect_b32 s{S_CB}, 30, 0\ns_cselect_b32 s{SRD_U+2}, 3072, 0")
    a.I(f"s_mul_i32 s{SRD_T+2}, s{S_ST}, 640\ns_mov_b32 s{SRD_T+3}, 0x20000")
    a.I(f"s_mov_b32 s{SRD_U}, s{S_B1}\ns_mov_b32 s{SRD_U+1}, s{S_B1+1}\ns_mov_b32 s{SRD_U+3}, 0x20000")
    a.I(f"s_cmp_ge_u32 s{S_L}, 54\ns_cselect_b32 s{SRD_T+2}, 0, s{SRD_T+2}")
    a.I(f"s_sub_u32 s{S_CB}, s{S_L}, s{S_CB}\ns_lshl_b32 s{S_CB}, s{S_CB}, 7\ns_lshl_b32 s{T}, s{S_AL}, 6\ns_add_u32 s{S_CB}, s{S_CB}, s{T}")
    a.I(f"s_mul_i32 s{T}, s{S_P}, 160\ns_mul_i32 s{T}, s{T}, s{S_ST}\ns_add_u32 s{T}, s{T}, s{S_CB}\ns_lshl_b32 s{T+1}, s{S_ST}, 4")
    a.I(f"v_lshrrev_b32 v{t1}, 2, v{L}\nv_mul_lo_u32 v{t1}, v{t1}, s{S_ST}\nv_and_b32 v{t2}, 3, v{L}\nv_lshl_add_u32 v{t1}, v{t2}, 4, v{t1}")
    for it in range(10):
        a.I(f"buffer_load_dwordx4 {q4(CW+4*it)}, v{t1}, {srd(SRD_T)}, s{T} offen")
        vm.issue("w")
        if it < 9: a.I(f"s_add_u32 s{T}, s{T}, s{T+1}")
    a.I(f"v_lshlrev_b32 v{t3}, 1, v{L}")
    a.I(f"buffer_load_ushort v{BIAS}, v{t3}, {srd(SRD_U)}, s{S_CB} offen")
    vm.issue("w")
    a.I(f"v_mov_b32 v{t2}, 0\nv_lshlrev_b32 v{t3}, 2, v{L}\nv_add_u32 v{t3}, {SYNC_LDS}, v{t3}\nds_write_b32 v{t3}, v{t2}\ns_waitcnt lgkmcnt(0)")
    bar = [0]
    def B(n=1):
        for _ in range(n): a.I("s_barrier"); bar[0] += 1
    B()
    ST(a, "P0")
    vm.wait(a, "x")
    def red16(v):
        for m in ("quad_perm:[1,0,3,2]", "quad_perm:[2,3,0,1]", "row_half_mirror", "row_mirror"):
            a.I(f"v_add_f32_dpp v{v}, v{v}, v{v} {m} row_mask:0xf bank_mask:0xf")
    for i in range(20):
        a.I(f"v_lshlrev_b32 v{U+2*i}, 16, v{X+i}\nv_and_b32 v{U+2*i+1}, s{S_M16}, v{X+i}")
    a.I(f"v_pk_add_f32 {pk(t0)}, {pk(U)}, {pk(U+2)}\nv_pk_add_f32 {pk(t2)}, {pk(U+4)}, {pk(U+6)}")
    for i in range(4, 20):
        r = t0 if i % 2 == 0 else t2
        a.I(f"v_pk_add_f32 {pk(r)}, {pk(r)}, {pk(U+2*i)}")
    a.I(f"v_pk_add_f32 {pk(t0)}, {pk(t0)}, {pk(t2)}\nv_add_f32 v{t0}, v{t0}, v{t1}")
    red16(t0)
    a.I(f"v_mul_f32 v{t0}, {hx(f32(-1.0/640))}, v{t0}")
    for i in range(20):
        a.I(f"v_pk_add_f32 {pk(U+2*i)}, {pk(U+2*i)}, {pk(t0)} op_sel_hi:[1,0]")
    a.I(f"v_pk_mul_f32 {pk(t2)}, {pk(U)}, {pk(U)}\nv_pk_mul_f32 {pk(X)}, {pk(U+2)}, {pk(U+2)}")
    for i in range(2, 20):
        r = t2 if i % 2 == 0 else X
        a.I(f"v_pk_fma_f32 {pk(r)}, {pk(U+2*i)}, {pk(U+2*i)}, {pk(r)}")
    a.I(f"v_pk_add_f32 {pk(t2)}, {pk(t2)}, {pk(X)}\nv_add_f32 v{t2}, v{t2}, v{t3}")
    red16(t2)
    a.I(f"v_mul_f32 v{t2}, {hx(f32(1.0/640))}, v{t2}")
    a.I(f"v_cvt_pk_bf16_f32 v{t2}, v{t2}, v{t2}\nv_and_b32 v{t2}, s{S_M16}, v{t2}")
    a.I(f"v_add_f32 v{t2}, {hx(f32(1e-5))}, v{t2}")
    a.I(f"v_cvt_pk_bf16_f32 v{t2}, v{t2}, v{t2}\nv_and_b32 v{t2}, s{S_M16}, v{t2}")
    a.I(f"v_sqrt_f32 v{t2}, v{t2}")
    a.I(f"v_cvt_pk_bf16_f32 v{X}, v{t0}, v{t2}")
    a.I(f"v_and_b32 v{t2}, s{S_M16}, v{X}")
    a.I(f"v_rcp_f32 v{X+1}, v{t2}")
    a.I(f"v_lshrrev_b32 v{t1}, 1, v{L}\ns_lshl_b32 s{T}, s{S_ROW}, 3\ns_add_u32 s{T}, s{T}, {STAT_OFF}")
    a.I("s_mov_b32 exec_lo, 0x00010001\ns_mov_b32 exec_hi, 0x00010001")
    a.I(f"buffer_store_dwordx2 {pk(X)}, v{t1}, {srd(SRD_WS)}, s{T} offen {SC}")
    vm.issue("st")
    a.I("s_mov_b64 exec, -1")
    B()
    vm.wait(a, "w")
    AC, E = U, U + 8
    for it in range(10):
        dst = AC if it == 0 else E + 8 * (it & 1)
        for i in range(4):
            a.I(f"v_lshlrev_b32 v{dst+2*i}, 16, v{CW+4*it+i}\nv_and_b32 v{dst+2*i+1}, s{S_M16}, v{CW+4*it+i}")
        if it:
            for i in range(4): a.I(f"v_pk_add_f32 {pk(AC+2*i)}, {pk(AC+2*i)}, {pk(dst+2*i)}")
        if it == 5: B()
    for i in range(4): a.I(f"v_permlane32_swap_b32 v{AC+i}, v{AC+i+4}")
    for i in range(4): a.I(f"v_add_f32 v{AC+i}, v{AC+i}, v{AC+i+4}")
    for i in range(2): a.I(f"v_permlane16_swap_b32 v{AC+i}, v{AC+i+2}")
    for i in range(2): a.I(f"v_add_f32 v{AC+i}, v{AC+i}, v{AC+i+2}")
    for m in ("row_ror:8", "row_ror:4"):
        for i in range(2): a.I(f"v_add_f32_dpp v{AC+i}, v{AC+i}, v{AC+i} {m} row_mask:0xf bank_mask:0xf")
    a.I(f"v_bfe_u32 v{t0}, v{L}, 2, 1\nv_cmp_eq_u32 vcc, 1, v{t0}\nv_and_b32 v{t1}, 3, v{L}\nv_lshl_add_u32 v{t0}, v{t1}, 3, v{t0}")
    a.I(f"v_cndmask_b32 v{AC}, v{AC}, v{AC+1}, vcc\nv_lshrrev_b32 v{t1}, 4, v{L}\nv_lshl_add_u32 v{t0}, v{t1}, 1, v{t0}\nv_lshlrev_b32 v{t0}, 5, v{t0}")
    a.I(f"v_cvt_pk_bf16_f32 v{t2}, v{AC}, v{AC}\nv_and_b32 v{t2}, s{S_M16}, v{t2}\nv_sub_f32 v{t2}, v{AC}, v{t2}\nv_cvt_pk_bf16_f32 v{t2}, v{AC}, v{t2}")
    a.I(f"s_cmp_ge_u32 s{S_L}, 54\ns_cbranch_scc1 L_cs_skip")
    a.I(f"s_lshl_b32 s{T}, s{S_L}, 11\ns_lshl_b32 s{T+1}, s{S_AL}, 10\ns_add_u32 s{T}, s{T}, s{T+1}\ns_add_u32 s{T}, s{T}, {CS_OFF}")
    a.I(f"s_lshl_b32 s{T+1}, s{S_P}, 2\ns_add_u32 s{T+1}, s{T+1}, s{T}")
    a.I("s_mov_b32 exec_lo, 0x00ff00ff\ns_mov_b32 exec_hi, 0x00ff00ff")
    a.I(f"buffer_store_dword v{t2}, v{t0}, {srd(SRD_WS)}, s{T+1} offen {SC}")
    a.I(f"s_mov_b64 exec, -1\ns_cmp_lg_u32 s{S_P}, 0\ns_cbranch_scc1 L_cs_skip")
    a.I(f"v_mov_b32 v{BIAS+1}, 0\nv_mov_b32 v{BIAS+2}, 0\nv_mov_b32 v{BIAS+3}, 0\nv_lshlrev_b32 v{t1}, 5, v{L}\ns_mov_b32 exec_hi, 0")
    a.I(f"buffer_store_dwordx4 {q4(BIAS)}, v{t1}, {srd(SRD_WS)}, s{T} offen offset:16 {SC}")
    a.I("s_mov_b64 exec, -1")
    a.L("L_cs_skip")
    ST(a, "p0done")
    B()
    vm.drain(a)
    B()
    ST(a, "P4")
    mk_srd(a, SRD_T, S_DBG, 256)
    a.I(f"s_cmp_lg_u32 s{S_AL}, 0\ns_cbranch_scc1 L_s1_skip")
    a.I(f"s_and_b32 s{T}, s2, 3\ns_lshl_b32 s{T}, s{T}, 6\nv_mov_b32 v{t0}, s{T}\nv_mov_b32 v{t1}, 1\ns_mov_b64 exec, 1")
    a.I(f"buffer_atomic_add v{t1}, v{t0}, {srd(SRD_T)}, 0 offen\ns_mov_b64 exec, -1")
    a.L("L_s1_skip")
    CSO, CSOM = 110, 111
    a.I(f"v_and_b32 v{t0}, 7, v{L}\nv_bfe_u32 v{t1}, v{L}, 4, 1\nv_lshl_add_u32 v{t0}, v{t1}, 3, v{t0}")
    a.I(f"v_bfe_u32 v{t1}, v{L}, 3, 1\nv_lshl_add_u32 v{t0}, v{t1}, 4, v{t0}\nv_lshlrev_b32 v{t0}, 5, v{t0}")
    a.I(f"v_lshrrev_b32 v{t2}, 5, v{L}\nv_lshl_add_u32 v{CSO}, v{t2}, 4, v{t0}")
    a.I(f"s_lshl_b32 s{T}, s{S_JA}, 4\nv_mul_lo_u32 v{t1}, v{t1}, s{T}\nv_add_u32 v{CSOM}, v{CSO}, v{t1}")
    a.I(f"v_lshlrev_b32 v{t0}, 6, v{L}\nv_mov_b32 v{t1}, 64")
    B(S1BAR - bar[0])
    ST(a, "prepoll")
    poll(a, SRD_T, t0, t1, t2, 4)
    ST(a, "S1")
    a.I(f"s_cmp_lg_u32 s{S_AL}, 0\ns_cbranch_scc1 L_ext_b")
    def cs(t, r):
        a.I(f"s_add_u32 s{T}, s{S_BASE}, {64*t}")
        if t >= 3: a.I(f"s_add_u32 s{T}, s{T}, s{S_JA}")
        if t >= 5: a.I(f"s_add_u32 s{T}, s{T}, s{S_JB}")
        a.I(f"s_lshl_b32 s{T}, s{T}, 4\ns_add_u32 s{T}, s{T}, s{S_CSB}")
        a.I(f"buffer_load_dwordx4 {q4(r)}, v{CSOM if t == 2 else CSO}, {srd(SRD_WS)}, s{T} offen {SC}")
    for t in range(4): cs(t, X + 4 * t)
    a.I("s_branch L_ext_c")
    a.L("L_ext_b")
    for t in range(4, 7): cs(t, X + 4 * (t - 4))
    a.I(f"s_lshl_b32 s{T}, s{S_RB}, 10\ns_add_u32 s{T}, s{T}, {STAT_OFF}")
    a.I(f"buffer_load_dwordx4 {q4(X+12)}, v{V_L16}, {srd(SRD_WS)}, s{T} offen {SC}")
    a.L("L_ext_c")
    a.I(f"s_lshl_b32 s{T}, s{S_AL}, 12\ns_add_u32 s{T}, s{T}, {EXT_LDS}\nv_add_u32 v{t0}, s{T}, v{V_L16}")
    B(2)
    a.I("s_waitcnt vmcnt(0)")
    for i in range(4): a.I(f"ds_write_b128 v{t0}, {q4(X+4*i)} offset:{1024*i}")
    a.I("s_waitcnt lgkmcnt(0)")
    B(20 - bar[0])
    ST(a, "ringend")
    return ST
S1BAR = 14

def g2_common(a):
    for sg in range(4):
        a.I(f"s_add_u32 s{T}, s{S_I}, {sg}")
        if ROT2: a.I(f"s_add_u32 s{T}, s{T}, s{S_CG2}")
        a.I(f"s_and_b32 s{T}, s{T}, 3\ns_lshl_b32 s{T+1}, s{S_RB2}, 2\ns_add_u32 s{T}, s{T}, s{T+1}")
        a.I(f"s_mul_i32 s{S_A+sg}, s{T}, {68*1024}")
        if sg == 0: a.I(f"s_mul_i32 s{S_OUTS}, s{T}, {16*1280}\ns_mul_i32 s{S_B2S}, s{S_CG2}, 160\ns_add_u32 s{S_OUTS}, s{S_OUTS}, s{S_B2S}")
S_OUTS, S_B2S, S_BB = 86, 87, 88

def final_reduce(a, vm, ST, ACC, role, cts, RES, TMP, VA):
    VW_, VO, VB = VA + 4, VA + 5, VA + 6
    a.C("---- cross-wave reduction + output ----")
    a.I("s_waitcnt lgkmcnt(0)\ns_barrier")
    ST(a, "barA")
    for sg in range(4):
        for ct in range(5):
            if sg == 0 and ct in cts: continue
            a.I(f"ds_write_b128 v{VA}, {q4(ACC+(sg*5+ct)*4)} offset:{role*20480 + (sg*5+ct)*1024}")
        if sg == 2: a.I("s_waitcnt lgkmcnt(8)")
    vm.wait(a, "R")
    n = len(cts)
    for k, ct in enumerate(cts):
        for src, o in ((RES + 4 * k, 0), (RES + 4 * k + 2, 4)):
            for i in range(2):
                a.I(f"v_lshlrev_b32 v{TMP+o+2*i}, 16, v{src+i}\nv_and_b32 v{TMP+o+2*i+1}, s{S_M16}, v{src+i}")
        for i in (0, 2):
            a.I(f"v_pk_add_f32 {pk(TMP+i)}, {pk(TMP+i)}, {pk(TMP+4+i)}")
        for i in (0, 2):
            a.I(f"v_pk_add_f32 {pk(ACC+4*ct+i)}, {pk(ACC+4*ct+i)}, {pk(TMP+i)}")
    a.I("s_waitcnt lgkmcnt(0)\ns_barrier")
    ST(a, "barB")
    lg = Q("lgkmcnt", 15)
    srcs = [(sg, r) for sg in range(4) for r in range(2) if not (sg == 0 and r == role)]
    dst = {}
    free = [ACC + 20 + 4 * i for i in range(15)] + [TMP + 4 * i for i in range(6)]
    k = 0
    def rd(j):
        sg, r = srcs[j]
        for ct in cts:
            d = free[(j * n + cts.index(ct)) % len(free)]
            a.I(f"ds_read_b128 {q4(d)}, v{VA+sg} offset:{r*20480 + (sg*5+ct)*1024}")
            lg.issue(j); dst[(j, ct)] = d
    ahead = 15 // n
    for j in range(min(ahead, 7)): rd(j)
    for j in range(7):
        lg.wait(a, j)
        for ct in cts:
            for i in (0, 2): a.I(f"v_pk_add_f32 {pk(ACC+4*ct+i)}, {pk(ACC+4*ct+i)}, {pk(dst[(j,ct)]+i)}")
        if j + ahead < 7: rd(j + ahead)
    for ct in cts:
        d = ACC + 4 * ct
        a.I(f"v_cvt_pk_bf16_f32 v{d}, v{d}, v{d+1}\nv_cvt_pk_bf16_f32 v{d+1}, v{d+2}, v{d+3}")
        a.I(f"buffer_store_dwordx2 {pk(d)}, v{VO}, {srd(SRD_U)}, s{S_OUTS} offen offset:{ct*32}")

def reduce_setup(a, vm, cts, RES, VA, t0):
    VO, VB = VA + 5, VA + 6
    for sg in range(4):
        a.I(f"s_sub_u32 s{T}, s{S_I}, {sg}\ns_and_b32 s{T}, s{T}, 3\ns_mul_i32 s{T}, s{T}, 40960\nv_add_u32 v{VA+sg}, s{T}, v{V_L16}")
    a.I(f"v_and_b32 v{t0}, 15, v{V_LANE}\nv_mul_u32_u24 v{t0}, 1280, v{t0}\nv_lshrrev_b32 v{VB}, 4, v{V_LANE}\nv_lshlrev_b32 v{VB}, 3, v{VB}")
    a.I(f"v_add_u32 v{VO}, v{t0}, v{VB}")
    mk_srd(a, SRD_T, S_B2, 1280)
    mk_srd(a, SRD_U, S_OUT, 2048 * 1280)
    for k, ct in enumerate(cts):
        a.I(f"buffer_load_dwordx2 {pk(RES+4*k)}, v{VO}, {srd(SRD_X)}, s{S_OUTS} offen offset:{ct*32}")
        a.I(f"buffer_load_dwordx2 {pk(RES+4*k+2)}, v{VB}, {srd(SRD_T)}, s{S_B2S} offen offset:{ct*32}")
        vm.issue("R"); vm.issue("R")

def h2(a, STs):
    class Both:
        def __call__(self, a_, name, real=False):
            if not STAMPS: return
            n = max(s.n for s in STs)
            for s in STs:
                while s.n < n: s.names.append("-"); s.n += 1
            a_.I(f"{'s_memrealtime' if real else 's_memtime'} s[92:93]\ns_waitcnt lgkmcnt(0)\nv_writelane_b32 v{V_STAMP}, s92, {n}")
            for s in STs: s.names.append(name); s.n += 1
    ST = Both()
    vm = Q("vmcnt", 63); lg = Q("lgkmcnt", 15)
    ACC, BR, AR = 0, 80, 200
    VT = 248
    S_KK = 64
    a.L("L_H2")
    a.C("==== gemm2, FFN part (waves 4..7) ====")
    g2_common(a)
    if ROT2:
        a.I(f"s_and_b32 s{T}, s{S_RB2}, 3\ns_mul_i32 s{T}, s{T}, 3\ns_mul_i32 s{T+1}, s{S_CG2}, 3\ns_lshr_b32 s{T+1}, s{T+1}, 1\ns_add_u32 s{T}, s{T}, s{T+1}")
        a.I(f"s_cmp_ge_u32 s{T}, 12\ns_cselect_b32 s{T+1}, 12, 0\ns_sub_u32 s{T}, s{T}, s{T+1}")
    else: a.I(f"s_mov_b32 s{T}, 0")
    a.I(f"s_mul_i32 s{T+2}, s{S_I}, 12")
    for j in range(12):
        a.I(f"s_add_u32 s{S_KK+j}, s{T}, s{T+2}\ns_lshl_b32 s{S_KK+j}, s{S_KK+j}, 10")
        if j < 11: a.I(f"s_add_u32 s{T}, s{T}, 1\ns_cmp_eq_u32 s{T}, 12\ns_cselect_b32 s{T}, 0, s{T}")
    a.I(f"s_mul_i32 s{S_BB}, s{S_CG2}, {68*5*1024}\ns_add_u32 s{S_BB}, s{S_BB}, {B2_OFF}")
    def bload(j, regs, tag):
        a.I(f"s_mul_i32 s{T}, s{S_KK+j}, 5\ns_add_u32 s{T}, s{T}, s{S_BB}\ns_add_u32 s{T+1}, s{T}, 4096")
        for ct in range(5):
            a.I(f"buffer_load_dwordx4 {q4(regs[ct])}, v{V_L16}, {srd(SRD_WS)}, s{T + (ct >> 2)} offen offset:{(ct&3)*1024} {SC}")
            vm.issue(tag)
    for j in range(6): bload(j, [BR + 20 * j + 4 * ct for ct in range(5)], "br")
    stg = [4 * i for i in range(20)] + [AR + 4 * i for i in range(5)]
    for j in range(6, 11): bload(j, stg[5 * (j - 6):5 * (j - 5)], ("bl", j))
    ST(a, "bissued")
    lds_wait_ge(a, 0, 4, VT)
    a.I(f"s_sub_u32 s{T}, s{S_I}, 1\ns_mul_i32 s{T}, s{T}, 25600\ns_add_u32 s{T}, s{T}, 73728\ns_cmp_eq_u32 s{S_I}, 0\ns_cselect_b32 s{T}, 0, s{T}")
    VBL = VT + 4
    a.I(f"v_add_u32 v{VBL}, s{T}, v{V_L16}")
    for j in range(6, 11):
        vm.wait(a, ("bl", j))
        for ct in range(5):
            a.I(f"ds_write_b128 v{VBL}, {q4(stg[5*(j-6)+ct])} offset:{(5*(j-6)+ct)*1024}")
        a.I("s_waitcnt lgkmcnt(5)")
    a.I("s_waitcnt lgkmcnt(0)")
    ST(a, "bdone")
    a.I(f"s_lshr_b32 s{T}, s{S_RB2}, 1\ns_lshl_b32 s{T}, s{T}, 7\ns_add_u32 s{T}, s{T}, {CNT_OFF}\nv_mov_b32 v{VT}, s{T}\nv_mov_b32 v{VT+1}, 7")
    poll(a, SRD_WS, VT, VT + 1, VT + 2, 1)
    ST(a, "S2F")
    def aload(j):
        for sg in range(4):
            a.I(f"s_add_u32 s{T}, s{S_A+sg}, s{S_KK+j}")
            a.I(f"buffer_load_dwordx4 {q4(AR + (j%3)*16 + 4*sg)}, v{V_L16}, {srd(SRD_WS)}, s{T} offen {SC}")
            vm.issue(("A", j))
    def bslot(j): return BR + 20 * (j if j < 6 else (0 if j == 11 else j - 5))
    for j in range(3): aload(j)
    for j in range(12):
        if 6 <= j + 1 <= 10:
            for ct in range(5):
                a.I(f"ds_read_b128 {q4(bslot(j+1)+4*ct)}, v{VBL} offset:{(5*(j+1-6)+ct)*1024}")
                lg.issue(j + 1)
        vm.wait(a, ("A", j))
        lg.wait(a, j)
        if j in (0, 3, 6, 9): ST(a, f"A{j}")
        for sg in range(4):
            for ct in range(5):
                d = ACC + (sg * 5 + ct) * 4
                cin = "0" if j == 0 else q4(d)
                a.I(f"v_mfma_f32_16x16x32_bf16 {q4(d)}, {q4(bslot(j)+4*ct)}, {q4(AR+(j%3)*16+4*sg)}, {cin}")
        if j + 3 < 12: aload(j + 3)
        if j == 0: bload(11, [BR + 4 * ct for ct in range(5)], "b11")
        if j == 9:
            RES, VA = AR, AR + 8
            reduce_setup(a, vm, [3, 4], RES, VA, VT)
    ST(a, "ffnend")
    final_reduce(a, vm, ST, ACC, 1, [3, 4], RES, BR, VA)
    ST(a, "end")
    if STAMPS: a.I("s_waitcnt vmcnt(0)")
    ST(a, "rt1", True)
    stamp_dump(a, VT)
    a.I("s_endpgm")

K0C = -2.0 * math.sqrt(2.0 / math.pi) * math.log2(math.e)
K1C = K0C * 0.044715
ACC1, AF, BF = 0, 112, 120
V_E = 144
V_R, V_R2, V_SD, V_C0, V_C1, V_EPS = 160, 162, 164, 166, 168, 170
V_TRA, V_VA, V_HQO, V_KVW = 240, 242, 246, 247

def ep_gelu(a, r0, n, out):
    Tm = V_E; P = range(0, n, 2)
    for i in P: a.I(f"v_pk_mul_f32 {pk(Tm+i)}, {pk(r0+i)}, {pk(r0+i)}")
    for i in P: a.I(f"v_pk_fma_f32 {pk(Tm+i)}, {pk(Tm+i)}, {pk(V_C1)}, {pk(V_C0)} op_sel_hi:[1,0,0]")
    for i in P: a.I(f"v_pk_mul_f32 {pk(Tm+i)}, {pk(Tm+i)}, {pk(r0+i)}")
    for i in range(n): a.I(f"v_exp_f32 v{Tm+i}, v{Tm+i}")
    for i in P: a.I(f"v_pk_fma_f32 {pk(Tm+i)}, {pk(Tm+i)}, {pk(V_SD)}, {pk(V_SD)} op_sel_hi:[1,0,0]")
    for i in range(n): a.I(f"v_rcp_f32 v{Tm+i}, v{Tm+i}")
    for i in P: a.I(f"v_pk_mul_f32 {pk(Tm+i)}, {pk(Tm+i)}, {pk(r0+i)}")
    for i in P: a.I(f"v_cvt_pk_bf16_f32 v{out+i//2}, v{Tm+i}, v{Tm+i+1}")
def ep_phi(a, r0, n, out):
    Tm = V_E; P = range(0, n, 2)
    for i in P: a.I(f"v_pk_mul_f32 {pk(Tm+i)}, {pk(r0+i)}, {pk(V_R2)} op_sel_hi:[1,0]")
    for i in P: a.I(f"v_pk_fma_f32 {pk(r0+i)}, {pk(r0+i)}, {pk(V_R)}, {pk(V_EPS)} op_sel_hi:[1,0,0]")
    for i in range(n): a.I(f"v_exp_f32_e64 v{Tm+i}, v{Tm+i} clamp")
    for i in range(n): a.I(f"v_max_f32 v{r0+i}, v{r0+i}, v{V_EPS}")
    for i in P: a.I(f"v_pk_add_f32 {pk(Tm+i)}, {pk(Tm+i)}, {pk(r0+i)}")
    for i in P: a.I(f"v_cvt_pk_bf16_f32 v{out+i//2}, v{Tm+i}, v{Tm+i+1}")
def ep_lin(a, r0, n, out):
    P = range(0, n, 2)
    for i in P: a.I(f"v_pk_mul_f32 {pk(r0+i)}, {pk(r0+i)}, {pk(V_R)} op_sel_hi:[1,0]")
    for i in P: a.I(f"v_cvt_pk_bf16_f32 v{out+i//2}, v{r0+i}, v{r0+i+1}")
S_HQ = T + 10
def ep_store_tile(a, t, fn):
    for u in range(2):
        r0 = ACC1 + 16 * t + 8 * u
        fn(a, r0, 8, r0)
        if u == 0: a.I(f"s_add_u32 s{T+1}, s{S_HQ}, {t*1024}")
        a.I(f"buffer_store_dwordx4 {q4(r0)}, v{V_HQO}, {srd(SRD_WS)}, s{T+1} offen offset:{u*512} {SC}")

def mwave(a):
    ST = Stamp("M")
    L = V_LANE
    t0, t1, t2, t3 = V_E, V_E + 1, V_E + 2, V_E + 3
    a.L("L_M")
    a.C("==== M waves: phase 0 (re-layout of w2 / wo, zeroing) ====")
    ST(a, "rt0", True); ST(a, "start")
    if DIAG: a.I("s_memrealtime s[90:91]")
    GW, KS, LC, SO, LB = T + 2, T + 3, T + 4, T + 5, T + 6
    VO, VI = V_E + 4, V_E + 5
    a.I(f"s_lshl_b32 s{GW}, s2, 2\ns_add_u32 s{GW}, s{GW}, s{S_WAVE}")
    a.I(f"s_mul_hi_u32 s{KS}, s{GW}, {hx((1<<32)//10+1)}\ns_mul_i32 s{LC}, s{KS}, 10\ns_sub_u32 s{LC}, s{GW}, s{LC}")
    a.I(f"v_lshrrev_b32 v{t0}, 3, v{L}\nv_and_b32 v{t1}, 7, v{L}")
    base_srds(a)
    a.I(f"s_cmp_ge_u32 s{GW}, 680\ns_cbranch_scc1 L_p0_noc")
    a.I(f"s_cmp_ge_u32 s{KS}, 48\ns_cbranch_scc1 L_p0_att")
    mk_srd(a, SRD_T, S_W2, 1536 * 1280)
    a.I(f"v_lshrrev_b32 v{t2}, 2, v{t0}\nv_and_b32 v{t3}, 3, v{t0}\nv_lshl_add_u32 v{VO}, v{t2}, 4, v{t3}")
    a.I(f"v_mov_b32 v{VI}, {4*1280}\ns_lshl_b32 s{SO}, s{KS}, 5\ns_branch L_p0_cgo")
    a.L("L_p0_att")
    mk_srd(a, SRD_T, S_WO, 640 * 1280)
    a.I(f"s_sub_u32 s{T}, s{KS}, 48\ns_mul_i32 s{T+1}, s{T}, 205\ns_lshr_b32 s{T+1}, s{T+1}, 10")
    a.I(f"s_mul_i32 s{SO}, s{T+1}, 5\ns_sub_u32 s{T}, s{T}, s{SO}\ns_lshl_b32 s{T}, s{T}, 3\ns_mul_i32 s{SO}, s{T+1}, 160")
    a.I(f"v_add_u32 v{t2}, s{T}, v{t0}")
    a.I(f"v_mul_u32_u24 v{t3}, 205, v{t2}\nv_lshrrev_b32 v{t3}, 10, v{t3}")
    a.I(f"v_mul_u32_u24 v{VO}, 5, v{t3}\nv_sub_u32 v{t2}, v{t2}, v{VO}")
    a.I(f"v_cmp_eq_u32 vcc, 4, v{t2}\nv_mov_b32 v{VO}, 16\nv_mov_b32 v{VI}, 1280")
    a.I(f"v_cndmask_b32 v{t2}, v{t2}, v{VO}, vcc\nv_mov_b32 v{VO}, {4*1280}")
    a.I(f"v_cndmask_b32 v{VI}, v{VO}, v{VI}, vcc")
    a.I(f"v_mad_u32_u24 v{VO}, v{t3}, 20, v{t2}")
    a.L("L_p0_cgo")
    a.I(f"v_mul_u32_u24 v{VO}, 1280, v{VO}\nv_lshl_add_u32 v{VO}, v{t1}, 4, v{VO}")
    a.I(f"s_mul_i32 s{SO}, s{SO}, 1280\ns_lshl_b32 s{T}, s{LC}, 7\ns_add_u32 s{SO}, s{SO}, s{T}")
    a.I(f"s_lshl_b32 s{LB}, s{S_WAVE}, 12\ns_add_u32 s{LB}, s{LB}, {P0_LDS}")
    for it in range(4):
        a.I(f"s_add_u32 m0, s{LB}, {it*1024}\ns_nop 0")
        a.I(f"buffer_load_dwordx4 v{VO}, {srd(SRD_T)}, s{SO} offen lds")
        if it < 3: a.I(f"v_add_u32 v{VO}, v{VO}, v{VI}")
    a.I(f"v_lshrrev_b32 v{t0}, 4, v{L}\nv_bfe_u32 v{t1}, v{L}, 2, 2\nv_and_b32 v{t2}, 3, v{L}")
    a.I(f"v_lshl_add_u32 v{t0}, v{t0}, 3, v{t1}\nv_lshlrev_b32 v{t0}, 7, v{t0}\nv_lshl_add_u32 v{t0}, v{t2}, 3, v{t0}\nv_add_u32 v{t0}, s{LB}, v{t0}")
    a.I(f"s_lshl_b32 s{LC}, s{LC}, 2\ns_mul_i32 s{KS}, s{KS}, 5")
    for i in range(4):
        a.I(f"s_mul_i32 s{T}, s{LC}, 205\ns_lshr_b32 s{T}, s{T}, 10\ns_mul_i32 s{T}, s{T}, 335\ns_add_u32 s{T}, s{T}, s{LC}\ns_add_u32 s{T}, s{T}, s{KS}")
        a.I(f"s_lshl_b32 s{T}, s{T}, 10\ns_add_u32 s{T+10+i}, s{T}, {B2_OFF}\ns_add_u32 s{LC}, s{LC}, 1")
    FR = 172
    a.I("s_waitcnt vmcnt(0)")
    for i in range(4):
        a.I(f"ds_read_b64_tr_b16 {pk(FR+4*i)}, v{t0} offset:{32*i}\nds_read_b64_tr_b16 {pk(FR+4*i+2)}, v{t0} offset:{32*i+512}")
    for i in range(4):
        a.I(f"s_waitcnt lgkmcnt({6-2*i})")
        a.I(f"buffer_store_dwordx4 {q4(FR+4*i)}, v{V_L16}, {srd(SRD_WS)}, s{T+10+i} offen {SC}")
    a.I("s_branch L_p0_cdone")
    a.L("L_p0_noc")
    a.I(f"s_sub_u32 s{T}, s{GW}, 680\ns_cmp_ge_u32 s{T}, {ZERO_KB}\ns_cbranch_scc1 L_p0_cdone")
    a.I(f"s_lshl_b32 s{T}, s{T}, 10\ns_add_u32 s{T}, s{T}, {KV_OFF}")
    for i in range(4): a.I(f"v_mov_b32 v{FR+i}, 0")
    a.I(f"buffer_store_dwordx4 {q4(FR)}, v{V_L16}, {srd(SRD_WS)}, s{T} offen {SC}")
    a.L("L_p0_cdone")
    a.C("==== gemm1 main loop ====")
    a.I(f"v_lshrrev_b32 v{t0}, 5, v{L}\nv_bfe_u32 v{t1}, v{L}, 2, 2\nv_lshl_add_u32 v{t0}, v{t0}, 3, v{t1}\nv_mul_u32_u24 v{t0}, 448, v{t0}")
    a.I(f"v_and_b32 v{t1}, 1, v{L}\nv_lshl_add_u32 v{t0}, v{t1}, 3, v{t0}\nv_bfe_u32 v{t1}, v{L}, 1, 1\nv_lshl_add_u32 v{t0}, v{t1}, 5, v{t0}")
    a.I(f"v_bfe_u32 v{t1}, v{L}, 4, 1\nv_lshl_add_u32 v{V_TRA}, v{t1}, 4, v{t0}\nv_add_u32 v{V_TRA+1}, {3*WSLOT}, v{V_TRA}")
    a.I(f"v_and_b32 v{t0}, 31, v{L}\nv_bfe_u32 v{t1}, v{L}, 1, 3\nv_lshrrev_b32 v{t2}, 5, v{L}\nv_xor_b32 v{t1}, v{t1}, v{t2}")
    a.I(f"v_lshlrev_b32 v{t0}, 7, v{t0}\nv_lshl_add_u32 v{t0}, v{t1}, 4, v{t0}\ns_lshl_b32 s{T}, s{S_WAVE}, 12\ns_add_u32 s{T}, s{T}, {XRING}")
    a.I(f"v_add_u32 v{V_VA}, s{T}, v{t0}")
    for ks in range(1, 4): a.I(f"v_xor_b32 v{V_VA+ks}, {32*ks}, v{V_VA}")
    if MPRIO: a.I(f"s_setprio {MPRIO}")
    ST(a, "p0done")
    lg = Q("lgkmcnt", 15)
    NM = 280
    def reads(m):
        h, r = divmod(m, 14); ks2, t = divmod(r, 7); g = m // 7
        if t == 0:
            c, ks = divmod(g, 4)
            a.I(f"ds_read_b128 {q4(AF+4*(g&1))}, v{V_VA+ks} offset:{(c%3)*16384}")
            lg.issue(m)
        slot = h % 6
        off = (slot % 3) * WSLOT + ks2 * 7168 + t * 64
        b = BF + (m % NB) * 4
        a.I(f"ds_read_b64_tr_b16 {pk(b)}, v{V_TRA + slot//3} offset:{off}")
        a.I(f"ds_read_b64_tr_b16 {pk(b+2)}, v{V_TRA + slot//3} offset:{off+1792}")
        lg.issue(m); lg.issue(m)
    def P(h):
        if h == 4: a.I("s_waitcnt vmcnt(0)")
        a.I("s_barrier")
        if h % 2 == 0: ST(a, f"P{h}")
    P(0)
    if DIAG == 2: a.I("s_memrealtime s[92:93]\ns_waitcnt lgkmcnt(0)\ns_sub_u32 s91, s92, s90")
    for m in range(PD): reads(m)
    for m in range(NM):
        t = m % 7; g = m // 7
        lg.wait(a, m)
        d = ACC1 + 16 * t
        cin = "0" if m < 7 else f"v[{d}:{d+15}]"
        a.I(f"v_mfma_f32_32x32x16_bf16 v[{d}:{d+15}], {q4(BF+(m%NB)*4)}, {q4(AF+4*(g&1))}, {cin}")
        if m + PD < NM:
            if (m + PD) % 14 == 0: P((m + PD) // 14)
            reads(m + PD)
        elif m + PD == NM:
            a.I(f"v_and_b32 v{t0}, 31, v{L}\ns_lshl_b32 s{T}, s{S_WAVE}, 8\ns_add_u32 s{T}, s{T}, {EXT_LDS+7168}")
            a.I(f"v_lshl_add_u32 v{t0}, v{t0}, 3, s{T}\nv_add_u32 v{t1}, {EXT_LDS}, v{V_L16}")
            a.I(f"ds_read_b64 {pk(t2)}, v{t0}"); lg.issue("st")
        elif m + PD == NM + 1:
            for tt in range(7):
                a.I(f"ds_read_b128 {q4(172+4*tt)}, v{t1} offset:{tt*1024}"); lg.issue(("e", tt))
    lds_add(a, 0, V_E + 4)
    lg.issue("add")
    ST(a, "mainend")
    if DIAG == 3: a.I("s_memrealtime s[92:93]\ns_waitcnt lgkmcnt(0)\ns_sub_u32 s91, s92, s90")
    XE = 200
    lg.wait(a, "st")
    a.I(f"v_cmp_gt_u32 vcc, 32, v{L}")
    a.I(f"v_and_b32 v{XE+1}, 0xffff, v{t2}\nv_lshl_or_b32 v{XE+1}, v{XE+1}, 16, v{XE+1}\nv_lshrrev_b32 v{XE}, 16, v{t2}")
    a.I(f"v_cndmask_b32 v{XE}, v{XE}, v{XE+1}, vcc\nv_cndmask_b32 v{XE+1}, 0, v{XE+1}, vcc")
    a.I(f"v_mov_b32 v{XE+2}, v{XE+1}\nv_mov_b32 v{XE+3}, v{XE+1}")
    a.I(f"v_mov_b32 v{V_R}, v{t3}\nv_and_b32 v{V_SD}, s{S_M16}, v{t2}")
    for t in range(7):
        d = ACC1 + 16 * t
        lg.wait(a, ("e", t))
        a.I(f"v_mfma_f32_32x32x16_bf16 v[{d}:{d+15}], {q4(172+4*t)}, {q4(XE)}, v[{d}:{d+15}]")
        if t == 0:
            a.I(f"v_mul_f32 v{V_R2}, {hx(f32(math.log2(math.e)))}, v{V_R}\nv_mul_f32 v{V_C0}, {hx(f32(K0C))}, v{V_R}")
            a.I(f"v_mul_f32 v{V_C1}, v{V_R}, v{V_R}\nv_mul_f32 v{V_C1}, v{V_C1}, v{V_R}")
        if t == 1:
            a.I(f"v_mul_f32 v{V_C1}, {hx(f32(K1C))}, v{V_C1}\nv_mov_b32 v{V_EPS}, {hx(f32(1e-6))}")
            a.I(f"v_bfe_u32 v{t0}, v{L}, 4, 1\nv_mul_u32_u24 v{t0}, {68*1024}, v{t0}")
        if t == 2:
            a.I(f"v_and_b32 v{t1}, 15, v{L}\nv_lshl_add_u32 v{t0}, v{t1}, 4, v{t0}")
            a.I(f"v_lshrrev_b32 v{t1}, 5, v{L}\nv_lshl_add_u32 v{V_HQO}, v{t1}, 8, v{t0}")
    a.I(f"s_lshl_b32 s{T}, s{S_RB}, 2\ns_add_u32 s{T}, s{T}, s{S_WAVE}\ns_mul_i32 s{T}, s{T}, {2*68}")
    a.I(f"s_add_u32 s{T}, s{T}, s{S_KS0}\ns_lshl_b32 s{S_HQ}, s{T}, 10")
    ST(a, "ext")
    SIG, SIGX = T + 11, T + 12
    a.I(f"s_lshl_b32 s{SIG}, s{S_RB}, 7\ns_add_u32 s{SIG}, s{SIG}, {CNT_OFF}\ns_mov_b32 s{SIGX}, 1")
    a.I(f"s_cmp_eq_u32 s{S_TYPE}, 0\ns_cbranch_scc1 L_ep_kvq\ns_cmp_eq_u32 s{S_TYPE}, 2\ns_cbranch_scc1 L_ep_qx")
    a.I("s_nop 3")
    for t in range(7):
        if t == 6: a.I(f"s_cmp_eq_u32 s{S_CG}, 14\ns_cbranch_scc1 L_ep_done")
        ep_store_tile(a, t, ep_gelu)
    a.I("s_branch L_ep_done")
    a.L("L_ep_qx")
    a.I(f"s_add_u32 s{SIG}, s{SIG}, 2048\ns_nop 3")
    for t in range(4): ep_store_tile(a, t, ep_phi)
    a.I("s_branch L_ep_done")
    a.L("L_ep_kvq")
    a.I(f"s_add_u32 s{SIG}, s{SIG}, 2048\ns_mov_b32 s{SIGX}, 3")
    a.I(f"v_and_b32 v{t0}, 31, v{L}\ns_lshl_b32 s{T}, s{S_WAVE}, 5\nv_add_u32 v{t0}, s{T}, v{t0}")
    a.I(f"v_mul_u32_u24 v{t0}, {KV_RS}, v{t0}\nv_lshrrev_b32 v{t1}, 5, v{L}\nv_lshl_add_u32 v{V_KVW}, v{t1}, 3, v{t0}\nv_add_u32 v{V_KVW}, {KVIMG}, v{V_KVW}")
    a.I(f"v_mov_b32 v{XE}, 0x3f803f80\nv_mov_b32 v{XE+1}, 0x3f803f80")
    a.I(f"ds_write_b64 v{V_KVW}, {pk(XE)} offset:320")
    for t in range(5):
        for u in range(2):
            r0 = ACC1 + 16 * t + 8 * u
            if t < 2: ep_phi(a, r0, 8, r0)
            elif t == 2:
                ep_phi(a, r0, 4, r0); ep_lin(a, r0 + 4, 4, r0 + 2)
            else: ep_lin(a, r0, 8, r0)
            o = 8 * t + 2 * u
            a.I(f"ds_write2_b64 v{V_KVW}, {pk(r0)}, {pk(r0+2)} offset0:{o} offset1:{o+4}")
    a.I("s_waitcnt lgkmcnt(0)")
    lds_add(a, 1, 112)
    AK, AV, C = 114, 115, 116
    a.I(f"v_lshrrev_b32 v{AK}, 5, v{L}\nv_bfe_u32 v{AV}, v{L}, 2, 2\nv_lshl_add_u32 v{AK}, v{AK}, 3, v{AV}\nv_mul_u32_u24 v{AK}, {KV_RS}, v{AK}")
    a.I(f"v_add_u32 v{AK}, {KVIMG}, v{AK}")
    a.I(f"v_bfe_u32 v{C}, v{L}, 4, 1\nv_and_b32 v{AV}, 3, v{L}\nv_lshl_add_u32 v{C}, v{C}, 2, v{AV}")
    a.I(f"s_mul_i32 s{T}, s{S_WAVE}, 40\nv_lshlrev_b32 v{C+1}, 3, v{C}\nv_add_u32 v{C+1}, s{T}, v{C+1}")
    a.I(f"v_cmp_gt_u32 vcc, 5, v{C}\nv_add_u32 v{C+2}, 160, v{C+1}\nv_mov_b32 v{C+3}, 320")
    a.I(f"v_cndmask_b32 v{C+2}, v{C+3}, v{C+2}, vcc")
    a.I(f"v_add_u32 v{AV}, v{AK}, v{C+2}\nv_add_u32 v{AK}, v{AK}, v{C+1}")
    a.I(f"v_lshrrev_b32 v{C}, 5, v{L}\nv_mul_u32_u24 v{C}, 320, v{C}\nv_and_b32 v{C+1}, 31, v{L}\nv_lshl_add_u32 v{C}, v{C+1}, 2, v{C}")
    lds_wait_ge(a, 1, 4, 112)
    FK, FV, D = 0, 32, 64
    for kp in range(8):
        o = kp * 16 * KV_RS
        a.I(f"ds_read_b64_tr_b16 {pk(FK+4*kp)}, v{AK} offset:{o}\nds_read_b64_tr_b16 {pk(FK+4*kp+2)}, v{AK} offset:{o+4*KV_RS}")
        a.I(f"ds_read_b64_tr_b16 {pk(FV+4*kp)}, v{AV} offset:{o}\nds_read_b64_tr_b16 {pk(FV+4*kp+2)}, v{AV} offset:{o+4*KV_RS}")
        if kp >= 2:
            a.I("s_waitcnt lgkmcnt(8)")
            k2 = kp - 2
            a.I(f"v_mfma_f32_32x32x16_bf16 v[{D}:{D+15}], {q4(FV+4*k2)}, {q4(FK+4*k2)}, {'0' if k2 == 0 else f'v[{D}:{D+15}]'}")
    for k2 in (6, 7):
        a.I(f"s_waitcnt lgkmcnt({4*(7-k2)})")
        a.I(f"v_mfma_f32_32x32x16_bf16 v[{D}:{D+15}], {q4(FV+4*k2)}, {q4(FK+4*k2)}, v[{D}:{D+15}]")
    a.I(f"s_lshl_b32 s{T+2}, s{S_CG}, 2\ns_add_u32 s{T+2}, s{T+2}, s{S_WAVE}\ns_mul_i32 s{T+2}, s{T+2}, 1680\ns_add_u32 s{T+2}, s{T+2}, {KV_OFF}")
    a.I("s_mov_b32 exec_lo, 0xfffff\ns_mov_b32 exec_hi, 0xfffff")
    for r in range(12):
        if r == 9: a.I("s_mov_b32 exec_hi, 0")
        e = 8 * (r >> 2) + (r & 3)
        a.I(f"buffer_atomic_add_f32 v{D+r}, v{C}, {srd(SRD_WS)}, s{T+2} offen offset:{e*80}")
    a.I("s_mov_b64 exec, -1")
    ep_store_tile(a, 5, ep_phi)
    ep_store_tile(a, 6, ep_phi)
    a.L("L_ep_done")
    ST(a, "epi")
    a.C("---- publish ----")
    a.I(f"s_lshl_b32 s{T}, s{S_CG}, 7\ns_add_u32 s{T}, s{T}, {CNT_OFF+4096}\nv_mov_b32 v114, s{SIG}\nv_mov_b32 v115, 1")
    a.I(f"v_writelane_b32 v114, s{T}, 1")
    a.I("s_waitcnt vmcnt(0)")
    ST(a, "drain")
    lds_add(a, 2, 112, rtn=True)
    a.I(f"s_waitcnt lgkmcnt(0)\nv_readfirstlane_b32 s{T}, v113\ns_cmp_lg_u32 s{T}, 3\ns_cbranch_scc1 L_nosig")
    a.I(f"s_mov_b32 exec_lo, s{SIGX}\ns_mov_b32 exec_hi, 0")
    a.I(f"buffer_atomic_add v115, v114, {srd(SRD_WS)}, 0 offen\ns_mov_b64 exec, -1")
    a.L("L_nosig")
    if MPRIO: a.I("s_setprio 0")
    a.C("==== gemm2, attention part (waves 0..3) ====")
    vm = Q("vmcnt", 63)
    PQ, AC2, WO = 0, 80, 160
    VT = 240
    W_KVW, W_KT0, W_KT1 = 250, 251, 252
    g2_common(a)
    a.I(f"s_mul_i32 s{S_BB}, s{S_CG2}, {68*5*1024}\ns_mul_i32 s{T}, s{S_WAVE}, {25*1024}\ns_add_u32 s{S_BB}, s{S_BB}, s{T}\ns_add_u32 s{S_BB}, s{S_BB}, {B2_OFF + 48*5*1024}")
    def woload(t, slot):
        a.I(f"s_add_u32 s{T}, s{S_BB}, {t*5120}\ns_add_u32 s{T+1}, s{T}, 4096")
        for ct in range(5):
            a.I(f"buffer_load_dwordx4 {q4(WO+20*slot+4*ct)}, v{V_L16}, {srd(SRD_WS)}, s{T+(ct>>2)} offen offset:{(ct&3)*1024} {SC}")
            vm.issue(("wo", t))
    for t in range(4): woload(t, t)
    lds_wait_ge(a, 2, 4, VT)
    u0, u1, u2, u3 = VT, VT + 1, VT + 2, VT + 3
    KB = T + 13
    a.I(f"s_mul_i32 s{KB}, s{S_WAVE}, 11264\ns_add_u32 s{KB}, s{KB}, {KVIMG}\nv_add_u32 v{W_KVW}, s{KB}, v{V_L16}")
    for i in range(4): a.I(f"v_mov_b32 v{AC2+i}, 0")
    for i in range(11): a.I(f"ds_write_b128 v{W_KVW}, {q4(AC2)} offset:{i*1024}")
    a.I(f"v_mul_u32_u24 v{u0}, 205, v{L}\nv_lshrrev_b32 v{u0}, 10, v{u0}\nv_mul_u32_u24 v{u1}, 5, v{u0}\nv_sub_u32 v{u1}, v{L}, v{u1}")
    a.I(f"v_lshlrev_b32 v{u0}, 6, v{u0}\nv_lshl_add_u32 v{u0}, v{u1}, 3, v{u0}")
    a.I("s_waitcnt lgkmcnt(0)")
    a.I(f"v_add_u32 v{W_KVW}, s{KB}, v{u0}")
    a.I(f"v_and_b32 v{u0}, 15, v{L}\nv_lshrrev_b32 v{u1}, 4, v{L}\nv_lshlrev_b32 v{u1}, 3, v{u1}\nv_add_u32 v{u1}, s{KB}, v{u1}")
    a.I(f"v_lshl_add_u32 v{W_KT0}, v{u0}, 6, v{u1}")
    a.I(f"v_and_b32 v{u2}, 3, v{L}\nv_cmp_eq_u32 vcc, 0, v{u2}\nv_lshrrev_b32 v{u0}, 2, v{u0}\nv_add_u32 v{u0}, 16, v{u0}\nv_mov_b32 v{u2}, 20")
    a.I(f"v_cndmask_b32 v{u0}, v{u2}, v{u0}, vcc")
    a.I(f"v_lshl_add_u32 v{W_KT1}, v{u0}, 6, v{u1}")
    a.I(f"s_lshl_b32 s{T}, s{S_WAVE}, 8\ns_add_u32 s{T}, s{T}, {CNT_OFF+4096-128}\nv_lshlrev_b32 v{u0}, 7, v{L}\nv_add_u32 v{u0}, s{T}, v{u0}\nv_mov_b32 v{u1}, 16")
    a.I(f"s_lshr_b32 s{T}, s{S_RB2}, 1\ns_lshl_b32 s{T}, s{T}, 7\ns_add_u32 s{T}, s{T}, {CNT_OFF+2048}\ns_mov_b32 s{T+1}, 9")
    a.I(f"v_writelane_b32 v{u0}, s{T}, 0\nv_writelane_b32 v{u1}, s{T+1}, 0")
    ST(a, "prepoll")
    poll(a, SRD_WS, u0, u1, u2, 3)
    vm.q = []
    ST(a, "S3")
    KVRAW = AC2
    for i in range(14):
        if i % 4 == 0: a.I(f"s_mul_i32 s{T}, s{S_WAVE}, {8*1680}\ns_add_u32 s{T}, s{T}, {KV_OFF + i*960}")
        a.I(f"buffer_load_dwordx4 {q4(KVRAW+4*i)}, v{V_L16}, {srd(SRD_WS)}, s{T} offen offset:{(i%4)*960} {SC}")
        vm.issue(("kv", i))
    for sg in range(4):
        a.I(f"s_mul_i32 s{T}, s{S_WAVE}, {5*1024}\ns_add_u32 s{T}, s{T}, {48*1024}\ns_add_u32 s{T}, s{T}, s{S_A+sg}\ns_add_u32 s{T+1}, s{T}, 4096")
        for t in range(5):
            a.I(f"buffer_load_dwordx4 {q4(PQ+20*sg+4*t)}, v{V_L16}, {srd(SRD_WS)}, s{T+(t>>2)} offen offset:{(t&3)*1024} {SC}")
            vm.issue(("pq", sg))
    for i in range(14):
        r = KVRAW + 4 * i
        vm.wait(a, ("kv", i))
        a.I(f"v_cvt_pk_bf16_f32 v{r}, v{r}, v{r+1}\nv_cvt_pk_bf16_f32 v{r+1}, v{r+2}, v{r+3}")
        a.I(f"ds_write_b64 v{W_KVW}, {pk(r)} offset:{24 + i*768}")
    a.I("s_waitcnt lgkmcnt(0)")
    ST(a, "kvlds")
    KT, ND = AC2, AC2 + 32
    for qd in range(2):
        for hq in range(4):
            h = 4 * qd + hq
            for tau in range(2):
                for b in range(2):
                    a.I(f"ds_read_b64 {pk(KT+(hq*2+tau)*4+2*b)}, v{W_KT1 if tau else W_KT0} offset:{h*1344 + 24 - 8*hq + 32*b}")
            if hq == 2: a.I("s_waitcnt lgkmcnt(8)")
        a.I("s_waitcnt lgkmcnt(0)")
        for sg in range(4):
            vm.wait(a, ("pq", sg))
            for hq in range(4):
                for tau in range(2):
                    a.I(f"v_mfma_f32_16x16x32_bf16 {q4(ND+(hq*2+tau)*4)}, {q4(KT+(hq*2+tau)*4)}, {q4(PQ+20*sg+10*qd+2*hq)}, 0")
            for hq in range(4): a.I(f"v_add_f32 v{ND+8*hq+6}, {hx(f32(1e-6))}, v{ND+8*hq+5}")
            for hq in range(4): a.I(f"v_rcp_f32 v{ND+8*hq+6}, v{ND+8*hq+6}")
            for hq in range(4):
                d = ND + 8 * hq
                a.I(f"v_pk_mul_f32 {pk(d)}, {pk(d)}, {pk(d+6)} op_sel_hi:[1,0]\nv_pk_mul_f32 {pk(d+2)}, {pk(d+2)}, {pk(d+6)} op_sel_hi:[1,0]")
                a.I(f"v_mul_f32 v{d+4}, v{d+4}, v{d+6}")
            vals = [ND + 8 * hq + i for hq in range(4) for i in range(5)]
            for i in range(10):
                a.I(f"v_cvt_pk_bf16_f32 v{PQ+20*sg+10*qd+i}, v{vals[2*i]}, v{vals[2*i+1]}")
    ST(a, "odone")
    RES, VA = 0, VT
    for t in range(5):
        if t == 4: vm.wait(a, ("wo", 4))
        for sg in range(4):
            for ct in range(5):
                d = AC2 + (sg * 5 + ct) * 4
                a.I(f"v_mfma_f32_16x16x32_bf16 {q4(d)}, {q4(WO+20*(t%4)+4*ct)}, {q4(PQ+20*sg+4*t)}, {'0' if t == 0 else q4(d)}")
        if t == 0: woload(4, 0)
        if t == 2: reduce_setup(a, vm, [0, 1, 2], RES, VA, VT + 8)
    ST(a, "attend")
    final_reduce(a, vm, ST, AC2, 0, [0, 1, 2], RES, WO, VA)
    ST(a, "end")
    if STAMPS: a.I("s_waitcnt vmcnt(0)")
    ST(a, "rt1", True)
    stamp_dump(a, VT + 8)
    if DIAG:
        a.I("s_waitcnt vmcnt(0)\ns_memrealtime s[92:93]\ns_waitcnt lgkmcnt(0)")
        if DIAG == 1: a.I("s_sub_u32 s91, s92, s90")
        a.I("s_min_u32 s91, s91, 20000\ns_mov_b32 s90, s92")
        a.L("L_diag")
        a.I("s_memrealtime s[92:93]\ns_waitcnt lgkmcnt(0)\ns_sub_u32 s92, s92, s90\ns_cmp_lt_u32 s92, s91\ns_cbranch_scc1 L_diag")
    a.L("L_end")
    a.I("s_endpgm")

def header(launches):
    ref = open(f"cdna_kernels/{NAME}.s.ref").read().split("\n")
    out = [l for l in ref if l.startswith(";") and "@launch" not in l]
    out += launches
    out += ['.amdgcn_target "amdgcn-amd-amdhsa--gfx950"', ".text"]
    return "\n".join(out) + "\n"

def build(path, listform):
    ln = f"; @launch kernel={KN} grid=(256,1,1) block=(512,1,1) lds=163840" if listform else "; @launch grid=(256,1,1) block=(512,1,1) lds=163840"
    txt = header([ln])
    a = Asm()
    common(a)
    s1 = loader(a)
    s2 = aux(a)
    h2(a, [s1, s2])
    mwave(a)
    t, n = a.fixed()
    txt += t
    txt += ".p2align 8\n.fill 16384, 4, 0xbf800000\n"
    txt += f""".section .rodata,"a"
.p2align 6
.amdhsa_kernel {KN}
  .amdhsa_next_free_vgpr 256
  .amdhsa_next_free_sgpr 96
  .amdhsa_accum_offset 256
  .amdhsa_group_segment_fixed_size 0
  .amdhsa_kernarg_size 88
  .amdhsa_user_sgpr_count 2
  .amdhsa_user_sgpr_kernarg_segment_ptr 1
  .amdhsa_system_sgpr_workgroup_id_x 1
.end_amdhsa_kernel
"""
    open(path, "w").write(txt)
    if STAMPS: open(path + ".names", "w").write(repr(STAMP_NAMES))
    print("written", path, "nops inserted:", n)

if __name__ == "__main__":
    LIST = 0
    for arg in list(sys.argv):
        if "=" in arg:
            k_, v_ = arg.split("="); globals()[k_] = int(v_); sys.argv.remove(arg)
    build(sys.argv[1] if len(sys.argv) > 1 else f"cdna_kernels/{NAME}.s", LIST)
```

```python
import sys, math, struct
sys.path.insert(0, "gen")
from asmlib import Asm

NAME = "parallel_sum__linear_attn_block__dense_activation_gelu__prompt"
KN = NAME + "_kernel"
HQ_OFF   = 0x000000
B2_OFF   = 0x900000
STAT_OFF = 0xC00000
CS_OFF   = 0xC10000
KV_OFF   = 0xC40000
CNT_OFF  = KV_OFF + 53 * 1024
ZERO_KB  = 53 + 26
STAMP_OFF = 0xC80000
WS_SIZE  = 0xE00000

STAMPS = 0
CODEPF = 1
ROT1 = 0
ROT2 = 2
PD = 4
NB = 6
MPRIO = 1
SPIN = 8000
NOATOM = 0
NOSCL = 0
NOSCS = 0
THR = 0
PSLEEP = 4
G2MAP = 1
DLY = 6
N1 = 99
WOEARLY = 4
HPRIO = 2
QFIRST = 1
WSMB = 0
WODRAIN = 2
PQPRIO = 3
S1A_POLL, S1B_POLL, M_DRAIN, BUDGET, BGRATE, BGMAX, PFGAP, APRIO = 8, 14, 4, 48, 0, 15, 4, 0
DIAG = 0

def f32(x): return struct.unpack("<I", struct.pack("<f", x))[0]
def hx(x): return hex(x & 0xFFFFFFFF)
def srd(n): return f"s[{n}:{n+3}]"
def pk(r): return f"v[{r}:{r+1}]"
def q4(r): return f"v[{r}:{r+3}]"
SC = "sc1"

S_X, S_WQKV, S_WO, S_W1, S_B1, S_W2, S_B2, S_OUT, S_DBG, S_WS = 4, 6, 8, 12, 14, 16, 18, 20, 22, 24
S_WAVE, S_I = 26, 27
SRD_X, SRD_W, SRD_WS, SRD_T, SRD_U = 28, 32, 36, 40, 44
S_RB, S_CG, S_TYPE, S_STR, S_BASE, S_JA, S_JB, S_NP, S_KS0, S_CSB, S_RB2, S_CG2 = range(48, 60)
T = 60
S_KK = 76
S_A = 88
S_SPIN = 96
S_M16 = 97
V_LANE, V_L16, V_STAMP = 255, 254, 253

WSLOT = 14336
XRING = 6 * WSLOT
P0_LDS = XRING + 3 * 16384
EXT_LDS = P0_LDS + 16384
SYNC_LDS = EXT_LDS + 8192
KVIMG = 2 * WSLOT
KV_RS = 344
MZ, MZS = 28672, 15360
HZ1, HZS = 90112, 20480

class Q:
    def __init__(self, name, mx): self.q = []; self.name = name; self.mx = mx
    def issue(self, tag): self.q.append(tag)
    def wait(self, a, tag):
        idx = [i for i, t in enumerate(self.q) if t == tag]
        if not idx: return
        n = len(self.q) - 1 - idx[-1]
        assert n <= self.mx, (self.name, n)
        a.I(f"s_waitcnt {self.name}({n})")
        self.q = self.q[idx[-1] + 1:]
    def drain(self, a):
        a.I(f"s_waitcnt {self.name}(0)"); self.q = []

STAMP_NAMES = {}
class Stamp:
    def __init__(self, role): self.n = 0; self.names = []; STAMP_NAMES[role] = self.names
    def __call__(self, a, name, real=False):
        if not STAMPS: return
        a.I(f"{'s_memrealtime' if real else 's_memtime'} s[92:93]\ns_waitcnt lgkmcnt(0)\nv_writelane_b32 v{V_STAMP}, s92, {self.n}")
        self.names.append(name); self.n += 1
def stamp_dump(a, vt):
    if not STAMPS: return
    a.I(f"s_lshl_b32 s92, s2, 3\ns_add_u32 s92, s92, s{S_WAVE}\ns_lshl_b32 s92, s92, 8\ns_add_u32 s92, s92, {STAMP_OFF}\nv_lshlrev_b32 v{vt}, 2, v{V_LANE}")
    a.I(f"buffer_store_dword v{V_STAMP}, v{vt}, {srd(SRD_WS)}, s92 offen")

def mk_srd(a, d, ptr, size):
    a.I(f"s_mov_b32 s{d}, s{ptr}\ns_mov_b32 s{d+1}, s{ptr+1}")
    a.I(f"s_mov_b32 s{d+2}, {hx(size)}\ns_mov_b32 s{d+3}, 0x20000")

_lbl = [0]
def newlabel(p):
    _lbl[0] += 1; return f"L_{p}{_lbl[0]}"

def lds_wait_ge(a, word, val, vt):
    l = newlabel("lw"); e = newlabel("lwe")
    a.I(f"s_mov_b32 s{S_SPIN}, {SPIN*8}\nv_mov_b32 v{vt}, {SYNC_LDS + 4*word}")
    a.L(l)
    a.I(f"ds_read_b32 v{vt+1}, v{vt}\ns_waitcnt lgkmcnt(0)\nv_readfirstlane_b32 s{T}, v{vt+1}")
    a.I(f"s_cmp_ge_u32 s{T}, {val}\ns_cbranch_scc1 {e}\ns_sleep 1\ns_sub_u32 s{S_SPIN}, s{S_SPIN}, 1\ns_cmp_lg_u32 s{S_SPIN}, 0\ns_cbranch_scc1 {l}")
    a.L(e)

def lds_add(a, word, vt, rtn=False):
    a.I(f"v_mov_b32 v{vt}, {SYNC_LDS + 4*word}\nv_mov_b32 v{vt+1}, 1\ns_mov_b64 exec, 1")
    if rtn: a.I(f"ds_add_rtn_u32 v{vt+1}, v{vt}, v{vt+1}")
    else: a.I(f"ds_add_u32 v{vt}, v{vt+1}")
    a.I("s_mov_b64 exec, -1")

def poll(a, srdn, voff, vexp, vt, nlanes, slp=4):
    l = newlabel("pl"); e = newlabel("ple")
    a.I(f"s_mov_b32 s{S_SPIN}, {SPIN}\ns_mov_b64 exec, {(1 << nlanes) - 1}")
    a.L(l)
    a.I(f"buffer_load_dword v{vt}, v{voff}, {srd(srdn)}, 0 offen {SC}\ns_waitcnt vmcnt(0)")
    a.I(f"v_cmp_lt_u32 vcc, v{vt}, v{vexp}\ns_nop 4\ns_cbranch_vccz {e}")
    a.I(f"s_sleep {slp}\ns_sub_u32 s{S_SPIN}, s{S_SPIN}, 1\ns_cmp_lg_u32 s{S_SPIN}, 0\ns_cbranch_scc1 {l}")
    a.L(e)
    a.I("s_mov_b64 exec, -1")

def poll_issue(a, vm, srdn, voff, vt, nlanes, tag):
    a.I(f"s_mov_b64 exec, {(1 << nlanes) - 1}")
    a.I(f"buffer_load_dword v{vt}, v{voff}, {srd(srdn)}, 0 offen {SC}\ns_mov_b64 exec, -1")
    vm.issue(tag)
def poll_check(a, vm, srdn, voff, vexp, vt, nlanes, tag, slp):
    e = newlabel("pc")
    vm.wait(a, tag)
    a.I(f"s_mov_b64 exec, {(1 << nlanes) - 1}\nv_cmp_lt_u32 vcc, v{vt}, v{vexp}\ns_mov_b64 exec, -1\ns_nop 3\ns_cbranch_vccz {e}")
    poll(a, srdn, voff, vexp, vt, nlanes, slp)
    a.L(e)

def common(a):
    a.raw(f".globl {KN}\n.p2align 8\n.type {KN},@function")
    a.L(KN)
    a.I("s_cmp_ge_u32 s2, 256\ns_cbranch_scc1 L_end")
    a.I("s_load_dwordx16 s[4:19], s[0:1], 0\ns_load_dwordx4 s[20:23], s[0:1], 64\ns_load_dwordx2 s[24:25], s[0:1], 80")
    a.I(f"v_lshrrev_b32 v1, 6, v0\nv_and_b32 v{V_LANE}, 63, v0")
    a.I(f"v_readfirstlane_b32 s{S_WAVE}, v1\nv_lshlrev_b32 v{V_L16}, 4, v{V_LANE}")
    if CODEPF:
        a.I("s_getpc_b64 s[94:95]\ns_and_b32 s94, s94, 0xffffff00")
        a.I(f"s_and_b32 s92, s2, 0xf8\ns_add_u32 s92, s92, s{S_WAVE}\ns_lshl_b32 s92, s92, 8")
        a.I(f"v_lshlrev_b32 v2, 7, v{V_LANE}\nv_add_u32 v2, s92, v2\ns_mov_b64 exec, 3")
        a.I("global_load_dword v252, v2, s[94:95]\ns_mov_b64 exec, -1")
    a.I(f"s_and_b32 s{S_I}, s{S_WAVE}, 3\ns_mov_b32 s{S_M16}, 0xffff0000")
    a.I(f"s_and_b32 s{T}, s2, 1\ns_lshl_b32 s{T}, s{T}, 3\ns_bfe_u32 s{S_RB}, s2, 0x30003\ns_add_u32 s{S_RB}, s{S_RB}, s{T}")
    a.I(f"s_and_b32 s{T}, s2, 6\ns_bfe_u32 s{S_CG}, s2, 0x10006\ns_add_u32 s{S_CG}, s{S_CG}, s{T}\ns_lshr_b32 s{T}, s2, 7\ns_lshl_b32 s{T}, s{T}, 3\ns_add_u32 s{S_CG}, s{S_CG}, s{T}")
    if G2MAP == 0:
        a.I(f"s_and_b32 s{S_RB2}, s2, 7\ns_lshl_b32 s{S_RB2}, s{S_RB2}, 2\ns_bfe_u32 s{T}, s2, 0x20003\ns_add_u32 s{S_RB2}, s{S_RB2}, s{T}")
        a.I(f"s_lshr_b32 s{S_CG2}, s2, 5")
    else:
        a.I(f"s_and_b32 s{S_RB2}, s2, 6\ns_lshl_b32 s{S_RB2}, s{S_RB2}, 2\ns_bfe_u32 s{T}, s2, 0x30003\ns_add_u32 s{S_RB2}, s{S_RB2}, s{T}")
        a.I(f"s_and_b32 s{S_CG2}, s2, 1\ns_lshl_b32 s{S_CG2}, s{S_CG2}, 2\ns_lshr_b32 s{T}, s2, 6\ns_add_u32 s{S_CG2}, s{S_CG2}, s{T}")
    a.I(f"s_mov_b32 s{S_JA}, 0\ns_mov_b32 s{S_JB}, 0\ns_mov_b32 s{S_STR}, 3840\ns_mov_b32 s{S_CSB}, {CS_OFF}\ns_mov_b32 s{S_NP}, 28")
    a.I(f"s_cmp_lt_u32 s{S_CG}, 8\ns_cbranch_scc1 L_t_kvq\ns_cmp_eq_u32 s{S_CG}, 15\ns_cbranch_scc1 L_t_qx")
    a.I(f"s_mov_b32 s{S_TYPE}, 1\ns_sub_u32 s{T}, s{S_CG}, 8\ns_mul_i32 s{S_BASE}, s{T}, 448\ns_mul_i32 s{S_KS0}, s{T}, 7")
    a.I(f"s_mov_b32 s{S_STR}, 3072\ns_mov_b32 s{S_CSB}, {CS_OFF + 1920*32}\ns_cmp_eq_u32 s{S_CG}, 14\ns_cselect_b32 s{S_NP}, 24, 28\ns_branch L_t_done")
    a.L("L_t_qx")
    a.I(f"s_mov_b32 s{S_TYPE}, 2\ns_mov_b32 s{S_BASE}, 1024\ns_mov_b32 s{S_KS0}, 64\ns_mov_b32 s{S_NP}, 16\ns_branch L_t_done")
    a.L("L_t_kvq")
    a.I(f"s_mov_b32 s{S_TYPE}, 0\ns_mul_i32 s{S_BASE}, s{S_CG}, 160\ns_add_u32 s{S_BASE}, s{S_BASE}, 1280\ns_mov_b32 s{S_JA}, 1120")
    a.I(f"s_lshl_b32 s{S_JB}, s{S_CG}, 5\ns_sub_u32 s{S_JB}, {hx(-2720)}, s{S_JB}")
    a.I(f"s_lshl_b32 s{S_KS0}, s{S_CG}, 1\ns_add_u32 s{S_KS0}, s{S_KS0}, {48-5}")
    a.L("L_t_done")
    a.I(f"s_cmp_lt_u32 s{S_WAVE}, 4\ns_cbranch_scc1 L_M\ns_cmp_ge_u32 s{S_WAVE}, 6\ns_cbranch_scc1 L_AUX")

def base_srds(a):
    a.I("s_waitcnt lgkmcnt(0)")
    mk_srd(a, SRD_X, S_X, 2048 * 1280)
    if WSMB: a.I(f"s_add_u32 s{S_WS}, s{S_WS}, {hx(WSMB << 20)}\ns_addc_u32 s{S_WS+1}, s{S_WS+1}, 0")
    mk_srd(a, SRD_WS, S_WS, WS_SIZE)

def loader(a):
    ST = Stamp("L")
    vm = Q("vmcnt", 63)
    if CODEPF: vm.issue("code")
    VW, VX, t0, t1, t2 = 4, 12, 16, 17, 18
    S_XK, S_WK, S_XB, S_MW, S_MX, S_W32, S_WEND = T + 2, T + 3, T + 4, T + 5, T + 6, T + 7, T + 8
    a.C("==== loader ====")
    ST(a, "rt0", True); ST(a, "start")
    a.I(f"v_lshrrev_b32 v{t0}, 3, v{V_LANE}\nv_and_b32 v{t1}, 7, v{V_LANE}\nv_lshrrev_b32 v{t2}, 1, v{t0}\nv_xor_b32 v{t1}, v{t1}, v{t2}")
    a.I(f"v_mul_u32_u24 v{t0}, 1280, v{t0}\nv_lshl_add_u32 v{VX}, v{t1}, 4, v{t0}\nv_xor_b32 v{VX+1}, 64, v{VX}")
    if ROT1 == 0: a.I(f"s_mov_b32 s{T}, 0")
    else:
        a.I(f"s_and_b32 s{T}, s{S_RB}, 7\ns_lshr_b32 s{T+1}, s2, 6")
        if ROT1 == 1: a.I(f"s_lshl_b32 s{T+1}, s{T+1}, 1\ns_add_u32 s{T}, s{T}, s{T+1}\ns_and_b32 s{T}, s{T}, 7\ns_mul_i32 s{T}, s{T}, 5\ns_lshr_b32 s{T}, s{T}, 2")
        else: a.I(f"s_add_u32 s{T}, s{T}, s{T+1}\ns_and_b32 s{T}, s{T}, 3\ns_mul_i32 s{T}, s{T}, 5\ns_lshr_b32 s{T}, s{T}, 1")
    a.I(f"s_lshl_b32 s{S_XK}, s{T}, 7\ns_lshl_b32 s{S_W32}, s{S_STR}, 5\ns_mul_i32 s{S_WK}, s{T}, s{S_W32}\ns_lshl_b32 s{S_WK}, s{S_WK}, 1")
    a.I(f"s_mul_i32 s{S_WEND}, s{S_STR}, 640")
    a.I(f"s_lshl_b32 s{S_XB}, s{S_RB}, 1\ns_add_u32 s{S_XB}, s{S_XB}, s{S_I}\ns_mul_i32 s{S_XB}, s{S_XB}, {64*1280}")
    a.I(f"s_mul_i32 s{S_MW}, s{S_I}, 7168\ns_lshl_b32 s{S_MX}, s{S_I}, 13\ns_add_u32 s{S_MX}, s{S_MX}, {XRING}")
    base_srds(a)
    def xl(c, half):
        if half == 0: a.I(f"s_add_u32 s{T+9}, s{S_XB}, s{S_XK}")
        for i in range(4 * half, 4 * half + 4):
            a.I(f"s_add_u32 m0, s{S_MX}, {(c%3)*16384 + i*1024}")
            a.I(f"s_add_u32 s{T}, s{T+9}, {i*10240}")
            a.I(f"buffer_load_dwordx4 v{VX+(i&1)}, {srd(SRD_X)}, s{T} offen lds")
            vm.issue(("x", c))
        if half == 0:
            a.I(f"s_add_u32 s{S_XK}, s{S_XK}, 128\ns_cmp_eq_u32 s{S_XK}, 1280\ns_cselect_b32 s{S_XK}, 0, s{S_XK}")
    def wl(h):
        for it in range(7):
            a.I(f"s_add_u32 m0, s{S_MW}, {(h%6)*WSLOT + it*1024}")
            a.I("s_nop 0")
            a.I(f"buffer_load_dwordx4 v{VW+it}, {srd(SRD_W)}, s{S_WK} offen lds")
            vm.issue(("W", h))
        a.I(f"s_add_u32 s{S_WK}, s{S_WK}, s{S_W32}\ns_cmp_eq_u32 s{S_WK}, s{S_WEND}\ns_cselect_b32 s{S_WK}, 0, s{S_WK}")
    xl(0, 0); xl(0, 1)
    a.I(f"s_cmp_eq_u32 s{S_TYPE}, 1\ns_cselect_b32 s{SRD_W}, s{S_W1}, s{S_WQKV}\ns_cselect_b32 s{SRD_W+1}, s{S_W1+1}, s{S_WQKV+1}")
    a.I(f"s_mov_b32 s{SRD_W+2}, s{S_WEND}\ns_mov_b32 s{SRD_W+3}, 0x20000")
    a.I(f"s_lshl_b32 s{T}, s{S_I}, 4\ns_mul_i32 s{T}, s{T}, s{S_STR}\ns_add_u32 s{T}, s{T}, s{S_BASE}")
    a.I(f"v_mov_b32 v20, s{S_JA}\nv_mov_b32 v21, s{S_JB}\nv_mov_b32 v22, 0x40000000")
    for it in range(7):
        a.I(f"v_add_u32 v{t0}, {64*it}, v{V_LANE}\nv_mul_u32_u24 v{t1}, 2341, v{t0}\nv_lshrrev_b32 v{t1}, 16, v{t1}")
        a.I(f"v_mul_u32_u24 v{t2}, 28, v{t1}\nv_sub_u32 v{t0}, v{t0}, v{t2}")
        a.I(f"v_mul_lo_u32 v{t1}, v{t1}, s{S_STR}\nv_lshl_add_u32 v{t1}, v{t0}, 4, v{t1}")
        a.I(f"v_cmp_le_u32 vcc, 10, v{t0}\nv_add_u32 v{t1}, s{T}, v{t1}")
        a.I(f"v_cndmask_b32 v{t2}, 0, v20, vcc\nv_cmp_le_u32 vcc, 20, v{t0}\nv_add_u32 v{t1}, v{t1}, v{t2}")
        a.I(f"v_cndmask_b32 v{t2}, 0, v21, vcc\nv_cmp_le_u32 vcc, s{S_NP}, v{t0}\nv_add_u32 v{t1}, v{t1}, v{t2}")
        a.I(f"v_cndmask_b32 v{VW+it}, v{t1}, v22, vcc")
    def step(h):
        if h > 19: return
        if h == 0: wl(0)
        elif h & 1:
            wl(h)
            if (h + 1) // 2 < 10: xl((h + 1) // 2, 0)
        else:
            xl(h // 2, 1); wl(h)
    step(0)
    a.I("s_barrier")
    step(1)
    bg = bg_jobs(a, vm)
    for h in range(20):
        vm.wait(a, ("W", h))
        if h % 2 == 0: ST(a, f"P{h}w")
        a.I("s_barrier")
        step(h + 2)
        if h == 6: h2_setup(a)
        if h > S1A_POLL:
            for _ in range(BGRATE):
                if len(bg) > 30 - BGMAX: bg.pop(0)()
    ST(a, "ringend")
    h_rest(a, bg)
    ST(a, "breg")
    a.I("s_branch L_H2")
    return ST

def aux(a):
    ST = Stamp("A")
    vm = Q("vmcnt", 63)
    if CODEPF: vm.issue("code")
    L = V_LANE
    X, CW, U = 0, 20, 200
    t0, t1, t2, t3 = 60, 61, 62, 63
    BIAS, VXA, VWA, VO, VI, VTRA, CSO, CSOM, VPF = 64, 68, 69, 70, 71, 72, 73, 74, 75
    S_AL, S_ROW, S_L, S_P, S_CB, S_ST, S_WO_, S_UK, S_UC, S_LB = (T + i for i in range(2, 12))
    a.L("L_AUX")
    a.C("==== aux ====")
    ST(a, "rt0", True); ST(a, "start")
    a.I(f"s_sub_u32 s{S_AL}, s{S_WAVE}, 6")
    UN = T + 12
    a.I(f"s_lshl_b32 s{UN}, s{S_AL}, 8\ns_add_u32 s{UN}, s{UN}, s2")
    a.I(f"s_mul_hi_u32 s{S_UK}, s{UN}, {hx((1<<32)//5+1)}\ns_mul_i32 s{S_UC}, s{S_UK}, 5\ns_sub_u32 s{S_UC}, s{UN}, s{S_UC}")
    a.I(f"v_lshrrev_b32 v{t0}, 3, v{L}\nv_and_b32 v{t1}, 7, v{L}")
    SO = T + 13
    a.I(f"s_cmp_ge_u32 s{S_UK}, 48\ns_cbranch_scc1 L_p0_att")
    a.I(f"v_lshrrev_b32 v{t2}, 2, v{t0}\nv_and_b32 v{t3}, 3, v{t0}\nv_lshl_add_u32 v{VO}, v{t2}, 4, v{t3}")
    a.I(f"v_mov_b32 v{VI}, {4*1280}\ns_lshl_b32 s{SO}, s{S_UK}, 5\ns_branch L_p0_cgo")
    a.L("L_p0_att")
    a.I(f"s_sub_u32 s{T}, s{S_UK}, 48\ns_mul_i32 s{T+1}, s{T}, 205\ns_lshr_b32 s{T+1}, s{T+1}, 10")
    a.I(f"s_mul_i32 s{SO}, s{T+1}, 5\ns_sub_u32 s{T}, s{T}, s{SO}\ns_lshl_b32 s{T}, s{T}, 3\ns_mul_i32 s{SO}, s{T+1}, 160")
    a.I(f"v_add_u32 v{t2}, s{T}, v{t0}")
    a.I(f"v_mul_u32_u24 v{t3}, 205, v{t2}\nv_lshrrev_b32 v{t3}, 10, v{t3}")
    a.I(f"v_mul_u32_u24 v{VO}, 5, v{t3}\nv_sub_u32 v{t2}, v{t2}, v{VO}")
    a.I(f"v_cmp_eq_u32 vcc, 4, v{t2}\nv_mov_b32 v{VO}, 16\nv_mov_b32 v{VI}, 1280")
    a.I(f"v_cndmask_b32 v{t2}, v{t2}, v{VO}, vcc\nv_mov_b32 v{VO}, {4*1280}")
    a.I(f"v_cndmask_b32 v{VI}, v{VO}, v{VI}, vcc")
    a.I(f"v_mad_u32_u24 v{VO}, v{t3}, 20, v{t2}")
    a.L("L_p0_cgo")
    a.I(f"v_mul_u32_u24 v{VO}, 1280, v{VO}\nv_lshl_add_u32 v{VO}, v{t1}, 4, v{VO}")
    a.I(f"s_mul_i32 s{SO}, s{SO}, 1280\ns_lshl_b32 s{T}, s{S_UC}, 8\ns_add_u32 s{SO}, s{SO}, s{T}")
    a.I(f"s_lshl_b32 s{S_LB}, s{S_AL}, 13\ns_add_u32 s{S_LB}, s{S_LB}, {P0_LDS}")
    a.I(f"v_mov_b32 v{t2}, 0\nv_lshlrev_b32 v{t3}, 2, v{L}\nv_add_u32 v{t3}, {SYNC_LDS}, v{t3}\nds_write_b32 v{t3}, v{t2}")
    for i in range(4): a.I(f"v_mov_b32 v{76+i}, 0")
    base_srds(a)
    a.I(f"s_cmp_ge_u32 s{S_UK}, 48\ns_cselect_b32 s{SRD_W}, s{S_WO}, s{S_W2}\ns_cselect_b32 s{SRD_W+1}, s{S_WO+1}, s{S_W2+1}")
    a.I(f"s_mov_b32 s{SRD_W+2}, {1536*1280}\ns_cselect_b32 s{SRD_W+2}, {640*1280}, s{SRD_W+2}\ns_mov_b32 s{SRD_W+3}, 0x20000")
    a.I(f"s_cmp_ge_u32 s{UN}, 340\ns_cselect_b32 s{SRD_W+2}, 0, s{SRD_W+2}")
    bar = [-1]
    def B(upto):
        while bar[0] <= upto:
            a.I("s_barrier"); bar[0] += 1
    B(-1)
    a.I(f"s_add_u32 s{T+1}, s{SO}, 128")
    for it in range(4):
        for ln in range(2):
            a.I(f"s_add_u32 m0, s{S_LB}, {ln*4096 + it*1024}\ns_nop 0")
            a.I(f"buffer_load_dwordx4 v{VO}, {srd(SRD_W)}, s{T+1 if ln else SO} offen lds")
            vm.issue("rl")
        if it < 3: a.I(f"v_add_u32 v{VO}, v{VO}, v{VI}")
    a.I(f"s_sub_u32 s{T}, s{UN}, 340\ns_lshl_b32 s{T+1}, s{T}, 10\ns_add_u32 s{T+1}, s{T+1}, {KV_OFF}\ns_cmp_lt_u32 s{T}, {ZERO_KB}\ns_cselect_b32 s{T+1}, s{T+1}, {WS_SIZE}")
    a.I(f"buffer_store_dwordx4 {q4(76)}, v{V_L16}, {srd(SRD_WS)}, s{T+1} offen {SC}")
    vm.issue("rls")
    LAM, QD = T + 14, T + 15
    a.I(f"s_lshr_b32 s{LAM}, s2, 4\ns_bfe_u32 s{QD}, s2, 0x20001\ns_and_b32 s{S_P}, s2, 1\ns_lshl_b32 s{S_P}, s{S_P}, 1\ns_bfe_u32 s{T}, s2, 0x10003\ns_add_u32 s{S_P}, s{S_P}, s{T}")
    a.I(f"s_lshr_b32 s{T}, s{QD}, 1\ns_mul_i32 s{T}, s{T}, 5\ns_and_b32 s{T+1}, s{QD}, 1\ns_mul_i32 s{S_L}, s{T+1}, 3\ns_add_u32 s{S_L}, s{S_L}, s{T}")
    a.I(f"s_add_u32 s{S_L}, s{S_L}, s{LAM}\ns_add_u32 s{S_L}, s{S_L}, 10")
    a.I(f"s_add_u32 s{T+1}, s{T+1}, s{LAM}\ns_cmp_ge_u32 s{T+1}, 3\ns_cselect_b32 s{T}, 7, 0\ns_add_u32 s{S_L}, s{S_L}, s{T}")
    a.I(f"s_lshl_b32 s{T}, s{QD}, 1\ns_add_u32 s{T}, s{T}, s{LAM}\ns_sub_u32 s{T}, s{T}, 5\ns_cmp_ge_u32 s{LAM}, 5\ns_cselect_b32 s{S_L}, s{T}, s{S_L}")
    a.I(f"s_mul_i32 s{T}, s{QD}, 7\ns_add_u32 s{T}, s{T}, s{LAM}\ns_add_u32 s{T}, s{T}, 23\ns_cmp_ge_u32 s{LAM}, 7\ns_cselect_b32 s{S_L}, s{T}, s{S_L}")
    a.I(f"s_cmp_ge_u32 s{LAM}, 14\ns_cselect_b32 s{S_L}, 64, s{S_L}")
    a.I(f"s_sub_u32 s{T}, s{S_L}, 46\ns_cmp_ge_u32 s{S_L}, 54\ns_cselect_b32 s{T+1}, s{T}, s{S_L}")
    a.I(f"s_cmp_ge_u32 s{S_L}, 56\ns_cselect_b32 s{S_L}, 64, s{T+1}")
    a.I(f"s_cmp_ge_u32 s{S_L}, 30")
    a.I(f"s_cselect_b32 s{SRD_T}, s{S_W1}, s{S_WQKV}\ns_cselect_b32 s{SRD_T+1}, s{S_W1+1}, s{S_WQKV+1}")
    a.I(f"s_mov_b32 s{S_ST}, 3840\ns_cselect_b32 s{S_ST}, 3072, s{S_ST}\ns_cselect_b32 s{S_CB}, 30, 0\ns_cselect_b32 s{SRD_U+2}, 3072, 0")
    a.I(f"s_mul_i32 s{SRD_T+2}, s{S_ST}, 640\ns_mov_b32 s{SRD_T+3}, 0x20000")
    a.I(f"s_mov_b32 s{SRD_U}, s{S_B1}\ns_mov_b32 s{SRD_U+1}, s{S_B1+1}\ns_mov_b32 s{SRD_U+3}, 0x20000")
    a.I(f"s_cmp_ge_u32 s{S_L}, 54\ns_cselect_b32 s{SRD_T+2}, 0, s{SRD_T+2}")
    a.I(f"s_sub_u32 s{S_CB}, s{S_L}, s{S_CB}\ns_lshl_b32 s{S_CB}, s{S_CB}, 7\ns_lshl_b32 s{T}, s{S_AL}, 6\ns_add_u32 s{S_CB}, s{S_CB}, s{T}")
    a.I(f"s_mul_i32 s{S_WO_}, s{S_P}, 160\ns_mul_i32 s{S_WO_}, s{S_WO_}, s{S_ST}\ns_add_u32 s{S_WO_}, s{S_WO_}, s{S_CB}")
    a.I(f"v_lshrrev_b32 v{t1}, 2, v{L}\nv_mul_lo_u32 v{t1}, v{t1}, s{S_ST}\nv_and_b32 v{t2}, 3, v{L}\nv_lshl_add_u32 v{VWA}, v{t2}, 4, v{t1}")
    a.I(f"s_lshl_b32 s{S_ST}, s{S_ST}, 4")
    a.I(f"v_lshrrev_b32 v{t0}, 4, v{L}\nv_bfe_u32 v{t1}, v{L}, 2, 2\nv_and_b32 v{t2}, 3, v{L}")
    a.I(f"v_lshl_add_u32 v{t0}, v{t0}, 3, v{t1}\nv_lshlrev_b32 v{t0}, 7, v{t0}\nv_lshl_add_u32 v{t0}, v{t2}, 3, v{t0}\nv_add_u32 v{VTRA}, s{S_LB}, v{t0}")
    a.I(f"s_lshl_b32 s{S_UC}, s{S_UC}, 3\ns_mul_i32 s{S_UK}, s{S_UK}, 5")
    a.I(f"s_cmp_ge_u32 s{UN}, 340\ns_cselect_b32 s{S_UK}, 0x4000, s{S_UK}")
    a.I("s_waitcnt lgkmcnt(0)")
    def wloads(i0, i1):
        for it in range(i0, i1):
            a.I(f"buffer_load_dwordx4 {q4(CW+4*it)}, v{VWA}, {srd(SRD_T)}, s{S_WO_} offen")
            vm.issue("w")
            a.I(f"s_add_u32 s{S_WO_}, s{S_WO_}, s{S_ST}")
    def relayout(ln):
        FR = U + 16 * ln
        for i in range(4):
            a.I(f"ds_read_b64_tr_b16 {pk(FR+4*i)}, v{VTRA} offset:{ln*4096+32*i}\nds_read_b64_tr_b16 {pk(FR+4*i+2)}, v{VTRA} offset:{ln*4096+32*i+512}")
        for i in range(4):
            a.I(f"s_mul_i32 s{T}, s{S_UC}, 205\ns_lshr_b32 s{T}, s{T}, 10\ns_mul_i32 s{T}, s{T}, 335\ns_add_u32 s{T}, s{T}, s{S_UC}\ns_add_u32 s{T}, s{T}, s{S_UK}")
            a.I(f"s_lshl_b32 s{T}, s{T}, 10\ns_add_u32 s{T}, s{T}, {B2_OFF}\ns_add_u32 s{S_UC}, s{S_UC}, 1")
            a.I(f"s_waitcnt lgkmcnt({6-2*i})")
            a.I(f"buffer_store_dwordx4 {q4(FR+4*i)}, v{V_L16}, {srd(SRD_WS)}, s{T} offen {SC}")
            vm.issue("rls")
    mark = [0]
    bg = bg_jobs(a, vm)
    pfs = []
    PV = 240
    def cost():
        c = 0
        for k, t in a.items[mark[0]:]:
            if k == "i": c += 8 if t.startswith("buffer_") else (0.5 if t.startswith("s_") else 1)
        return c
    def nxt():
        if bar[0] == S1A_POLL + 1:
            ST(a, "prepolla")
            poll_check(a, vm, SRD_W, PV, PV + 1, PV + 2, 4, "pa", 8)
            ST(a, "S1a")
        B(bar[0]); mark[0] = len(a.items)
        if bar[0] == S1A_POLL: poll_issue(a, vm, SRD_W, PV, PV + 2, 4, "pa")
        if bar[0] - 1 > S1A_POLL:
            for _ in range(BGRATE):
                if len(bg) > 30 - BGMAX: bg.pop(0)()
            if pfs and (bar[0] - S1A_POLL) % PFGAP == 0: pfs.pop(0)()
    def cut():
        if cost() >= BUDGET: nxt()
    def until(k):
        while bar[0] <= k: nxt()
    a.I(f"s_and_b32 s{T}, s{S_RB2}, 3\ns_mul_i32 s{T}, s{T}, {25*1024}\ns_mul_i32 s{T+1}, s{S_AL}, 12800\ns_add_u32 s{T}, s{T}, s{T+1}\ns_add_u32 s{T}, s{T}, {240*1024}")
    a.I(f"v_lshlrev_b32 v{PV+4}, 7, v{L}\nv_add_u32 v{PV+4}, s{T}, v{PV+4}\nv_add_u32 v{PV+5}, 6400, v{PV+4}")
    a.I(f"s_lshl_b32 s{T}, s{S_AL}, 30\ns_lshl_b32 s{T+1}, s{S_AL}, 6\ns_sub_u32 s{T+1}, 64, s{T+1}")
    a.I(f"v_lshlrev_b32 v{PV}, 6, v{L}\nv_add_u32 v{PV}, s{T}, v{PV}\nv_mov_b32 v{PV+1}, s{T+1}")
    def pf(i):
        def f():
            a.I(f"s_mov_b32 exec_hi, 0x3ffff\nbuffer_load_dword v{PV+3}, v{PV+4+i}, {srd(SRD_WS)}, s{S_BB} offen {SC}\ns_mov_b32 exec_hi, -1")
            vm.issue("bg")
        return f
    if BPF: pfs += [pf(0), pf(1)]
    if APRIO: a.I(f"s_setprio {APRIO}")
    until(0)
    ST(a, "P0")
    vm.wait(a, "rl")
    relayout(0)
    relayout(1)
    nxt()
    wloads(0, 10)
    a.I(f"v_lshlrev_b32 v{t3}, 1, v{L}")
    a.I(f"buffer_load_ushort v{BIAS}, v{t3}, {srd(SRD_U)}, s{S_CB} offen")
    vm.issue("w")
    nxt()
    mk_srd(a, SRD_W, S_DBG, 256)
    h2_setup(a)
    vm.wait(a, "rls")
    ST(a, "rlsdone")
    nxt()
    a.I(f"s_and_b32 s{T}, s2, 3\ns_lshl_b32 s{T}, s{T}, 6\ns_lshl_b32 s{T+1}, s{S_AL}, 8\ns_add_u32 s{T}, s{T}, s{T+1}")
    a.I(f"v_mov_b32 v{t0}, s{T}\nv_mov_b32 v{t1}, 1\ns_mov_b64 exec, 1")
    a.I(f"buffer_atomic_add v{t1}, v{t0}, {srd(SRD_W)}, 0 offen\ns_mov_b64 exec, -1")
    vm.issue("sig")
    vm.wait(a, "w")
    AC, m0_ = 0, 76
    E = 8
    for it in range(10):
        dst = AC if it == 0 else E
        for i in range(4):
            a.I(f"v_lshlrev_b32 v{dst+2*i}, 16, v{CW+4*it+i}\nv_and_b32 v{dst+2*i+1}, s{S_M16}, v{CW+4*it+i}")
        if it:
            for i in range(8): a.I(f"v_add_f32 v{AC+i}, v{AC+i}, v{E+i}")
        cut()
    for i in range(4): a.I(f"v_permlane32_swap_b32 v{AC+i}, v{AC+i+4}")
    for i in range(4): a.I(f"v_add_f32 v{AC+i}, v{AC+i}, v{AC+i+4}")
    for i in range(2): a.I(f"v_permlane16_swap_b32 v{AC+i}, v{AC+i+2}")
    for i in range(2): a.I(f"v_add_f32 v{AC+i}, v{AC+i}, v{AC+i+2}")
    for m in ("row_ror:8", "row_ror:4"):
        for i in range(2): a.I(f"v_add_f32_dpp v{AC+i}, v{AC+i}, v{AC+i} {m} row_mask:0xf bank_mask:0xf")
    cut()
    a.I(f"v_bfe_u32 v{t0}, v{L}, 2, 1\nv_cmp_eq_u32 vcc, 1, v{t0}\nv_and_b32 v{t1}, 3, v{L}\nv_lshl_add_u32 v{t0}, v{t1}, 3, v{t0}")
    a.I(f"v_cndmask_b32 v{AC}, v{AC}, v{AC+1}, vcc\nv_lshrrev_b32 v{t1}, 4, v{L}\nv_lshl_add_u32 v{t0}, v{t1}, 1, v{t0}\nv_lshlrev_b32 v{t0}, 5, v{t0}")
    a.I(f"v_cvt_pk_bf16_f32 v{t2}, v{AC}, v{AC}\nv_and_b32 v{t2}, s{S_M16}, v{t2}\nv_sub_f32 v{t2}, v{AC}, v{t2}\nv_cvt_pk_bf16_f32 v{t2}, v{AC}, v{t2}")
    a.I(f"s_lshl_b32 s{T}, s{S_L}, 11\ns_lshl_b32 s{T+1}, s{S_AL}, 10\ns_add_u32 s{T}, s{T}, s{T+1}\ns_add_u32 s{T}, s{T}, {CS_OFF}")
    a.I(f"s_cmp_ge_u32 s{S_L}, 54\ns_cselect_b32 s{T}, {WS_SIZE}, s{T}")
    a.I(f"s_lshl_b32 s{T+1}, s{S_P}, 2\ns_add_u32 s{T+1}, s{T+1}, s{T}")
    a.I("s_mov_b32 exec_lo, 0x00ff00ff\ns_mov_b32 exec_hi, 0x00ff00ff")
    a.I(f"buffer_store_dword v{t2}, v{t0}, {srd(SRD_WS)}, s{T+1} offen {SC}")
    vm.issue("st")
    a.I(f"s_mov_b64 exec, -1\ns_cmp_lg_u32 s{S_P}, 0\ns_cselect_b32 s{T}, {WS_SIZE}, s{T}")
    a.I(f"v_mov_b32 v{BIAS+1}, 0\nv_mov_b32 v{BIAS+2}, 0\nv_mov_b32 v{BIAS+3}, 0\nv_lshlrev_b32 v{t1}, 5, v{L}\ns_mov_b32 exec_hi, 0")
    a.I(f"buffer_store_dwordx4 {q4(BIAS)}, v{t1}, {srd(SRD_WS)}, s{T} offen offset:16 {SC}")
    vm.issue("st")
    a.I("s_mov_b64 exec, -1")
    ST(a, "p0done")
    print("aux: phase-0 compute ends in interval", bar[0] - 1)
    nxt()
    a.I(f"v_and_b32 v{t0}, 7, v{L}\nv_bfe_u32 v{t1}, v{L}, 4, 1\nv_lshl_add_u32 v{t0}, v{t1}, 3, v{t0}")
    a.I(f"v_bfe_u32 v{t1}, v{L}, 3, 1\nv_lshl_add_u32 v{t0}, v{t1}, 4, v{t0}\nv_lshlrev_b32 v{t0}, 5, v{t0}")
    a.I(f"v_lshrrev_b32 v{t2}, 5, v{L}\nv_lshl_add_u32 v{CSO}, v{t2}, 4, v{t0}")
    a.I(f"s_lshl_b32 s{T}, s{S_JA}, 4\nv_mul_lo_u32 v{t1}, v{t1}, s{T}\nv_add_u32 v{CSOM}, v{CSO}, v{t1}")
    until(S1A_POLL)
    vm.wait(a, "st")
    assert bar[0] >= M_DRAIN, bar[0]
    nxt()
    print("aux: S1b signalled in interval", bar[0] - 1)
    a.I(f"s_and_b32 s{T}, s2, 7\ns_lshl_b32 s{T}, s{T}, 8\ns_add_u32 s{T}, s{T}, {CNT_OFF+24576}\ns_cmp_lg_u32 s{S_AL}, 0\ns_cselect_b32 s{T}, {WS_SIZE}, s{T}")
    a.I(f"v_mov_b32 v{t0}, s{T}\nv_mov_b32 v{t1}, 1\ns_mov_b64 exec, 1")
    a.I(f"buffer_atomic_add v{t1}, v{t0}, {srd(SRD_WS)}, 0 offen\ns_mov_b64 exec, -1")
    vm.issue("sig")
    a.I(f"s_lshl_b32 s{T}, s{S_AL}, 30\ns_add_u32 s{T}, s{T}, {CNT_OFF+24576}\ns_lshl_b32 s{T+1}, s{S_AL}, 5\ns_sub_u32 s{T+1}, 32, s{T+1}")
    a.I(f"v_lshlrev_b32 v{PV}, 8, v{L}\nv_add_u32 v{PV}, s{T}, v{PV}\nv_mov_b32 v{PV+1}, s{T+1}")
    until(S1B_POLL - 1)
    poll_issue(a, vm, SRD_WS, PV, PV + 2, 8, "pb")
    nxt()
    ST(a, "prepollb")
    poll_check(a, vm, SRD_WS, PV, PV + 1, PV + 2, 8, "pb", 8)
    ST(a, "S1b")
    nxt()
    a.I(f"s_cmp_lg_u32 s{S_AL}, 0\ns_cbranch_scc1 L_ext_b")
    def cs(t, r):
        a.I(f"s_add_u32 s{T}, s{S_BASE}, {64*t}")
        if t >= 3: a.I(f"s_add_u32 s{T}, s{T}, s{S_JA}")
        if t >= 5: a.I(f"s_add_u32 s{T}, s{T}, s{S_JB}")
        a.I(f"s_lshl_b32 s{T}, s{T}, 4\ns_add_u32 s{T}, s{T}, s{S_CSB}")
        a.I(f"buffer_load_dwordx4 {q4(r)}, v{CSOM if t == 2 else CSO}, {srd(SRD_WS)}, s{T} offen {SC}")
    for t in range(4): cs(t, X + 4 * t)
    a.I("s_branch L_ext_c")
    a.L("L_ext_b")
    for t in range(4, 7): cs(t, X + 4 * (t - 4))
    a.I(f"s_lshl_b32 s{T}, s{S_RB}, 10\ns_add_u32 s{T}, s{T}, {STAT_OFF}")
    a.I(f"buffer_load_dwordx4 {q4(X+12)}, v{V_L16}, {srd(SRD_WS)}, s{T} offen {SC}")
    a.L("L_ext_c")
    vm.issue("ext")
    a.I(f"s_lshl_b32 s{T}, s{S_AL}, 12\ns_add_u32 s{T}, s{T}, {EXT_LDS}\nv_add_u32 v{t0}, s{T}, v{V_L16}")
    until(18)
    vm.wait(a, "ext")
    for i in range(4): a.I(f"ds_write_b128 v{t0}, {q4(X+4*i)} offset:{1024*i}")
    a.I("s_waitcnt lgkmcnt(0)")
    until(19)
    print("aux: background jobs left after the ring:", len(bg))
    if APRIO: a.I("s_setprio 0")
    h_rest(a, bg)
    ST(a, "ringend")
    return ST
BPF = 0
BR, AR = 80, 200

def h2_setup(a):
    g2_common(a)
    if ROT2:
        if G2MAP == 0:
            a.I(f"s_and_b32 s{T}, s{S_RB2}, 3\ns_mul_i32 s{T}, s{T}, 3\ns_mul_i32 s{T+1}, s{S_CG2}, 3\ns_lshr_b32 s{T+1}, s{T+1}, 1\ns_add_u32 s{T}, s{T}, s{T+1}")
        elif ROT2 == 2:
            a.I(f"s_and_b32 s{T}, s{S_CG2}, 1\ns_mul_i32 s{T}, s{T}, 6\ns_and_b32 s{T+1}, s{S_RB2}, 7\ns_mul_i32 s{T+1}, s{T+1}, 3\ns_lshr_b32 s{T+1}, s{T+1}, 1\ns_add_u32 s{T}, s{T}, s{T+1}")
        else:
            a.I(f"s_and_b32 s{T}, s{S_CG2}, 3\ns_mul_i32 s{T}, s{T}, 3\ns_and_b32 s{T+1}, s{S_RB2}, 7\ns_mul_i32 s{T+1}, s{T+1}, 3\ns_lshr_b32 s{T+1}, s{T+1}, 1\ns_add_u32 s{T}, s{T}, s{T+1}")
        a.I(f"s_cmp_ge_u32 s{T}, 12\ns_cselect_b32 s{T+1}, 12, 0\ns_sub_u32 s{T}, s{T}, s{T+1}")
    else: a.I(f"s_mov_b32 s{T}, 0")
    a.I(f"s_mul_i32 s{T+1}, s{S_I}, 12")
    for j in range(12):
        a.I(f"s_add_u32 s{S_KK+j}, s{T}, s{T+1}\ns_lshl_b32 s{S_KK+j}, s{S_KK+j}, 10")
        if j < 11: a.I(f"s_add_u32 s{T}, s{T}, 1\ns_cmp_eq_u32 s{T}, 12\ns_cselect_b32 s{T}, 0, s{T}")
    a.I(f"s_mul_i32 s{S_BB}, s{S_CG2}, {68*5*1024}\ns_add_u32 s{S_BB}, s{S_BB}, {B2_OFF}")

def bg_jobs(a, vm):
    def ld(j, ct):
        def f():
            a.I(f"s_mul_i32 s{T}, s{S_KK+j}, 5\ns_add_u32 s{T}, s{T}, s{S_BB}")
            if ct == 4: a.I(f"s_add_u32 s{T}, s{T}, 4096")
            a.I(f"buffer_load_dwordx4 {q4(BR+20*j+4*ct)}, v{V_L16}, {srd(SRD_WS)}, s{T} offen offset:{(ct&3)*1024} {SC}")
            vm.issue("bg")
        return f
    return [ld(j, ct) for j in range(6) for ct in range(5)]

def h_rest(a, bg):
    n = 0
    while bg:
        if n == N1: lds_wait_ge(a, 7, 4, 248)
        bg.pop(0)(); n += 1
        if THR: a.I(f"s_waitcnt vmcnt({THR})")
    if n == N1: lds_wait_ge(a, 7, 4, 248)

def bload(a, vm, j, regs, tag, thr):
    a.I(f"s_mul_i32 s{T}, s{S_KK+j}, 5\ns_add_u32 s{T}, s{T}, s{S_BB}\ns_add_u32 s{T+1}, s{T}, 4096")
    for ct in range(5):
        a.I(f"buffer_load_dwordx4 {q4(regs[ct])}, v{V_L16}, {srd(SRD_WS)}, s{T + (ct >> 2)} offen offset:{(ct&3)*1024} {SC}")
        if vm: vm.issue(tag)
        if thr: a.I(f"s_waitcnt vmcnt({thr})")


def g2_common(a):
    for sg in range(4):
        a.I(f"s_add_u32 s{T}, s{S_I}, {sg}")
        if ROT2: a.I(f"s_add_u32 s{T}, s{T}, s{S_CG2}")
        a.I(f"s_and_b32 s{T}, s{T}, 3\ns_lshl_b32 s{T+1}, s{S_RB2}, 2\ns_add_u32 s{T}, s{T}, s{T+1}")
        a.I(f"s_mul_i32 s{S_A+sg}, s{T}, {68*1024}")
        if sg == 0: a.I(f"s_mul_i32 s{S_OUTS}, s{T}, {16*1280}\ns_mul_i32 s{S_B2S}, s{S_CG2}, 160\ns_add_u32 s{S_OUTS}, s{S_OUTS}, s{S_B2S}")
S_OUTS, S_B2S, S_BB = 98, 99, 100

def hzone(a, sidx, dst):
    a.I(f"s_sub_u32 s{dst}, s{sidx}, 1\ns_mul_i32 s{dst}, s{dst}, {HZS}\ns_add_u32 s{dst}, s{dst}, {HZ1}\ns_cmp_eq_u32 s{sidx}, 0\ns_cselect_b32 s{dst}, 0, s{dst}")

def out_addr(a, VO, VB, t0):
    a.I(f"v_and_b32 v{t0}, 15, v{V_LANE}\nv_mul_u32_u24 v{t0}, 1280, v{t0}\nv_lshrrev_b32 v{VB}, 4, v{V_LANE}\nv_lshlrev_b32 v{VB}, 3, v{VB}")
    a.I(f"v_add_u32 v{VO}, v{t0}, v{VB}")

def res_issue(a, vm, cts, RES, VO, VB):
    mk_srd(a, SRD_T, S_B2, 1280)
    mk_srd(a, SRD_U, S_OUT, 2048 * 1280)
    for k, ct in enumerate(cts):
        a.I(f"buffer_load_dwordx2 {pk(RES+4*k)}, v{VO}, {srd(SRD_X)}, s{S_OUTS} offen offset:{ct*32}")
        a.I(f"buffer_load_dwordx2 {pk(RES+4*k+2)}, v{VB}, {srd(SRD_T)}, s{S_B2S} offen offset:{ct*32}")
        vm.issue("R"); vm.issue("R")

def res_unpack(cts, RES, OUT):
    o = []
    for k, ct in enumerate(cts):
        for src, d in ((RES + 4 * k, OUT + 8 * k), (RES + 4 * k + 2, OUT + 8 * k + 4)):
            for i in range(2):
                o += [f"v_lshlrev_b32 v{d+2*i}, 16, v{src+i}", f"v_and_b32 v{d+2*i+1}, s{S_M16}, v{src+i}"]
        for i in range(4): o.append(f"v_add_f32 v{OUT+8*k+i}, v{OUT+8*k+i}, v{OUT+8*k+4+i}")
    return o

def red_addrs(a, VM, VH, VX):
    for sg in range(4):
        a.I(f"s_sub_u32 s{T+2}, s{S_I}, {sg}\ns_and_b32 s{T+2}, s{T+2}, 3")
        if sg:
            a.I(f"s_mul_i32 s{T}, s{T+2}, {MZS}\ns_add_u32 s{T}, s{T}, {MZ}\nv_add_u32 v{VM+sg}, s{T}, v{V_L16}")
        hzone(a, T + 2, T)
        a.I(f"v_add_u32 v{VH+sg}, s{T}, v{V_L16}")
    a.I(f"s_lshl_b32 s{T}, s{S_I}, 11\ns_add_u32 s{T}, s{T}, {EXT_LDS}\nv_add_u32 v{VX}, s{T}, v{V_L16}")

def final_sum(a, role, cts, OWN, BUF, VM, VH, VX, VO):
    lg = Q("lgkmcnt", 15)
    srcs = []
    for sg in range(4):
        if sg: srcs.append(lambda ct, sg=sg: (VM + sg, ((sg - 1) * 5 + ct) * 1024))
        elif role == 1: srcs.append(lambda ct: (VX, (ct - 3) * 1024))
        if sg or role == 0: srcs.append(lambda ct, sg=sg: (VH + sg, (sg * 5 + ct) * 1024))
    n = len(cts)
    def rd(j):
        for k, ct in enumerate(cts):
            v, off = srcs[j](ct)
            a.I(f"ds_read_b128 {q4(BUF+(j*n+k)*4)}, v{v} offset:{off}")
            lg.issue(j)
    ahead = 15 // n
    for j in range(min(ahead, 7)): rd(j)
    for j in range(7):
        lg.wait(a, j)
        if j + ahead < 7: rd(j + ahead)
        for k, ct in enumerate(cts):
            for i in (0, 2): a.I(f"v_pk_add_f32 {pk(OWN+4*ct+i)}, {pk(OWN+4*ct+i)}, {pk(BUF+(j*n+k)*4+i)}")
    for ct in cts:
        d = OWN + 4 * ct
        a.I(f"v_cvt_pk_bf16_f32 v{d}, v{d}, v{d+1}\nv_cvt_pk_bf16_f32 v{d+1}, v{d+2}, v{d+3}")
        a.I(f"buffer_store_dwordx2 {pk(d)}, v{VO}, {srd(SRD_U)}, s{S_OUTS} offen offset:{ct*32}")

def h2(a, STs):
    class Both:
        def __call__(self, a_, name, real=False):
            if not STAMPS: return
            n = max(s.n for s in STs)
            for s in STs:
                while s.n < n: s.names.append("-"); s.n += 1
            a_.I(f"{'s_memrealtime' if real else 's_memtime'} s[92:93]\ns_waitcnt lgkmcnt(0)\nv_writelane_b32 v{V_STAMP}, s92, {n}")
            for s in STs: s.names.append(name); s.n += 1
    ST = Both()
    vm = Q("vmcnt", 63); lg = Q("lgkmcnt", 15)
    ACC = 0
    VT = 248
    a.L("L_H2")
    a.C("==== gemm2, FFN part (waves 4..7) ====")
    for j in range(6, 10): bload(a, vm, j, [20 * (j - 6) + 4 * ct for ct in range(5)], ("bl", j), THR)
    ST(a, "bissued")
    lds_wait_ge(a, 0, 4, VT)
    hzone(a, S_I, T)
    VBL = VT + 4
    a.I(f"v_add_u32 v{VBL}, s{T}, v{V_L16}")
    for j in range(6, 10):
        vm.wait(a, ("bl", j))
        for ct in range(5):
            a.I(f"ds_write_b128 v{VBL}, {q4(20*(j-6)+4*ct)} offset:{(5*(j-6)+ct)*1024}")
        a.I("s_waitcnt lgkmcnt(5)")
    a.I("s_waitcnt lgkmcnt(0)")
    ST(a, "bdone")
    if HPRIO: a.I(f"s_setprio {HPRIO}")
    a.I(f"s_cmp_lg_u32 s{S_WAVE}, 7\ns_cbranch_scc1 L_h_nopoll\ns_setprio 3")
    a.I(f"s_lshr_b32 s{T}, s{S_RB2}, 1\ns_lshl_b32 s{T}, s{T}, 8\ns_add_u32 s{T}, s{T}, {CNT_OFF}\nv_mov_b32 v{VT}, s{T}\nv_mov_b32 v{VT+1}, 7")
    poll(a, SRD_WS, VT, VT + 1, VT + 2, 1, PSLEEP)
    lds_add(a, 3, VT)
    a.L("L_h_nopoll")
    lds_wait_ge(a, 3, 1, VT)
    a.I(f"s_setprio {HPRIO}")
    ST(a, "S2F")
    def aload(j):
        for sg in range(4):
            a.I(f"s_add_u32 s{T}, s{S_A+sg}, s{S_KK+j}")
            a.I(f"buffer_load_dwordx4 {q4(AR + (j%3)*16 + 4*sg)}, v{V_L16}, {srd(SRD_WS)}, s{T} offen {SC}")
            vm.issue(("A", j))
    def bslot(j): return BR + 20 * (j if j < 6 else (j - 10 if j >= 10 else j - 4))
    for j in range(3): aload(j)
    for j in range(12):
        if 6 <= j + 1 <= 9:
            for ct in range(5):
                a.I(f"ds_read_b128 {q4(bslot(j+1)+4*ct)}, v{VBL} offset:{(5*(j+1-6)+ct)*1024}")
                lg.issue(j + 1)
        vm.wait(a, ("A", j))
        lg.wait(a, j)
        if j in (0, 3, 6, 9): ST(a, f"A{j}")
        fill = []
        if j == 11:
            vm.wait(a, "R")
            fill = res_unpack([3, 4], RES, RU)
        sgs = (1, 2, 3, 0) if j == 11 else range(4)
        wq = []
        for k, sg in enumerate(sgs):
            for ct in range(5):
                d = ACC + (sg * 5 + ct) * 4
                cin = "0" if j == 0 else q4(d)
                a.I(f"v_mfma_f32_16x16x32_bf16 {q4(d)}, {q4(bslot(j)+4*ct)}, {q4(AR+(j%3)*16+4*sg)}, {cin}")
                if j == 11:
                    if not (sg == 0 and ct >= 3): wq.append(f"ds_write_b128 v{VBL}, {q4(d)} offset:{(sg*5+ct)*1024}")
                    if fill: a.I(fill.pop(0))
                    if k * 5 + ct >= 6: a.I(wq.pop(0))
        if j + 3 < 12: aload(j + 3)
        if j in (3, 4): bload(a, vm, j + 7, [bslot(j + 7) + 4 * ct for ct in range(5)], "late", None)
        if j == 9:
            RES, RU = BR + 40, BR + 60
            VM_, VH_, VX_, VO_, VB_ = AR, AR + 4, AR + 8, AR + 9, AR + 10
            out_addr(a, VO_, VB_, VT)
            res_issue(a, vm, [3, 4], RES, VO_, VB_)
            red_addrs(a, VM_, VH_, VX_)
    a.I("s_waitcnt lgkmcnt(8)")
    for x in wq + fill: a.I(x)
    for k, ct in enumerate([3, 4]):
        for i in (0, 2): a.I(f"v_pk_add_f32 {pk(ACC+4*ct+i)}, {pk(ACC+4*ct+i)}, {pk(RU+8*k+i)}")
    ST(a, "ffnend")
    a.I("s_waitcnt lgkmcnt(0)\ns_barrier")
    ST(a, "bar")
    final_sum(a, 1, [3, 4], ACC, BR, VM_, VH_, VX_, VO_)
    if STAMPS: a.I("s_waitcnt vmcnt(0)")
    ST(a, "end")
    ST(a, "rt1", True)
    stamp_dump(a, VT)
    a.I("s_endpgm")

K0C = -2.0 * math.sqrt(2.0 / math.pi) * math.log2(math.e)
K1C = K0C * 0.044715
ACC1, AF, BF = 0, 112, 120
V_E = 144
V_R, V_R2, V_SD, V_C0, V_C1, V_EPS = 160, 162, 164, 166, 168, 170
V_TRA, V_VA, V_HQO, V_KVW = 240, 242, 246, 247

def u_gelu(r0, Tm):
    P = range(0, 8, 2)
    pre = [f"v_pk_mul_f32 {pk(Tm+i)}, {pk(r0+i)}, {pk(r0+i)}" for i in P]
    pre += [f"v_pk_fma_f32 {pk(Tm+i)}, {pk(Tm+i)}, {pk(V_C1)}, {pk(V_C0)} op_sel_hi:[1,0,0]" for i in P]
    pre += [f"v_pk_mul_f32 {pk(Tm+i)}, {pk(Tm+i)}, {pk(r0+i)}" for i in P]
    mid = [f"v_exp_f32_e64 v{Tm+i}, v{Tm+i}" for i in range(8)]
    mid += [f"v_pk_fma_f32 {pk(Tm+i)}, {pk(Tm+i)}, {pk(V_SD)}, {pk(V_SD)} op_sel_hi:[1,0,0]" for i in P]
    mid += [f"v_rcp_f32_e64 v{Tm+i}, v{Tm+i}" for i in range(8)]
    post = [f"v_pk_mul_f32 {pk(Tm+i)}, {pk(Tm+i)}, {pk(r0+i)}" for i in P]
    post += [f"v_cvt_pk_bf16_f32 v{r0+i//2}, v{Tm+i}, v{Tm+i+1}" for i in P]
    return pre, mid, post
def u_phi(r0, Tm, n=8):
    P = range(0, n, 2); R = range(n, 8, 2)
    pre = [f"v_pk_mul_f32 {pk(Tm+i)}, {pk(r0+i)}, {pk(V_R2)} op_sel_hi:[1,0]" for i in P]
    pre += [f"v_pk_fma_f32 {pk(r0+i)}, {pk(r0+i)}, {pk(V_R)}, {pk(V_EPS)} op_sel_hi:[1,0,0]" for i in P]
    pre += [f"v_pk_mul_f32 {pk(Tm+i)}, {pk(r0+i)}, {pk(V_R)} op_sel_hi:[1,0]" for i in R]
    pre += [f"v_max_f32_e64 v{r0+i}, v{r0+i}, v{V_EPS}" for i in range(n)]
    mid = [f"v_exp_f32_e64 v{Tm+i}, v{Tm+i} clamp" for i in range(n)]
    post = [f"v_pk_add_f32 {pk(Tm+i)}, {pk(Tm+i)}, {pk(r0+i)}" for i in P]
    post += [f"v_cvt_pk_bf16_f32 v{r0+i//2}, v{Tm+i}, v{Tm+i+1}" for i in range(0, 8, 2)]
    return pre, mid, post
S_HQ = T + 10
def hq_store(t, u):
    r0 = ACC1 + 16 * t + 8 * u
    o = [f"s_add_u32 s{T+1}, s{S_HQ}, {0x10000 + t*1024}"] if u == 0 else []
    return o + [f"buffer_store_dwordx4 {q4(r0)}, v{V_HQO}, {srd(SRD_WS)}, s{T+1} offen offset:{u*512} {SC}"]
def ep_pipe(a, units, dly=0):
    n = len(units)
    st = [units[i][0](V_E + 8 * (i & 1)) for i in range(n)]
    a.raw(".p2align 3")
    for x in st[0][0]: a.I(x)
    pend = []
    for i in range(n + 1):
        mid = st[i][1] if i < n else []
        plain = []
        if i > 0:
            plain += st[i - 1][2]
            pend += units[i - 1][1]
            if i - 1 >= dly or i == n:
                k = len(pend) if (i == n or len(pend) <= 4) else 4
                if pend[k - 1].startswith("s_add"): k += 1
                plain += pend[:k]; pend = pend[k:]
        if i + 1 < n: plain += st[i + 1][0]
        tot = len(mid) + len(plain); mi = pi = 0
        while mi < len(mid) or pi < len(plain):
            if pi >= len(plain) or (mi < len(mid) and mi * len(plain) <= pi * len(mid)):
                a.I(mid[mi]); mi += 1
            else:
                a.I(plain[pi]); pi += 1

def mwave(a):
    ST = Stamp("M")
    L = V_LANE
    t0, t1, t2, t3 = V_E, V_E + 1, V_E + 2, V_E + 3
    a.L("L_M")
    a.C("==== M waves: phase 0 (re-layout of w2 / wo, zeroing) ====")
    ST(a, "rt0", True); ST(a, "start")
    if DIAG: a.I("s_memrealtime s[10:11]")
    ROW = T + 2
    X, U = 0, 12
    a.I(f"s_and_b32 s{T}, s2, 1\ns_lshl_b32 s{ROW}, s{T}, 10\ns_and_b32 s{T}, s2, 6\ns_lshl_b32 s{T}, s{T}, 7\ns_add_u32 s{ROW}, s{ROW}, s{T}")
    a.I(f"s_and_b32 s{T}, s2, 0xf8\ns_add_u32 s{ROW}, s{ROW}, s{T}\ns_lshl_b32 s{T}, s{S_WAVE}, 1\ns_add_u32 s{ROW}, s{ROW}, s{T}")
    a.I(f"v_lshrrev_b32 v{t0}, 5, v{L}\nv_and_b32 v{t1}, 31, v{L}\nv_mul_u32_u24 v{t0}, 1280, v{t0}")
    a.I(f"v_lshl_add_u32 v{t2}, v{t1}, 4, v{t0}\nv_lshl_add_u32 v{t3}, v{t1}, 3, v{t0}\ns_mul_i32 s{T}, s{ROW}, 1280")
    base_srds(a)
    a.I(f"buffer_load_dwordx4 {q4(X)}, v{t2}, {srd(SRD_X)}, s{T} offen")
    a.I(f"buffer_load_dwordx4 {q4(X+4)}, v{t2}, {srd(SRD_X)}, s{T} offen offset:512")
    a.I(f"buffer_load_dwordx2 {pk(X+8)}, v{t3}, {srd(SRD_X)}, s{T} offen offset:1024")
    a.C("==== gemm1 main loop ====")
    a.I(f"v_lshrrev_b32 v{t0}, 5, v{L}\nv_bfe_u32 v{t1}, v{L}, 2, 2\nv_lshl_add_u32 v{t0}, v{t0}, 3, v{t1}\nv_mul_u32_u24 v{t0}, 448, v{t0}")
    a.I(f"v_and_b32 v{t1}, 1, v{L}\nv_lshl_add_u32 v{t0}, v{t1}, 3, v{t0}\nv_bfe_u32 v{t1}, v{L}, 1, 1\nv_lshl_add_u32 v{t0}, v{t1}, 5, v{t0}")
    a.I(f"v_bfe_u32 v{t1}, v{L}, 4, 1\nv_lshl_add_u32 v{V_TRA}, v{t1}, 4, v{t0}\nv_add_u32 v{V_TRA+1}, {3*WSLOT}, v{V_TRA}")
    a.I(f"v_and_b32 v{t0}, 31, v{L}\nv_bfe_u32 v{t1}, v{L}, 1, 3\nv_lshrrev_b32 v{t2}, 5, v{L}\nv_xor_b32 v{t1}, v{t1}, v{t2}")
    a.I(f"v_lshlrev_b32 v{t0}, 7, v{t0}\nv_lshl_add_u32 v{t0}, v{t1}, 4, v{t0}\ns_lshl_b32 s{T}, s{S_WAVE}, 12\ns_add_u32 s{T}, s{T}, {XRING}")
    a.I(f"v_add_u32 v{V_VA}, s{T}, v{t0}")
    for ks in range(1, 4): a.I(f"v_xor_b32 v{V_VA+ks}, {32*ks}, v{V_VA}")
    a.I("s_barrier")
    def red32(v, tmp):
        for m in ("quad_perm:[1,0,3,2]", "quad_perm:[2,3,0,1]", "row_half_mirror", "row_mirror"):
            a.I(f"v_add_f32_dpp v{v}, v{v}, v{v} {m} row_mask:0xf bank_mask:0xf")
        a.I(f"v_mov_b32 v{tmp}, v{v}\nv_permlane16_swap_b32 v{v}, v{tmp}\nv_add_f32 v{v}, v{v}, v{tmp}")
    a.I("s_waitcnt vmcnt(0)")
    ST(a, "xin")
    for i in range(10):
        a.I(f"v_lshlrev_b32 v{U+2*i}, 16, v{X+i}\nv_and_b32 v{U+2*i+1}, s{S_M16}, v{X+i}")
    a.I(f"v_pk_add_f32 {pk(t0)}, {pk(U)}, {pk(U+2)}\nv_pk_add_f32 {pk(t2)}, {pk(U+4)}, {pk(U+6)}")
    for i in range(4, 10):
        r = t0 if i % 2 == 0 else t2
        a.I(f"v_pk_add_f32 {pk(r)}, {pk(r)}, {pk(U+2*i)}")
    a.I(f"v_pk_add_f32 {pk(t0)}, {pk(t0)}, {pk(t2)}\nv_add_f32 v{t0}, v{t0}, v{t1}")
    red32(t0, t1)
    a.I(f"v_mul_f32 v{t0}, {hx(f32(-1.0/640))}, v{t0}")
    for i in range(10):
        a.I(f"v_pk_add_f32 {pk(U+2*i)}, {pk(U+2*i)}, {pk(t0)} op_sel_hi:[1,0]")
    a.I(f"v_pk_mul_f32 {pk(t2)}, {pk(U)}, {pk(U)}\nv_pk_mul_f32 {pk(X)}, {pk(U+2)}, {pk(U+2)}")
    for i in range(2, 10):
        r = t2 if i % 2 == 0 else X
        a.I(f"v_pk_fma_f32 {pk(r)}, {pk(U+2*i)}, {pk(U+2*i)}, {pk(r)}")
    a.I(f"v_pk_add_f32 {pk(t2)}, {pk(t2)}, {pk(X)}\nv_add_f32 v{t2}, v{t2}, v{t3}")
    red32(t2, t3)
    a.I(f"v_mul_f32 v{t2}, {hx(f32(1.0/640))}, v{t2}")
    a.I(f"v_cvt_pk_bf16_f32 v{t2}, v{t2}, v{t2}\nv_and_b32 v{t2}, s{S_M16}, v{t2}")
    a.I(f"v_add_f32 v{t2}, {hx(f32(1e-5))}, v{t2}")
    a.I(f"v_cvt_pk_bf16_f32 v{t2}, v{t2}, v{t2}\nv_and_b32 v{t2}, s{S_M16}, v{t2}")
    a.I(f"v_sqrt_f32 v{t2}, v{t2}")
    a.I(f"v_cvt_pk_bf16_f32 v{V_E+4}, v{t0}, v{t2}")
    a.I(f"v_and_b32 v{t2}, s{S_M16}, v{V_E+4}")
    a.I(f"v_rcp_f32 v{V_E+5}, v{t2}")
    a.I(f"v_lshrrev_b32 v{t1}, 2, v{L}\ns_lshl_b32 s{T}, s{ROW}, 3\ns_add_u32 s{T}, s{T}, {STAT_OFF}")
    a.I("s_mov_b32 exec_lo, 1\ns_mov_b32 exec_hi, 1")
    a.I(f"buffer_store_dwordx2 {pk(V_E+4)}, v{t1}, {srd(SRD_WS)}, s{T} offen {SC}")
    a.I("s_mov_b64 exec, -1")
    if MPRIO: a.I(f"s_setprio {MPRIO}")
    ST(a, "p0done")
    lg = Q("lgkmcnt", 15)
    NM = 280
    def reads(m):
        h, r = divmod(m, 14); ks2, t = divmod(r, 7); g = m // 7
        if t == 0:
            c, ks = divmod(g, 4)
            a.I(f"ds_read_b128 {q4(AF+4*(g&1))}, v{V_VA+ks} offset:{(c%3)*16384}")
            lg.issue(m)
        slot = h % 6
        off = (slot % 3) * WSLOT + ks2 * 7168 + t * 64
        b = BF + (m % NB) * 4
        a.I(f"ds_read_b64_tr_b16 {pk(b)}, v{V_TRA + slot//3} offset:{off}")
        a.I(f"ds_read_b64_tr_b16 {pk(b+2)}, v{V_TRA + slot//3} offset:{off+1792}")
        lg.issue(m); lg.issue(m)
    def P(h):
        if h == M_DRAIN: a.I("s_waitcnt vmcnt(0)")
        a.I("s_barrier")
        if h % 2 == 0: ST(a, f"P{h}")
    P(0)
    if DIAG == 2: a.I("s_memrealtime s[92:93]\ns_waitcnt lgkmcnt(0)\ns_sub_u32 s11, s92, s10")
    for m in range(PD): reads(m)
    for m in range(NM):
        t = m % 7; g = m // 7
        lg.wait(a, m)
        d = ACC1 + 16 * t
        cin = "0" if m < 7 else f"v[{d}:{d+15}]"
        a.I(f"v_mfma_f32_32x32x16_bf16 v[{d}:{d+15}], {q4(BF+(m%NB)*4)}, {q4(AF+4*(g&1))}, {cin}")
        if m + PD < NM:
            if (m + PD) % 14 == 0: P((m + PD) // 14)
            reads(m + PD)
        elif m + PD == NM:
            a.I(f"v_and_b32 v{t0}, 31, v{L}\ns_lshl_b32 s{T}, s{S_WAVE}, 8\ns_add_u32 s{T}, s{T}, {EXT_LDS+7168}")
            a.I(f"v_lshl_add_u32 v{t0}, v{t0}, 3, s{T}\nv_add_u32 v{t1}, {EXT_LDS}, v{V_L16}")
            a.I(f"ds_read_b64 {pk(t2)}, v{t0}"); lg.issue("st")
        elif m + PD == NM + 1:
            for tt in (5, 6, 0, 1, 2, 3, 4):
                a.I(f"ds_read_b128 {q4(172+4*tt)}, v{t1} offset:{tt*1024}"); lg.issue(("e", tt))
    lds_add(a, 0, V_E + 4)
    lg.issue("add")
    ST(a, "mainend")
    if DIAG == 3: a.I("s_memrealtime s[92:93]\ns_waitcnt lgkmcnt(0)\ns_sub_u32 s11, s92, s10")
    XE = 200
    lg.wait(a, "st")
    a.I(f"v_cmp_gt_u32 vcc, 32, v{L}")
    a.I(f"v_and_b32 v{XE+1}, 0xffff, v{t2}\nv_lshl_or_b32 v{XE+1}, v{XE+1}, 16, v{XE+1}\nv_lshrrev_b32 v{XE}, 16, v{t2}")
    a.I(f"v_cndmask_b32 v{XE}, v{XE}, v{XE+1}, vcc\nv_cndmask_b32 v{XE+1}, 0, v{XE+1}, vcc")
    a.I(f"v_mov_b32 v{XE+2}, v{XE+1}\nv_mov_b32 v{XE+3}, v{XE+1}")
    a.I(f"v_mov_b32 v{V_R}, v{t3}\nv_and_b32 v{V_SD}, s{S_M16}, v{t2}")
    for t in (5, 6, 0, 1, 2, 3, 4):
        d = ACC1 + 16 * t
        lg.wait(a, ("e", t))
        a.I(f"v_mfma_f32_32x32x16_bf16 v[{d}:{d+15}], {q4(172+4*t)}, {q4(XE)}, v[{d}:{d+15}]")
        if t == 0:
            a.I(f"v_mul_f32 v{V_R2}, {hx(f32(math.log2(math.e)))}, v{V_R}\nv_mul_f32 v{V_C0}, {hx(f32(K0C))}, v{V_R}")
            a.I(f"v_mul_f32 v{V_C1}, v{V_R}, v{V_R}\nv_mul_f32 v{V_C1}, v{V_C1}, v{V_R}")
        if t == 1:
            a.I(f"v_mul_f32 v{V_C1}, {hx(f32(K1C))}, v{V_C1}\nv_mov_b32 v{V_EPS}, {hx(f32(1e-6))}")
            a.I(f"v_bfe_u32 v{t0}, v{L}, 4, 1\nv_mul_u32_u24 v{t0}, {68*1024}, v{t0}")
        if t == 2:
            a.I(f"v_and_b32 v{t1}, 15, v{L}\nv_lshl_add_u32 v{t0}, v{t1}, 4, v{t0}")
            a.I(f"v_lshrrev_b32 v{t1}, 5, v{L}\nv_lshl_add_u32 v{V_HQO}, v{t1}, 8, v{t0}")
    a.I(f"s_lshl_b32 s{T}, s{S_RB}, 2\ns_add_u32 s{T}, s{T}, s{S_WAVE}\ns_mul_i32 s{T}, s{T}, {2*68}")
    a.I(f"s_add_u32 s{T}, s{T}, s{S_KS0}\ns_lshl_b32 s{S_HQ}, s{T}, 10\ns_sub_u32 s{S_HQ}, s{S_HQ}, 0x10000")
    ST(a, "ext")
    SIG, SIGX = T + 11, T + 12
    a.I(f"s_lshl_b32 s{SIG}, s{S_RB}, 8\ns_add_u32 s{SIG}, s{SIG}, {CNT_OFF}\ns_mov_b32 s{SIGX}, 1")
    def tile_units(t, fn):
        return [((lambda Tm, r0=ACC1+16*t+8*u: fn(r0, Tm)), hq_store(t, u)) for u in range(2)]
    a.I(f"s_cmp_eq_u32 s{S_TYPE}, 0\ns_cbranch_scc1 L_ep_kvq\ns_cmp_eq_u32 s{S_TYPE}, 2\ns_cbranch_scc1 L_ep_qx")
    a.I(f"s_cmp_eq_u32 s{S_CG}, 14\ns_cselect_b32 s{T+2}, {WS_SIZE}, s{S_HQ}")
    un = []
    for t in (5, 6, 0, 1, 2, 3, 4):
        uu = tile_units(t, u_gelu)
        if t == 6: uu = [(f, [x.replace(f"s{S_HQ},", f"s{T+2},") for x in tl]) for f, tl in uu]
        un += uu
    ep_pipe(a, un, DLY)
    a.I("s_branch L_ep_done")
    a.L("L_ep_qx")
    a.I(f"s_add_u32 s{SIG}, s{SIG}, 4096\ns_nop 3")
    ep_pipe(a, [x for t in range(4) for x in tile_units(t, u_phi)])
    a.I("s_branch L_ep_done")
    a.L("L_ep_kvq")
    a.I(f"s_add_u32 s{SIG}, s{SIG}, 4096\ns_mov_b32 s{SIGX}, 0x1fe")
    a.I(f"v_and_b32 v{t0}, 31, v{L}\ns_lshl_b32 s{T}, s{S_WAVE}, 5\nv_add_u32 v{t0}, s{T}, v{t0}")
    a.I(f"v_mul_u32_u24 v{t0}, {KV_RS}, v{t0}\nv_lshrrev_b32 v{t1}, 5, v{L}\nv_lshl_add_u32 v{V_KVW}, v{t1}, 3, v{t0}\nv_add_u32 v{V_KVW}, {KVIMG}, v{V_KVW}")
    a.I(f"v_mov_b32 v{XE}, 0x3f803f80\nv_mov_b32 v{XE+1}, 0x3f803f80")
    a.I(f"ds_write_b64 v{V_KVW}, {pk(XE)} offset:320")
    un = [x for t in (5, 6) for x in tile_units(t, u_phi)] if QFIRST else []
    if not QFIRST: a.I(f"s_mov_b32 s{SIGX}, 0x1ff")
    for t in range(5):
        for u in range(2):
            r0 = ACC1 + 16 * t + 8 * u
            o = 8 * t + 2 * u
            n = 8 if t < 2 else (4 if t == 2 else 0)
            un.append(((lambda Tm, r0=r0, n=n: u_phi(r0, Tm, n)), [f"ds_write2_b64 v{V_KVW}, {pk(r0)}, {pk(r0+2)} offset0:{o} offset1:{o+4}"]))
    ep_pipe(a, un)
    a.I("s_waitcnt vmcnt(0) lgkmcnt(0)")
    lds_add(a, 1, 112)
    AK, AV, C = 114, 115, 116
    a.I(f"v_lshrrev_b32 v{AK}, 5, v{L}\nv_bfe_u32 v{AV}, v{L}, 2, 2\nv_lshl_add_u32 v{AK}, v{AK}, 3, v{AV}\nv_mul_u32_u24 v{AK}, {KV_RS}, v{AK}")
    a.I(f"v_add_u32 v{AK}, {KVIMG}, v{AK}")
    a.I(f"v_bfe_u32 v{C}, v{L}, 4, 1\nv_and_b32 v{AV}, 3, v{L}\nv_lshl_add_u32 v{C}, v{C}, 2, v{AV}")
    a.I(f"s_mul_i32 s{T}, s{S_WAVE}, 40\nv_lshlrev_b32 v{C+1}, 3, v{C}\nv_add_u32 v{C+1}, s{T}, v{C+1}")
    a.I(f"v_cmp_gt_u32 vcc, 5, v{C}\nv_add_u32 v{C+2}, 160, v{C+1}\nv_mov_b32 v{C+3}, 320")
    a.I(f"v_cndmask_b32 v{C+2}, v{C+3}, v{C+2}, vcc")
    a.I(f"v_add_u32 v{AV}, v{AK}, v{C+2}\nv_add_u32 v{AK}, v{AK}, v{C+1}")
    a.I(f"v_lshrrev_b32 v{C}, 5, v{L}\nv_mul_u32_u24 v{C}, 320, v{C}\nv_and_b32 v{C+1}, 31, v{L}\nv_lshl_add_u32 v{C}, v{C+1}, 2, v{C}")
    lds_wait_ge(a, 1, 4, 112)
    if QFIRST:
        a.I(f"s_cmp_eq_u32 s{S_WAVE}, 0\ns_cselect_b32 s{T}, s{SIG}, {WS_SIZE}\nv_mov_b32 v112, s{T}\nv_mov_b32 v113, 1\ns_mov_b64 exec, 1")
        a.I(f"buffer_atomic_add v113, v112, {srd(SRD_WS)}, 0 offen\ns_mov_b64 exec, -1")
    FK, FV, D = 0, 32, 64
    for kp in range(8):
        o = kp * 16 * KV_RS
        a.I(f"ds_read_b64_tr_b16 {pk(FK+4*kp)}, v{AK} offset:{o}\nds_read_b64_tr_b16 {pk(FK+4*kp+2)}, v{AK} offset:{o+4*KV_RS}")
        a.I(f"ds_read_b64_tr_b16 {pk(FV+4*kp)}, v{AV} offset:{o}\nds_read_b64_tr_b16 {pk(FV+4*kp+2)}, v{AV} offset:{o+4*KV_RS}")
        if kp >= 2:
            a.I("s_waitcnt lgkmcnt(8)")
            k2 = kp - 2
            a.I(f"v_mfma_f32_32x32x16_bf16 v[{D}:{D+15}], {q4(FV+4*k2)}, {q4(FK+4*k2)}, {'0' if k2 == 0 else f'v[{D}:{D+15}]'}")
    for k2 in (6, 7):
        a.I(f"s_waitcnt lgkmcnt({4*(7-k2)})")
        a.I(f"v_mfma_f32_32x32x16_bf16 v[{D}:{D+15}], {q4(FV+4*k2)}, {q4(FK+4*k2)}, v[{D}:{D+15}]")
    a.I(f"s_lshl_b32 s{T+2}, s{S_CG}, 2\ns_add_u32 s{T+2}, s{T+2}, s{S_WAVE}\ns_mul_i32 s{T+2}, s{T+2}, 1680\ns_add_u32 s{T+2}, s{T+2}, {KV_OFF}")
    a.I("s_mov_b32 exec_lo, 0xfffff\ns_mov_b32 exec_hi, 0xfffff")
    for r in range(12):
        if r == 9: a.I("s_mov_b32 exec_hi, 0")
        e = 8 * (r >> 2) + (r & 3)
        if not NOATOM: a.I(f"buffer_atomic_add_f32 v{D+r}, v{C}, {srd(SRD_WS)}, s{T+2} offen offset:{e*80}")
    a.I("s_mov_b64 exec, -1")
    if not QFIRST: ep_pipe(a, [x for t in (5, 6) for x in tile_units(t, u_phi)])
    a.L("L_ep_done")
    lds_add(a, 7, 112)
    ST(a, "epi")
    a.C("---- publish ----")
    vm = Q("vmcnt", 63)
    PQ, AC2, WO = 0, 80, 160
    VT = 240
    W_KVW, W_KT0, W_KT1, W_MZ = 250, 251, 252, 249
    u0, u1, u2, u3 = VT, VT + 1, VT + 2, VT + 3
    a.I(f"s_lshl_b32 s{T}, s{S_CG}, 11\ns_add_u32 s{T}, s{T}, {CNT_OFF+8192-256}\nv_lshlrev_b32 v114, 8, v{L}\nv_add_u32 v114, s{T}, v114\nv_mov_b32 v115, 1")
    a.I(f"v_writelane_b32 v114, s{SIG}, 0")
    g2_common(a)
    a.I(f"s_mul_i32 s{S_BB}, s{S_CG2}, {68*5*1024}\ns_mul_i32 s{T}, s{S_WAVE}, {25*1024}\ns_add_u32 s{S_BB}, s{S_BB}, s{T}\ns_add_u32 s{S_BB}, s{S_BB}, {B2_OFF + 48*5*1024}")
    WO4 = AC2 + 60
    def wor(t): return WO4 if t == 4 else WO + 20 * t
    def woload(t):
        a.I(f"s_add_u32 s{T}, s{S_BB}, {t*5120}\ns_add_u32 s{T+1}, s{T}, 4096")
        for ct in range(5):
            a.I(f"buffer_load_dwordx4 {q4(wor(t)+4*ct)}, v{V_L16}, {srd(SRD_WS)}, s{T+(ct>>2)} offen offset:{(ct&3)*1024} {SC}")
            vm.issue(("wo", t))
    vm.issue("stores")
    a.I(f"s_lshr_b32 s{T}, s{S_RB2}, 1\ns_lshl_b32 s{T}, s{T}, 8\ns_add_u32 s{T}, s{T}, {CNT_OFF+4096}\nv_mov_b32 v116, s{T}\nv_mov_b32 v117, 9")
    if QFIRST: poll_issue(a, vm, SRD_WS, 116, 118, 1, "pq?")
    for t in range(WODRAIN): woload(t)
    KB = T + 13
    a.I(f"s_mul_i32 s{KB}, s{S_WAVE}, {MZS}\ns_add_u32 s{KB}, s{KB}, {MZ}\nv_add_u32 v{W_MZ}, s{KB}, v{V_L16}")
    a.I(f"v_mul_u32_u24 v{u0}, 205, v{L}\nv_lshrrev_b32 v{u0}, 10, v{u0}\nv_mul_u32_u24 v{u1}, 5, v{u0}\nv_sub_u32 v{u1}, v{L}, v{u1}")
    a.I(f"v_lshlrev_b32 v{u0}, 6, v{u0}\nv_lshl_add_u32 v{u0}, v{u1}, 3, v{u0}")
    a.I(f"v_add_u32 v{W_KVW}, s{KB}, v{u0}")
    a.I(f"v_and_b32 v{u0}, 15, v{L}\nv_lshrrev_b32 v{u1}, 4, v{L}\nv_lshlrev_b32 v{u1}, 3, v{u1}\nv_add_u32 v{u1}, s{KB}, v{u1}")
    a.I(f"v_lshl_add_u32 v{W_KT0}, v{u0}, 6, v{u1}")
    a.I(f"v_and_b32 v{u2}, 3, v{L}\nv_cmp_eq_u32 vcc, 0, v{u2}\nv_lshrrev_b32 v{u0}, 2, v{u0}\nv_add_u32 v{u0}, 16, v{u0}\nv_mov_b32 v{u2}, 20")
    a.I(f"v_cndmask_b32 v{u0}, v{u2}, v{u0}, vcc")
    a.I(f"v_lshl_add_u32 v{W_KT1}, v{u0}, 6, v{u1}")
    vm.wait(a, "pq?" if QFIRST else "stores")
    ST(a, "drain")
    lds_add(a, 2, 112, rtn=True)
    a.I(f"s_waitcnt lgkmcnt(0)\nv_readfirstlane_b32 s{T}, v113\ns_cmp_lg_u32 s{T}, 3\ns_cbranch_scc1 L_nosig")
    a.I(f"s_mov_b32 exec_lo, s{SIGX}\ns_mov_b32 exec_hi, 0")
    a.I(f"buffer_atomic_add v115, v114, {srd(SRD_WS)}, 0 offen\ns_mov_b64 exec, -1")
    a.L("L_nosig")
    a.C("==== gemm2, attention part (waves 0..3) ====")
    def pqload():
        for sg in range(4):
            a.I(f"s_mul_i32 s{T}, s{S_WAVE}, {5*1024}\ns_add_u32 s{T}, s{T}, {48*1024}\ns_add_u32 s{T}, s{T}, s{S_A+sg}\ns_add_u32 s{T+1}, s{T}, 4096")
            for t in range(5):
                a.I(f"buffer_load_dwordx4 {q4(PQ+20*sg+4*t)}, v{V_L16}, {srd(SRD_WS)}, s{T+(t>>2)} offen offset:{(t&3)*1024} {SC}")
                vm.issue(("pq", sg))
    def s2q():
        a.I(f"s_cmp_lg_u32 s{S_WAVE}, 0\ns_cbranch_scc1 L_m_nopoll\ns_setprio 3")
        a.I(f"s_lshr_b32 s{T}, s{S_RB2}, 1\ns_lshl_b32 s{T}, s{T}, 8\ns_add_u32 s{T}, s{T}, {CNT_OFF+4096}\nv_mov_b32 v{u0}, s{T}\nv_mov_b32 v{u1}, 9")
        poll(a, SRD_WS, u0, u1, u2, 1, PSLEEP)
        lds_add(a, 5, VT)
        a.L("L_m_nopoll")
        lds_wait_ge(a, 5, 1, VT)
        ST(a, "S2Q")
    def zero_img():
        lds_wait_ge(a, 7, 4, VT)
        for i in range(4): a.I(f"v_mov_b32 v{AC2+i}, 0")
        for i in range(11): a.I(f"ds_write_b128 v{W_MZ}, {q4(AC2)} offset:{i*1024}")
    if QFIRST:
        a.I(f"s_setprio {PQPRIO}")
        poll_check(a, vm, SRD_WS, 116, 117, 118, 1, "pq?", 8)
        ST(a, "S2Q")
        pqload(); zero_img()
        for t in range(WODRAIN, WOEARLY): woload(t)
    else:
        for t in range(WODRAIN, WOEARLY): woload(t)
        zero_img(); s2q(); a.I(f"s_setprio {PQPRIO}"); pqload()
    ST(a, "pqiss")
    a.I("s_setprio 3")
    a.I(f"s_cmp_lg_u32 s{S_WAVE}, 0\ns_cbranch_scc1 L_m_nopoll2")
    a.I(f"s_and_b32 s{T}, s2, 7\ns_lshl_b32 s{T}, s{T}, 8\ns_add_u32 s{T}, s{T}, {CNT_OFF+8192}\nv_lshlrev_b32 v{u0}, 11, v{L}\nv_add_u32 v{u0}, s{T}, v{u0}\nv_mov_b32 v{u1}, 16")
    poll(a, SRD_WS, u0, u1, u2, 8, PSLEEP)
    lds_add(a, 4, VT)
    a.L("L_m_nopoll2")
    lds_wait_ge(a, 4, 1, VT)
    ST(a, "S3")
    KVRAW = AC2
    for i in range(14):
        if i % 4 == 0: a.I(f"s_mul_i32 s{T}, s{S_WAVE}, {8*1680}\ns_add_u32 s{T}, s{T}, {KV_OFF + i*960}")
        a.I(f"buffer_load_dwordx4 {q4(KVRAW+4*i)}, v{V_L16}, {srd(SRD_WS)}, s{T} offen offset:{(i%4)*960} {SC}")
        vm.issue(("kv", i))
    EPSC = VT + 4
    a.I(f"v_mov_b32 v{EPSC}, 0\nv_mov_b32 v{EPSC+1}, {hx(f32(1e-6))}\nv_mov_b32 v{EPSC+2}, 0\nv_mov_b32 v{EPSC+3}, 0")
    for i in range(14):
        r = KVRAW + 4 * i
        vm.wait(a, ("kv", i))
        a.I(f"v_cvt_pk_bf16_f32 v{r}, v{r}, v{r+1}\nv_cvt_pk_bf16_f32 v{r+1}, v{r+2}, v{r+3}")
        a.I(f"ds_write_b64 v{W_KVW}, {pk(r)} offset:{24 + i*768}")
    for t in range(WOEARLY, 4): woload(t)
    a.I("s_waitcnt lgkmcnt(0)")
    ST(a, "kvlds")
    ND, KT = AC2, AC2 + 48
    def ktread(qd, pr):
        o = []
        for hh in range(2):
            hq = 2 * pr + hh; h = 4 * qd + hq
            for tau in range(2):
                for b in range(2):
                    o.append(f"ds_read_b64 {pk(KT+(hq*2+tau)*4+2*b)}, v{W_KT1 if tau else W_KT0} offset:{h*1344 + 24 - 8*hq + 32*b}")
        return o
    groups = [(qd, sg, pr) for qd in range(2) for sg in range(4) for pr in range(2)]
    def nmf(gi):
        qd, sg, pr = groups[gi]
        nd = ND + 16 * (gi % 3)
        o = []
        for hh in range(2):
            hq = 2 * pr + hh
            for tau in (1, 0):
                o.append(f"v_mfma_f32_16x16x32_bf16 {q4(nd+8*hh+4*tau)}, {q4(KT+(hq*2+tau)*4)}, {q4(PQ+20*sg+10*qd+2*hq)}, {q4(EPSC) if tau else '0'}")
        return o
    def nva(gi):
        qd, sg, pr = groups[gi]
        D = [ND + 16 * (gi % 3), ND + 16 * (gi % 3) + 8]
        o = [f"v_rcp_f32_e64 v{d+6}, v{d+5}" for d in D]
        o += [f"v_mul_f32 v{d+i}, v{d+i}, v{d+6}" for d in D for i in range(5)]
        vals = [d + i for d in D for i in range(5)]
        o += [f"v_cvt_pk_bf16_f32 v{PQ+20*sg+10*qd+5*pr+i}, v{vals[2*i]}, v{vals[2*i+1]}" for i in range(5)]
        return o
    for x in ktread(0, 0): a.I(x)
    a.I("s_waitcnt lgkmcnt(7)")
    for x in ktread(0, 1): a.I(x)
    a.I("s_waitcnt lgkmcnt(8)")
    for x in nmf(0): a.I(x)
    a.I("s_waitcnt lgkmcnt(0)")
    for x in nmf(1): a.I(x)
    for gi in range(16):
        m = nmf(gi + 2) if gi + 2 < 16 else []
        v = nva(gi)
        if gi + 2 == 8: a.I("s_waitcnt lgkmcnt(8)")
        if gi + 2 == 9: a.I("s_waitcnt lgkmcnt(0)")
        for k, x in enumerate(v):
            a.I(x)
            if k % 4 == 1 and m: a.I(m.pop(0))
        if gi + 2 == 6:
            for x in ktread(1, 0): a.I(x)
        if gi + 2 == 7:
            a.I("s_waitcnt lgkmcnt(7)")
            for x in ktread(1, 1): a.I(x)
        if gi == 13: woload(4)
    ST(a, "odone")
    VM_, VH_, VX_, VO_, VB_ = VT, VT + 4, VT + 8, 250, 251
    RES, RU = 20, 40
    order = (1, 2, 3, 0)
    for k, sg in enumerate(order):
        A_ = AC2 + 20 * (k % 3); P_ = AC2 + 20 * ((k - 1) % 3)
        fill = []
        if k == 3:
            vm.wait(a, "R"); fill = res_unpack([0, 1, 2], RES, RU)
        for t in range(5):
            if k == 0: vm.wait(a, ("wo", t))
            for ct in ((3, 4, 0, 1, 2) if k == 3 else range(5)):
                d = A_ + 4 * ct
                a.I(f"v_mfma_f32_16x16x32_bf16 {q4(d)}, {q4(wor(t)+4*ct)}, {q4(PQ+20*sg+4*t)}, {'0' if t == 0 else q4(d)}")
                n = t * 5 + ct
                if k > 0 and n >= 8 and n % 3 == 2 and (n - 8) // 3 < 5:
                    c2 = (n - 8) // 3
                    a.I(f"ds_write_b128 v{W_MZ}, {q4(P_+4*c2)} offset:{((order[k-1]-1)*5+c2)*1024}")
                for _ in range(2):
                    if fill: a.I(fill.pop(0))
        if k == 0:
            out_addr(a, VO_, VB_, 252)
            res_issue(a, vm, [0, 1, 2], RES, VO_, VB_)
        if k == 1: red_addrs(a, VM_, VH_, VX_)
    for c2 in (3, 4): a.I(f"ds_write_b128 v{VX_}, {q4(AC2+4*c2)} offset:{(c2-3)*1024}")
    for k, ct in enumerate([0, 1, 2]):
        for i in (0, 2): a.I(f"v_pk_add_f32 {pk(AC2+4*ct+i)}, {pk(AC2+4*ct+i)}, {pk(RU+8*k+i)}")
    ST(a, "attend")
    a.I("s_waitcnt lgkmcnt(0)\ns_barrier")
    ST(a, "bar")
    final_sum(a, 0, [0, 1, 2], AC2, 100, VM_, VH_, VX_, VO_)
    ST(a, "end")
    if STAMPS: a.I("s_waitcnt vmcnt(0)")
    ST(a, "rt1", True)
    stamp_dump(a, 0)
    if DIAG:
        a.I("s_waitcnt vmcnt(0)\ns_memrealtime s[92:93]\ns_waitcnt lgkmcnt(0)")
        if DIAG == 1: a.I("s_sub_u32 s11, s92, s10")
        a.I("s_min_u32 s11, s11, 20000\ns_mov_b32 s10, s92")
        a.L("L_diag")
        a.I("s_memrealtime s[92:93]\ns_waitcnt lgkmcnt(0)\ns_sub_u32 s92, s92, s10\ns_cmp_lt_u32 s92, s11\ns_cbranch_scc1 L_diag")
    a.L("L_end")
    a.I("s_endpgm")

def header(launches):
    ref = open(f"cdna_kernels/{NAME}.s.ref").read().split("\n")
    out = [l for l in ref if l.startswith(";") and "@launch" not in l]
    out += launches
    out += ['.amdgcn_target "amdgcn-amd-amdhsa--gfx950"', ".text"]
    return "\n".join(out) + "\n"

def build(path, listform):
    ln = f"; @launch kernel={KN} grid=(256,1,1) block=(512,1,1) lds=163840" if listform else "; @launch grid=(256,1,1) block=(512,1,1) lds=163840"
    txt = header([ln])
    a = Asm()
    common(a)
    s1 = loader(a)
    s2 = aux(a)
    h2(a, [s1, s2])
    mwave(a)
    t, n = a.fixed()
    if NOSCL: t = "\n".join(l.replace(" sc1", "") if "load_dwordx4" in l else l for l in t.split("\n"))
    if NOSCS: t = "\n".join(l.replace(" sc1", "") if "store_dwordx4" in l else l for l in t.split("\n"))
    txt += t
    txt += ".p2align 8\n.fill 16384, 4, 0xbf800000\n"
    txt += f""".section .rodata,"a"
.p2align 6
.amdhsa_kernel {KN}
  .amdhsa_next_free_vgpr 256
  .amdhsa_next_free_sgpr 102
  .amdhsa_accum_offset 256
  .amdhsa_group_segment_fixed_size 0
  .amdhsa_kernarg_size 88
  .amdhsa_user_sgpr_count 2
  .amdhsa_user_sgpr_kernarg_segment_ptr 1
  .amdhsa_system_sgpr_workgroup_id_x 1
.end_amdhsa_kernel
"""
    open(path, "w").write(txt)
    if STAMPS: open(path + ".names", "w").write(repr(STAMP_NAMES))
    print("written", path, "nops inserted:", n)

if __name__ == "__main__":
    LIST = 0
    for arg in list(sys.argv):
        if "=" in arg:
            k_, v_ = arg.split("="); globals()[k_] = int(v_); sys.argv.remove(arg)
    build(sys.argv[1] if len(sys.argv) > 1 else f"cdna_kernels/{NAME}.s", LIST)
```

```python
import sys, math, struct
sys.path.insert(0, "gen")
from asmlib import Asm

NAME = "parallel_sum__linear_attn_block__dense_activation_gelu__prompt"
KN = NAME + "_kernel"
HQ_OFF   = 0x000000
B2_OFF   = 0x900000
STAT_OFF = 0xC00000
CS_OFF   = 0xC10000
KV_OFF   = 0xC40000
CNT_OFF  = KV_OFF + 53 * 1024
ZERO_KB  = 53 + 26
STAMP_OFF = 0xC80000
WS_SIZE  = 0xE00000

STAMPS = 0
CODEPF = 1
ROT1 = 0
ROT2 = 2
PD = 4
NB = 6
MPRIO = 1
SPIN = 8000
NOATOM = 0
NOSCL = 0
NOSCS = 0
THR = 0
PSLEEP = 4
G2MAP = 1
DLY = 6
N1 = 99
WOEARLY = 4
HPRIO = 2
QFIRST = 1
WSMB = 0
WODRAIN = 2
PQPRIO = 3
S1A_POLL, S1B_POLL, M_DRAIN, BUDGET, BGRATE, BGMAX, PFGAP, APRIO = 8, 14, 4, 48, 0, 15, 4, 0
DIAG = 0

def f32(x): return struct.unpack("<I", struct.pack("<f", x))[0]
def hx(x): return hex(x & 0xFFFFFFFF)
def srd(n): return f"s[{n}:{n+3}]"
def pk(r): return f"v[{r}:{r+1}]"
def q4(r): return f"v[{r}:{r+3}]"
SC = "sc1"

S_X, S_WQKV, S_WO, S_W1, S_B1, S_W2, S_B2, S_OUT, S_DBG, S_WS = 4, 6, 8, 12, 14, 16, 18, 20, 22, 24
S_WAVE, S_I = 26, 27
SRD_X, SRD_W, SRD_WS, SRD_T, SRD_U = 28, 32, 36, 40, 44
S_RB, S_CG, S_TYPE, S_STR, S_BASE, S_JA, S_JB, S_NP, S_KS0, S_CSB, S_RB2, S_CG2 = range(48, 60)
T = 60
S_KK = 76
S_A = 88
S_SPIN = 96
S_M16 = 97
V_LANE, V_L16, V_STAMP = 255, 254, 253

WSLOT = 14336
XRING = 6 * WSLOT
P0_LDS = XRING + 3 * 16384
EXT_LDS = P0_LDS + 16384
SYNC_LDS = EXT_LDS + 8192
KVIMG = 2 * WSLOT
KV_RS = 344
MZ, MZS = 28672, 15360
HZ1, HZS = 90112, 20480

class Q:
    def __init__(self, name, mx): self.q = []; self.name = name; self.mx = mx
    def issue(self, tag): self.q.append(tag)
    def wait(self, a, tag):
        idx = [i for i, t in enumerate(self.q) if t == tag]
        if not idx: return
        n = len(self.q) - 1 - idx[-1]
        assert n <= self.mx, (self.name, n)
        a.I(f"s_waitcnt {self.name}({n})")
        self.q = self.q[idx[-1] + 1:]
    def drain(self, a):
        a.I(f"s_waitcnt {self.name}(0)"); self.q = []

STAMP_NAMES = {}
DIAGN = {2: 'P0', 3: 'mainend', 4: 'epi', 5: 'drain', 6: 'S3', 7: 'P4', 8: 'P10', 9: 'odone', 10: 'xin', 11: 'P8', 12: 'P14', 13: 'P2', 14: 'P6'}
class Stamp:
    def __init__(self, role): self.role = role; self.n = 0; self.names = []; STAMP_NAMES[role] = self.names
    def __call__(self, a, name, real=False):
        if DIAG > 1 and self.role == "M" and name == DIAGN[DIAG]:
            a.I("s_memrealtime s[92:93]\ns_waitcnt lgkmcnt(0)\ns_sub_u32 s78, s92, s76")
        if not STAMPS: return
        a.I(f"{'s_memrealtime' if real else 's_memtime'} s[92:93]\ns_waitcnt lgkmcnt(0)\nv_writelane_b32 v{V_STAMP}, s92, {self.n}")
        self.names.append(name); self.n += 1
def stamp_dump(a, vt):
    if not STAMPS: return
    a.I(f"s_lshl_b32 s92, s2, 3\ns_add_u32 s92, s92, s{S_WAVE}\ns_lshl_b32 s92, s92, 8\ns_add_u32 s92, s92, {STAMP_OFF}\nv_lshlrev_b32 v{vt}, 2, v{V_LANE}")
    a.I(f"buffer_store_dword v{V_STAMP}, v{vt}, {srd(SRD_WS)}, s92 offen")

def mk_srd(a, d, ptr, size):
    a.I(f"s_mov_b32 s{d}, s{ptr}\ns_mov_b32 s{d+1}, s{ptr+1}")
    a.I(f"s_mov_b32 s{d+2}, {hx(size)}\ns_mov_b32 s{d+3}, 0x20000")

_lbl = [0]
def newlabel(p):
    _lbl[0] += 1; return f"L_{p}{_lbl[0]}"

def lds_wait_ge(a, word, val, vt):
    l = newlabel("lw"); e = newlabel("lwe")
    a.I(f"s_mov_b32 s{S_SPIN}, {SPIN*8}\nv_mov_b32 v{vt}, {SYNC_LDS + 4*word}")
    a.L(l)
    a.I(f"ds_read_b32 v{vt+1}, v{vt}\ns_waitcnt lgkmcnt(0)\nv_readfirstlane_b32 s{T}, v{vt+1}")
    a.I(f"s_cmp_ge_u32 s{T}, {val}\ns_cbranch_scc1 {e}\ns_sleep 1\ns_sub_u32 s{S_SPIN}, s{S_SPIN}, 1\ns_cmp_lg_u32 s{S_SPIN}, 0\ns_cbranch_scc1 {l}")
    a.L(e)

def lds_add(a, word, vt, rtn=False):
    a.I(f"v_mov_b32 v{vt}, {SYNC_LDS + 4*word}\nv_mov_b32 v{vt+1}, 1\ns_mov_b64 exec, 1")
    if rtn: a.I(f"ds_add_rtn_u32 v{vt+1}, v{vt}, v{vt+1}")
    else: a.I(f"ds_add_u32 v{vt}, v{vt+1}")
    a.I("s_mov_b64 exec, -1")

def poll(a, srdn, voff, vexp, vt, nlanes, slp=4):
    l = newlabel("pl"); e = newlabel("ple")
    a.I(f"s_mov_b32 s{S_SPIN}, {SPIN}\ns_mov_b64 exec, {(1 << nlanes) - 1}")
    a.L(l)
    a.I(f"buffer_load_dword v{vt}, v{voff}, {srd(srdn)}, 0 offen {SC}\ns_waitcnt vmcnt(0)")
    a.I(f"v_cmp_lt_u32 vcc, v{vt}, v{vexp}\ns_nop 4\ns_cbranch_vccz {e}")
    a.I(f"s_sleep {slp}\ns_sub_u32 s{S_SPIN}, s{S_SPIN}, 1\ns_cmp_lg_u32 s{S_SPIN}, 0\ns_cbranch_scc1 {l}")
    a.L(e)
    a.I("s_mov_b64 exec, -1")

def poll_issue(a, vm, srdn, voff, vt, nlanes, tag):
    a.I(f"s_mov_b64 exec, {(1 << nlanes) - 1}")
    a.I(f"buffer_load_dword v{vt}, v{voff}, {srd(srdn)}, 0 offen {SC}\ns_mov_b64 exec, -1")
    vm.issue(tag)
def poll_check(a, vm, srdn, voff, vexp, vt, nlanes, tag, slp):
    e = newlabel("pc")
    vm.wait(a, tag)
    a.I(f"s_mov_b64 exec, {(1 << nlanes) - 1}\nv_cmp_lt_u32 vcc, v{vt}, v{vexp}\ns_mov_b64 exec, -1\ns_nop 3\ns_cbranch_vccz {e}")
    poll(a, srdn, voff, vexp, vt, nlanes, slp)
    a.L(e)

def common(a):
    a.raw(f".globl {KN}\n.p2align 8\n.type {KN},@function")
    a.L(KN)
    a.I("s_cmp_ge_u32 s2, 256\ns_cbranch_scc1 L_end")
    a.I("s_load_dwordx16 s[4:19], s[0:1], 0\ns_load_dwordx4 s[20:23], s[0:1], 64\ns_load_dwordx2 s[24:25], s[0:1], 80")
    a.I(f"v_lshrrev_b32 v1, 6, v0\nv_and_b32 v{V_LANE}, 63, v0")
    a.I(f"v_readfirstlane_b32 s{S_WAVE}, v1\nv_lshlrev_b32 v{V_L16}, 4, v{V_LANE}")
    if CODEPF:
        a.I("s_getpc_b64 s[94:95]\ns_and_b32 s94, s94, 0xffffff00")
        a.I(f"s_and_b32 s92, s2, 0xf8\ns_add_u32 s92, s92, s{S_WAVE}\ns_lshl_b32 s92, s92, 8")
        a.I(f"v_lshlrev_b32 v2, 7, v{V_LANE}\nv_add_u32 v2, s92, v2\ns_mov_b64 exec, 3")
        a.I("global_load_dword v252, v2, s[94:95]\ns_mov_b64 exec, -1")
    a.I(f"s_and_b32 s{S_I}, s{S_WAVE}, 3\ns_mov_b32 s{S_M16}, 0xffff0000")
    a.I(f"s_and_b32 s{T}, s2, 1\ns_lshl_b32 s{T}, s{T}, 3\ns_bfe_u32 s{S_RB}, s2, 0x30003\ns_add_u32 s{S_RB}, s{S_RB}, s{T}")
    a.I(f"s_and_b32 s{T}, s2, 6\ns_bfe_u32 s{S_CG}, s2, 0x10006\ns_add_u32 s{S_CG}, s{S_CG}, s{T}\ns_lshr_b32 s{T}, s2, 7\ns_lshl_b32 s{T}, s{T}, 3\ns_add_u32 s{S_CG}, s{S_CG}, s{T}")
    if G2MAP == 0:
        a.I(f"s_and_b32 s{S_RB2}, s2, 7\ns_lshl_b32 s{S_RB2}, s{S_RB2}, 2\ns_bfe_u32 s{T}, s2, 0x20003\ns_add_u32 s{S_RB2}, s{S_RB2}, s{T}")
        a.I(f"s_lshr_b32 s{S_CG2}, s2, 5")
    else:
        a.I(f"s_and_b32 s{S_RB2}, s2, 6\ns_lshl_b32 s{S_RB2}, s{S_RB2}, 2\ns_bfe_u32 s{T}, s2, 0x30003\ns_add_u32 s{S_RB2}, s{S_RB2}, s{T}")
        a.I(f"s_and_b32 s{S_CG2}, s2, 1\ns_lshl_b32 s{S_CG2}, s{S_CG2}, 2\ns_lshr_b32 s{T}, s2, 6\ns_add_u32 s{S_CG2}, s{S_CG2}, s{T}")
    a.I(f"s_mov_b32 s{S_JA}, 0\ns_mov_b32 s{S_JB}, 0\ns_mov_b32 s{S_STR}, 3840\ns_mov_b32 s{S_CSB}, {CS_OFF}\ns_mov_b32 s{S_NP}, 28")
    a.I(f"s_cmp_lt_u32 s{S_CG}, 8\ns_cbranch_scc1 L_t_kvq\ns_cmp_eq_u32 s{S_CG}, 15\ns_cbranch_scc1 L_t_qx")
    a.I(f"s_mov_b32 s{S_TYPE}, 1\ns_sub_u32 s{T}, s{S_CG}, 8\ns_mul_i32 s{S_BASE}, s{T}, 448\ns_mul_i32 s{S_KS0}, s{T}, 7")
    a.I(f"s_mov_b32 s{S_STR}, 3072\ns_mov_b32 s{S_CSB}, {CS_OFF + 1920*32}\ns_cmp_eq_u32 s{S_CG}, 14\ns_cselect_b32 s{S_NP}, 24, 28\ns_branch L_t_done")
    a.L("L_t_qx")
    a.I(f"s_mov_b32 s{S_TYPE}, 2\ns_mov_b32 s{S_BASE}, 1024\ns_mov_b32 s{S_KS0}, 64\ns_mov_b32 s{S_NP}, 16\ns_branch L_t_done")
    a.L("L_t_kvq")
    a.I(f"s_mov_b32 s{S_TYPE}, 0\ns_mul_i32 s{S_BASE}, s{S_CG}, 160\ns_add_u32 s{S_BASE}, s{S_BASE}, 1280\ns_mov_b32 s{S_JA}, 1120")
    a.I(f"s_lshl_b32 s{S_JB}, s{S_CG}, 5\ns_sub_u32 s{S_JB}, {hx(-2720)}, s{S_JB}")
    a.I(f"s_lshl_b32 s{S_KS0}, s{S_CG}, 1\ns_add_u32 s{S_KS0}, s{S_KS0}, {48-5}")
    a.L("L_t_done")
    a.I(f"s_cmp_lt_u32 s{S_WAVE}, 4\ns_cbranch_scc1 L_M\ns_cmp_ge_u32 s{S_WAVE}, 6\ns_cbranch_scc1 L_AUX")

def base_srds(a):
    a.I("s_waitcnt lgkmcnt(0)")
    mk_srd(a, SRD_X, S_X, 2048 * 1280)
    if WSMB: a.I(f"s_add_u32 s{S_WS}, s{S_WS}, {hx(WSMB << 20)}\ns_addc_u32 s{S_WS+1}, s{S_WS+1}, 0")
    mk_srd(a, SRD_WS, S_WS, WS_SIZE)

def loader(a):
    ST = Stamp("L")
    vm = Q("vmcnt", 63)
    if CODEPF: vm.issue("code")
    VW, VX, t0, t1, t2 = 4, 12, 16, 17, 18
    S_XK, S_WK, S_XB, S_MW, S_MX, S_W32, S_WEND = T + 2, T + 3, T + 4, T + 5, T + 6, T + 7, T + 8
    a.C("==== loader ====")
    ST(a, "rt0", True); ST(a, "start")
    a.I(f"v_lshrrev_b32 v{t0}, 3, v{V_LANE}\nv_and_b32 v{t1}, 7, v{V_LANE}\nv_lshrrev_b32 v{t2}, 1, v{t0}\nv_xor_b32 v{t1}, v{t1}, v{t2}")
    a.I(f"v_mul_u32_u24 v{t0}, 1280, v{t0}\nv_lshl_add_u32 v{VX}, v{t1}, 4, v{t0}\nv_xor_b32 v{VX+1}, 64, v{VX}")
    if ROT1 == 0: a.I(f"s_mov_b32 s{T}, 0")
    else:
        a.I(f"s_and_b32 s{T}, s{S_RB}, 7\ns_lshr_b32 s{T+1}, s2, 6")
        if ROT1 == 1: a.I(f"s_lshl_b32 s{T+1}, s{T+1}, 1\ns_add_u32 s{T}, s{T}, s{T+1}\ns_and_b32 s{T}, s{T}, 7\ns_mul_i32 s{T}, s{T}, 5\ns_lshr_b32 s{T}, s{T}, 2")
        else: a.I(f"s_add_u32 s{T}, s{T}, s{T+1}\ns_and_b32 s{T}, s{T}, 3\ns_mul_i32 s{T}, s{T}, 5\ns_lshr_b32 s{T}, s{T}, 1")
    a.I(f"s_lshl_b32 s{S_XK}, s{T}, 7\ns_lshl_b32 s{S_W32}, s{S_STR}, 5\ns_mul_i32 s{S_WK}, s{T}, s{S_W32}\ns_lshl_b32 s{S_WK}, s{S_WK}, 1")
    a.I(f"s_mul_i32 s{S_WEND}, s{S_STR}, 640")
    a.I(f"s_lshl_b32 s{S_XB}, s{S_RB}, 1\ns_add_u32 s{S_XB}, s{S_XB}, s{S_I}\ns_mul_i32 s{S_XB}, s{S_XB}, {64*1280}")
    a.I(f"s_mul_i32 s{S_MW}, s{S_I}, 7168\ns_lshl_b32 s{S_MX}, s{S_I}, 13\ns_add_u32 s{S_MX}, s{S_MX}, {XRING}")
    base_srds(a)
    def xl(c, half):
        if half == 0: a.I(f"s_add_u32 s{T+9}, s{S_XB}, s{S_XK}")
        for i in range(4 * half, 4 * half + 4):
            a.I(f"s_add_u32 m0, s{S_MX}, {(c%3)*16384 + i*1024}")
            a.I(f"s_add_u32 s{T}, s{T+9}, {i*10240}")
            a.I(f"buffer_load_dwordx4 v{VX+(i&1)}, {srd(SRD_X)}, s{T} offen lds")
            vm.issue(("x", c))
        if half == 0:
            a.I(f"s_add_u32 s{S_XK}, s{S_XK}, 128\ns_cmp_eq_u32 s{S_XK}, 1280\ns_cselect_b32 s{S_XK}, 0, s{S_XK}")
    def wl(h):
        for it in range(7):
            a.I(f"s_add_u32 m0, s{S_MW}, {(h%6)*WSLOT + it*1024}")
            a.I("s_nop 0")
            a.I(f"buffer_load_dwordx4 v{VW+it}, {srd(SRD_W)}, s{S_WK} offen lds")
            vm.issue(("W", h))
        a.I(f"s_add_u32 s{S_WK}, s{S_WK}, s{S_W32}\ns_cmp_eq_u32 s{S_WK}, s{S_WEND}\ns_cselect_b32 s{S_WK}, 0, s{S_WK}")
    xl(0, 0); xl(0, 1)
    a.I(f"s_cmp_eq_u32 s{S_TYPE}, 1\ns_cselect_b32 s{SRD_W}, s{S_W1}, s{S_WQKV}\ns_cselect_b32 s{SRD_W+1}, s{S_W1+1}, s{S_WQKV+1}")
    a.I(f"s_mov_b32 s{SRD_W+2}, s{S_WEND}\ns_mov_b32 s{SRD_W+3}, 0x20000")
    a.I(f"s_lshl_b32 s{T}, s{S_I}, 4\ns_mul_i32 s{T}, s{T}, s{S_STR}\ns_add_u32 s{T}, s{T}, s{S_BASE}")
    a.I(f"v_mov_b32 v20, s{S_JA}\nv_mov_b32 v21, s{S_JB}\nv_mov_b32 v22, 0x40000000")
    for it in range(7):
        a.I(f"v_add_u32 v{t0}, {64*it}, v{V_LANE}\nv_mul_u32_u24 v{t1}, 2341, v{t0}\nv_lshrrev_b32 v{t1}, 16, v{t1}")
        a.I(f"v_mul_u32_u24 v{t2}, 28, v{t1}\nv_sub_u32 v{t0}, v{t0}, v{t2}")
        a.I(f"v_mul_lo_u32 v{t1}, v{t1}, s{S_STR}\nv_lshl_add_u32 v{t1}, v{t0}, 4, v{t1}")
        a.I(f"v_cmp_le_u32 vcc, 10, v{t0}\nv_add_u32 v{t1}, s{T}, v{t1}")
        a.I(f"v_cndmask_b32 v{t2}, 0, v20, vcc\nv_cmp_le_u32 vcc, 20, v{t0}\nv_add_u32 v{t1}, v{t1}, v{t2}")
        a.I(f"v_cndmask_b32 v{t2}, 0, v21, vcc\nv_cmp_le_u32 vcc, s{S_NP}, v{t0}\nv_add_u32 v{t1}, v{t1}, v{t2}")
        a.I(f"v_cndmask_b32 v{VW+it}, v{t1}, v22, vcc")
    def step(h):
        if h > 19: return
        if h == 0: wl(0)
        elif h & 1:
            wl(h)
            if (h + 1) // 2 < 10: xl((h + 1) // 2, 0)
        else:
            xl(h // 2, 1); wl(h)
    step(0)
    a.I("s_barrier")
    step(1)
    bg = bg_jobs(a, vm)
    for h in range(20):
        vm.wait(a, ("W", h))
        if h % 2 == 0: ST(a, f"P{h}w")
        a.I("s_barrier")
        step(h + 2)
        if h == 6: h2_setup(a)
        if h > S1A_POLL:
            for _ in range(BGRATE):
                if len(bg) > 30 - BGMAX: bg.pop(0)()
    ST(a, "ringend")
    h_rest(a, bg)
    ST(a, "breg")
    a.I("s_branch L_H2")
    return ST

def aux(a):
    ST = Stamp("A")
    vm = Q("vmcnt", 63)
    if CODEPF: vm.issue("code")
    L = V_LANE
    X, CW, U = 0, 20, 200
    t0, t1, t2, t3 = 60, 61, 62, 63
    BIAS, VXA, VWA, VO, VI, VTRA, CSO, CSOM, VPF = 64, 68, 69, 70, 71, 72, 73, 74, 75
    S_AL, S_ROW, S_L, S_P, S_CB, S_ST, S_WO_, S_UK, S_UC, S_LB = (T + i for i in range(2, 12))
    a.L("L_AUX")
    a.C("==== aux ====")
    ST(a, "rt0", True); ST(a, "start")
    a.I(f"s_sub_u32 s{S_AL}, s{S_WAVE}, 6")
    UN = T + 12
    a.I(f"s_lshl_b32 s{UN}, s{S_AL}, 8\ns_add_u32 s{UN}, s{UN}, s2")
    a.I(f"s_mul_hi_u32 s{S_UK}, s{UN}, {hx((1<<32)//5+1)}\ns_mul_i32 s{S_UC}, s{S_UK}, 5\ns_sub_u32 s{S_UC}, s{UN}, s{S_UC}")
    a.I(f"v_lshrrev_b32 v{t0}, 3, v{L}\nv_and_b32 v{t1}, 7, v{L}")
    SO = T + 13
    a.I(f"s_cmp_ge_u32 s{S_UK}, 48\ns_cbranch_scc1 L_p0_att")
    a.I(f"v_lshrrev_b32 v{t2}, 2, v{t0}\nv_and_b32 v{t3}, 3, v{t0}\nv_lshl_add_u32 v{VO}, v{t2}, 4, v{t3}")
    a.I(f"v_mov_b32 v{VI}, {4*1280}\ns_lshl_b32 s{SO}, s{S_UK}, 5\ns_branch L_p0_cgo")
    a.L("L_p0_att")
    a.I(f"s_sub_u32 s{T}, s{S_UK}, 48\ns_mul_i32 s{T+1}, s{T}, 205\ns_lshr_b32 s{T+1}, s{T+1}, 10")
    a.I(f"s_mul_i32 s{SO}, s{T+1}, 5\ns_sub_u32 s{T}, s{T}, s{SO}\ns_lshl_b32 s{T}, s{T}, 3\ns_mul_i32 s{SO}, s{T+1}, 160")
    a.I(f"v_add_u32 v{t2}, s{T}, v{t0}")
    a.I(f"v_mul_u32_u24 v{t3}, 205, v{t2}\nv_lshrrev_b32 v{t3}, 10, v{t3}")
    a.I(f"v_mul_u32_u24 v{VO}, 5, v{t3}\nv_sub_u32 v{t2}, v{t2}, v{VO}")
    a.I(f"v_cmp_eq_u32 vcc, 4, v{t2}\nv_mov_b32 v{VO}, 16\nv_mov_b32 v{VI}, 1280")
    a.I(f"v_cndmask_b32 v{t2}, v{t2}, v{VO}, vcc\nv_mov_b32 v{VO}, {4*1280}")
    a.I(f"v_cndmask_b32 v{VI}, v{VO}, v{VI}, vcc")
    a.I(f"v_mad_u32_u24 v{VO}, v{t3}, 20, v{t2}")
    a.L("L_p0_cgo")
    a.I(f"v_mul_u32_u24 v{VO}, 1280, v{VO}\nv_lshl_add_u32 v{VO}, v{t1}, 4, v{VO}")
    a.I(f"s_mul_i32 s{SO}, s{SO}, 1280\ns_lshl_b32 s{T}, s{S_UC}, 8\ns_add_u32 s{SO}, s{SO}, s{T}")
    a.I(f"s_lshl_b32 s{S_LB}, s{S_AL}, 13\ns_add_u32 s{S_LB}, s{S_LB}, {P0_LDS}")
    a.I(f"v_mov_b32 v{t2}, 0\nv_lshlrev_b32 v{t3}, 2, v{L}\nv_add_u32 v{t3}, {SYNC_LDS}, v{t3}\nds_write_b32 v{t3}, v{t2}")
    for i in range(4): a.I(f"v_mov_b32 v{76+i}, 0")
    base_srds(a)
    a.I(f"s_cmp_ge_u32 s{S_UK}, 48\ns_cselect_b32 s{SRD_W}, s{S_WO}, s{S_W2}\ns_cselect_b32 s{SRD_W+1}, s{S_WO+1}, s{S_W2+1}")
    a.I(f"s_mov_b32 s{SRD_W+2}, {1536*1280}\ns_cselect_b32 s{SRD_W+2}, {640*1280}, s{SRD_W+2}\ns_mov_b32 s{SRD_W+3}, 0x20000")
    a.I(f"s_cmp_ge_u32 s{UN}, 340\ns_cselect_b32 s{SRD_W+2}, 0, s{SRD_W+2}")
    bar = [-1]
    def B(upto):
        while bar[0] <= upto:
            a.I("s_barrier"); bar[0] += 1
    B(-1)
    a.I(f"s_add_u32 s{T+1}, s{SO}, 128")
    for it in range(4):
        for ln in range(2):
            a.I(f"s_add_u32 m0, s{S_LB}, {ln*4096 + it*1024}\ns_nop 0")
            a.I(f"buffer_load_dwordx4 v{VO}, {srd(SRD_W)}, s{T+1 if ln else SO} offen lds")
            vm.issue("rl")
        if it < 3: a.I(f"v_add_u32 v{VO}, v{VO}, v{VI}")
    a.I(f"s_sub_u32 s{T}, s{UN}, 340\ns_lshl_b32 s{T+1}, s{T}, 10\ns_add_u32 s{T+1}, s{T+1}, {KV_OFF}\ns_cmp_lt_u32 s{T}, {ZERO_KB}\ns_cselect_b32 s{T+1}, s{T+1}, {WS_SIZE}")
    a.I(f"buffer_store_dwordx4 {q4(76)}, v{V_L16}, {srd(SRD_WS)}, s{T+1} offen {SC}")
    vm.issue("rls")
    LAM, QD = T + 14, T + 15
    a.I(f"s_lshr_b32 s{LAM}, s2, 4\ns_bfe_u32 s{QD}, s2, 0x20001\ns_and_b32 s{S_P}, s2, 1\ns_lshl_b32 s{S_P}, s{S_P}, 1\ns_bfe_u32 s{T}, s2, 0x10003\ns_add_u32 s{S_P}, s{S_P}, s{T}")
    a.I(f"s_lshr_b32 s{T}, s{QD}, 1\ns_mul_i32 s{T}, s{T}, 5\ns_and_b32 s{T+1}, s{QD}, 1\ns_mul_i32 s{S_L}, s{T+1}, 3\ns_add_u32 s{S_L}, s{S_L}, s{T}")
    a.I(f"s_add_u32 s{S_L}, s{S_L}, s{LAM}\ns_add_u32 s{S_L}, s{S_L}, 10")
    a.I(f"s_add_u32 s{T+1}, s{T+1}, s{LAM}\ns_cmp_ge_u32 s{T+1}, 3\ns_cselect_b32 s{T}, 7, 0\ns_add_u32 s{S_L}, s{S_L}, s{T}")
    a.I(f"s_lshl_b32 s{T}, s{QD}, 1\ns_add_u32 s{T}, s{T}, s{LAM}\ns_sub_u32 s{T}, s{T}, 5\ns_cmp_ge_u32 s{LAM}, 5\ns_cselect_b32 s{S_L}, s{T}, s{S_L}")
    a.I(f"s_mul_i32 s{T}, s{QD}, 7\ns_add_u32 s{T}, s{T}, s{LAM}\ns_add_u32 s{T}, s{T}, 23\ns_cmp_ge_u32 s{LAM}, 7\ns_cselect_b32 s{S_L}, s{T}, s{S_L}")
    a.I(f"s_cmp_ge_u32 s{LAM}, 14\ns_cselect_b32 s{S_L}, 64, s{S_L}")
    a.I(f"s_sub_u32 s{T}, s{S_L}, 46\ns_cmp_ge_u32 s{S_L}, 54\ns_cselect_b32 s{T+1}, s{T}, s{S_L}")
    a.I(f"s_cmp_ge_u32 s{S_L}, 56\ns_cselect_b32 s{S_L}, 64, s{T+1}")
    a.I(f"s_cmp_ge_u32 s{S_L}, 30")
    a.I(f"s_cselect_b32 s{SRD_T}, s{S_W1}, s{S_WQKV}\ns_cselect_b32 s{SRD_T+1}, s{S_W1+1}, s{S_WQKV+1}")
    a.I(f"s_mov_b32 s{S_ST}, 3840\ns_cselect_b32 s{S_ST}, 3072, s{S_ST}\ns_cselect_b32 s{S_CB}, 30, 0\ns_cselect_b32 s{SRD_U+2}, 3072, 0")
    a.I(f"s_mul_i32 s{SRD_T+2}, s{S_ST}, 640\ns_mov_b32 s{SRD_T+3}, 0x20000")
    a.I(f"s_mov_b32 s{SRD_U}, s{S_B1}\ns_mov_b32 s{SRD_U+1}, s{S_B1+1}\ns_mov_b32 s{SRD_U+3}, 0x20000")
    a.I(f"s_cmp_ge_u32 s{S_L}, 54\ns_cselect_b32 s{SRD_T+2}, 0, s{SRD_T+2}")
    a.I(f"s_sub_u32 s{S_CB}, s{S_L}, s{S_CB}\ns_lshl_b32 s{S_CB}, s{S_CB}, 7\ns_lshl_b32 s{T}, s{S_AL}, 6\ns_add_u32 s{S_CB}, s{S_CB}, s{T}")
    a.I(f"s_mul_i32 s{S_WO_}, s{S_P}, 160\ns_mul_i32 s{S_WO_}, s{S_WO_}, s{S_ST}\ns_add_u32 s{S_WO_}, s{S_WO_}, s{S_CB}")
    a.I(f"v_lshrrev_b32 v{t1}, 2, v{L}\nv_mul_lo_u32 v{t1}, v{t1}, s{S_ST}\nv_and_b32 v{t2}, 3, v{L}\nv_lshl_add_u32 v{VWA}, v{t2}, 4, v{t1}")
    a.I(f"s_lshl_b32 s{S_ST}, s{S_ST}, 4")
    a.I(f"v_lshrrev_b32 v{t0}, 4, v{L}\nv_bfe_u32 v{t1}, v{L}, 2, 2\nv_and_b32 v{t2}, 3, v{L}")
    a.I(f"v_lshl_add_u32 v{t0}, v{t0}, 3, v{t1}\nv_lshlrev_b32 v{t0}, 7, v{t0}\nv_lshl_add_u32 v{t0}, v{t2}, 3, v{t0}\nv_add_u32 v{VTRA}, s{S_LB}, v{t0}")
    a.I(f"s_lshl_b32 s{S_UC}, s{S_UC}, 3\ns_mul_i32 s{S_UK}, s{S_UK}, 5")
    a.I(f"s_cmp_ge_u32 s{UN}, 340\ns_cselect_b32 s{S_UK}, 0x4000, s{S_UK}")
    a.I("s_waitcnt lgkmcnt(0)")
    def wloads(i0, i1):
        for it in range(i0, i1):
            a.I(f"buffer_load_dwordx4 {q4(CW+4*it)}, v{VWA}, {srd(SRD_T)}, s{S_WO_} offen")
            vm.issue("w")
            a.I(f"s_add_u32 s{S_WO_}, s{S_WO_}, s{S_ST}")
    def relayout(ln):
        FR = U + 16 * ln
        for i in range(4):
            a.I(f"ds_read_b64_tr_b16 {pk(FR+4*i)}, v{VTRA} offset:{ln*4096+32*i}\nds_read_b64_tr_b16 {pk(FR+4*i+2)}, v{VTRA} offset:{ln*4096+32*i+512}")
        for i in range(4):
            a.I(f"s_mul_i32 s{T}, s{S_UC}, 205\ns_lshr_b32 s{T}, s{T}, 10\ns_mul_i32 s{T}, s{T}, 335\ns_add_u32 s{T}, s{T}, s{S_UC}\ns_add_u32 s{T}, s{T}, s{S_UK}")
            a.I(f"s_lshl_b32 s{T}, s{T}, 10\ns_add_u32 s{T}, s{T}, {B2_OFF}\ns_add_u32 s{S_UC}, s{S_UC}, 1")
            a.I(f"s_waitcnt lgkmcnt({6-2*i})")
            a.I(f"buffer_store_dwordx4 {q4(FR+4*i)}, v{V_L16}, {srd(SRD_WS)}, s{T} offen {SC}")
            vm.issue("rls")
    mark = [0]
    bg = bg_jobs(a, vm)
    pfs = []
    PV = 240
    def cost():
        c = 0
        for k, t in a.items[mark[0]:]:
            if k == "i": c += 8 if t.startswith("buffer_") else (0.5 if t.startswith("s_") else 1)
        return c
    def nxt():
        if bar[0] == S1A_POLL + 1:
            ST(a, "prepolla")
            poll_check(a, vm, SRD_W, PV, PV + 1, PV + 2, 4, "pa", 8)
            ST(a, "S1a")
        B(bar[0]); mark[0] = len(a.items)
        if bar[0] == S1A_POLL: poll_issue(a, vm, SRD_W, PV, PV + 2, 4, "pa")
        if bar[0] - 1 > S1A_POLL:
            for _ in range(BGRATE):
                if len(bg) > 30 - BGMAX: bg.pop(0)()
            if pfs and (bar[0] - S1A_POLL) % PFGAP == 0: pfs.pop(0)()
    def cut():
        if cost() >= BUDGET: nxt()
    def until(k):
        while bar[0] <= k: nxt()
    a.I(f"s_and_b32 s{T}, s{S_RB2}, 3\ns_mul_i32 s{T}, s{T}, {25*1024}\ns_mul_i32 s{T+1}, s{S_AL}, 12800\ns_add_u32 s{T}, s{T}, s{T+1}\ns_add_u32 s{T}, s{T}, {240*1024}")
    a.I(f"v_lshlrev_b32 v{PV+4}, 7, v{L}\nv_add_u32 v{PV+4}, s{T}, v{PV+4}\nv_add_u32 v{PV+5}, 6400, v{PV+4}")
    a.I(f"s_lshl_b32 s{T}, s{S_AL}, 30\ns_lshl_b32 s{T+1}, s{S_AL}, 6\ns_sub_u32 s{T+1}, 64, s{T+1}")
    a.I(f"v_lshlrev_b32 v{PV}, 6, v{L}\nv_add_u32 v{PV}, s{T}, v{PV}\nv_mov_b32 v{PV+1}, s{T+1}")
    def pf(i):
        def f():
            a.I(f"s_mov_b32 exec_hi, 0x3ffff\nbuffer_load_dword v{PV+3}, v{PV+4+i}, {srd(SRD_WS)}, s{S_BB} offen {SC}\ns_mov_b32 exec_hi, -1")
            vm.issue("bg")
        return f
    if BPF: pfs += [pf(0), pf(1)]
    if APRIO: a.I(f"s_setprio {APRIO}")
    until(0)
    ST(a, "P0")
    vm.wait(a, "rl")
    relayout(0)
    relayout(1)
    nxt()
    wloads(0, 10)
    a.I(f"v_lshlrev_b32 v{t3}, 1, v{L}")
    a.I(f"buffer_load_ushort v{BIAS}, v{t3}, {srd(SRD_U)}, s{S_CB} offen")
    vm.issue("w")
    nxt()
    mk_srd(a, SRD_W, S_DBG, 256)
    h2_setup(a)
    vm.wait(a, "rls")
    ST(a, "rlsdone")
    nxt()
    a.I(f"s_and_b32 s{T}, s2, 3\ns_lshl_b32 s{T}, s{T}, 6\ns_lshl_b32 s{T+1}, s{S_AL}, 8\ns_add_u32 s{T}, s{T}, s{T+1}")
    a.I(f"v_mov_b32 v{t0}, s{T}\nv_mov_b32 v{t1}, 1\ns_mov_b64 exec, 1")
    a.I(f"buffer_atomic_add v{t1}, v{t0}, {srd(SRD_W)}, 0 offen\ns_mov_b64 exec, -1")
    vm.issue("sig")
    vm.wait(a, "w")
    AC, m0_ = 0, 76
    E = 8
    for it in range(10):
        dst = AC if it == 0 else E
        for i in range(4):
            a.I(f"v_lshlrev_b32 v{dst+2*i}, 16, v{CW+4*it+i}\nv_and_b32 v{dst+2*i+1}, s{S_M16}, v{CW+4*it+i}")
        if it:
            for i in range(8): a.I(f"v_add_f32 v{AC+i}, v{AC+i}, v{E+i}")
        cut()
    for i in range(4): a.I(f"v_permlane32_swap_b32 v{AC+i}, v{AC+i+4}")
    for i in range(4): a.I(f"v_add_f32 v{AC+i}, v{AC+i}, v{AC+i+4}")
    for i in range(2): a.I(f"v_permlane16_swap_b32 v{AC+i}, v{AC+i+2}")
    for i in range(2): a.I(f"v_add_f32 v{AC+i}, v{AC+i}, v{AC+i+2}")
    for m in ("row_ror:8", "row_ror:4"):
        for i in range(2): a.I(f"v_add_f32_dpp v{AC+i}, v{AC+i}, v{AC+i} {m} row_mask:0xf bank_mask:0xf")
    cut()
    a.I(f"v_bfe_u32 v{t0}, v{L}, 2, 1\nv_cmp_eq_u32 vcc, 1, v{t0}\nv_and_b32 v{t1}, 3, v{L}\nv_lshl_add_u32 v{t0}, v{t1}, 3, v{t0}")
    a.I(f"v_cndmask_b32 v{AC}, v{AC}, v{AC+1}, vcc\nv_lshrrev_b32 v{t1}, 4, v{L}\nv_lshl_add_u32 v{t0}, v{t1}, 1, v{t0}\nv_lshlrev_b32 v{t0}, 5, v{t0}")
    a.I(f"v_cvt_pk_bf16_f32 v{t2}, v{AC}, v{AC}\nv_and_b32 v{t2}, s{S_M16}, v{t2}\nv_sub_f32 v{t2}, v{AC}, v{t2}\nv_cvt_pk_bf16_f32 v{t2}, v{AC}, v{t2}")
    a.I(f"s_lshl_b32 s{T}, s{S_L}, 11\ns_lshl_b32 s{T+1}, s{S_AL}, 10\ns_add_u32 s{T}, s{T}, s{T+1}\ns_add_u32 s{T}, s{T}, {CS_OFF}")
    a.I(f"s_cmp_ge_u32 s{S_L}, 54\ns_cselect_b32 s{T}, {WS_SIZE}, s{T}")
    a.I(f"s_lshl_b32 s{T+1}, s{S_P}, 2\ns_add_u32 s{T+1}, s{T+1}, s{T}")
    a.I("s_mov_b32 exec_lo, 0x00ff00ff\ns_mov_b32 exec_hi, 0x00ff00ff")
    a.I(f"buffer_store_dword v{t2}, v{t0}, {srd(SRD_WS)}, s{T+1} offen {SC}")
    vm.issue("st")
    a.I(f"s_mov_b64 exec, -1\ns_cmp_lg_u32 s{S_P}, 0\ns_cselect_b32 s{T}, {WS_SIZE}, s{T}")
    a.I(f"v_mov_b32 v{BIAS+1}, 0\nv_mov_b32 v{BIAS+2}, 0\nv_mov_b32 v{BIAS+3}, 0\nv_lshlrev_b32 v{t1}, 5, v{L}\ns_mov_b32 exec_hi, 0")
    a.I(f"buffer_store_dwordx4 {q4(BIAS)}, v{t1}, {srd(SRD_WS)}, s{T} offen offset:16 {SC}")
    vm.issue("st")
    a.I("s_mov_b64 exec, -1")
    ST(a, "p0done")
    print("aux: phase-0 compute ends in interval", bar[0] - 1)
    nxt()
    a.I(f"v_and_b32 v{t0}, 7, v{L}\nv_bfe_u32 v{t1}, v{L}, 4, 1\nv_lshl_add_u32 v{t0}, v{t1}, 3, v{t0}")
    a.I(f"v_bfe_u32 v{t1}, v{L}, 3, 1\nv_lshl_add_u32 v{t0}, v{t1}, 4, v{t0}\nv_lshlrev_b32 v{t0}, 5, v{t0}")
    a.I(f"v_lshrrev_b32 v{t2}, 5, v{L}\nv_lshl_add_u32 v{CSO}, v{t2}, 4, v{t0}")
    a.I(f"s_lshl_b32 s{T}, s{S_JA}, 4\nv_mul_lo_u32 v{t1}, v{t1}, s{T}\nv_add_u32 v{CSOM}, v{CSO}, v{t1}")
    until(S1A_POLL)
    vm.wait(a, "st")
    assert bar[0] >= M_DRAIN, bar[0]
    nxt()
    print("aux: S1b signalled in interval", bar[0] - 1)
    a.I(f"s_and_b32 s{T}, s2, 7\ns_lshl_b32 s{T}, s{T}, 8\ns_add_u32 s{T}, s{T}, {CNT_OFF+24576}\ns_cmp_lg_u32 s{S_AL}, 0\ns_cselect_b32 s{T}, {WS_SIZE}, s{T}")
    a.I(f"v_mov_b32 v{t0}, s{T}\nv_mov_b32 v{t1}, 1\ns_mov_b64 exec, 1")
    a.I(f"buffer_atomic_add v{t1}, v{t0}, {srd(SRD_WS)}, 0 offen\ns_mov_b64 exec, -1")
    vm.issue("sig")
    a.I(f"s_lshl_b32 s{T}, s{S_AL}, 30\ns_add_u32 s{T}, s{T}, {CNT_OFF+24576}\ns_lshl_b32 s{T+1}, s{S_AL}, 5\ns_sub_u32 s{T+1}, 32, s{T+1}")
    a.I(f"v_lshlrev_b32 v{PV}, 8, v{L}\nv_add_u32 v{PV}, s{T}, v{PV}\nv_mov_b32 v{PV+1}, s{T+1}")
    until(S1B_POLL - 1)
    poll_issue(a, vm, SRD_WS, PV, PV + 2, 8, "pb")
    nxt()
    ST(a, "prepollb")
    poll_check(a, vm, SRD_WS, PV, PV + 1, PV + 2, 8, "pb", 8)
    ST(a, "S1b")
    nxt()
    a.I(f"s_cmp_lg_u32 s{S_AL}, 0\ns_cbranch_scc1 L_ext_b")
    def cs(t, r):
        a.I(f"s_add_u32 s{T}, s{S_BASE}, {64*t}")
        if t >= 3: a.I(f"s_add_u32 s{T}, s{T}, s{S_JA}")
        if t >= 5: a.I(f"s_add_u32 s{T}, s{T}, s{S_JB}")
        a.I(f"s_lshl_b32 s{T}, s{T}, 4\ns_add_u32 s{T}, s{T}, s{S_CSB}")
        a.I(f"buffer_load_dwordx4 {q4(r)}, v{CSOM if t == 2 else CSO}, {srd(SRD_WS)}, s{T} offen {SC}")
    for t in range(4): cs(t, X + 4 * t)
    a.I("s_branch L_ext_c")
    a.L("L_ext_b")
    for t in range(4, 7): cs(t, X + 4 * (t - 4))
    a.I(f"s_lshl_b32 s{T}, s{S_RB}, 10\ns_add_u32 s{T}, s{T}, {STAT_OFF}")
    a.I(f"buffer_load_dwordx4 {q4(X+12)}, v{V_L16}, {srd(SRD_WS)}, s{T} offen {SC}")
    a.L("L_ext_c")
    vm.issue("ext")
    a.I(f"s_lshl_b32 s{T}, s{S_AL}, 12\ns_add_u32 s{T}, s{T}, {EXT_LDS}\nv_add_u32 v{t0}, s{T}, v{V_L16}")
    until(18)
    vm.wait(a, "ext")
    for i in range(4): a.I(f"ds_write_b128 v{t0}, {q4(X+4*i)} offset:{1024*i}")
    a.I("s_waitcnt lgkmcnt(0)")
    until(19)
    print("aux: background jobs left after the ring:", len(bg))
    if APRIO: a.I("s_setprio 0")
    h_rest(a, bg)
    ST(a, "ringend")
    return ST
BPF = 0
BR, AR = 80, 200

def h2_setup(a):
    g2_common(a)
    if ROT2:
        if G2MAP == 0:
            a.I(f"s_and_b32 s{T}, s{S_RB2}, 3\ns_mul_i32 s{T}, s{T}, 3\ns_mul_i32 s{T+1}, s{S_CG2}, 3\ns_lshr_b32 s{T+1}, s{T+1}, 1\ns_add_u32 s{T}, s{T}, s{T+1}")
        elif ROT2 == 2:
            a.I(f"s_and_b32 s{T}, s{S_CG2}, 1\ns_mul_i32 s{T}, s{T}, 6\ns_and_b32 s{T+1}, s{S_RB2}, 7\ns_mul_i32 s{T+1}, s{T+1}, 3\ns_lshr_b32 s{T+1}, s{T+1}, 1\ns_add_u32 s{T}, s{T}, s{T+1}")
        else:
            a.I(f"s_and_b32 s{T}, s{S_CG2}, 3\ns_mul_i32 s{T}, s{T}, 3\ns_and_b32 s{T+1}, s{S_RB2}, 7\ns_mul_i32 s{T+1}, s{T+1}, 3\ns_lshr_b32 s{T+1}, s{T+1}, 1\ns_add_u32 s{T}, s{T}, s{T+1}")
        a.I(f"s_cmp_ge_u32 s{T}, 12\ns_cselect_b32 s{T+1}, 12, 0\ns_sub_u32 s{T}, s{T}, s{T+1}")
    else: a.I(f"s_mov_b32 s{T}, 0")
    a.I(f"s_mul_i32 s{T+1}, s{S_I}, 12")
    for j in range(12):
        a.I(f"s_add_u32 s{S_KK+j}, s{T}, s{T+1}\ns_lshl_b32 s{S_KK+j}, s{S_KK+j}, 10")
        if j < 11: a.I(f"s_add_u32 s{T}, s{T}, 1\ns_cmp_eq_u32 s{T}, 12\ns_cselect_b32 s{T}, 0, s{T}")
    a.I(f"s_mul_i32 s{S_BB}, s{S_CG2}, {68*5*1024}\ns_add_u32 s{S_BB}, s{S_BB}, {B2_OFF}")

def bg_jobs(a, vm):
    def ld(j, ct):
        def f():
            a.I(f"s_mul_i32 s{T}, s{S_KK+j}, 5\ns_add_u32 s{T}, s{T}, s{S_BB}")
            if ct == 4: a.I(f"s_add_u32 s{T}, s{T}, 4096")
            a.I(f"buffer_load_dwordx4 {q4(BR+20*j+4*ct)}, v{V_L16}, {srd(SRD_WS)}, s{T} offen offset:{(ct&3)*1024} {SC}")
            vm.issue("bg")
        return f
    return [ld(j, ct) for j in range(6) for ct in range(5)]

def h_rest(a, bg):
    n = 0
    while bg:
        if n == N1: lds_wait_ge(a, 7, 4, 248)
        bg.pop(0)(); n += 1
        if THR: a.I(f"s_waitcnt vmcnt({THR})")
    if n == N1: lds_wait_ge(a, 7, 4, 248)

def bload(a, vm, j, regs, tag, thr):
    a.I(f"s_mul_i32 s{T}, s{S_KK+j}, 5\ns_add_u32 s{T}, s{T}, s{S_BB}\ns_add_u32 s{T+1}, s{T}, 4096")
    for ct in range(5):
        a.I(f"buffer_load_dwordx4 {q4(regs[ct])}, v{V_L16}, {srd(SRD_WS)}, s{T + (ct >> 2)} offen offset:{(ct&3)*1024} {SC}")
        if vm: vm.issue(tag)
        if thr: a.I(f"s_waitcnt vmcnt({thr})")


def g2_common(a):
    for sg in range(4):
        a.I(f"s_add_u32 s{T}, s{S_I}, {sg}")
        if ROT2: a.I(f"s_add_u32 s{T}, s{T}, s{S_CG2}")
        a.I(f"s_and_b32 s{T}, s{T}, 3\ns_lshl_b32 s{T+1}, s{S_RB2}, 2\ns_add_u32 s{T}, s{T}, s{T+1}")
        a.I(f"s_mul_i32 s{S_A+sg}, s{T}, {68*1024}")
        if sg == 0: a.I(f"s_mul_i32 s{S_OUTS}, s{T}, {16*1280}\ns_mul_i32 s{S_B2S}, s{S_CG2}, 160\ns_add_u32 s{S_OUTS}, s{S_OUTS}, s{S_B2S}")
S_OUTS, S_B2S, S_BB = 98, 99, 100

def hzone(a, sidx, dst):
    a.I(f"s_sub_u32 s{dst}, s{sidx}, 1\ns_mul_i32 s{dst}, s{dst}, {HZS}\ns_add_u32 s{dst}, s{dst}, {HZ1}\ns_cmp_eq_u32 s{sidx}, 0\ns_cselect_b32 s{dst}, 0, s{dst}")

def out_addr(a, VO, VB, t0):
    a.I(f"v_and_b32 v{t0}, 15, v{V_LANE}\nv_mul_u32_u24 v{t0}, 1280, v{t0}\nv_lshrrev_b32 v{VB}, 4, v{V_LANE}\nv_lshlrev_b32 v{VB}, 3, v{VB}")
    a.I(f"v_add_u32 v{VO}, v{t0}, v{VB}")

def res_issue(a, vm, cts, RES, VO, VB):
    mk_srd(a, SRD_T, S_B2, 1280)
    mk_srd(a, SRD_U, S_OUT, 2048 * 1280)
    for k, ct in enumerate(cts):
        a.I(f"buffer_load_dwordx2 {pk(RES+4*k)}, v{VO}, {srd(SRD_X)}, s{S_OUTS} offen offset:{ct*32}")
        a.I(f"buffer_load_dwordx2 {pk(RES+4*k+2)}, v{VB}, {srd(SRD_T)}, s{S_B2S} offen offset:{ct*32}")
        vm.issue("R"); vm.issue("R")

def res_unpack(cts, RES, OUT):
    o = []
    for k, ct in enumerate(cts):
        for src, d in ((RES + 4 * k, OUT + 8 * k), (RES + 4 * k + 2, OUT + 8 * k + 4)):
            for i in range(2):
                o += [f"v_lshlrev_b32 v{d+2*i}, 16, v{src+i}", f"v_and_b32 v{d+2*i+1}, s{S_M16}, v{src+i}"]
        for i in range(4): o.append(f"v_add_f32 v{OUT+8*k+i}, v{OUT+8*k+i}, v{OUT+8*k+4+i}")
    return o

def red_addrs(a, VM, VH, VX):
    for sg in range(4):
        a.I(f"s_sub_u32 s{T+2}, s{S_I}, {sg}\ns_and_b32 s{T+2}, s{T+2}, 3")
        if sg:
            a.I(f"s_mul_i32 s{T}, s{T+2}, {MZS}\ns_add_u32 s{T}, s{T}, {MZ}\nv_add_u32 v{VM+sg}, s{T}, v{V_L16}")
        hzone(a, T + 2, T)
        a.I(f"v_add_u32 v{VH+sg}, s{T}, v{V_L16}")
    a.I(f"s_lshl_b32 s{T}, s{S_I}, 11\ns_add_u32 s{T}, s{T}, {EXT_LDS}\nv_add_u32 v{VX}, s{T}, v{V_L16}")

def final_sum(a, role, cts, OWN, BUF, VM, VH, VX, VO):
    lg = Q("lgkmcnt", 15)
    srcs = []
    for sg in range(4):
        if sg: srcs.append(lambda ct, sg=sg: (VM + sg, ((sg - 1) * 5 + ct) * 1024))
        elif role == 1: srcs.append(lambda ct: (VX, (ct - 3) * 1024))
        if sg or role == 0: srcs.append(lambda ct, sg=sg: (VH + sg, (sg * 5 + ct) * 1024))
    n = len(cts)
    def rd(j):
        for k, ct in enumerate(cts):
            v, off = srcs[j](ct)
            a.I(f"ds_read_b128 {q4(BUF+(j*n+k)*4)}, v{v} offset:{off}")
            lg.issue(j)
    ahead = 15 // n
    for j in range(min(ahead, 7)): rd(j)
    for j in range(7):
        lg.wait(a, j)
        if j + ahead < 7: rd(j + ahead)
        for k, ct in enumerate(cts):
            for i in (0, 2): a.I(f"v_pk_add_f32 {pk(OWN+4*ct+i)}, {pk(OWN+4*ct+i)}, {pk(BUF+(j*n+k)*4+i)}")
    for ct in cts:
        d = OWN + 4 * ct
        a.I(f"v_cvt_pk_bf16_f32 v{d}, v{d}, v{d+1}\nv_cvt_pk_bf16_f32 v{d+1}, v{d+2}, v{d+3}")
        a.I(f"buffer_store_dwordx2 {pk(d)}, v{VO}, {srd(SRD_U)}, s{S_OUTS} offen offset:{ct*32}")

def h2(a, STs):
    class Both:
        def __call__(self, a_, name, real=False):
            if not STAMPS: return
            n = max(s.n for s in STs)
            for s in STs:
                while s.n < n: s.names.append("-"); s.n += 1
            a_.I(f"{'s_memrealtime' if real else 's_memtime'} s[92:93]\ns_waitcnt lgkmcnt(0)\nv_writelane_b32 v{V_STAMP}, s92, {n}")
            for s in STs: s.names.append(name); s.n += 1
    ST = Both()
    vm = Q("vmcnt", 63); lg = Q("lgkmcnt", 15)
    ACC = 0
    VT = 248
    a.L("L_H2")
    a.C("==== gemm2, FFN part (waves 4..7) ====")
    for j in range(6, 10): bload(a, vm, j, [20 * (j - 6) + 4 * ct for ct in range(5)], ("bl", j), THR)
    ST(a, "bissued")
    lds_wait_ge(a, 0, 4, VT)
    hzone(a, S_I, T)
    VBL = VT + 4
    a.I(f"v_add_u32 v{VBL}, s{T}, v{V_L16}")
    for j in range(6, 10):
        vm.wait(a, ("bl", j))
        for ct in range(5):
            a.I(f"ds_write_b128 v{VBL}, {q4(20*(j-6)+4*ct)} offset:{(5*(j-6)+ct)*1024}")
        a.I("s_waitcnt lgkmcnt(5)")
    a.I("s_waitcnt lgkmcnt(0)")
    ST(a, "bdone")
    if HPRIO: a.I(f"s_setprio {HPRIO}")
    a.I(f"s_cmp_lg_u32 s{S_WAVE}, 7\ns_cbranch_scc1 L_h_nopoll\ns_setprio 3")
    a.I(f"s_lshr_b32 s{T}, s{S_RB2}, 1\ns_lshl_b32 s{T}, s{T}, 8\ns_add_u32 s{T}, s{T}, {CNT_OFF}\nv_mov_b32 v{VT}, s{T}\nv_mov_b32 v{VT+1}, 7")
    poll(a, SRD_WS, VT, VT + 1, VT + 2, 1, PSLEEP)
    lds_add(a, 3, VT)
    a.L("L_h_nopoll")
    lds_wait_ge(a, 3, 1, VT)
    a.I(f"s_setprio {HPRIO}")
    ST(a, "S2F")
    def aload(j):
        for sg in range(4):
            a.I(f"s_add_u32 s{T}, s{S_A+sg}, s{S_KK+j}")
            a.I(f"buffer_load_dwordx4 {q4(AR + (j%3)*16 + 4*sg)}, v{V_L16}, {srd(SRD_WS)}, s{T} offen {SC}")
            vm.issue(("A", j))
    def bslot(j): return BR + 20 * (j if j < 6 else (j - 10 if j >= 10 else j - 4))
    for j in range(3): aload(j)
    for j in range(12):
        if 6 <= j + 1 <= 9:
            for ct in range(5):
                a.I(f"ds_read_b128 {q4(bslot(j+1)+4*ct)}, v{VBL} offset:{(5*(j+1-6)+ct)*1024}")
                lg.issue(j + 1)
        vm.wait(a, ("A", j))
        lg.wait(a, j)
        if j in (0, 3, 6, 9): ST(a, f"A{j}")
        fill = []
        if j == 11:
            vm.wait(a, "R")
            fill = res_unpack([3, 4], RES, RU)
        sgs = (1, 2, 3, 0) if j == 11 else range(4)
        wq = []
        for k, sg in enumerate(sgs):
            for ct in range(5):
                d = ACC + (sg * 5 + ct) * 4
                cin = "0" if j == 0 else q4(d)
                a.I(f"v_mfma_f32_16x16x32_bf16 {q4(d)}, {q4(bslot(j)+4*ct)}, {q4(AR+(j%3)*16+4*sg)}, {cin}")
                if j == 11:
                    if not (sg == 0 and ct >= 3): wq.append(f"ds_write_b128 v{VBL}, {q4(d)} offset:{(sg*5+ct)*1024}")
                    if fill: a.I(fill.pop(0))
                    if k * 5 + ct >= 6: a.I(wq.pop(0))
        if j + 3 < 12: aload(j + 3)
        if j in (3, 4): bload(a, vm, j + 7, [bslot(j + 7) + 4 * ct for ct in range(5)], "late", None)
        if j == 9:
            RES, RU = BR + 40, BR + 60
            VM_, VH_, VX_, VO_, VB_ = AR, AR + 4, AR + 8, AR + 9, AR + 10
            out_addr(a, VO_, VB_, VT)
            res_issue(a, vm, [3, 4], RES, VO_, VB_)
            red_addrs(a, VM_, VH_, VX_)
    a.I("s_waitcnt lgkmcnt(8)")
    for x in wq + fill: a.I(x)
    for k, ct in enumerate([3, 4]):
        for i in (0, 2): a.I(f"v_pk_add_f32 {pk(ACC+4*ct+i)}, {pk(ACC+4*ct+i)}, {pk(RU+8*k+i)}")
    ST(a, "ffnend")
    a.I("s_waitcnt lgkmcnt(0)\ns_barrier")
    ST(a, "bar")
    final_sum(a, 1, [3, 4], ACC, BR, VM_, VH_, VX_, VO_)
    if STAMPS: a.I("s_waitcnt vmcnt(0)")
    ST(a, "end")
    ST(a, "rt1", True)
    stamp_dump(a, VT)
    a.I("s_endpgm")

K0C = -2.0 * math.sqrt(2.0 / math.pi) * math.log2(math.e)
K1C = K0C * 0.044715
ACC1, AF, BF = 0, 112, 120
V_E = 144
V_R, V_R2, V_SD, V_C0, V_C1, V_EPS = 160, 162, 164, 166, 168, 170
V_TRA, V_VA, V_HQO, V_KVW = 240, 242, 246, 247

def u_gelu(r0, Tm):
    P = range(0, 8, 2)
    pre = [f"v_pk_mul_f32 {pk(Tm+i)}, {pk(r0+i)}, {pk(r0+i)}" for i in P]
    pre += [f"v_pk_fma_f32 {pk(Tm+i)}, {pk(Tm+i)}, {pk(V_C1)}, {pk(V_C0)} op_sel_hi:[1,0,0]" for i in P]
    pre += [f"v_pk_mul_f32 {pk(Tm+i)}, {pk(Tm+i)}, {pk(r0+i)}" for i in P]
    mid = [f"v_exp_f32_e64 v{Tm+i}, v{Tm+i}" for i in range(8)]
    mid += [f"v_pk_fma_f32 {pk(Tm+i)}, {pk(Tm+i)}, {pk(V_SD)}, {pk(V_SD)} op_sel_hi:[1,0,0]" for i in P]
    mid += [f"v_rcp_f32_e64 v{Tm+i}, v{Tm+i}" for i in range(8)]
    post = [f"v_pk_mul_f32 {pk(Tm+i)}, {pk(Tm+i)}, {pk(r0+i)}" for i in P]
    post += [f"v_cvt_pk_bf16_f32 v{r0+i//2}, v{Tm+i}, v{Tm+i+1}" for i in P]
    return pre, mid, post
def u_phi(r0, Tm, n=8):
    P = range(0, n, 2); R = range(n, 8, 2)
    pre = [f"v_pk_mul_f32 {pk(Tm+i)}, {pk(r0+i)}, {pk(V_R2)} op_sel_hi:[1,0]" for i in P]
    pre += [f"v_pk_fma_f32 {pk(r0+i)}, {pk(r0+i)}, {pk(V_R)}, {pk(V_EPS)} op_sel_hi:[1,0,0]" for i in P]
    pre += [f"v_pk_mul_f32 {pk(Tm+i)}, {pk(r0+i)}, {pk(V_R)} op_sel_hi:[1,0]" for i in R]
    pre += [f"v_max_f32_e64 v{r0+i}, v{r0+i}, v{V_EPS}" for i in range(n)]
    mid = [f"v_exp_f32_e64 v{Tm+i}, v{Tm+i} clamp" for i in range(n)]
    post = [f"v_pk_add_f32 {pk(Tm+i)}, {pk(Tm+i)}, {pk(r0+i)}" for i in P]
    post += [f"v_cvt_pk_bf16_f32 v{r0+i//2}, v{Tm+i}, v{Tm+i+1}" for i in range(0, 8, 2)]
    return pre, mid, post
S_HQ = T + 10
def hq_store(t, u):
    r0 = ACC1 + 16 * t + 8 * u
    o = [f"s_add_u32 s{T+1}, s{S_HQ}, {0x10000 + t*1024}"] if u == 0 else []
    return o + [f"buffer_store_dwordx4 {q4(r0)}, v{V_HQO}, {srd(SRD_WS)}, s{T+1} offen offset:{u*512} {SC}"]
def ep_pipe(a, units, dly=0):
    n = len(units)
    st = [units[i][0](V_E + 8 * (i & 1)) for i in range(n)]
    a.raw(".p2align 3")
    for x in st[0][0]: a.I(x)
    pend = []
    for i in range(n + 1):
        mid = st[i][1] if i < n else []
        plain = []
        if i > 0:
            plain += st[i - 1][2]
            pend += units[i - 1][1]
            if i - 1 >= dly or i == n:
                k = len(pend) if (i == n or len(pend) <= 4) else 4
                if pend[k - 1].startswith("s_add"): k += 1
                plain += pend[:k]; pend = pend[k:]
        if i + 1 < n: plain += st[i + 1][0]
        tot = len(mid) + len(plain); mi = pi = 0
        while mi < len(mid) or pi < len(plain):
            if pi >= len(plain) or (mi < len(mid) and mi * len(plain) <= pi * len(mid)):
                a.I(mid[mi]); mi += 1
            else:
                a.I(plain[pi]); pi += 1

def mwave(a):
    ST = Stamp("M")
    L = V_LANE
    t0, t1, t2, t3 = V_E, V_E + 1, V_E + 2, V_E + 3
    a.L("L_M")
    a.C("==== M waves: phase 0 (re-layout of w2 / wo, zeroing) ====")
    ST(a, "rt0", True); ST(a, "start")
    if DIAG: a.I("s_memrealtime s[76:77]")
    ROW = T + 2
    X, U = 0, 12
    a.I(f"s_and_b32 s{T}, s2, 1\ns_lshl_b32 s{ROW}, s{T}, 10\ns_and_b32 s{T}, s2, 6\ns_lshl_b32 s{T}, s{T}, 7\ns_add_u32 s{ROW}, s{ROW}, s{T}")
    a.I(f"s_and_b32 s{T}, s2, 0xf8\ns_add_u32 s{ROW}, s{ROW}, s{T}\ns_lshl_b32 s{T}, s{S_WAVE}, 1\ns_add_u32 s{ROW}, s{ROW}, s{T}")
    a.I(f"v_lshrrev_b32 v{t0}, 5, v{L}\nv_and_b32 v{t1}, 31, v{L}\nv_mul_u32_u24 v{t0}, 1280, v{t0}")
    a.I(f"v_lshl_add_u32 v{t2}, v{t1}, 4, v{t0}\nv_lshl_add_u32 v{t3}, v{t1}, 3, v{t0}\ns_mul_i32 s{T}, s{ROW}, 1280")
    base_srds(a)
    a.I(f"buffer_load_dwordx4 {q4(X)}, v{t2}, {srd(SRD_X)}, s{T} offen")
    a.I(f"buffer_load_dwordx4 {q4(X+4)}, v{t2}, {srd(SRD_X)}, s{T} offen offset:512")
    a.I(f"buffer_load_dwordx2 {pk(X+8)}, v{t3}, {srd(SRD_X)}, s{T} offen offset:1024")
    a.C("==== gemm1 main loop ====")
    a.I(f"v_lshrrev_b32 v{t0}, 5, v{L}\nv_bfe_u32 v{t1}, v{L}, 2, 2\nv_lshl_add_u32 v{t0}, v{t0}, 3, v{t1}\nv_mul_u32_u24 v{t0}, 448, v{t0}")
    a.I(f"v_and_b32 v{t1}, 1, v{L}\nv_lshl_add_u32 v{t0}, v{t1}, 3, v{t0}\nv_bfe_u32 v{t1}, v{L}, 1, 1\nv_lshl_add_u32 v{t0}, v{t1}, 5, v{t0}")
    a.I(f"v_bfe_u32 v{t1}, v{L}, 4, 1\nv_lshl_add_u32 v{V_TRA}, v{t1}, 4, v{t0}\nv_add_u32 v{V_TRA+1}, {3*WSLOT}, v{V_TRA}")
    a.I(f"v_and_b32 v{t0}, 31, v{L}\nv_bfe_u32 v{t1}, v{L}, 1, 3\nv_lshrrev_b32 v{t2}, 5, v{L}\nv_xor_b32 v{t1}, v{t1}, v{t2}")
    a.I(f"v_lshlrev_b32 v{t0}, 7, v{t0}\nv_lshl_add_u32 v{t0}, v{t1}, 4, v{t0}\ns_lshl_b32 s{T}, s{S_WAVE}, 12\ns_add_u32 s{T}, s{T}, {XRING}")
    a.I(f"v_add_u32 v{V_VA}, s{T}, v{t0}")
    for ks in range(1, 4): a.I(f"v_xor_b32 v{V_VA+ks}, {32*ks}, v{V_VA}")
    a.I("s_barrier")
    def red32(v, tmp):
        for m in ("quad_perm:[1,0,3,2]", "quad_perm:[2,3,0,1]", "row_half_mirror", "row_mirror"):
            a.I(f"v_add_f32_dpp v{v}, v{v}, v{v} {m} row_mask:0xf bank_mask:0xf")
        a.I(f"v_mov_b32 v{tmp}, v{v}\nv_permlane16_swap_b32 v{v}, v{tmp}\nv_add_f32 v{v}, v{v}, v{tmp}")
    a.I("s_waitcnt vmcnt(0)")
    ST(a, "xin")
    for i in range(10):
        a.I(f"v_lshlrev_b32 v{U+2*i}, 16, v{X+i}\nv_and_b32 v{U+2*i+1}, s{S_M16}, v{X+i}")
    a.I(f"v_pk_add_f32 {pk(t0)}, {pk(U)}, {pk(U+2)}\nv_pk_add_f32 {pk(t2)}, {pk(U+4)}, {pk(U+6)}")
    for i in range(4, 10):
        r = t0 if i % 2 == 0 else t2
        a.I(f"v_pk_add_f32 {pk(r)}, {pk(r)}, {pk(U+2*i)}")
    a.I(f"v_pk_add_f32 {pk(t0)}, {pk(t0)}, {pk(t2)}\nv_add_f32 v{t0}, v{t0}, v{t1}")
    red32(t0, t1)
    a.I(f"v_mul_f32 v{t0}, {hx(f32(-1.0/640))}, v{t0}")
    for i in range(10):
        a.I(f"v_pk_add_f32 {pk(U+2*i)}, {pk(U+2*i)}, {pk(t0)} op_sel_hi:[1,0]")
    a.I(f"v_pk_mul_f32 {pk(t2)}, {pk(U)}, {pk(U)}\nv_pk_mul_f32 {pk(X)}, {pk(U+2)}, {pk(U+2)}")
    for i in range(2, 10):
        r = t2 if i % 2 == 0 else X
        a.I(f"v_pk_fma_f32 {pk(r)}, {pk(U+2*i)}, {pk(U+2*i)}, {pk(r)}")
    a.I(f"v_pk_add_f32 {pk(t2)}, {pk(t2)}, {pk(X)}\nv_add_f32 v{t2}, v{t2}, v{t3}")
    red32(t2, t3)
    a.I(f"v_mul_f32 v{t2}, {hx(f32(1.0/640))}, v{t2}")
    a.I(f"v_cvt_pk_bf16_f32 v{t2}, v{t2}, v{t2}\nv_and_b32 v{t2}, s{S_M16}, v{t2}")
    a.I(f"v_add_f32 v{t2}, {hx(f32(1e-5))}, v{t2}")
    a.I(f"v_cvt_pk_bf16_f32 v{t2}, v{t2}, v{t2}\nv_and_b32 v{t2}, s{S_M16}, v{t2}")
    a.I(f"v_sqrt_f32 v{t2}, v{t2}")
    a.I(f"v_cvt_pk_bf16_f32 v{V_E+4}, v{t0}, v{t2}")
    a.I(f"v_and_b32 v{t2}, s{S_M16}, v{V_E+4}")
    a.I(f"v_rcp_f32 v{V_E+5}, v{t2}")
    a.I(f"v_lshrrev_b32 v{t1}, 2, v{L}\ns_lshl_b32 s{T}, s{ROW}, 3\ns_add_u32 s{T}, s{T}, {STAT_OFF}")
    a.I("s_mov_b32 exec_lo, 1\ns_mov_b32 exec_hi, 1")
    a.I(f"buffer_store_dwordx2 {pk(V_E+4)}, v{t1}, {srd(SRD_WS)}, s{T} offen {SC}")
    a.I("s_mov_b64 exec, -1")
    if MPRIO: a.I(f"s_setprio {MPRIO}")
    ST(a, "p0done")
    lg = Q("lgkmcnt", 15)
    NM = 280
    def reads(m):
        h, r = divmod(m, 14); ks2, t = divmod(r, 7); g = m // 7
        if t == 0:
            c, ks = divmod(g, 4)
            a.I(f"ds_read_b128 {q4(AF+4*(g&1))}, v{V_VA+ks} offset:{(c%3)*16384}")
            lg.issue(m)
        slot = h % 6
        off = (slot % 3) * WSLOT + ks2 * 7168 + t * 64
        b = BF + (m % NB) * 4
        a.I(f"ds_read_b64_tr_b16 {pk(b)}, v{V_TRA + slot//3} offset:{off}")
        a.I(f"ds_read_b64_tr_b16 {pk(b+2)}, v{V_TRA + slot//3} offset:{off+1792}")
        lg.issue(m); lg.issue(m)
    def P(h):
        if h == M_DRAIN: a.I("s_waitcnt vmcnt(0)")
        a.I("s_barrier")
        if h % 2 == 0: ST(a, f"P{h}")
    P(0)
    for m in range(PD): reads(m)
    for m in range(NM):
        t = m % 7; g = m // 7
        lg.wait(a, m)
        d = ACC1 + 16 * t
        cin = "0" if m < 7 else f"v[{d}:{d+15}]"
        a.I(f"v_mfma_f32_32x32x16_bf16 v[{d}:{d+15}], {q4(BF+(m%NB)*4)}, {q4(AF+4*(g&1))}, {cin}")
        if m + PD < NM:
            if (m + PD) % 14 == 0: P((m + PD) // 14)
            reads(m + PD)
        elif m + PD == NM:
            a.I(f"v_and_b32 v{t0}, 31, v{L}\ns_lshl_b32 s{T}, s{S_WAVE}, 8\ns_add_u32 s{T}, s{T}, {EXT_LDS+7168}")
            a.I(f"v_lshl_add_u32 v{t0}, v{t0}, 3, s{T}\nv_add_u32 v{t1}, {EXT_LDS}, v{V_L16}")
            a.I(f"ds_read_b64 {pk(t2)}, v{t0}"); lg.issue("st")
        elif m + PD == NM + 1:
            for tt in (5, 6, 0, 1, 2, 3, 4):
                a.I(f"ds_read_b128 {q4(172+4*tt)}, v{t1} offset:{tt*1024}"); lg.issue(("e", tt))
    lds_add(a, 0, V_E + 4)
    lg.issue("add")
    ST(a, "mainend")
    XE = 200
    lg.wait(a, "st")
    a.I(f"v_cmp_gt_u32 vcc, 32, v{L}")
    a.I(f"v_and_b32 v{XE+1}, 0xffff, v{t2}\nv_lshl_or_b32 v{XE+1}, v{XE+1}, 16, v{XE+1}\nv_lshrrev_b32 v{XE}, 16, v{t2}")
    a.I(f"v_cndmask_b32 v{XE}, v{XE}, v{XE+1}, vcc\nv_cndmask_b32 v{XE+1}, 0, v{XE+1}, vcc")
    a.I(f"v_mov_b32 v{XE+2}, v{XE+1}\nv_mov_b32 v{XE+3}, v{XE+1}")
    a.I(f"v_mov_b32 v{V_R}, v{t3}\nv_and_b32 v{V_SD}, s{S_M16}, v{t2}")
    for t in (5, 6, 0, 1, 2, 3, 4):
        d = ACC1 + 16 * t
        lg.wait(a, ("e", t))
        a.I(f"v_mfma_f32_32x32x16_bf16 v[{d}:{d+15}], {q4(172+4*t)}, {q4(XE)}, v[{d}:{d+15}]")
        if t == 0:
            a.I(f"v_mul_f32 v{V_R2}, {hx(f32(math.log2(math.e)))}, v{V_R}\nv_mul_f32 v{V_C0}, {hx(f32(K0C))}, v{V_R}")
            a.I(f"v_mul_f32 v{V_C1}, v{V_R}, v{V_R}\nv_mul_f32 v{V_C1}, v{V_C1}, v{V_R}")
        if t == 1:
            a.I(f"v_mul_f32 v{V_C1}, {hx(f32(K1C))}, v{V_C1}\nv_mov_b32 v{V_EPS}, {hx(f32(1e-6))}")
            a.I(f"v_bfe_u32 v{t0}, v{L}, 4, 1\nv_mul_u32_u24 v{t0}, {68*1024}, v{t0}")
        if t == 2:
            a.I(f"v_and_b32 v{t1}, 15, v{L}\nv_lshl_add_u32 v{t0}, v{t1}, 4, v{t0}")
            a.I(f"v_lshrrev_b32 v{t1}, 5, v{L}\nv_lshl_add_u32 v{V_HQO}, v{t1}, 8, v{t0}")
    a.I(f"s_lshl_b32 s{T}, s{S_RB}, 2\ns_add_u32 s{T}, s{T}, s{S_WAVE}\ns_mul_i32 s{T}, s{T}, {2*68}")
    a.I(f"s_add_u32 s{T}, s{T}, s{S_KS0}\ns_lshl_b32 s{S_HQ}, s{T}, 10\ns_sub_u32 s{S_HQ}, s{S_HQ}, 0x10000")
    ST(a, "ext")
    SIG, SIGX = T + 11, T + 12
    a.I(f"s_lshl_b32 s{SIG}, s{S_RB}, 8\ns_add_u32 s{SIG}, s{SIG}, {CNT_OFF}\ns_mov_b32 s{SIGX}, 1")
    def tile_units(t, fn):
        return [((lambda Tm, r0=ACC1+16*t+8*u: fn(r0, Tm)), hq_store(t, u)) for u in range(2)]
    a.I(f"s_cmp_eq_u32 s{S_TYPE}, 0\ns_cbranch_scc1 L_ep_kvq\ns_cmp_eq_u32 s{S_TYPE}, 2\ns_cbranch_scc1 L_ep_qx")
    a.I(f"s_cmp_eq_u32 s{S_CG}, 14\ns_cselect_b32 s{T+2}, {WS_SIZE}, s{S_HQ}")
    un = []
    for t in (5, 6, 0, 1, 2, 3, 4):
        uu = tile_units(t, u_gelu)
        if t == 6: uu = [(f, [x.replace(f"s{S_HQ},", f"s{T+2},") for x in tl]) for f, tl in uu]
        un += uu
    ep_pipe(a, un, DLY)
    a.I("s_branch L_ep_done")
    a.L("L_ep_qx")
    a.I(f"s_add_u32 s{SIG}, s{SIG}, 4096\ns_nop 3")
    ep_pipe(a, [x for t in range(4) for x in tile_units(t, u_phi)])
    a.I("s_branch L_ep_done")
    a.L("L_ep_kvq")
    a.I(f"s_add_u32 s{SIG}, s{SIG}, 4096\ns_mov_b32 s{SIGX}, 0x1fe")
    a.I(f"v_and_b32 v{t0}, 31, v{L}\ns_lshl_b32 s{T}, s{S_WAVE}, 5\nv_add_u32 v{t0}, s{T}, v{t0}")
    a.I(f"v_mul_u32_u24 v{t0}, {KV_RS}, v{t0}\nv_lshrrev_b32 v{t1}, 5, v{L}\nv_lshl_add_u32 v{V_KVW}, v{t1}, 3, v{t0}\nv_add_u32 v{V_KVW}, {KVIMG}, v{V_KVW}")
    a.I(f"v_mov_b32 v{XE}, 0x3f803f80\nv_mov_b32 v{XE+1}, 0x3f803f80")
    a.I(f"ds_write_b64 v{V_KVW}, {pk(XE)} offset:320")
    un = [x for t in (5, 6) for x in tile_units(t, u_phi)] if QFIRST else []
    if not QFIRST: a.I(f"s_mov_b32 s{SIGX}, 0x1ff")
    for t in range(5):
        for u in range(2):
            r0 = ACC1 + 16 * t + 8 * u
            o = 8 * t + 2 * u
            n = 8 if t < 2 else (4 if t == 2 else 0)
            un.append(((lambda Tm, r0=r0, n=n: u_phi(r0, Tm, n)), [f"ds_write2_b64 v{V_KVW}, {pk(r0)}, {pk(r0+2)} offset0:{o} offset1:{o+4}"]))
    ep_pipe(a, un)
    a.I("s_waitcnt vmcnt(0) lgkmcnt(0)")
    lds_add(a, 1, 112)
    AK, AV, C = 114, 115, 116
    a.I(f"v_lshrrev_b32 v{AK}, 5, v{L}\nv_bfe_u32 v{AV}, v{L}, 2, 2\nv_lshl_add_u32 v{AK}, v{AK}, 3, v{AV}\nv_mul_u32_u24 v{AK}, {KV_RS}, v{AK}")
    a.I(f"v_add_u32 v{AK}, {KVIMG}, v{AK}")
    a.I(f"v_bfe_u32 v{C}, v{L}, 4, 1\nv_and_b32 v{AV}, 3, v{L}\nv_lshl_add_u32 v{C}, v{C}, 2, v{AV}")
    a.I(f"s_mul_i32 s{T}, s{S_WAVE}, 40\nv_lshlrev_b32 v{C+1}, 3, v{C}\nv_add_u32 v{C+1}, s{T}, v{C+1}")
    a.I(f"v_cmp_gt_u32 vcc, 5, v{C}\nv_add_u32 v{C+2}, 160, v{C+1}\nv_mov_b32 v{C+3}, 320")
    a.I(f"v_cndmask_b32 v{C+2}, v{C+3}, v{C+2}, vcc")
    a.I(f"v_add_u32 v{AV}, v{AK}, v{C+2}\nv_add_u32 v{AK}, v{AK}, v{C+1}")
    a.I(f"v_lshrrev_b32 v{C}, 5, v{L}\nv_mul_u32_u24 v{C}, 320, v{C}\nv_and_b32 v{C+1}, 31, v{L}\nv_lshl_add_u32 v{C}, v{C+1}, 2, v{C}")
    lds_wait_ge(a, 1, 4, 112)
    if QFIRST:
        a.I(f"s_cmp_eq_u32 s{S_WAVE}, 0\ns_cselect_b32 s{T}, s{SIG}, {WS_SIZE}\nv_mov_b32 v112, s{T}\nv_mov_b32 v113, 1\ns_mov_b64 exec, 1")
        a.I(f"buffer_atomic_add v113, v112, {srd(SRD_WS)}, 0 offen\ns_mov_b64 exec, -1")
    FK, FV, D = 0, 32, 64
    for kp in range(8):
        o = kp * 16 * KV_RS
        a.I(f"ds_read_b64_tr_b16 {pk(FK+4*kp)}, v{AK} offset:{o}\nds_read_b64_tr_b16 {pk(FK+4*kp+2)}, v{AK} offset:{o+4*KV_RS}")
        a.I(f"ds_read_b64_tr_b16 {pk(FV+4*kp)}, v{AV} offset:{o}\nds_read_b64_tr_b16 {pk(FV+4*kp+2)}, v{AV} offset:{o+4*KV_RS}")
        if kp >= 2:
            a.I("s_waitcnt lgkmcnt(8)")
            k2 = kp - 2
            a.I(f"v_mfma_f32_32x32x16_bf16 v[{D}:{D+15}], {q4(FV+4*k2)}, {q4(FK+4*k2)}, {'0' if k2 == 0 else f'v[{D}:{D+15}]'}")
    for k2 in (6, 7):
        a.I(f"s_waitcnt lgkmcnt({4*(7-k2)})")
        a.I(f"v_mfma_f32_32x32x16_bf16 v[{D}:{D+15}], {q4(FV+4*k2)}, {q4(FK+4*k2)}, v[{D}:{D+15}]")
    a.I(f"s_lshl_b32 s{T+2}, s{S_CG}, 2\ns_add_u32 s{T+2}, s{T+2}, s{S_WAVE}\ns_mul_i32 s{T+2}, s{T+2}, 1680\ns_add_u32 s{T+2}, s{T+2}, {KV_OFF}")
    a.I("s_mov_b32 exec_lo, 0xfffff\ns_mov_b32 exec_hi, 0xfffff")
    for r in range(12):
        if r == 9: a.I("s_mov_b32 exec_hi, 0")
        e = 8 * (r >> 2) + (r & 3)
        if not NOATOM: a.I(f"buffer_atomic_add_f32 v{D+r}, v{C}, {srd(SRD_WS)}, s{T+2} offen offset:{e*80}")
    a.I("s_mov_b64 exec, -1")
    if not QFIRST: ep_pipe(a, [x for t in (5, 6) for x in tile_units(t, u_phi)])
    a.L("L_ep_done")
    lds_add(a, 7, 112)
    ST(a, "epi")
    a.C("---- publish ----")
    vm = Q("vmcnt", 63)
    PQ, AC2, WO = 0, 80, 160
    VT = 240
    W_KVW, W_KT0, W_KT1, W_MZ = 250, 251, 252, 249
    u0, u1, u2, u3 = VT, VT + 1, VT + 2, VT + 3
    a.I(f"s_lshl_b32 s{T}, s{S_CG}, 11\ns_add_u32 s{T}, s{T}, {CNT_OFF+8192-256}\nv_lshlrev_b32 v114, 8, v{L}\nv_add_u32 v114, s{T}, v114\nv_mov_b32 v115, 1")
    a.I(f"v_writelane_b32 v114, s{SIG}, 0")
    g2_common(a)
    a.I(f"s_mul_i32 s{S_BB}, s{S_CG2}, {68*5*1024}\ns_mul_i32 s{T}, s{S_WAVE}, {25*1024}\ns_add_u32 s{S_BB}, s{S_BB}, s{T}\ns_add_u32 s{S_BB}, s{S_BB}, {B2_OFF + 48*5*1024}")
    WO4 = AC2 + 60
    def wor(t): return WO4 if t == 4 else WO + 20 * t
    def woload(t):
        a.I(f"s_add_u32 s{T}, s{S_BB}, {t*5120}\ns_add_u32 s{T+1}, s{T}, 4096")
        for ct in range(5):
            a.I(f"buffer_load_dwordx4 {q4(wor(t)+4*ct)}, v{V_L16}, {srd(SRD_WS)}, s{T+(ct>>2)} offen offset:{(ct&3)*1024} {SC}")
            vm.issue(("wo", t))
    vm.issue("stores")
    a.I(f"s_lshr_b32 s{T}, s{S_RB2}, 1\ns_lshl_b32 s{T}, s{T}, 8\ns_add_u32 s{T}, s{T}, {CNT_OFF+4096}\nv_mov_b32 v116, s{T}\nv_mov_b32 v117, 9")
    if QFIRST: poll_issue(a, vm, SRD_WS, 116, 118, 1, "pq?")
    for t in range(WODRAIN): woload(t)
    KB = T + 13
    a.I(f"s_mul_i32 s{KB}, s{S_WAVE}, {MZS}\ns_add_u32 s{KB}, s{KB}, {MZ}\nv_add_u32 v{W_MZ}, s{KB}, v{V_L16}")
    a.I(f"v_mul_u32_u24 v{u0}, 205, v{L}\nv_lshrrev_b32 v{u0}, 10, v{u0}\nv_mul_u32_u24 v{u1}, 5, v{u0}\nv_sub_u32 v{u1}, v{L}, v{u1}")
    a.I(f"v_lshlrev_b32 v{u0}, 6, v{u0}\nv_lshl_add_u32 v{u0}, v{u1}, 3, v{u0}")
    a.I(f"v_add_u32 v{W_KVW}, s{KB}, v{u0}")
    a.I(f"v_and_b32 v{u0}, 15, v{L}\nv_lshrrev_b32 v{u1}, 4, v{L}\nv_lshlrev_b32 v{u1}, 3, v{u1}\nv_add_u32 v{u1}, s{KB}, v{u1}")
    a.I(f"v_lshl_add_u32 v{W_KT0}, v{u0}, 6, v{u1}")
    a.I(f"v_and_b32 v{u2}, 3, v{L}\nv_cmp_eq_u32 vcc, 0, v{u2}\nv_lshrrev_b32 v{u0}, 2, v{u0}\nv_add_u32 v{u0}, 16, v{u0}\nv_mov_b32 v{u2}, 20")
    a.I(f"v_cndmask_b32 v{u0}, v{u2}, v{u0}, vcc")
    a.I(f"v_lshl_add_u32 v{W_KT1}, v{u0}, 6, v{u1}")
    vm.wait(a, "pq?" if QFIRST else "stores")
    ST(a, "drain")
    lds_add(a, 2, 112, rtn=True)
    a.I(f"s_waitcnt lgkmcnt(0)\nv_readfirstlane_b32 s{T}, v113\ns_cmp_lg_u32 s{T}, 3\ns_cbranch_scc1 L_nosig")
    a.I(f"s_mov_b32 exec_lo, s{SIGX}\ns_mov_b32 exec_hi, 0")
    a.I(f"buffer_atomic_add v115, v114, {srd(SRD_WS)}, 0 offen\ns_mov_b64 exec, -1")
    a.L("L_nosig")
    a.C("==== gemm2, attention part (waves 0..3) ====")
    def pqload():
        for sg in range(4):
            a.I(f"s_mul_i32 s{T}, s{S_WAVE}, {5*1024}\ns_add_u32 s{T}, s{T}, {48*1024}\ns_add_u32 s{T}, s{T}, s{S_A+sg}\ns_add_u32 s{T+1}, s{T}, 4096")
            for t in range(5):
                a.I(f"buffer_load_dwordx4 {q4(PQ+20*sg+4*t)}, v{V_L16}, {srd(SRD_WS)}, s{T+(t>>2)} offen offset:{(t&3)*1024} {SC}")
                vm.issue(("pq", sg))
    def s2q():
        a.I(f"s_cmp_lg_u32 s{S_WAVE}, 0\ns_cbranch_scc1 L_m_nopoll\ns_setprio 3")
        a.I(f"s_lshr_b32 s{T}, s{S_RB2}, 1\ns_lshl_b32 s{T}, s{T}, 8\ns_add_u32 s{T}, s{T}, {CNT_OFF+4096}\nv_mov_b32 v{u0}, s{T}\nv_mov_b32 v{u1}, 9")
        poll(a, SRD_WS, u0, u1, u2, 1, PSLEEP)
        lds_add(a, 5, VT)
        a.L("L_m_nopoll")
        lds_wait_ge(a, 5, 1, VT)
        ST(a, "S2Q")
    def zero_img():
        lds_wait_ge(a, 7, 4, VT)
        for i in range(4): a.I(f"v_mov_b32 v{AC2+i}, 0")
        for i in range(11): a.I(f"ds_write_b128 v{W_MZ}, {q4(AC2)} offset:{i*1024}")
    if QFIRST:
        a.I(f"s_setprio {PQPRIO}")
        poll_check(a, vm, SRD_WS, 116, 117, 118, 1, "pq?", 8)
        ST(a, "S2Q")
        pqload(); zero_img()
        for t in range(WODRAIN, WOEARLY): woload(t)
    else:
        for t in range(WODRAIN, WOEARLY): woload(t)
        zero_img(); s2q(); a.I(f"s_setprio {PQPRIO}"); pqload()
    ST(a, "pqiss")
    a.I("s_setprio 3")
    a.I(f"s_cmp_lg_u32 s{S_WAVE}, 0\ns_cbranch_scc1 L_m_nopoll2")
    a.I(f"s_and_b32 s{T}, s2, 7\ns_lshl_b32 s{T}, s{T}, 8\ns_add_u32 s{T}, s{T}, {CNT_OFF+8192}\nv_lshlrev_b32 v{u0}, 11, v{L}\nv_add_u32 v{u0}, s{T}, v{u0}\nv_mov_b32 v{u1}, 16")
    poll(a, SRD_WS, u0, u1, u2, 8, PSLEEP)
    lds_add(a, 4, VT)
    a.L("L_m_nopoll2")
    lds_wait_ge(a, 4, 1, VT)
    ST(a, "S3")
    KVRAW = AC2
    for i in range(14):
        if i % 4 == 0: a.I(f"s_mul_i32 s{T}, s{S_WAVE}, {8*1680}\ns_add_u32 s{T}, s{T}, {KV_OFF + i*960}")
        a.I(f"buffer_load_dwordx4 {q4(KVRAW+4*i)}, v{V_L16}, {srd(SRD_WS)}, s{T} offen offset:{(i%4)*960} {SC}")
        vm.issue(("kv", i))
    EPSC = VT + 4
    a.I(f"v_mov_b32 v{EPSC}, 0\nv_mov_b32 v{EPSC+1}, {hx(f32(1e-6))}\nv_mov_b32 v{EPSC+2}, 0\nv_mov_b32 v{EPSC+3}, 0")
    for i in range(14):
        r = KVRAW + 4 * i
        vm.wait(a, ("kv", i))
        a.I(f"v_cvt_pk_bf16_f32 v{r}, v{r}, v{r+1}\nv_cvt_pk_bf16_f32 v{r+1}, v{r+2}, v{r+3}")
        a.I(f"ds_write_b64 v{W_KVW}, {pk(r)} offset:{24 + i*768}")
    for t in range(WOEARLY, 4): woload(t)
    a.I("s_waitcnt lgkmcnt(0)")
    ST(a, "kvlds")
    ND, KT = AC2, AC2 + 48
    def ktread(qd, pr):
        o = []
        for hh in range(2):
            hq = 2 * pr + hh; h = 4 * qd + hq
            for tau in range(2):
                for b in range(2):
                    o.append(f"ds_read_b64 {pk(KT+(hq*2+tau)*4+2*b)}, v{W_KT1 if tau else W_KT0} offset:{h*1344 + 24 - 8*hq + 32*b}")
        return o
    groups = [(qd, sg, pr) for qd in range(2) for sg in range(4) for pr in range(2)]
    def nmf(gi):
        qd, sg, pr = groups[gi]
        nd = ND + 16 * (gi % 3)
        o = []
        for hh in range(2):
            hq = 2 * pr + hh
            for tau in (1, 0):
                o.append(f"v_mfma_f32_16x16x32_bf16 {q4(nd+8*hh+4*tau)}, {q4(KT+(hq*2+tau)*4)}, {q4(PQ+20*sg+10*qd+2*hq)}, {q4(EPSC) if tau else '0'}")
        return o
    def nva(gi):
        qd, sg, pr = groups[gi]
        D = [ND + 16 * (gi % 3), ND + 16 * (gi % 3) + 8]
        o = [f"v_rcp_f32_e64 v{d+6}, v{d+5}" for d in D]
        o += [f"v_mul_f32 v{d+i}, v{d+i}, v{d+6}" for d in D for i in range(5)]
        vals = [d + i for d in D for i in range(5)]
        o += [f"v_cvt_pk_bf16_f32 v{PQ+20*sg+10*qd+5*pr+i}, v{vals[2*i]}, v{vals[2*i+1]}" for i in range(5)]
        return o
    for x in ktread(0, 0): a.I(x)
    a.I("s_waitcnt lgkmcnt(7)")
    for x in ktread(0, 1): a.I(x)
    a.I("s_waitcnt lgkmcnt(8)")
    for x in nmf(0): a.I(x)
    a.I("s_waitcnt lgkmcnt(0)")
    for x in nmf(1): a.I(x)
    for gi in range(16):
        m = nmf(gi + 2) if gi + 2 < 16 else []
        v = nva(gi)
        if gi + 2 == 8: a.I("s_waitcnt lgkmcnt(8)")
        if gi + 2 == 9: a.I("s_waitcnt lgkmcnt(0)")
        for k, x in enumerate(v):
            a.I(x)
            if k % 4 == 1 and m: a.I(m.pop(0))
        if gi + 2 == 6:
            for x in ktread(1, 0): a.I(x)
        if gi + 2 == 7:
            a.I("s_waitcnt lgkmcnt(7)")
            for x in ktread(1, 1): a.I(x)
        if gi == 13: woload(4)
    ST(a, "odone")
    VM_, VH_, VX_, VO_, VB_ = VT, VT + 4, VT + 8, 250, 251
    RES, RU = 20, 40
    order = (1, 2, 3, 0)
    for k, sg in enumerate(order):
        A_ = AC2 + 20 * (k % 3); P_ = AC2 + 20 * ((k - 1) % 3)
        fill = []
        if k == 3:
            vm.wait(a, "R"); fill = res_unpack([0, 1, 2], RES, RU)
        for t in range(5):
            if k == 0: vm.wait(a, ("wo", t))
            for ct in ((3, 4, 0, 1, 2) if k == 3 else range(5)):
                d = A_ + 4 * ct
                a.I(f"v_mfma_f32_16x16x32_bf16 {q4(d)}, {q4(wor(t)+4*ct)}, {q4(PQ+20*sg+4*t)}, {'0' if t == 0 else q4(d)}")
                n = t * 5 + ct
                if k > 0 and n >= 8 and n % 3 == 2 and (n - 8) // 3 < 5:
                    c2 = (n - 8) // 3
                    a.I(f"ds_write_b128 v{W_MZ}, {q4(P_+4*c2)} offset:{((order[k-1]-1)*5+c2)*1024}")
                for _ in range(2):
                    if fill: a.I(fill.pop(0))
        if k == 0:
            out_addr(a, VO_, VB_, 252)
            res_issue(a, vm, [0, 1, 2], RES, VO_, VB_)
        if k == 1: red_addrs(a, VM_, VH_, VX_)
    for c2 in (3, 4): a.I(f"ds_write_b128 v{VX_}, {q4(AC2+4*c2)} offset:{(c2-3)*1024}")
    for k, ct in enumerate([0, 1, 2]):
        for i in (0, 2): a.I(f"v_pk_add_f32 {pk(AC2+4*ct+i)}, {pk(AC2+4*ct+i)}, {pk(RU+8*k+i)}")
    ST(a, "attend")
    a.I("s_waitcnt lgkmcnt(0)\ns_barrier")
    ST(a, "bar")
    final_sum(a, 0, [0, 1, 2], AC2, 100, VM_, VH_, VX_, VO_)
    ST(a, "end")
    if STAMPS: a.I("s_waitcnt vmcnt(0)")
    ST(a, "rt1", True)
    stamp_dump(a, 0)
    if DIAG:
        a.I("s_waitcnt vmcnt(0)\ns_memrealtime s[92:93]\ns_waitcnt lgkmcnt(0)")
        if DIAG == 1: a.I("s_sub_u32 s78, s92, s76")
        a.I("s_min_u32 s78, s78, 20000\ns_mov_b32 s76, s92")
        a.L("L_diag")
        a.I("s_memrealtime s[92:93]\ns_waitcnt lgkmcnt(0)\ns_sub_u32 s92, s92, s76\ns_cmp_lt_u32 s92, s78\ns_cbranch_scc1 L_diag")
    a.L("L_end")
    a.I("s_endpgm")

def header(launches):
    ref = open(f"cdna_kernels/{NAME}.s.ref").read().split("\n")
    out = [l for l in ref if l.startswith(";") and "@launch" not in l]
    out += launches
    out += ['.amdgcn_target "amdgcn-amd-amdhsa--gfx950"', ".text"]
    return "\n".join(out) + "\n"

def build(path, listform):
    ln = f"; @launch kernel={KN} grid=(256,1,1) block=(512,1,1) lds=163840" if listform else "; @launch grid=(256,1,1) block=(512,1,1) lds=163840"
    txt = header([ln])
    a = Asm()
    common(a)
    s1 = loader(a)
    s2 = aux(a)
    h2(a, [s1, s2])
    mwave(a)
    t, n = a.fixed()
    if NOSCL: t = "\n".join(l.replace(" sc1", "") if "load_dwordx4" in l else l for l in t.split("\n"))
    if NOSCS: t = "\n".join(l.replace(" sc1", "") if "store_dwordx4" in l else l for l in t.split("\n"))
    txt += t
    txt += ".p2align 8\n.fill 16384, 4, 0xbf800000\n"
    txt += f""".section .rodata,"a"
.p2align 6
.amdhsa_kernel {KN}
  .amdhsa_next_free_vgpr 256
  .amdhsa_next_free_sgpr 102
  .amdhsa_accum_offset 256
  .amdhsa_group_segment_fixed_size 0
  .amdhsa_kernarg_size 88
  .amdhsa_user_sgpr_count 2
  .amdhsa_user_sgpr_kernarg_segment_ptr 1
  .amdhsa_system_sgpr_workgroup_id_x 1
.end_amdhsa_kernel
"""
    open(path, "w").write(txt)
    if STAMPS: open(path + ".names", "w").write(repr(STAMP_NAMES))
    print("written", path, "nops inserted:", n)

if __name__ == "__main__":
    LIST = 0
    for arg in list(sys.argv):
        if "=" in arg:
            k_, v_ = arg.split("="); globals()[k_] = int(v_); sys.argv.remove(arg)
    build(sys.argv[1] if len(sys.argv) > 1 else f"cdna_kernels/{NAME}.s", LIST)
```

```python
import sys, math, struct
sys.path.insert(0, "gen")
from asmlib import Asm

NAME = "parallel_sum__linear_attn_block__dense_activation_gelu__prompt"
KN = NAME + "_kernel"
HQ_OFF   = 0x000000
B2_OFF   = 0x900000
STAT_OFF = 0xC00000
CS_OFF   = 0xC10000
KV_OFF   = 0xC40000
CNT_OFF  = KV_OFF + 53 * 1024
ZERO_KB  = 53 + 26
STAMP_OFF = 0xC80000
WS_SIZE  = 0xE00000

STAMPS = 0
CODEPF = 1
ROT1 = 0
ROT2 = 2
PD = 4
NB = 6
MPRIO = 1
SPIN = 8000
NOATOM = 0
NOSCL = 0
NOSCS = 0
THR = 0
PSLEEP = 4
G2MAP = 1
DLY = 6
N1 = 99
WOEARLY = 4
HPRIO = 2
QFIRST = 1
NOS1 = 0
WSMB = 0
WODRAIN = 2
PQPRIO = 3
S1A_POLL, S1B_POLL, M_DRAIN, BUDGET, BGRATE, BGMAX, PFGAP, APRIO = 8, 14, 4, 48, 0, 15, 4, 0
DIAG = 0

def f32(x): return struct.unpack("<I", struct.pack("<f", x))[0]
def hx(x): return hex(x & 0xFFFFFFFF)
def srd(n): return f"s[{n}:{n+3}]"
def pk(r): return f"v[{r}:{r+1}]"
def q4(r): return f"v[{r}:{r+3}]"
SC = "sc1"

S_X, S_WQKV, S_WO, S_W1, S_B1, S_W2, S_B2, S_OUT, S_DBG, S_WS = 4, 6, 8, 12, 14, 16, 18, 20, 22, 24
S_WAVE, S_I = 26, 27
SRD_X, SRD_W, SRD_WS, SRD_T, SRD_U = 28, 32, 36, 40, 44
S_RB, S_CG, S_TYPE, S_STR, S_BASE, S_JA, S_JB, S_NP, S_KS0, S_CSB, S_RB2, S_CG2 = range(48, 60)
T = 60
S_KK = 76
S_A = 88
S_SPIN = 96
S_M16 = 97
V_LANE, V_L16, V_STAMP = 255, 254, 253

WSLOT = 14336
XRING = 6 * WSLOT
P0_LDS = XRING + 3 * 16384
EXT_LDS = P0_LDS + 16384
SYNC_LDS = EXT_LDS + 8192
KVIMG = 2 * WSLOT
KV_RS = 344
MZ, MZS = 28672, 15360
HZ1, HZS = 90112, 20480

class Q:
    def __init__(self, name, mx): self.q = []; self.name = name; self.mx = mx
    def issue(self, tag): self.q.append(tag)
    def wait(self, a, tag):
        idx = [i for i, t in enumerate(self.q) if t == tag]
        if not idx: return
        n = len(self.q) - 1 - idx[-1]
        assert n <= self.mx, (self.name, n)
        a.I(f"s_waitcnt {self.name}({n})")
        self.q = self.q[idx[-1] + 1:]
    def drain(self, a):
        a.I(f"s_waitcnt {self.name}(0)"); self.q = []

STAMP_NAMES = {}
DIAGN = {2: 'P0', 3: 'mainend', 4: 'epi', 5: 'drain', 6: 'S3', 7: 'P4', 8: 'P10', 9: 'odone', 10: 'xin', 11: 'P8', 12: 'P14', 13: 'P2', 14: 'P6'}
class Stamp:
    def __init__(self, role): self.role = role; self.n = 0; self.names = []; STAMP_NAMES[role] = self.names
    def __call__(self, a, name, real=False):
        if DIAG > 1 and self.role == "M" and name == DIAGN[DIAG]:
            a.I("s_memrealtime s[92:93]\ns_waitcnt lgkmcnt(0)\ns_sub_u32 s78, s92, s76")
        if not STAMPS: return
        a.I(f"{'s_memrealtime' if real else 's_memtime'} s[92:93]\ns_waitcnt lgkmcnt(0)\nv_writelane_b32 v{V_STAMP}, s92, {self.n}")
        self.names.append(name); self.n += 1
def stamp_dump(a, vt):
    if not STAMPS: return
    a.I(f"s_lshl_b32 s92, s2, 3\ns_add_u32 s92, s92, s{S_WAVE}\ns_lshl_b32 s92, s92, 8\ns_add_u32 s92, s92, {STAMP_OFF}\nv_lshlrev_b32 v{vt}, 2, v{V_LANE}")
    a.I(f"buffer_store_dword v{V_STAMP}, v{vt}, {srd(SRD_WS)}, s92 offen")

def mk_srd(a, d, ptr, size):
    a.I(f"s_mov_b32 s{d}, s{ptr}\ns_mov_b32 s{d+1}, s{ptr+1}")
    a.I(f"s_mov_b32 s{d+2}, {hx(size)}\ns_mov_b32 s{d+3}, 0x20000")

_lbl = [0]
def newlabel(p):
    _lbl[0] += 1; return f"L_{p}{_lbl[0]}"

def lds_wait_ge(a, word, val, vt):
    l = newlabel("lw"); e = newlabel("lwe")
    a.I(f"s_mov_b32 s{S_SPIN}, {SPIN*8}\nv_mov_b32 v{vt}, {SYNC_LDS + 4*word}")
    a.L(l)
    a.I(f"ds_read_b32 v{vt+1}, v{vt}\ns_waitcnt lgkmcnt(0)\nv_readfirstlane_b32 s{T}, v{vt+1}")
    a.I(f"s_cmp_ge_u32 s{T}, {val}\ns_cbranch_scc1 {e}\ns_sleep 1\ns_sub_u32 s{S_SPIN}, s{S_SPIN}, 1\ns_cmp_lg_u32 s{S_SPIN}, 0\ns_cbranch_scc1 {l}")
    a.L(e)

def lds_add(a, word, vt, rtn=False):
    a.I(f"v_mov_b32 v{vt}, {SYNC_LDS + 4*word}\nv_mov_b32 v{vt+1}, 1\ns_mov_b64 exec, 1")
    if rtn: a.I(f"ds_add_rtn_u32 v{vt+1}, v{vt}, v{vt+1}")
    else: a.I(f"ds_add_u32 v{vt}, v{vt+1}")
    a.I("s_mov_b64 exec, -1")

def poll(a, srdn, voff, vexp, vt, nlanes, slp=4):
    l = newlabel("pl"); e = newlabel("ple")
    a.I(f"s_mov_b32 s{S_SPIN}, {SPIN}\ns_mov_b64 exec, {(1 << nlanes) - 1}")
    a.L(l)
    a.I(f"buffer_load_dword v{vt}, v{voff}, {srd(srdn)}, 0 offen {SC}\ns_waitcnt vmcnt(0)")
    a.I(f"v_cmp_lt_u32 vcc, v{vt}, v{vexp}\ns_nop 4\ns_cbranch_vccz {e}")
    a.I(f"s_sleep {slp}\ns_sub_u32 s{S_SPIN}, s{S_SPIN}, 1\ns_cmp_lg_u32 s{S_SPIN}, 0\ns_cbranch_scc1 {l}")
    a.L(e)
    a.I("s_mov_b64 exec, -1")

def poll_issue(a, vm, srdn, voff, vt, nlanes, tag):
    if NOS1 and tag in ("pa", "pb"): return
    a.I(f"s_mov_b64 exec, {(1 << nlanes) - 1}")
    a.I(f"buffer_load_dword v{vt}, v{voff}, {srd(srdn)}, 0 offen {SC}\ns_mov_b64 exec, -1")
    vm.issue(tag)
def poll_check(a, vm, srdn, voff, vexp, vt, nlanes, tag, slp):
    if NOS1 and tag in ("pa", "pb"): return
    e = newlabel("pc")
    vm.wait(a, tag)
    a.I(f"s_mov_b64 exec, {(1 << nlanes) - 1}\nv_cmp_lt_u32 vcc, v{vt}, v{vexp}\ns_mov_b64 exec, -1\ns_nop 3\ns_cbranch_vccz {e}")
    poll(a, srdn, voff, vexp, vt, nlanes, slp)
    a.L(e)

def common(a):
    a.raw(f".globl {KN}\n.p2align 8\n.type {KN},@function")
    a.L(KN)
    a.I("s_cmp_ge_u32 s2, 256\ns_cbranch_scc1 L_end")
    a.I("s_load_dwordx16 s[4:19], s[0:1], 0\ns_load_dwordx4 s[20:23], s[0:1], 64\ns_load_dwordx2 s[24:25], s[0:1], 80")
    a.I(f"v_lshrrev_b32 v1, 6, v0\nv_and_b32 v{V_LANE}, 63, v0")
    a.I(f"v_readfirstlane_b32 s{S_WAVE}, v1\nv_lshlrev_b32 v{V_L16}, 4, v{V_LANE}")
    if CODEPF:
        a.I("s_getpc_b64 s[94:95]\ns_and_b32 s94, s94, 0xffffff00")
        a.I(f"s_and_b32 s92, s2, 0xf8\ns_add_u32 s92, s92, s{S_WAVE}\ns_lshl_b32 s92, s92, 8")
        a.I(f"v_lshlrev_b32 v2, 7, v{V_LANE}\nv_add_u32 v2, s92, v2\ns_mov_b64 exec, 3")
        a.I("global_load_dword v252, v2, s[94:95]\ns_mov_b64 exec, -1")
    a.I(f"s_and_b32 s{S_I}, s{S_WAVE}, 3\ns_mov_b32 s{S_M16}, 0xffff0000")
    a.I(f"s_and_b32 s{T}, s2, 1\ns_lshl_b32 s{T}, s{T}, 3\ns_bfe_u32 s{S_RB}, s2, 0x30003\ns_add_u32 s{S_RB}, s{S_RB}, s{T}")
    a.I(f"s_and_b32 s{T}, s2, 6\ns_bfe_u32 s{S_CG}, s2, 0x10006\ns_add_u32 s{S_CG}, s{S_CG}, s{T}\ns_lshr_b32 s{T}, s2, 7\ns_lshl_b32 s{T}, s{T}, 3\ns_add_u32 s{S_CG}, s{S_CG}, s{T}")
    if G2MAP == 0:
        a.I(f"s_and_b32 s{S_RB2}, s2, 7\ns_lshl_b32 s{S_RB2}, s{S_RB2}, 2\ns_bfe_u32 s{T}, s2, 0x20003\ns_add_u32 s{S_RB2}, s{S_RB2}, s{T}")
        a.I(f"s_lshr_b32 s{S_CG2}, s2, 5")
    else:
        a.I(f"s_and_b32 s{S_RB2}, s2, 6\ns_lshl_b32 s{S_RB2}, s{S_RB2}, 2\ns_bfe_u32 s{T}, s2, 0x30003\ns_add_u32 s{S_RB2}, s{S_RB2}, s{T}")
        a.I(f"s_and_b32 s{S_CG2}, s2, 1\ns_lshl_b32 s{S_CG2}, s{S_CG2}, 2\ns_lshr_b32 s{T}, s2, 6\ns_add_u32 s{S_CG2}, s{S_CG2}, s{T}")
    a.I(f"s_mov_b32 s{S_JA}, 0\ns_mov_b32 s{S_JB}, 0\ns_mov_b32 s{S_STR}, 3840\ns_mov_b32 s{S_CSB}, {CS_OFF}\ns_mov_b32 s{S_NP}, 28")
    a.I(f"s_cmp_lt_u32 s{S_CG}, 8\ns_cbranch_scc1 L_t_kvq\ns_cmp_eq_u32 s{S_CG}, 15\ns_cbranch_scc1 L_t_qx")
    a.I(f"s_mov_b32 s{S_TYPE}, 1\ns_sub_u32 s{T}, s{S_CG}, 8\ns_mul_i32 s{S_BASE}, s{T}, 448\ns_mul_i32 s{S_KS0}, s{T}, 7")
    a.I(f"s_mov_b32 s{S_STR}, 3072\ns_mov_b32 s{S_CSB}, {CS_OFF + 1920*32}\ns_cmp_eq_u32 s{S_CG}, 14\ns_cselect_b32 s{S_NP}, 24, 28\ns_branch L_t_done")
    a.L("L_t_qx")
    a.I(f"s_mov_b32 s{S_TYPE}, 2\ns_mov_b32 s{S_BASE}, 1024\ns_mov_b32 s{S_KS0}, 64\ns_mov_b32 s{S_NP}, 16\ns_branch L_t_done")
    a.L("L_t_kvq")
    a.I(f"s_mov_b32 s{S_TYPE}, 0\ns_mul_i32 s{S_BASE}, s{S_CG}, 160\ns_add_u32 s{S_BASE}, s{S_BASE}, 1280\ns_mov_b32 s{S_JA}, 1120")
    a.I(f"s_lshl_b32 s{S_JB}, s{S_CG}, 5\ns_sub_u32 s{S_JB}, {hx(-2720)}, s{S_JB}")
    a.I(f"s_lshl_b32 s{S_KS0}, s{S_CG}, 1\ns_add_u32 s{S_KS0}, s{S_KS0}, {48-5}")
    a.L("L_t_done")
    a.I(f"s_cmp_lt_u32 s{S_WAVE}, 4\ns_cbranch_scc1 L_M\ns_cmp_ge_u32 s{S_WAVE}, 6\ns_cbranch_scc1 L_AUX")

def base_srds(a):
    a.I("s_waitcnt lgkmcnt(0)")
    mk_srd(a, SRD_X, S_X, 2048 * 1280)
    if WSMB: a.I(f"s_add_u32 s{S_WS}, s{S_WS}, {hx(WSMB << 20)}\ns_addc_u32 s{S_WS+1}, s{S_WS+1}, 0")
    mk_srd(a, SRD_WS, S_WS, WS_SIZE)

def loader(a):
    ST = Stamp("L")
    vm = Q("vmcnt", 63)
    if CODEPF: vm.issue("code")
    VW, VX, t0, t1, t2 = 4, 12, 16, 17, 18
    S_XK, S_WK, S_XB, S_MW, S_MX, S_W32, S_WEND = T + 2, T + 3, T + 4, T + 5, T + 6, T + 7, T + 8
    a.C("==== loader ====")
    ST(a, "rt0", True); ST(a, "start")
    a.I(f"v_lshrrev_b32 v{t0}, 3, v{V_LANE}\nv_and_b32 v{t1}, 7, v{V_LANE}\nv_lshrrev_b32 v{t2}, 1, v{t0}\nv_xor_b32 v{t1}, v{t1}, v{t2}")
    a.I(f"v_mul_u32_u24 v{t0}, 1280, v{t0}\nv_lshl_add_u32 v{VX}, v{t1}, 4, v{t0}\nv_xor_b32 v{VX+1}, 64, v{VX}")
    if ROT1 == 0: a.I(f"s_mov_b32 s{T}, 0")
    else:
        a.I(f"s_and_b32 s{T}, s{S_RB}, 7\ns_lshr_b32 s{T+1}, s2, 6")
        if ROT1 == 1: a.I(f"s_lshl_b32 s{T+1}, s{T+1}, 1\ns_add_u32 s{T}, s{T}, s{T+1}\ns_and_b32 s{T}, s{T}, 7\ns_mul_i32 s{T}, s{T}, 5\ns_lshr_b32 s{T}, s{T}, 2")
        else: a.I(f"s_add_u32 s{T}, s{T}, s{T+1}\ns_and_b32 s{T}, s{T}, 3\ns_mul_i32 s{T}, s{T}, 5\ns_lshr_b32 s{T}, s{T}, 1")
    a.I(f"s_lshl_b32 s{S_XK}, s{T}, 7\ns_lshl_b32 s{S_W32}, s{S_STR}, 5\ns_mul_i32 s{S_WK}, s{T}, s{S_W32}\ns_lshl_b32 s{S_WK}, s{S_WK}, 1")
    a.I(f"s_mul_i32 s{S_WEND}, s{S_STR}, 640")
    a.I(f"s_lshl_b32 s{S_XB}, s{S_RB}, 1\ns_add_u32 s{S_XB}, s{S_XB}, s{S_I}\ns_mul_i32 s{S_XB}, s{S_XB}, {64*1280}")
    a.I(f"s_mul_i32 s{S_MW}, s{S_I}, 7168\ns_lshl_b32 s{S_MX}, s{S_I}, 13\ns_add_u32 s{S_MX}, s{S_MX}, {XRING}")
    base_srds(a)
    def xl(c, half):
        if half == 0: a.I(f"s_add_u32 s{T+9}, s{S_XB}, s{S_XK}")
        for i in range(4 * half, 4 * half + 4):
            a.I(f"s_add_u32 m0, s{S_MX}, {(c%3)*16384 + i*1024}")
            a.I(f"s_add_u32 s{T}, s{T+9}, {i*10240}")
            a.I(f"buffer_load_dwordx4 v{VX+(i&1)}, {srd(SRD_X)}, s{T} offen lds")
            vm.issue(("x", c))
        if half == 0:
            a.I(f"s_add_u32 s{S_XK}, s{S_XK}, 128\ns_cmp_eq_u32 s{S_XK}, 1280\ns_cselect_b32 s{S_XK}, 0, s{S_XK}")
    def wl(h):
        for it in range(7):
            a.I(f"s_add_u32 m0, s{S_MW}, {(h%6)*WSLOT + it*1024}")
            a.I("s_nop 0")
            a.I(f"buffer_load_dwordx4 v{VW+it}, {srd(SRD_W)}, s{S_WK} offen lds")
            vm.issue(("W", h))
        a.I(f"s_add_u32 s{S_WK}, s{S_WK}, s{S_W32}\ns_cmp_eq_u32 s{S_WK}, s{S_WEND}\ns_cselect_b32 s{S_WK}, 0, s{S_WK}")
    xl(0, 0); xl(0, 1)
    a.I(f"s_cmp_eq_u32 s{S_TYPE}, 1\ns_cselect_b32 s{SRD_W}, s{S_W1}, s{S_WQKV}\ns_cselect_b32 s{SRD_W+1}, s{S_W1+1}, s{S_WQKV+1}")
    a.I(f"s_mov_b32 s{SRD_W+2}, s{S_WEND}\ns_mov_b32 s{SRD_W+3}, 0x20000")
    a.I(f"s_lshl_b32 s{T}, s{S_I}, 4\ns_mul_i32 s{T}, s{T}, s{S_STR}\ns_add_u32 s{T}, s{T}, s{S_BASE}")
    a.I(f"v_mov_b32 v20, s{S_JA}\nv_mov_b32 v21, s{S_JB}\nv_mov_b32 v22, 0x40000000")
    for it in range(7):
        a.I(f"v_add_u32 v{t0}, {64*it}, v{V_LANE}\nv_mul_u32_u24 v{t1}, 2341, v{t0}\nv_lshrrev_b32 v{t1}, 16, v{t1}")
        a.I(f"v_mul_u32_u24 v{t2}, 28, v{t1}\nv_sub_u32 v{t0}, v{t0}, v{t2}")
        a.I(f"v_mul_lo_u32 v{t1}, v{t1}, s{S_STR}\nv_lshl_add_u32 v{t1}, v{t0}, 4, v{t1}")
        a.I(f"v_cmp_le_u32 vcc, 10, v{t0}\nv_add_u32 v{t1}, s{T}, v{t1}")
        a.I(f"v_cndmask_b32 v{t2}, 0, v20, vcc\nv_cmp_le_u32 vcc, 20, v{t0}\nv_add_u32 v{t1}, v{t1}, v{t2}")
        a.I(f"v_cndmask_b32 v{t2}, 0, v21, vcc\nv_cmp_le_u32 vcc, s{S_NP}, v{t0}\nv_add_u32 v{t1}, v{t1}, v{t2}")
        a.I(f"v_cndmask_b32 v{VW+it}, v{t1}, v22, vcc")
    def step(h):
        if h > 19: return
        if h == 0: wl(0)
        elif h & 1:
            wl(h)
            if (h + 1) // 2 < 10: xl((h + 1) // 2, 0)
        else:
            xl(h // 2, 1); wl(h)
    step(0)
    a.I("s_barrier")
    step(1)
    bg = bg_jobs(a, vm)
    for h in range(20):
        vm.wait(a, ("W", h))
        if h % 2 == 0: ST(a, f"P{h}w")
        a.I("s_barrier")
        step(h + 2)
        if h == 6: h2_setup(a)
        if h > S1A_POLL:
            for _ in range(BGRATE):
                if len(bg) > 30 - BGMAX: bg.pop(0)()
    ST(a, "ringend")
    h_rest(a, bg)
    ST(a, "breg")
    a.I("s_branch L_H2")
    return ST

def aux(a):
    ST = Stamp("A")
    vm = Q("vmcnt", 63)
    if CODEPF: vm.issue("code")
    L = V_LANE
    X, CW, U = 0, 20, 200
    t0, t1, t2, t3 = 60, 61, 62, 63
    BIAS, VXA, VWA, VO, VI, VTRA, CSO, CSOM, VPF = 64, 68, 69, 70, 71, 72, 73, 74, 75
    S_AL, S_ROW, S_L, S_P, S_CB, S_ST, S_WO_, S_UK, S_UC, S_LB = (T + i for i in range(2, 12))
    a.L("L_AUX")
    a.C("==== aux ====")
    ST(a, "rt0", True); ST(a, "start")
    a.I(f"s_sub_u32 s{S_AL}, s{S_WAVE}, 6")
    UN = T + 12
    a.I(f"s_lshl_b32 s{UN}, s{S_AL}, 8\ns_add_u32 s{UN}, s{UN}, s2")
    a.I(f"s_mul_hi_u32 s{S_UK}, s{UN}, {hx((1<<32)//5+1)}\ns_mul_i32 s{S_UC}, s{S_UK}, 5\ns_sub_u32 s{S_UC}, s{UN}, s{S_UC}")
    a.I(f"v_lshrrev_b32 v{t0}, 3, v{L}\nv_and_b32 v{t1}, 7, v{L}")
    SO = T + 13
    a.I(f"s_cmp_ge_u32 s{S_UK}, 48\ns_cbranch_scc1 L_p0_att")
    a.I(f"v_lshrrev_b32 v{t2}, 2, v{t0}\nv_and_b32 v{t3}, 3, v{t0}\nv_lshl_add_u32 v{VO}, v{t2}, 4, v{t3}")
    a.I(f"v_mov_b32 v{VI}, {4*1280}\ns_lshl_b32 s{SO}, s{S_UK}, 5\ns_branch L_p0_cgo")
    a.L("L_p0_att")
    a.I(f"s_sub_u32 s{T}, s{S_UK}, 48\ns_mul_i32 s{T+1}, s{T}, 205\ns_lshr_b32 s{T+1}, s{T+1}, 10")
    a.I(f"s_mul_i32 s{SO}, s{T+1}, 5\ns_sub_u32 s{T}, s{T}, s{SO}\ns_lshl_b32 s{T}, s{T}, 3\ns_mul_i32 s{SO}, s{T+1}, 160")
    a.I(f"v_add_u32 v{t2}, s{T}, v{t0}")
    a.I(f"v_mul_u32_u24 v{t3}, 205, v{t2}\nv_lshrrev_b32 v{t3}, 10, v{t3}")
    a.I(f"v_mul_u32_u24 v{VO}, 5, v{t3}\nv_sub_u32 v{t2}, v{t2}, v{VO}")
    a.I(f"v_cmp_eq_u32 vcc, 4, v{t2}\nv_mov_b32 v{VO}, 16\nv_mov_b32 v{VI}, 1280")
    a.I(f"v_cndmask_b32 v{t2}, v{t2}, v{VO}, vcc\nv_mov_b32 v{VO}, {4*1280}")
    a.I(f"v_cndmask_b32 v{VI}, v{VO}, v{VI}, vcc")
    a.I(f"v_mad_u32_u24 v{VO}, v{t3}, 20, v{t2}")
    a.L("L_p0_cgo")
    a.I(f"v_mul_u32_u24 v{VO}, 1280, v{VO}\nv_lshl_add_u32 v{VO}, v{t1}, 4, v{VO}")
    a.I(f"s_mul_i32 s{SO}, s{SO}, 1280\ns_lshl_b32 s{T}, s{S_UC}, 8\ns_add_u32 s{SO}, s{SO}, s{T}")
    a.I(f"s_lshl_b32 s{S_LB}, s{S_AL}, 13\ns_add_u32 s{S_LB}, s{S_LB}, {P0_LDS}")
    a.I(f"v_mov_b32 v{t2}, 0\nv_lshlrev_b32 v{t3}, 2, v{L}\nv_add_u32 v{t3}, {SYNC_LDS}, v{t3}\nds_write_b32 v{t3}, v{t2}")
    for i in range(4): a.I(f"v_mov_b32 v{76+i}, 0")
    base_srds(a)
    a.I(f"s_cmp_ge_u32 s{S_UK}, 48\ns_cselect_b32 s{SRD_W}, s{S_WO}, s{S_W2}\ns_cselect_b32 s{SRD_W+1}, s{S_WO+1}, s{S_W2+1}")
    a.I(f"s_mov_b32 s{SRD_W+2}, {1536*1280}\ns_cselect_b32 s{SRD_W+2}, {640*1280}, s{SRD_W+2}\ns_mov_b32 s{SRD_W+3}, 0x20000")
    a.I(f"s_cmp_ge_u32 s{UN}, 340\ns_cselect_b32 s{SRD_W+2}, 0, s{SRD_W+2}")
    bar = [-1]
    def B(upto):
        while bar[0] <= upto:
            a.I("s_barrier"); bar[0] += 1
    B(-1)
    a.I(f"s_add_u32 s{T+1}, s{SO}, 128")
    for it in range(4):
        for ln in range(2):
            a.I(f"s_add_u32 m0, s{S_LB}, {ln*4096 + it*1024}\ns_nop 0")
            a.I(f"buffer_load_dwordx4 v{VO}, {srd(SRD_W)}, s{T+1 if ln else SO} offen lds")
            vm.issue("rl")
        if it < 3: a.I(f"v_add_u32 v{VO}, v{VO}, v{VI}")
    a.I(f"s_sub_u32 s{T}, s{UN}, 340\ns_lshl_b32 s{T+1}, s{T}, 10\ns_add_u32 s{T+1}, s{T+1}, {KV_OFF}\ns_cmp_lt_u32 s{T}, {ZERO_KB}\ns_cselect_b32 s{T+1}, s{T+1}, {WS_SIZE}")
    a.I(f"buffer_store_dwordx4 {q4(76)}, v{V_L16}, {srd(SRD_WS)}, s{T+1} offen {SC}")
    vm.issue("rls")
    LAM, QD = T + 14, T + 15
    a.I(f"s_lshr_b32 s{LAM}, s2, 4\ns_bfe_u32 s{QD}, s2, 0x20001\ns_and_b32 s{S_P}, s2, 1\ns_lshl_b32 s{S_P}, s{S_P}, 1\ns_bfe_u32 s{T}, s2, 0x10003\ns_add_u32 s{S_P}, s{S_P}, s{T}")
    a.I(f"s_lshr_b32 s{T}, s{QD}, 1\ns_mul_i32 s{T}, s{T}, 5\ns_and_b32 s{T+1}, s{QD}, 1\ns_mul_i32 s{S_L}, s{T+1}, 3\ns_add_u32 s{S_L}, s{S_L}, s{T}")
    a.I(f"s_add_u32 s{S_L}, s{S_L}, s{LAM}\ns_add_u32 s{S_L}, s{S_L}, 10")
    a.I(f"s_add_u32 s{T+1}, s{T+1}, s{LAM}\ns_cmp_ge_u32 s{T+1}, 3\ns_cselect_b32 s{T}, 7, 0\ns_add_u32 s{S_L}, s{S_L}, s{T}")
    a.I(f"s_lshl_b32 s{T}, s{QD}, 1\ns_add_u32 s{T}, s{T}, s{LAM}\ns_sub_u32 s{T}, s{T}, 5\ns_cmp_ge_u32 s{LAM}, 5\ns_cselect_b32 s{S_L}, s{T}, s{S_L}")
    a.I(f"s_mul_i32 s{T}, s{QD}, 7\ns_add_u32 s{T}, s{T}, s{LAM}\ns_add_u32 s{T}, s{T}, 23\ns_cmp_ge_u32 s{LAM}, 7\ns_cselect_b32 s{S_L}, s{T}, s{S_L}")
    a.I(f"s_cmp_ge_u32 s{LAM}, 14\ns_cselect_b32 s{S_L}, 64, s{S_L}")
    a.I(f"s_sub_u32 s{T}, s{S_L}, 46\ns_cmp_ge_u32 s{S_L}, 54\ns_cselect_b32 s{T+1}, s{T}, s{S_L}")
    a.I(f"s_cmp_ge_u32 s{S_L}, 56\ns_cselect_b32 s{S_L}, 64, s{T+1}")
    a.I(f"s_cmp_ge_u32 s{S_L}, 30")
    a.I(f"s_cselect_b32 s{SRD_T}, s{S_W1}, s{S_WQKV}\ns_cselect_b32 s{SRD_T+1}, s{S_W1+1}, s{S_WQKV+1}")
    a.I(f"s_mov_b32 s{S_ST}, 3840\ns_cselect_b32 s{S_ST}, 3072, s{S_ST}\ns_cselect_b32 s{S_CB}, 30, 0\ns_cselect_b32 s{SRD_U+2}, 3072, 0")
    a.I(f"s_mul_i32 s{SRD_T+2}, s{S_ST}, 640\ns_mov_b32 s{SRD_T+3}, 0x20000")
    a.I(f"s_mov_b32 s{SRD_U}, s{S_B1}\ns_mov_b32 s{SRD_U+1}, s{S_B1+1}\ns_mov_b32 s{SRD_U+3}, 0x20000")
    a.I(f"s_cmp_ge_u32 s{S_L}, 54\ns_cselect_b32 s{SRD_T+2}, 0, s{SRD_T+2}")
    a.I(f"s_sub_u32 s{S_CB}, s{S_L}, s{S_CB}\ns_lshl_b32 s{S_CB}, s{S_CB}, 7\ns_lshl_b32 s{T}, s{S_AL}, 6\ns_add_u32 s{S_CB}, s{S_CB}, s{T}")
    a.I(f"s_mul_i32 s{S_WO_}, s{S_P}, 160\ns_mul_i32 s{S_WO_}, s{S_WO_}, s{S_ST}\ns_add_u32 s{S_WO_}, s{S_WO_}, s{S_CB}")
    a.I(f"v_lshrrev_b32 v{t1}, 2, v{L}\nv_mul_lo_u32 v{t1}, v{t1}, s{S_ST}\nv_and_b32 v{t2}, 3, v{L}\nv_lshl_add_u32 v{VWA}, v{t2}, 4, v{t1}")
    a.I(f"s_lshl_b32 s{S_ST}, s{S_ST}, 4")
    a.I(f"v_lshrrev_b32 v{t0}, 4, v{L}\nv_bfe_u32 v{t1}, v{L}, 2, 2\nv_and_b32 v{t2}, 3, v{L}")
    a.I(f"v_lshl_add_u32 v{t0}, v{t0}, 3, v{t1}\nv_lshlrev_b32 v{t0}, 7, v{t0}\nv_lshl_add_u32 v{t0}, v{t2}, 3, v{t0}\nv_add_u32 v{VTRA}, s{S_LB}, v{t0}")
    a.I(f"s_lshl_b32 s{S_UC}, s{S_UC}, 3\ns_mul_i32 s{S_UK}, s{S_UK}, 5")
    a.I(f"s_cmp_ge_u32 s{UN}, 340\ns_cselect_b32 s{S_UK}, 0x4000, s{S_UK}")
    a.I("s_waitcnt lgkmcnt(0)")
    def wloads(i0, i1):
        for it in range(i0, i1):
            a.I(f"buffer_load_dwordx4 {q4(CW+4*it)}, v{VWA}, {srd(SRD_T)}, s{S_WO_} offen")
            vm.issue("w")
            a.I(f"s_add_u32 s{S_WO_}, s{S_WO_}, s{S_ST}")
    def relayout(ln):
        FR = U + 16 * ln
        for i in range(4):
            a.I(f"ds_read_b64_tr_b16 {pk(FR+4*i)}, v{VTRA} offset:{ln*4096+32*i}\nds_read_b64_tr_b16 {pk(FR+4*i+2)}, v{VTRA} offset:{ln*4096+32*i+512}")
        for i in range(4):
            a.I(f"s_mul_i32 s{T}, s{S_UC}, 205\ns_lshr_b32 s{T}, s{T}, 10\ns_mul_i32 s{T}, s{T}, 335\ns_add_u32 s{T}, s{T}, s{S_UC}\ns_add_u32 s{T}, s{T}, s{S_UK}")
            a.I(f"s_lshl_b32 s{T}, s{T}, 10\ns_add_u32 s{T}, s{T}, {B2_OFF}\ns_add_u32 s{S_UC}, s{S_UC}, 1")
            a.I(f"s_waitcnt lgkmcnt({6-2*i})")
            a.I(f"buffer_store_dwordx4 {q4(FR+4*i)}, v{V_L16}, {srd(SRD_WS)}, s{T} offen {SC}")
            vm.issue("rls")
    mark = [0]
    bg = bg_jobs(a, vm)
    pfs = []
    PV = 240
    def cost():
        c = 0
        for k, t in a.items[mark[0]:]:
            if k == "i": c += 8 if t.startswith("buffer_") else (0.5 if t.startswith("s_") else 1)
        return c
    def nxt():
        if bar[0] == S1A_POLL + 1:
            ST(a, "prepolla")
            poll_check(a, vm, SRD_W, PV, PV + 1, PV + 2, 4, "pa", 8)
            ST(a, "S1a")
        B(bar[0]); mark[0] = len(a.items)
        if bar[0] == S1A_POLL: poll_issue(a, vm, SRD_W, PV, PV + 2, 4, "pa")
        if bar[0] - 1 > S1A_POLL:
            for _ in range(BGRATE):
                if len(bg) > 30 - BGMAX: bg.pop(0)()
            if pfs and (bar[0] - S1A_POLL) % PFGAP == 0: pfs.pop(0)()
    def cut():
        if cost() >= BUDGET: nxt()
    def until(k):
        while bar[0] <= k: nxt()
    a.I(f"s_and_b32 s{T}, s{S_RB2}, 3\ns_mul_i32 s{T}, s{T}, {25*1024}\ns_mul_i32 s{T+1}, s{S_AL}, 12800\ns_add_u32 s{T}, s{T}, s{T+1}\ns_add_u32 s{T}, s{T}, {240*1024}")
    a.I(f"v_lshlrev_b32 v{PV+4}, 7, v{L}\nv_add_u32 v{PV+4}, s{T}, v{PV+4}\nv_add_u32 v{PV+5}, 6400, v{PV+4}")
    a.I(f"s_lshl_b32 s{T}, s{S_AL}, 30\ns_lshl_b32 s{T+1}, s{S_AL}, 6\ns_sub_u32 s{T+1}, 64, s{T+1}")
    a.I(f"v_lshlrev_b32 v{PV}, 6, v{L}\nv_add_u32 v{PV}, s{T}, v{PV}\nv_mov_b32 v{PV+1}, s{T+1}")
    def pf(i):
        def f():
            a.I(f"s_mov_b32 exec_hi, 0x3ffff\nbuffer_load_dword v{PV+3}, v{PV+4+i}, {srd(SRD_WS)}, s{S_BB} offen {SC}\ns_mov_b32 exec_hi, -1")
            vm.issue("bg")
        return f
    if BPF: pfs += [pf(0), pf(1)]
    if APRIO: a.I(f"s_setprio {APRIO}")
    until(0)
    ST(a, "P0")
    vm.wait(a, "rl")
    relayout(0)
    relayout(1)
    nxt()
    wloads(0, 10)
    a.I(f"v_lshlrev_b32 v{t3}, 1, v{L}")
    a.I(f"buffer_load_ushort v{BIAS}, v{t3}, {srd(SRD_U)}, s{S_CB} offen")
    vm.issue("w")
    nxt()
    mk_srd(a, SRD_W, S_DBG, 256)
    h2_setup(a)
    vm.wait(a, "rls")
    ST(a, "rlsdone")
    nxt()
    a.I(f"s_and_b32 s{T}, s2, 3\ns_lshl_b32 s{T}, s{T}, 6\ns_lshl_b32 s{T+1}, s{S_AL}, 8\ns_add_u32 s{T}, s{T}, s{T+1}")
    a.I(f"v_mov_b32 v{t0}, s{T}\nv_mov_b32 v{t1}, 1\ns_mov_b64 exec, 1")
    if not NOS1:
        a.I(f"buffer_atomic_add v{t1}, v{t0}, {srd(SRD_W)}, 0 offen")
        vm.issue("sig")
    a.I("s_mov_b64 exec, -1")
    vm.wait(a, "w")
    AC, m0_ = 0, 76
    E = 8
    for it in range(10):
        dst = AC if it == 0 else E
        for i in range(4):
            a.I(f"v_lshlrev_b32 v{dst+2*i}, 16, v{CW+4*it+i}\nv_and_b32 v{dst+2*i+1}, s{S_M16}, v{CW+4*it+i}")
        if it:
            for i in range(8): a.I(f"v_add_f32 v{AC+i}, v{AC+i}, v{E+i}")
        cut()
    for i in range(4): a.I(f"v_permlane32_swap_b32 v{AC+i}, v{AC+i+4}")
    for i in range(4): a.I(f"v_add_f32 v{AC+i}, v{AC+i}, v{AC+i+4}")
    for i in range(2): a.I(f"v_permlane16_swap_b32 v{AC+i}, v{AC+i+2}")
    for i in range(2): a.I(f"v_add_f32 v{AC+i}, v{AC+i}, v{AC+i+2}")
    for m in ("row_ror:8", "row_ror:4"):
        for i in range(2): a.I(f"v_add_f32_dpp v{AC+i}, v{AC+i}, v{AC+i} {m} row_mask:0xf bank_mask:0xf")
    cut()
    a.I(f"v_bfe_u32 v{t0}, v{L}, 2, 1\nv_cmp_eq_u32 vcc, 1, v{t0}\nv_and_b32 v{t1}, 3, v{L}\nv_lshl_add_u32 v{t0}, v{t1}, 3, v{t0}")
    a.I(f"v_cndmask_b32 v{AC}, v{AC}, v{AC+1}, vcc\nv_lshrrev_b32 v{t1}, 4, v{L}\nv_lshl_add_u32 v{t0}, v{t1}, 1, v{t0}\nv_lshlrev_b32 v{t0}, 5, v{t0}")
    a.I(f"v_cvt_pk_bf16_f32 v{t2}, v{AC}, v{AC}\nv_and_b32 v{t2}, s{S_M16}, v{t2}\nv_sub_f32 v{t2}, v{AC}, v{t2}\nv_cvt_pk_bf16_f32 v{t2}, v{AC}, v{t2}")
    a.I(f"s_lshl_b32 s{T}, s{S_L}, 11\ns_lshl_b32 s{T+1}, s{S_AL}, 10\ns_add_u32 s{T}, s{T}, s{T+1}\ns_add_u32 s{T}, s{T}, {CS_OFF}")
    a.I(f"s_cmp_ge_u32 s{S_L}, 54\ns_cselect_b32 s{T}, {WS_SIZE}, s{T}")
    a.I(f"s_lshl_b32 s{T+1}, s{S_P}, 2\ns_add_u32 s{T+1}, s{T+1}, s{T}")
    a.I("s_mov_b32 exec_lo, 0x00ff00ff\ns_mov_b32 exec_hi, 0x00ff00ff")
    a.I(f"buffer_store_dword v{t2}, v{t0}, {srd(SRD_WS)}, s{T+1} offen {SC}")
    vm.issue("st")
    a.I(f"s_mov_b64 exec, -1\ns_cmp_lg_u32 s{S_P}, 0\ns_cselect_b32 s{T}, {WS_SIZE}, s{T}")
    a.I(f"v_mov_b32 v{BIAS+1}, 0\nv_mov_b32 v{BIAS+2}, 0\nv_mov_b32 v{BIAS+3}, 0\nv_lshlrev_b32 v{t1}, 5, v{L}\ns_mov_b32 exec_hi, 0")
    a.I(f"buffer_store_dwordx4 {q4(BIAS)}, v{t1}, {srd(SRD_WS)}, s{T} offen offset:16 {SC}")
    vm.issue("st")
    a.I("s_mov_b64 exec, -1")
    ST(a, "p0done")
    print("aux: phase-0 compute ends in interval", bar[0] - 1)
    nxt()
    a.I(f"v_and_b32 v{t0}, 7, v{L}\nv_bfe_u32 v{t1}, v{L}, 4, 1\nv_lshl_add_u32 v{t0}, v{t1}, 3, v{t0}")
    a.I(f"v_bfe_u32 v{t1}, v{L}, 3, 1\nv_lshl_add_u32 v{t0}, v{t1}, 4, v{t0}\nv_lshlrev_b32 v{t0}, 5, v{t0}")
    a.I(f"v_lshrrev_b32 v{t2}, 5, v{L}\nv_lshl_add_u32 v{CSO}, v{t2}, 4, v{t0}")
    a.I(f"s_lshl_b32 s{T}, s{S_JA}, 4\nv_mul_lo_u32 v{t1}, v{t1}, s{T}\nv_add_u32 v{CSOM}, v{CSO}, v{t1}")
    until(S1A_POLL)
    vm.wait(a, "st")
    assert bar[0] >= M_DRAIN, bar[0]
    nxt()
    print("aux: S1b signalled in interval", bar[0] - 1)
    a.I(f"s_and_b32 s{T}, s2, 7\ns_lshl_b32 s{T}, s{T}, 8\ns_add_u32 s{T}, s{T}, {CNT_OFF+24576}\ns_cmp_lg_u32 s{S_AL}, 0\ns_cselect_b32 s{T}, {WS_SIZE}, s{T}")
    a.I(f"v_mov_b32 v{t0}, s{T}\nv_mov_b32 v{t1}, 1\ns_mov_b64 exec, 1")
    if not NOS1:
        a.I(f"buffer_atomic_add v{t1}, v{t0}, {srd(SRD_WS)}, 0 offen")
        vm.issue("sig")
    a.I("s_mov_b64 exec, -1")
    a.I(f"s_lshl_b32 s{T}, s{S_AL}, 30\ns_add_u32 s{T}, s{T}, {CNT_OFF+24576}\ns_lshl_b32 s{T+1}, s{S_AL}, 5\ns_sub_u32 s{T+1}, 32, s{T+1}")
    a.I(f"v_lshlrev_b32 v{PV}, 8, v{L}\nv_add_u32 v{PV}, s{T}, v{PV}\nv_mov_b32 v{PV+1}, s{T+1}")
    until(S1B_POLL - 1)
    poll_issue(a, vm, SRD_WS, PV, PV + 2, 8, "pb")
    nxt()
    ST(a, "prepollb")
    poll_check(a, vm, SRD_WS, PV, PV + 1, PV + 2, 8, "pb", 8)
    ST(a, "S1b")
    nxt()
    a.I(f"s_cmp_lg_u32 s{S_AL}, 0\ns_cbranch_scc1 L_ext_b")
    def cs(t, r):
        a.I(f"s_add_u32 s{T}, s{S_BASE}, {64*t}")
        if t >= 3: a.I(f"s_add_u32 s{T}, s{T}, s{S_JA}")
        if t >= 5: a.I(f"s_add_u32 s{T}, s{T}, s{S_JB}")
        a.I(f"s_lshl_b32 s{T}, s{T}, 4\ns_add_u32 s{T}, s{T}, s{S_CSB}")
        a.I(f"buffer_load_dwordx4 {q4(r)}, v{CSOM if t == 2 else CSO}, {srd(SRD_WS)}, s{T} offen {SC}")
    for t in range(4): cs(t, X + 4 * t)
    a.I("s_branch L_ext_c")
    a.L("L_ext_b")
    for t in range(4, 7): cs(t, X + 4 * (t - 4))
    a.I(f"s_lshl_b32 s{T}, s{S_RB}, 10\ns_add_u32 s{T}, s{T}, {STAT_OFF}")
    a.I(f"buffer_load_dwordx4 {q4(X+12)}, v{V_L16}, {srd(SRD_WS)}, s{T} offen {SC}")
    a.L("L_ext_c")
    vm.issue("ext")
    a.I(f"s_lshl_b32 s{T}, s{S_AL}, 12\ns_add_u32 s{T}, s{T}, {EXT_LDS}\nv_add_u32 v{t0}, s{T}, v{V_L16}")
    until(18)
    vm.wait(a, "ext")
    for i in range(4): a.I(f"ds_write_b128 v{t0}, {q4(X+4*i)} offset:{1024*i}")
    a.I("s_waitcnt lgkmcnt(0)")
    until(19)
    print("aux: background jobs left after the ring:", len(bg))
    if APRIO: a.I("s_setprio 0")
    h_rest(a, bg)
    ST(a, "ringend")
    return ST
BPF = 0
BR, AR = 80, 200

def h2_setup(a):
    g2_common(a)
    if ROT2:
        if G2MAP == 0:
            a.I(f"s_and_b32 s{T}, s{S_RB2}, 3\ns_mul_i32 s{T}, s{T}, 3\ns_mul_i32 s{T+1}, s{S_CG2}, 3\ns_lshr_b32 s{T+1}, s{T+1}, 1\ns_add_u32 s{T}, s{T}, s{T+1}")
        elif ROT2 == 2:
            a.I(f"s_and_b32 s{T}, s{S_CG2}, 1\ns_mul_i32 s{T}, s{T}, 6\ns_and_b32 s{T+1}, s{S_RB2}, 7\ns_mul_i32 s{T+1}, s{T+1}, 3\ns_lshr_b32 s{T+1}, s{T+1}, 1\ns_add_u32 s{T}, s{T}, s{T+1}")
        else:
            a.I(f"s_and_b32 s{T}, s{S_CG2}, 3\ns_mul_i32 s{T}, s{T}, 3\ns_and_b32 s{T+1}, s{S_RB2}, 7\ns_mul_i32 s{T+1}, s{T+1}, 3\ns_lshr_b32 s{T+1}, s{T+1}, 1\ns_add_u32 s{T}, s{T}, s{T+1}")
        a.I(f"s_cmp_ge_u32 s{T}, 12\ns_cselect_b32 s{T+1}, 12, 0\ns_sub_u32 s{T}, s{T}, s{T+1}")
    else: a.I(f"s_mov_b32 s{T}, 0")
    a.I(f"s_mul_i32 s{T+1}, s{S_I}, 12")
    for j in range(12):
        a.I(f"s_add_u32 s{S_KK+j}, s{T}, s{T+1}\ns_lshl_b32 s{S_KK+j}, s{S_KK+j}, 10")
        if j < 11: a.I(f"s_add_u32 s{T}, s{T}, 1\ns_cmp_eq_u32 s{T}, 12\ns_cselect_b32 s{T}, 0, s{T}")
    a.I(f"s_mul_i32 s{S_BB}, s{S_CG2}, {68*5*1024}\ns_add_u32 s{S_BB}, s{S_BB}, {B2_OFF}")

def bg_jobs(a, vm):
    def ld(j, ct):
        def f():
            a.I(f"s_mul_i32 s{T}, s{S_KK+j}, 5\ns_add_u32 s{T}, s{T}, s{S_BB}")
            if ct == 4: a.I(f"s_add_u32 s{T}, s{T}, 4096")
            a.I(f"buffer_load_dwordx4 {q4(BR+20*j+4*ct)}, v{V_L16}, {srd(SRD_WS)}, s{T} offen offset:{(ct&3)*1024} {SC}")
            vm.issue("bg")
        return f
    return [ld(j, ct) for j in range(6) for ct in range(5)]

def h_rest(a, bg):
    n = 0
    while bg:
        if n == N1: lds_wait_ge(a, 7, 4, 248)
        bg.pop(0)(); n += 1
        if THR: a.I(f"s_waitcnt vmcnt({THR})")
    if n == N1: lds_wait_ge(a, 7, 4, 248)

def bload(a, vm, j, regs, tag, thr):
    a.I(f"s_mul_i32 s{T}, s{S_KK+j}, 5\ns_add_u32 s{T}, s{T}, s{S_BB}\ns_add_u32 s{T+1}, s{T}, 4096")
    for ct in range(5):
        a.I(f"buffer_load_dwordx4 {q4(regs[ct])}, v{V_L16}, {srd(SRD_WS)}, s{T + (ct >> 2)} offen offset:{(ct&3)*1024} {SC}")
        if vm: vm.issue(tag)
        if thr: a.I(f"s_waitcnt vmcnt({thr})")


def g2_common(a):
    for sg in range(4):
        a.I(f"s_add_u32 s{T}, s{S_I}, {sg}")
        if ROT2: a.I(f"s_add_u32 s{T}, s{T}, s{S_CG2}")
        a.I(f"s_and_b32 s{T}, s{T}, 3\ns_lshl_b32 s{T+1}, s{S_RB2}, 2\ns_add_u32 s{T}, s{T}, s{T+1}")
        a.I(f"s_mul_i32 s{S_A+sg}, s{T}, {68*1024}")
        if sg == 0: a.I(f"s_mul_i32 s{S_OUTS}, s{T}, {16*1280}\ns_mul_i32 s{S_B2S}, s{S_CG2}, 160\ns_add_u32 s{S_OUTS}, s{S_OUTS}, s{S_B2S}")
S_OUTS, S_B2S, S_BB = 98, 99, 100

def hzone(a, sidx, dst):
    a.I(f"s_sub_u32 s{dst}, s{sidx}, 1\ns_mul_i32 s{dst}, s{dst}, {HZS}\ns_add_u32 s{dst}, s{dst}, {HZ1}\ns_cmp_eq_u32 s{sidx}, 0\ns_cselect_b32 s{dst}, 0, s{dst}")

def out_addr(a, VO, VB, t0):
    a.I(f"v_and_b32 v{t0}, 15, v{V_LANE}\nv_mul_u32_u24 v{t0}, 1280, v{t0}\nv_lshrrev_b32 v{VB}, 4, v{V_LANE}\nv_lshlrev_b32 v{VB}, 3, v{VB}")
    a.I(f"v_add_u32 v{VO}, v{t0}, v{VB}")

def res_issue(a, vm, cts, RES, VO, VB):
    mk_srd(a, SRD_T, S_B2, 1280)
    mk_srd(a, SRD_U, S_OUT, 2048 * 1280)
    for k, ct in enumerate(cts):
        a.I(f"buffer_load_dwordx2 {pk(RES+4*k)}, v{VO}, {srd(SRD_X)}, s{S_OUTS} offen offset:{ct*32}")
        a.I(f"buffer_load_dwordx2 {pk(RES+4*k+2)}, v{VB}, {srd(SRD_T)}, s{S_B2S} offen offset:{ct*32}")
        vm.issue("R"); vm.issue("R")

def res_unpack(cts, RES, OUT):
    o = []
    for k, ct in enumerate(cts):
        for src, d in ((RES + 4 * k, OUT + 8 * k), (RES + 4 * k + 2, OUT + 8 * k + 4)):
            for i in range(2):
                o += [f"v_lshlrev_b32 v{d+2*i}, 16, v{src+i}", f"v_and_b32 v{d+2*i+1}, s{S_M16}, v{src+i}"]
        for i in range(4): o.append(f"v_add_f32 v{OUT+8*k+i}, v{OUT+8*k+i}, v{OUT+8*k+4+i}")
    return o

def red_addrs(a, VM, VH, VX):
    for sg in range(4):
        a.I(f"s_sub_u32 s{T+2}, s{S_I}, {sg}\ns_and_b32 s{T+2}, s{T+2}, 3")
        if sg:
            a.I(f"s_mul_i32 s{T}, s{T+2}, {MZS}\ns_add_u32 s{T}, s{T}, {MZ}\nv_add_u32 v{VM+sg}, s{T}, v{V_L16}")
        hzone(a, T + 2, T)
        a.I(f"v_add_u32 v{VH+sg}, s{T}, v{V_L16}")
    a.I(f"s_lshl_b32 s{T}, s{S_I}, 11\ns_add_u32 s{T}, s{T}, {EXT_LDS}\nv_add_u32 v{VX}, s{T}, v{V_L16}")

def final_sum(a, role, cts, OWN, BUF, VM, VH, VX, VO):
    lg = Q("lgkmcnt", 15)
    srcs = []
    for sg in range(4):
        if sg: srcs.append(lambda ct, sg=sg: (VM + sg, ((sg - 1) * 5 + ct) * 1024))
        elif role == 1: srcs.append(lambda ct: (VX, (ct - 3) * 1024))
        if sg or role == 0: srcs.append(lambda ct, sg=sg: (VH + sg, (sg * 5 + ct) * 1024))
    n = len(cts)
    def rd(j):
        for k, ct in enumerate(cts):
            v, off = srcs[j](ct)
            a.I(f"ds_read_b128 {q4(BUF+(j*n+k)*4)}, v{v} offset:{off}")
            lg.issue(j)
    ahead = 15 // n
    for j in range(min(ahead, 7)): rd(j)
    for j in range(7):
        lg.wait(a, j)
        if j + ahead < 7: rd(j + ahead)
        for k, ct in enumerate(cts):
            for i in (0, 2): a.I(f"v_pk_add_f32 {pk(OWN+4*ct+i)}, {pk(OWN+4*ct+i)}, {pk(BUF+(j*n+k)*4+i)}")
    for ct in cts:
        d = OWN + 4 * ct
        a.I(f"v_cvt_pk_bf16_f32 v{d}, v{d}, v{d+1}\nv_cvt_pk_bf16_f32 v{d+1}, v{d+2}, v{d+3}")
        a.I(f"buffer_store_dwordx2 {pk(d)}, v{VO}, {srd(SRD_U)}, s{S_OUTS} offen offset:{ct*32}")

def h2(a, STs):
    class Both:
        def __call__(self, a_, name, real=False):
            if not STAMPS: return
            n = max(s.n for s in STs)
            for s in STs:
                while s.n < n: s.names.append("-"); s.n += 1
            a_.I(f"{'s_memrealtime' if real else 's_memtime'} s[92:93]\ns_waitcnt lgkmcnt(0)\nv_writelane_b32 v{V_STAMP}, s92, {n}")
            for s in STs: s.names.append(name); s.n += 1
    ST = Both()
    vm = Q("vmcnt", 63); lg = Q("lgkmcnt", 15)
    ACC = 0
    VT = 248
    a.L("L_H2")
    a.C("==== gemm2, FFN part (waves 4..7) ====")
    for j in range(6, 10): bload(a, vm, j, [20 * (j - 6) + 4 * ct for ct in range(5)], ("bl", j), THR)
    ST(a, "bissued")
    lds_wait_ge(a, 0, 4, VT)
    hzone(a, S_I, T)
    VBL = VT + 4
    a.I(f"v_add_u32 v{VBL}, s{T}, v{V_L16}")
    for j in range(6, 10):
        vm.wait(a, ("bl", j))
        for ct in range(5):
            a.I(f"ds_write_b128 v{VBL}, {q4(20*(j-6)+4*ct)} offset:{(5*(j-6)+ct)*1024}")
        a.I("s_waitcnt lgkmcnt(5)")
    a.I("s_waitcnt lgkmcnt(0)")
    ST(a, "bdone")
    if HPRIO: a.I(f"s_setprio {HPRIO}")
    a.I(f"s_cmp_lg_u32 s{S_WAVE}, 7\ns_cbranch_scc1 L_h_nopoll\ns_setprio 3")
    a.I(f"s_lshr_b32 s{T}, s{S_RB2}, 1\ns_lshl_b32 s{T}, s{T}, 8\ns_add_u32 s{T}, s{T}, {CNT_OFF}\nv_mov_b32 v{VT}, s{T}\nv_mov_b32 v{VT+1}, 7")
    poll(a, SRD_WS, VT, VT + 1, VT + 2, 1, PSLEEP)
    lds_add(a, 3, VT)
    a.L("L_h_nopoll")
    lds_wait_ge(a, 3, 1, VT)
    a.I(f"s_setprio {HPRIO}")
    ST(a, "S2F")
    def aload(j):
        for sg in range(4):
            a.I(f"s_add_u32 s{T}, s{S_A+sg}, s{S_KK+j}")
            a.I(f"buffer_load_dwordx4 {q4(AR + (j%3)*16 + 4*sg)}, v{V_L16}, {srd(SRD_WS)}, s{T} offen {SC}")
            vm.issue(("A", j))
    def bslot(j): return BR + 20 * (j if j < 6 else (j - 10 if j >= 10 else j - 4))
    for j in range(3): aload(j)
    for j in range(12):
        if 6 <= j + 1 <= 9:
            for ct in range(5):
                a.I(f"ds_read_b128 {q4(bslot(j+1)+4*ct)}, v{VBL} offset:{(5*(j+1-6)+ct)*1024}")
                lg.issue(j + 1)
        vm.wait(a, ("A", j))
        lg.wait(a, j)
        if j in (0, 3, 6, 9): ST(a, f"A{j}")
        fill = []
        if j == 11:
            vm.wait(a, "R")
            fill = res_unpack([3, 4], RES, RU)
        sgs = (1, 2, 3, 0) if j == 11 else range(4)
        wq = []
        for k, sg in enumerate(sgs):
            for ct in range(5):
                d = ACC + (sg * 5 + ct) * 4
                cin = "0" if j == 0 else q4(d)
                a.I(f"v_mfma_f32_16x16x32_bf16 {q4(d)}, {q4(bslot(j)+4*ct)}, {q4(AR+(j%3)*16+4*sg)}, {cin}")
                if j == 11:
                    if not (sg == 0 and ct >= 3): wq.append(f"ds_write_b128 v{VBL}, {q4(d)} offset:{(sg*5+ct)*1024}")
                    if fill: a.I(fill.pop(0))
                    if k * 5 + ct >= 6: a.I(wq.pop(0))
        if j + 3 < 12: aload(j + 3)
        if j in (3, 4): bload(a, vm, j + 7, [bslot(j + 7) + 4 * ct for ct in range(5)], "late", None)
        if j == 9:
            RES, RU = BR + 40, BR + 60
            VM_, VH_, VX_, VO_, VB_ = AR, AR + 4, AR + 8, AR + 9, AR + 10
            out_addr(a, VO_, VB_, VT)
            res_issue(a, vm, [3, 4], RES, VO_, VB_)
            red_addrs(a, VM_, VH_, VX_)
    a.I("s_waitcnt lgkmcnt(8)")
    for x in wq + fill: a.I(x)
    for k, ct in enumerate([3, 4]):
        for i in (0, 2): a.I(f"v_pk_add_f32 {pk(ACC+4*ct+i)}, {pk(ACC+4*ct+i)}, {pk(RU+8*k+i)}")
    ST(a, "ffnend")
    a.I("s_waitcnt lgkmcnt(0)\ns_barrier")
    ST(a, "bar")
    final_sum(a, 1, [3, 4], ACC, BR, VM_, VH_, VX_, VO_)
    if STAMPS: a.I("s_waitcnt vmcnt(0)")
    ST(a, "end")
    ST(a, "rt1", True)
    stamp_dump(a, VT)
    a.I("s_endpgm")

K0C = -2.0 * math.sqrt(2.0 / math.pi) * math.log2(math.e)
K1C = K0C * 0.044715
ACC1, AF, BF = 0, 112, 120
V_E = 144
V_R, V_R2, V_SD, V_C0, V_C1, V_EPS = 160, 162, 164, 166, 168, 170
V_TRA, V_VA, V_HQO, V_KVW = 240, 242, 246, 247

def u_gelu(r0, Tm):
    P = range(0, 8, 2)
    pre = [f"v_pk_mul_f32 {pk(Tm+i)}, {pk(r0+i)}, {pk(r0+i)}" for i in P]
    pre += [f"v_pk_fma_f32 {pk(Tm+i)}, {pk(Tm+i)}, {pk(V_C1)}, {pk(V_C0)} op_sel_hi:[1,0,0]" for i in P]
    pre += [f"v_pk_mul_f32 {pk(Tm+i)}, {pk(Tm+i)}, {pk(r0+i)}" for i in P]
    mid = [f"v_exp_f32_e64 v{Tm+i}, v{Tm+i}" for i in range(8)]
    mid += [f"v_pk_fma_f32 {pk(Tm+i)}, {pk(Tm+i)}, {pk(V_SD)}, {pk(V_SD)} op_sel_hi:[1,0,0]" for i in P]
    mid += [f"v_rcp_f32_e64 v{Tm+i}, v{Tm+i}" for i in range(8)]
    post = [f"v_pk_mul_f32 {pk(Tm+i)}, {pk(Tm+i)}, {pk(r0+i)}" for i in P]
    post += [f"v_cvt_pk_bf16_f32 v{r0+i//2}, v{Tm+i}, v{Tm+i+1}" for i in P]
    return pre, mid, post
def u_phi(r0, Tm, n=8):
    P = range(0, n, 2); R = range(n, 8, 2)
    pre = [f"v_pk_mul_f32 {pk(Tm+i)}, {pk(r0+i)}, {pk(V_R2)} op_sel_hi:[1,0]" for i in P]
    pre += [f"v_pk_fma_f32 {pk(r0+i)}, {pk(r0+i)}, {pk(V_R)}, {pk(V_EPS)} op_sel_hi:[1,0,0]" for i in P]
    pre += [f"v_pk_mul_f32 {pk(Tm+i)}, {pk(r0+i)}, {pk(V_R)} op_sel_hi:[1,0]" for i in R]
    pre += [f"v_max_f32_e64 v{r0+i}, v{r0+i}, v{V_EPS}" for i in range(n)]
    mid = [f"v_exp_f32_e64 v{Tm+i}, v{Tm+i} clamp" for i in range(n)]
    post = [f"v_pk_add_f32 {pk(Tm+i)}, {pk(Tm+i)}, {pk(r0+i)}" for i in P]
    post += [f"v_cvt_pk_bf16_f32 v{r0+i//2}, v{Tm+i}, v{Tm+i+1}" for i in range(0, 8, 2)]
    return pre, mid, post
S_HQ = T + 10
def hq_store(t, u):
    r0 = ACC1 + 16 * t + 8 * u
    o = [f"s_add_u32 s{T+1}, s{S_HQ}, {0x10000 + t*1024}"] if u == 0 else []
    return o + [f"buffer_store_dwordx4 {q4(r0)}, v{V_HQO}, {srd(SRD_WS)}, s{T+1} offen offset:{u*512} {SC}"]
def ep_pipe(a, units, dly=0):
    n = len(units)
    st = [units[i][0](V_E + 8 * (i & 1)) for i in range(n)]
    a.raw(".p2align 3")
    for x in st[0][0]: a.I(x)
    pend = []
    for i in range(n + 1):
        mid = st[i][1] if i < n else []
        plain = []
        if i > 0:
            plain += st[i - 1][2]
            pend += units[i - 1][1]
            if i - 1 >= dly or i == n:
                k = len(pend) if (i == n or len(pend) <= 4) else 4
                if pend[k - 1].startswith("s_add"): k += 1
                plain += pend[:k]; pend = pend[k:]
        if i + 1 < n: plain += st[i + 1][0]
        tot = len(mid) + len(plain); mi = pi = 0
        while mi < len(mid) or pi < len(plain):
            if pi >= len(plain) or (mi < len(mid) and mi * len(plain) <= pi * len(mid)):
                a.I(mid[mi]); mi += 1
            else:
                a.I(plain[pi]); pi += 1

def mwave(a):
    ST = Stamp("M")
    L = V_LANE
    t0, t1, t2, t3 = V_E, V_E + 1, V_E + 2, V_E + 3
    a.L("L_M")
    a.C("==== M waves: phase 0 (re-layout of w2 / wo, zeroing) ====")
    ST(a, "rt0", True); ST(a, "start")
    if DIAG: a.I("s_memrealtime s[76:77]")
    ROW = T + 2
    X, U = 0, 12
    a.I(f"s_and_b32 s{T}, s2, 1\ns_lshl_b32 s{ROW}, s{T}, 10\ns_and_b32 s{T}, s2, 6\ns_lshl_b32 s{T}, s{T}, 7\ns_add_u32 s{ROW}, s{ROW}, s{T}")
    a.I(f"s_and_b32 s{T}, s2, 0xf8\ns_add_u32 s{ROW}, s{ROW}, s{T}\ns_lshl_b32 s{T}, s{S_WAVE}, 1\ns_add_u32 s{ROW}, s{ROW}, s{T}")
    a.I(f"v_lshrrev_b32 v{t0}, 5, v{L}\nv_and_b32 v{t1}, 31, v{L}\nv_mul_u32_u24 v{t0}, 1280, v{t0}")
    a.I(f"v_lshl_add_u32 v{t2}, v{t1}, 4, v{t0}\nv_lshl_add_u32 v{t3}, v{t1}, 3, v{t0}\ns_mul_i32 s{T}, s{ROW}, 1280")
    base_srds(a)
    a.I(f"buffer_load_dwordx4 {q4(X)}, v{t2}, {srd(SRD_X)}, s{T} offen")
    a.I(f"buffer_load_dwordx4 {q4(X+4)}, v{t2}, {srd(SRD_X)}, s{T} offen offset:512")
    a.I(f"buffer_load_dwordx2 {pk(X+8)}, v{t3}, {srd(SRD_X)}, s{T} offen offset:1024")
    a.C("==== gemm1 main loop ====")
    a.I(f"v_lshrrev_b32 v{t0}, 5, v{L}\nv_bfe_u32 v{t1}, v{L}, 2, 2\nv_lshl_add_u32 v{t0}, v{t0}, 3, v{t1}\nv_mul_u32_u24 v{t0}, 448, v{t0}")
    a.I(f"v_and_b32 v{t1}, 1, v{L}\nv_lshl_add_u32 v{t0}, v{t1}, 3, v{t0}\nv_bfe_u32 v{t1}, v{L}, 1, 1\nv_lshl_add_u32 v{t0}, v{t1}, 5, v{t0}")
    a.I(f"v_bfe_u32 v{t1}, v{L}, 4, 1\nv_lshl_add_u32 v{V_TRA}, v{t1}, 4, v{t0}\nv_add_u32 v{V_TRA+1}, {3*WSLOT}, v{V_TRA}")
    a.I(f"v_and_b32 v{t0}, 31, v{L}\nv_bfe_u32 v{t1}, v{L}, 1, 3\nv_lshrrev_b32 v{t2}, 5, v{L}\nv_xor_b32 v{t1}, v{t1}, v{t2}")
    a.I(f"v_lshlrev_b32 v{t0}, 7, v{t0}\nv_lshl_add_u32 v{t0}, v{t1}, 4, v{t0}\ns_lshl_b32 s{T}, s{S_WAVE}, 12\ns_add_u32 s{T}, s{T}, {XRING}")
    a.I(f"v_add_u32 v{V_VA}, s{T}, v{t0}")
    for ks in range(1, 4): a.I(f"v_xor_b32 v{V_VA+ks}, {32*ks}, v{V_VA}")
    a.I("s_barrier")
    def red32(v, tmp):
        for m in ("quad_perm:[1,0,3,2]", "quad_perm:[2,3,0,1]", "row_half_mirror", "row_mirror"):
            a.I(f"v_add_f32_dpp v{v}, v{v}, v{v} {m} row_mask:0xf bank_mask:0xf")
        a.I(f"v_mov_b32 v{tmp}, v{v}\nv_permlane16_swap_b32 v{v}, v{tmp}\nv_add_f32 v{v}, v{v}, v{tmp}")
    a.I("s_waitcnt vmcnt(0)")
    ST(a, "xin")
    for i in range(10):
        a.I(f"v_lshlrev_b32 v{U+2*i}, 16, v{X+i}\nv_and_b32 v{U+2*i+1}, s{S_M16}, v{X+i}")
    a.I(f"v_pk_add_f32 {pk(t0)}, {pk(U)}, {pk(U+2)}\nv_pk_add_f32 {pk(t2)}, {pk(U+4)}, {pk(U+6)}")
    for i in range(4, 10):
        r = t0 if i % 2 == 0 else t2
        a.I(f"v_pk_add_f32 {pk(r)}, {pk(r)}, {pk(U+2*i)}")
    a.I(f"v_pk_add_f32 {pk(t0)}, {pk(t0)}, {pk(t2)}\nv_add_f32 v{t0}, v{t0}, v{t1}")
    red32(t0, t1)
    a.I(f"v_mul_f32 v{t0}, {hx(f32(-1.0/640))}, v{t0}")
    for i in range(10):
        a.I(f"v_pk_add_f32 {pk(U+2*i)}, {pk(U+2*i)}, {pk(t0)} op_sel_hi:[1,0]")
    a.I(f"v_pk_mul_f32 {pk(t2)}, {pk(U)}, {pk(U)}\nv_pk_mul_f32 {pk(X)}, {pk(U+2)}, {pk(U+2)}")
    for i in range(2, 10):
        r = t2 if i % 2 == 0 else X
        a.I(f"v_pk_fma_f32 {pk(r)}, {pk(U+2*i)}, {pk(U+2*i)}, {pk(r)}")
    a.I(f"v_pk_add_f32 {pk(t2)}, {pk(t2)}, {pk(X)}\nv_add_f32 v{t2}, v{t2}, v{t3}")
    red32(t2, t3)
    a.I(f"v_mul_f32 v{t2}, {hx(f32(1.0/640))}, v{t2}")
    a.I(f"v_cvt_pk_bf16_f32 v{t2}, v{t2}, v{t2}\nv_and_b32 v{t2}, s{S_M16}, v{t2}")
    a.I(f"v_add_f32 v{t2}, {hx(f32(1e-5))}, v{t2}")
    a.I(f"v_cvt_pk_bf16_f32 v{t2}, v{t2}, v{t2}\nv_and_b32 v{t2}, s{S_M16}, v{t2}")
    a.I(f"v_sqrt_f32 v{t2}, v{t2}")
    a.I(f"v_cvt_pk_bf16_f32 v{V_E+4}, v{t0}, v{t2}")
    a.I(f"v_and_b32 v{t2}, s{S_M16}, v{V_E+4}")
    a.I(f"v_rcp_f32 v{V_E+5}, v{t2}")
    a.I(f"v_lshrrev_b32 v{t1}, 2, v{L}\ns_lshl_b32 s{T}, s{ROW}, 3\ns_add_u32 s{T}, s{T}, {STAT_OFF}")
    a.I("s_mov_b32 exec_lo, 1\ns_mov_b32 exec_hi, 1")
    a.I(f"buffer_store_dwordx2 {pk(V_E+4)}, v{t1}, {srd(SRD_WS)}, s{T} offen {SC}")
    a.I("s_mov_b64 exec, -1")
    if MPRIO: a.I(f"s_setprio {MPRIO}")
    ST(a, "p0done")
    lg = Q("lgkmcnt", 15)
    NM = 280
    def reads(m):
        h, r = divmod(m, 14); ks2, t = divmod(r, 7); g = m // 7
        if t == 0:
            c, ks = divmod(g, 4)
            a.I(f"ds_read_b128 {q4(AF+4*(g&1))}, v{V_VA+ks} offset:{(c%3)*16384}")
            lg.issue(m)
        slot = h % 6
        off = (slot % 3) * WSLOT + ks2 * 7168 + t * 64
        b = BF + (m % NB) * 4
        a.I(f"ds_read_b64_tr_b16 {pk(b)}, v{V_TRA + slot//3} offset:{off}")
        a.I(f"ds_read_b64_tr_b16 {pk(b+2)}, v{V_TRA + slot//3} offset:{off+1792}")
        lg.issue(m); lg.issue(m)
    def P(h):
        if h == M_DRAIN: a.I("s_waitcnt vmcnt(0)")
        a.I("s_barrier")
        if h % 2 == 0: ST(a, f"P{h}")
    P(0)
    for m in range(PD): reads(m)
    for m in range(NM):
        t = m % 7; g = m // 7
        lg.wait(a, m)
        d = ACC1 + 16 * t
        cin = "0" if m < 7 else f"v[{d}:{d+15}]"
        a.I(f"v_mfma_f32_32x32x16_bf16 v[{d}:{d+15}], {q4(BF+(m%NB)*4)}, {q4(AF+4*(g&1))}, {cin}")
        if m + PD < NM:
            if (m + PD) % 14 == 0: P((m + PD) // 14)
            reads(m + PD)
        elif m + PD == NM:
            a.I(f"v_and_b32 v{t0}, 31, v{L}\ns_lshl_b32 s{T}, s{S_WAVE}, 8\ns_add_u32 s{T}, s{T}, {EXT_LDS+7168}")
            a.I(f"v_lshl_add_u32 v{t0}, v{t0}, 3, s{T}\nv_add_u32 v{t1}, {EXT_LDS}, v{V_L16}")
            a.I(f"ds_read_b64 {pk(t2)}, v{t0}"); lg.issue("st")
        elif m + PD == NM + 1:
            for tt in (5, 6, 0, 1, 2, 3, 4):
                a.I(f"ds_read_b128 {q4(172+4*tt)}, v{t1} offset:{tt*1024}"); lg.issue(("e", tt))
    lds_add(a, 0, V_E + 4)
    lg.issue("add")
    ST(a, "mainend")
    XE = 200
    lg.wait(a, "st")
    a.I(f"v_cmp_gt_u32 vcc, 32, v{L}")
    a.I(f"v_and_b32 v{XE+1}, 0xffff, v{t2}\nv_lshl_or_b32 v{XE+1}, v{XE+1}, 16, v{XE+1}\nv_lshrrev_b32 v{XE}, 16, v{t2}")
    a.I(f"v_cndmask_b32 v{XE}, v{XE}, v{XE+1}, vcc\nv_cndmask_b32 v{XE+1}, 0, v{XE+1}, vcc")
    a.I(f"v_mov_b32 v{XE+2}, v{XE+1}\nv_mov_b32 v{XE+3}, v{XE+1}")
    a.I(f"v_mov_b32 v{V_R}, v{t3}\nv_and_b32 v{V_SD}, s{S_M16}, v{t2}")
    for t in (5, 6, 0, 1, 2, 3, 4):
        d = ACC1 + 16 * t
        lg.wait(a, ("e", t))
        a.I(f"v_mfma_f32_32x32x16_bf16 v[{d}:{d+15}], {q4(172+4*t)}, {q4(XE)}, v[{d}:{d+15}]")
        if t == 0:
            a.I(f"v_mul_f32 v{V_R2}, {hx(f32(math.log2(math.e)))}, v{V_R}\nv_mul_f32 v{V_C0}, {hx(f32(K0C))}, v{V_R}")
            a.I(f"v_mul_f32 v{V_C1}, v{V_R}, v{V_R}\nv_mul_f32 v{V_C1}, v{V_C1}, v{V_R}")
        if t == 1:
            a.I(f"v_mul_f32 v{V_C1}, {hx(f32(K1C))}, v{V_C1}\nv_mov_b32 v{V_EPS}, {hx(f32(1e-6))}")
            a.I(f"v_bfe_u32 v{t0}, v{L}, 4, 1\nv_mul_u32_u24 v{t0}, {68*1024}, v{t0}")
        if t == 2:
            a.I(f"v_and_b32 v{t1}, 15, v{L}\nv_lshl_add_u32 v{t0}, v{t1}, 4, v{t0}")
            a.I(f"v_lshrrev_b32 v{t1}, 5, v{L}\nv_lshl_add_u32 v{V_HQO}, v{t1}, 8, v{t0}")
    a.I(f"s_lshl_b32 s{T}, s{S_RB}, 2\ns_add_u32 s{T}, s{T}, s{S_WAVE}\ns_mul_i32 s{T}, s{T}, {2*68}")
    a.I(f"s_add_u32 s{T}, s{T}, s{S_KS0}\ns_lshl_b32 s{S_HQ}, s{T}, 10\ns_sub_u32 s{S_HQ}, s{S_HQ}, 0x10000")
    ST(a, "ext")
    SIG, SIGX = T + 11, T + 12
    a.I(f"s_lshl_b32 s{SIG}, s{S_RB}, 8\ns_add_u32 s{SIG}, s{SIG}, {CNT_OFF}\ns_mov_b32 s{SIGX}, 1")
    def tile_units(t, fn):
        return [((lambda Tm, r0=ACC1+16*t+8*u: fn(r0, Tm)), hq_store(t, u)) for u in range(2)]
    a.I(f"s_cmp_eq_u32 s{S_TYPE}, 0\ns_cbranch_scc1 L_ep_kvq\ns_cmp_eq_u32 s{S_TYPE}, 2\ns_cbranch_scc1 L_ep_qx")
    a.I(f"s_cmp_eq_u32 s{S_CG}, 14\ns_cselect_b32 s{T+2}, {WS_SIZE}, s{S_HQ}")
    un = []
    for t in (5, 6, 0, 1, 2, 3, 4):
        uu = tile_units(t, u_gelu)
        if t == 6: uu = [(f, [x.replace(f"s{S_HQ},", f"s{T+2},") for x in tl]) for f, tl in uu]
        un += uu
    ep_pipe(a, un, DLY)
    a.I("s_branch L_ep_done")
    a.L("L_ep_qx")
    a.I(f"s_add_u32 s{SIG}, s{SIG}, 4096\ns_nop 3")
    ep_pipe(a, [x for t in range(4) for x in tile_units(t, u_phi)])
    a.I("s_branch L_ep_done")
    a.L("L_ep_kvq")
    a.I(f"s_add_u32 s{SIG}, s{SIG}, 4096\ns_mov_b32 s{SIGX}, 0x1fe")
    a.I(f"v_and_b32 v{t0}, 31, v{L}\ns_lshl_b32 s{T}, s{S_WAVE}, 5\nv_add_u32 v{t0}, s{T}, v{t0}")
    a.I(f"v_mul_u32_u24 v{t0}, {KV_RS}, v{t0}\nv_lshrrev_b32 v{t1}, 5, v{L}\nv_lshl_add_u32 v{V_KVW}, v{t1}, 3, v{t0}\nv_add_u32 v{V_KVW}, {KVIMG}, v{V_KVW}")
    a.I(f"v_mov_b32 v{XE}, 0x3f803f80\nv_mov_b32 v{XE+1}, 0x3f803f80")
    a.I(f"ds_write_b64 v{V_KVW}, {pk(XE)} offset:320")
    un = [x for t in (5, 6) for x in tile_units(t, u_phi)] if QFIRST else []
    if not QFIRST: a.I(f"s_mov_b32 s{SIGX}, 0x1ff")
    for t in range(5):
        for u in range(2):
            r0 = ACC1 + 16 * t + 8 * u
            o = 8 * t + 2 * u
            n = 8 if t < 2 else (4 if t == 2 else 0)
            un.append(((lambda Tm, r0=r0, n=n: u_phi(r0, Tm, n)), [f"ds_write2_b64 v{V_KVW}, {pk(r0)}, {pk(r0+2)} offset0:{o} offset1:{o+4}"]))
    ep_pipe(a, un)
    a.I("s_waitcnt vmcnt(0) lgkmcnt(0)")
    lds_add(a, 1, 112)
    AK, AV, C = 114, 115, 116
    a.I(f"v_lshrrev_b32 v{AK}, 5, v{L}\nv_bfe_u32 v{AV}, v{L}, 2, 2\nv_lshl_add_u32 v{AK}, v{AK}, 3, v{AV}\nv_mul_u32_u24 v{AK}, {KV_RS}, v{AK}")
    a.I(f"v_add_u32 v{AK}, {KVIMG}, v{AK}")
    a.I(f"v_bfe_u32 v{C}, v{L}, 4, 1\nv_and_b32 v{AV}, 3, v{L}\nv_lshl_add_u32 v{C}, v{C}, 2, v{AV}")
    a.I(f"s_mul_i32 s{T}, s{S_WAVE}, 40\nv_lshlrev_b32 v{C+1}, 3, v{C}\nv_add_u32 v{C+1}, s{T}, v{C+1}")
    a.I(f"v_cmp_gt_u32 vcc, 5, v{C}\nv_add_u32 v{C+2}, 160, v{C+1}\nv_mov_b32 v{C+3}, 320")
    a.I(f"v_cndmask_b32 v{C+2}, v{C+3}, v{C+2}, vcc")
    a.I(f"v_add_u32 v{AV}, v{AK}, v{C+2}\nv_add_u32 v{AK}, v{AK}, v{C+1}")
    a.I(f"v_lshrrev_b32 v{C}, 5, v{L}\nv_mul_u32_u24 v{C}, 320, v{C}\nv_and_b32 v{C+1}, 31, v{L}\nv_lshl_add_u32 v{C}, v{C+1}, 2, v{C}")
    lds_wait_ge(a, 1, 4, 112)
    if QFIRST:
        a.I(f"s_cmp_eq_u32 s{S_WAVE}, 0\ns_cselect_b32 s{T}, s{SIG}, {WS_SIZE}\nv_mov_b32 v112, s{T}\nv_mov_b32 v113, 1\ns_mov_b64 exec, 1")
        a.I(f"buffer_atomic_add v113, v112, {srd(SRD_WS)}, 0 offen\ns_mov_b64 exec, -1")
    FK, FV, D = 0, 32, 64
    for kp in range(8):
        o = kp * 16 * KV_RS
        a.I(f"ds_read_b64_tr_b16 {pk(FK+4*kp)}, v{AK} offset:{o}\nds_read_b64_tr_b16 {pk(FK+4*kp+2)}, v{AK} offset:{o+4*KV_RS}")
        a.I(f"ds_read_b64_tr_b16 {pk(FV+4*kp)}, v{AV} offset:{o}\nds_read_b64_tr_b16 {pk(FV+4*kp+2)}, v{AV} offset:{o+4*KV_RS}")
        if kp >= 2:
            a.I("s_waitcnt lgkmcnt(8)")
            k2 = kp - 2
            a.I(f"v_mfma_f32_32x32x16_bf16 v[{D}:{D+15}], {q4(FV+4*k2)}, {q4(FK+4*k2)}, {'0' if k2 == 0 else f'v[{D}:{D+15}]'}")
    for k2 in (6, 7):
        a.I(f"s_waitcnt lgkmcnt({4*(7-k2)})")
        a.I(f"v_mfma_f32_32x32x16_bf16 v[{D}:{D+15}], {q4(FV+4*k2)}, {q4(FK+4*k2)}, v[{D}:{D+15}]")
    a.I(f"s_lshl_b32 s{T+2}, s{S_CG}, 2\ns_add_u32 s{T+2}, s{T+2}, s{S_WAVE}\ns_mul_i32 s{T+2}, s{T+2}, 1680\ns_add_u32 s{T+2}, s{T+2}, {KV_OFF}")
    a.I("s_mov_b32 exec_lo, 0xfffff\ns_mov_b32 exec_hi, 0xfffff")
    for r in range(12):
        if r == 9: a.I("s_mov_b32 exec_hi, 0")
        e = 8 * (r >> 2) + (r & 3)
        if not NOATOM: a.I(f"buffer_atomic_add_f32 v{D+r}, v{C}, {srd(SRD_WS)}, s{T+2} offen offset:{e*80}")
    a.I("s_mov_b64 exec, -1")
    if not QFIRST: ep_pipe(a, [x for t in (5, 6) for x in tile_units(t, u_phi)])
    a.L("L_ep_done")
    lds_add(a, 7, 112)
    ST(a, "epi")
    a.C("---- publish ----")
    vm = Q("vmcnt", 63)
    PQ, AC2, WO = 0, 80, 160
    VT = 240
    W_KVW, W_KT0, W_KT1, W_MZ = 250, 251, 252, 249
    u0, u1, u2, u3 = VT, VT + 1, VT + 2, VT + 3
    a.I(f"s_lshl_b32 s{T}, s{S_CG}, 11\ns_add_u32 s{T}, s{T}, {CNT_OFF+8192-256}\nv_lshlrev_b32 v114, 8, v{L}\nv_add_u32 v114, s{T}, v114\nv_mov_b32 v115, 1")
    a.I(f"v_writelane_b32 v114, s{SIG}, 0")
    g2_common(a)
    a.I(f"s_mul_i32 s{S_BB}, s{S_CG2}, {68*5*1024}\ns_mul_i32 s{T}, s{S_WAVE}, {25*1024}\ns_add_u32 s{S_BB}, s{S_BB}, s{T}\ns_add_u32 s{S_BB}, s{S_BB}, {B2_OFF + 48*5*1024}")
    WO4 = AC2 + 60
    def wor(t): return WO4 if t == 4 else WO + 20 * t
    def woload(t):
        a.I(f"s_add_u32 s{T}, s{S_BB}, {t*5120}\ns_add_u32 s{T+1}, s{T}, 4096")
        for ct in range(5):
            a.I(f"buffer_load_dwordx4 {q4(wor(t)+4*ct)}, v{V_L16}, {srd(SRD_WS)}, s{T+(ct>>2)} offen offset:{(ct&3)*1024} {SC}")
            vm.issue(("wo", t))
    vm.issue("stores")
    a.I(f"s_lshr_b32 s{T}, s{S_RB2}, 1\ns_lshl_b32 s{T}, s{T}, 8\ns_add_u32 s{T}, s{T}, {CNT_OFF+4096}\nv_mov_b32 v116, s{T}\nv_mov_b32 v117, 9")
    if QFIRST: poll_issue(a, vm, SRD_WS, 116, 118, 1, "pq?")
    for t in range(WODRAIN): woload(t)
    KB = T + 13
    a.I(f"s_mul_i32 s{KB}, s{S_WAVE}, {MZS}\ns_add_u32 s{KB}, s{KB}, {MZ}\nv_add_u32 v{W_MZ}, s{KB}, v{V_L16}")
    a.I(f"v_mul_u32_u24 v{u0}, 205, v{L}\nv_lshrrev_b32 v{u0}, 10, v{u0}\nv_mul_u32_u24 v{u1}, 5, v{u0}\nv_sub_u32 v{u1}, v{L}, v{u1}")
    a.I(f"v_lshlrev_b32 v{u0}, 6, v{u0}\nv_lshl_add_u32 v{u0}, v{u1}, 3, v{u0}")
    a.I(f"v_add_u32 v{W_KVW}, s{KB}, v{u0}")
    a.I(f"v_and_b32 v{u0}, 15, v{L}\nv_lshrrev_b32 v{u1}, 4, v{L}\nv_lshlrev_b32 v{u1}, 3, v{u1}\nv_add_u32 v{u1}, s{KB}, v{u1}")
    a.I(f"v_lshl_add_u32 v{W_KT0}, v{u0}, 6, v{u1}")
    a.I(f"v_and_b32 v{u2}, 3, v{L}\nv_cmp_eq_u32 vcc, 0, v{u2}\nv_lshrrev_b32 v{u0}, 2, v{u0}\nv_add_u32 v{u0}, 16, v{u0}\nv_mov_b32 v{u2}, 20")
    a.I(f"v_cndmask_b32 v{u0}, v{u2}, v{u0}, vcc")
    a.I(f"v_lshl_add_u32 v{W_KT1}, v{u0}, 6, v{u1}")
    vm.wait(a, "pq?" if QFIRST else "stores")
    ST(a, "drain")
    lds_add(a, 2, 112, rtn=True)
    a.I(f"s_waitcnt lgkmcnt(0)\nv_readfirstlane_b32 s{T}, v113\ns_cmp_lg_u32 s{T}, 3\ns_cbranch_scc1 L_nosig")
    a.I(f"s_mov_b32 exec_lo, s{SIGX}\ns_mov_b32 exec_hi, 0")
    a.I(f"buffer_atomic_add v115, v114, {srd(SRD_WS)}, 0 offen\ns_mov_b64 exec, -1")
    a.L("L_nosig")
    a.C("==== gemm2, attention part (waves 0..3) ====")
    def pqload():
        for sg in range(4):
            a.I(f"s_mul_i32 s{T}, s{S_WAVE}, {5*1024}\ns_add_u32 s{T}, s{T}, {48*1024}\ns_add_u32 s{T}, s{T}, s{S_A+sg}\ns_add_u32 s{T+1}, s{T}, 4096")
            for t in range(5):
                a.I(f"buffer_load_dwordx4 {q4(PQ+20*sg+4*t)}, v{V_L16}, {srd(SRD_WS)}, s{T+(t>>2)} offen offset:{(t&3)*1024} {SC}")
                vm.issue(("pq", sg))
    def s2q():
        a.I(f"s_cmp_lg_u32 s{S_WAVE}, 0\ns_cbranch_scc1 L_m_nopoll\ns_setprio 3")
        a.I(f"s_lshr_b32 s{T}, s{S_RB2}, 1\ns_lshl_b32 s{T}, s{T}, 8\ns_add_u32 s{T}, s{T}, {CNT_OFF+4096}\nv_mov_b32 v{u0}, s{T}\nv_mov_b32 v{u1}, 9")
        poll(a, SRD_WS, u0, u1, u2, 1, PSLEEP)
        lds_add(a, 5, VT)
        a.L("L_m_nopoll")
        lds_wait_ge(a, 5, 1, VT)
        ST(a, "S2Q")
    def zero_img():
        lds_wait_ge(a, 7, 4, VT)
        for i in range(4): a.I(f"v_mov_b32 v{AC2+i}, 0")
        for i in range(11): a.I(f"ds_write_b128 v{W_MZ}, {q4(AC2)} offset:{i*1024}")
    if QFIRST:
        a.I(f"s_setprio {PQPRIO}")
        poll_check(a, vm, SRD_WS, 116, 117, 118, 1, "pq?", 8)
        ST(a, "S2Q")
        pqload(); zero_img()
        for t in range(WODRAIN, WOEARLY): woload(t)
    else:
        for t in range(WODRAIN, WOEARLY): woload(t)
        zero_img(); s2q(); a.I(f"s_setprio {PQPRIO}"); pqload()
    ST(a, "pqiss")
    a.I("s_setprio 3")
    a.I(f"s_cmp_lg_u32 s{S_WAVE}, 0\ns_cbranch_scc1 L_m_nopoll2")
    a.I(f"s_and_b32 s{T}, s2, 7\ns_lshl_b32 s{T}, s{T}, 8\ns_add_u32 s{T}, s{T}, {CNT_OFF+8192}\nv_lshlrev_b32 v{u0}, 11, v{L}\nv_add_u32 v{u0}, s{T}, v{u0}\nv_mov_b32 v{u1}, 16")
    poll(a, SRD_WS, u0, u1, u2, 8, PSLEEP)
    lds_add(a, 4, VT)
    a.L("L_m_nopoll2")
    lds_wait_ge(a, 4, 1, VT)
    ST(a, "S3")
    KVRAW = AC2
    for i in range(14):
        if i % 4 == 0: a.I(f"s_mul_i32 s{T}, s{S_WAVE}, {8*1680}\ns_add_u32 s{T}, s{T}, {KV_OFF + i*960}")
        a.I(f"buffer_load_dwordx4 {q4(KVRAW+4*i)}, v{V_L16}, {srd(SRD_WS)}, s{T} offen offset:{(i%4)*960} {SC}")
        vm.issue(("kv", i))
    EPSC = VT + 4
    a.I(f"v_mov_b32 v{EPSC}, 0\nv_mov_b32 v{EPSC+1}, {hx(f32(1e-6))}\nv_mov_b32 v{EPSC+2}, 0\nv_mov_b32 v{EPSC+3}, 0")
    for i in range(14):
        r = KVRAW + 4 * i
        vm.wait(a, ("kv", i))
        a.I(f"v_cvt_pk_bf16_f32 v{r}, v{r}, v{r+1}\nv_cvt_pk_bf16_f32 v{r+1}, v{r+2}, v{r+3}")
        a.I(f"ds_write_b64 v{W_KVW}, {pk(r)} offset:{24 + i*768}")
    for t in range(WOEARLY, 4): woload(t)
    a.I("s_waitcnt lgkmcnt(0)")
    ST(a, "kvlds")
    ND, KT = AC2, AC2 + 48
    def ktread(qd, pr):
        o = []
        for hh in range(2):
            hq = 2 * pr + hh; h = 4 * qd + hq
            for tau in range(2):
                for b in range(2):
                    o.append(f"ds_read_b64 {pk(KT+(hq*2+tau)*4+2*b)}, v{W_KT1 if tau else W_KT0} offset:{h*1344 + 24 - 8*hq + 32*b}")
        return o
    groups = [(qd, sg, pr) for qd in range(2) for sg in range(4) for pr in range(2)]
    def nmf(gi):
        qd, sg, pr = groups[gi]
        nd = ND + 16 * (gi % 3)
        o = []
        for hh in range(2):
            hq = 2 * pr + hh
            for tau in (1, 0):
                o.append(f"v_mfma_f32_16x16x32_bf16 {q4(nd+8*hh+4*tau)}, {q4(KT+(hq*2+tau)*4)}, {q4(PQ+20*sg+10*qd+2*hq)}, {q4(EPSC) if tau else '0'}")
        return o
    def nva(gi):
        qd, sg, pr = groups[gi]
        D = [ND + 16 * (gi % 3), ND + 16 * (gi % 3) + 8]
        o = [f"v_rcp_f32_e64 v{d+6}, v{d+5}" for d in D]
        o += [f"v_mul_f32 v{d+i}, v{d+i}, v{d+6}" for d in D for i in range(5)]
        vals = [d + i for d in D for i in range(5)]
        o += [f"v_cvt_pk_bf16_f32 v{PQ+20*sg+10*qd+5*pr+i}, v{vals[2*i]}, v{vals[2*i+1]}" for i in range(5)]
        return o
    for x in ktread(0, 0): a.I(x)
    a.I("s_waitcnt lgkmcnt(7)")
    for x in ktread(0, 1): a.I(x)
    a.I("s_waitcnt lgkmcnt(8)")
    for x in nmf(0): a.I(x)
    a.I("s_waitcnt lgkmcnt(0)")
    for x in nmf(1): a.I(x)
    for gi in range(16):
        m = nmf(gi + 2) if gi + 2 < 16 else []
        v = nva(gi)
        if gi + 2 == 8: a.I("s_waitcnt lgkmcnt(8)")
        if gi + 2 == 9: a.I("s_waitcnt lgkmcnt(0)")
        for k, x in enumerate(v):
            a.I(x)
            if k % 4 == 1 and m: a.I(m.pop(0))
        if gi + 2 == 6:
            for x in ktread(1, 0): a.I(x)
        if gi + 2 == 7:
            a.I("s_waitcnt lgkmcnt(7)")
            for x in ktread(1, 1): a.I(x)
        if gi == 13: woload(4)
    ST(a, "odone")
    VM_, VH_, VX_, VO_, VB_ = VT, VT + 4, VT + 8, 250, 251
    RES, RU = 20, 40
    order = (1, 2, 3, 0)
    for k, sg in enumerate(order):
        A_ = AC2 + 20 * (k % 3); P_ = AC2 + 20 * ((k - 1) % 3)
        fill = []
        if k == 3:
            vm.wait(a, "R"); fill = res_unpack([0, 1, 2], RES, RU)
        for t in range(5):
            if k == 0: vm.wait(a, ("wo", t))
            for ct in ((3, 4, 0, 1, 2) if k == 3 else range(5)):
                d = A_ + 4 * ct
                a.I(f"v_mfma_f32_16x16x32_bf16 {q4(d)}, {q4(wor(t)+4*ct)}, {q4(PQ+20*sg+4*t)}, {'0' if t == 0 else q4(d)}")
                n = t * 5 + ct
                if k > 0 and n >= 8 and n % 3 == 2 and (n - 8) // 3 < 5:
                    c2 = (n - 8) // 3
                    a.I(f"ds_write_b128 v{W_MZ}, {q4(P_+4*c2)} offset:{((order[k-1]-1)*5+c2)*1024}")
                for _ in range(2):
                    if fill: a.I(fill.pop(0))
        if k == 0:
            out_addr(a, VO_, VB_, 252)
            res_issue(a, vm, [0, 1, 2], RES, VO_, VB_)
        if k == 1: red_addrs(a, VM_, VH_, VX_)
    for c2 in (3, 4): a.I(f"ds_write_b128 v{VX_}, {q4(AC2+4*c2)} offset:{(c2-3)*1024}")
    for k, ct in enumerate([0, 1, 2]):
        for i in (0, 2): a.I(f"v_pk_add_f32 {pk(AC2+4*ct+i)}, {pk(AC2+4*ct+i)}, {pk(RU+8*k+i)}")
    ST(a, "attend")
    a.I("s_waitcnt lgkmcnt(0)\ns_barrier")
    ST(a, "bar")
    final_sum(a, 0, [0, 1, 2], AC2, 100, VM_, VH_, VX_, VO_)
    ST(a, "end")
    if STAMPS: a.I("s_waitcnt vmcnt(0)")
    ST(a, "rt1", True)
    stamp_dump(a, 0)
    if DIAG:
        a.I("s_waitcnt vmcnt(0)\ns_memrealtime s[92:93]\ns_waitcnt lgkmcnt(0)")
        if DIAG == 1: a.I("s_sub_u32 s78, s92, s76")
        a.I("s_min_u32 s78, s78, 20000\ns_mov_b32 s76, s92")
        a.L("L_diag")
        a.I("s_memrealtime s[92:93]\ns_waitcnt lgkmcnt(0)\ns_sub_u32 s92, s92, s76\ns_cmp_lt_u32 s92, s78\ns_cbranch_scc1 L_diag")
    a.L("L_end")
    a.I("s_endpgm")

def header(launches):
    ref = open(f"cdna_kernels/{NAME}.s.ref").read().split("\n")
    out = [l for l in ref if l.startswith(";") and "@launch" not in l]
    out += launches
    out += ['.amdgcn_target "amdgcn-amd-amdhsa--gfx950"', ".text"]
    return "\n".join(out) + "\n"

def build(path, listform):
    ln = f"; @launch kernel={KN} grid=(256,1,1) block=(512,1,1) lds=163840" if listform else "; @launch grid=(256,1,1) block=(512,1,1) lds=163840"
    txt = header([ln])
    a = Asm()
    common(a)
    s1 = loader(a)
    s2 = aux(a)
    h2(a, [s1, s2])
    mwave(a)
    t, n = a.fixed()
    if NOSCL: t = "\n".join(l.replace(" sc1", "") if "load_dwordx4" in l else l for l in t.split("\n"))
    if NOSCS: t = "\n".join(l.replace(" sc1", "") if "store_dwordx4" in l else l for l in t.split("\n"))
    txt += t
    txt += ".p2align 8\n.fill 16384, 4, 0xbf800000\n"
    txt += f""".section .rodata,"a"
.p2align 6
.amdhsa_kernel {KN}
  .amdhsa_next_free_vgpr 256
  .amdhsa_next_free_sgpr 102
  .amdhsa_accum_offset 256
  .amdhsa_group_segment_fixed_size 0
  .amdhsa_kernarg_size 88
  .amdhsa_user_sgpr_count 2
  .amdhsa_user_sgpr_kernarg_segment_ptr 1
  .amdhsa_system_sgpr_workgroup_id_x 1
.end_amdhsa_kernel
"""
    open(path, "w").write(txt)
    if STAMPS: open(path + ".names", "w").write(repr(STAMP_NAMES))
    print("written", path, "nops inserted:", n)

if __name__ == "__main__":
    LIST = 0
    for arg in list(sys.argv):
        if "=" in arg:
            k_, v_ = arg.split("="); globals()[k_] = int(v_); sys.argv.remove(arg)
    build(sys.argv[1] if len(sys.argv) > 1 else f"cdna_kernels/{NAME}.s", LIST)
```

```python
import sys, math, struct
sys.path.insert(0, "gen")
from asmlib import Asm

NAME = "parallel_sum__linear_attn_block__dense_activation_gelu__prompt"
KN = NAME + "_kernel"
HQ_OFF   = 0x000000
B2_OFF   = 0x900000
STAT_OFF = 0xC00000
CS_OFF   = 0xC10000
KV_OFF   = 0xC40000
FLG_OFF  = 0xC58000
FL1, FL2F, FL2Q, FL3 = FLG_OFF + 0x1000, FLG_OFF + 0x2000, FLG_OFF + 0x3000, FLG_OFF + 0x4000
ZERO_KB  = 68
STAMP_OFF = 0xC80000
WS_SIZE  = 0xE00000

STAMPS = 0
CODEPF = 1
ROT1 = 0
ROT2 = 2
PD = 4
NB = 6
MPRIO = 1
SPIN = 8000
NOATOM = 0
NOSCL = 0
NOSCS = 0
THR = 0
PSLEEP = 4
G2MAP = 1
DLY = 6
N1 = 99
WOEARLY = 4
HPRIO = 2
QFIRST = 1
NOS1 = 0
WSMB = 0
WODRAIN = 2
PQPRIO = 3
FCHK, ECHK, BUDGET, BGRATE, BGMAX, APRIO = 12, 14, 48, 0, 15, 0
DIAG = 0

def f32(x): return struct.unpack("<I", struct.pack("<f", x))[0]
def hx(x): return hex(x & 0xFFFFFFFF)
def srd(n): return f"s[{n}:{n+3}]"
def pk(r): return f"v[{r}:{r+1}]"
def q4(r): return f"v[{r}:{r+3}]"
SC = "sc1"

S_X, S_WQKV, S_WO, S_W1, S_B1, S_W2, S_B2, S_OUT, S_DBG, S_WS = 4, 6, 8, 12, 14, 16, 18, 20, 22, 24
S_WAVE, S_I = 26, 27
SRD_X, SRD_W, SRD_WS, SRD_T, SRD_U = 28, 32, 36, 40, 44
S_RB, S_CG, S_TYPE, S_STR, S_BASE, S_JA, S_JB, S_NP, S_KS0, S_CSB, S_RB2, S_CG2 = range(48, 60)
T = 60
S_KK = 76
S_A = 88
S_SPIN = 96
S_TAG = 101
S_M16 = 97
V_LANE, V_L16, V_STAMP = 255, 254, 253

WSLOT = 14336
XRING = 6 * WSLOT
P0_LDS = XRING + 3 * 16384
EXT_LDS = P0_LDS + 16384
SYNC_LDS = EXT_LDS + 8192
KVIMG = 2 * WSLOT
KV_RS = 344
MZ, MZS = 28672, 15360
HZ1, HZS = 90112, 20480

class Q:
    def __init__(self, name, mx): self.q = []; self.name = name; self.mx = mx
    def issue(self, tag): self.q.append(tag)
    def wait(self, a, tag):
        idx = [i for i, t in enumerate(self.q) if t == tag]
        if not idx: return
        n = len(self.q) - 1 - idx[-1]
        assert n <= self.mx, (self.name, n)
        a.I(f"s_waitcnt {self.name}({n})")
        self.q = self.q[idx[-1] + 1:]
    def drain(self, a):
        a.I(f"s_waitcnt {self.name}(0)"); self.q = []

STAMP_NAMES = {}
DIAGN = {2: 'P0', 3: 'mainend', 4: 'epi', 5: 'drain', 6: 'S3', 7: 'P4', 8: 'P10', 9: 'odone', 10: 'xin', 11: 'P8', 12: 'P14', 13: 'P2', 14: 'P6'}
class Stamp:
    def __init__(self, role): self.role = role; self.n = 0; self.names = []; STAMP_NAMES[role] = self.names
    def __call__(self, a, name, real=False):
        if DIAG > 1 and self.role == "M" and name == DIAGN[DIAG]:
            a.I("s_memrealtime s[92:93]\ns_waitcnt lgkmcnt(0)\ns_sub_u32 s78, s92, s76")
        if not STAMPS: return
        a.I(f"{'s_memrealtime' if real else 's_memtime'} s[92:93]\ns_waitcnt lgkmcnt(0)\nv_writelane_b32 v{V_STAMP}, s92, {self.n}")
        self.names.append(name); self.n += 1
def stamp_dump(a, vt):
    if not STAMPS: return
    a.I(f"s_lshl_b32 s92, s2, 3\ns_add_u32 s92, s92, s{S_WAVE}\ns_lshl_b32 s92, s92, 8\ns_add_u32 s92, s92, {STAMP_OFF}\nv_lshlrev_b32 v{vt}, 2, v{V_LANE}")
    a.I(f"buffer_store_dword v{V_STAMP}, v{vt}, {srd(SRD_WS)}, s92 offen")

def mk_srd(a, d, ptr, size):
    a.I(f"s_mov_b32 s{d}, s{ptr}\ns_mov_b32 s{d+1}, s{ptr+1}")
    a.I(f"s_mov_b32 s{d+2}, {hx(size)}\ns_mov_b32 s{d+3}, 0x20000")

_lbl = [0]
def newlabel(p):
    _lbl[0] += 1; return f"L_{p}{_lbl[0]}"

def lds_wait_ge(a, word, val, vt):
    l = newlabel("lw"); e = newlabel("lwe")
    a.I(f"s_mov_b32 s{S_SPIN}, {SPIN*8}\nv_mov_b32 v{vt}, {SYNC_LDS + 4*word}")
    a.L(l)
    a.I(f"ds_read_b32 v{vt+1}, v{vt}\ns_waitcnt lgkmcnt(0)\nv_readfirstlane_b32 s{T}, v{vt+1}")
    a.I(f"s_cmp_ge_u32 s{T}, {val}\ns_cbranch_scc1 {e}\ns_sleep 1\ns_sub_u32 s{S_SPIN}, s{S_SPIN}, 1\ns_cmp_lg_u32 s{S_SPIN}, 0\ns_cbranch_scc1 {l}")
    a.L(e)

def lds_add(a, word, vt, rtn=False):
    a.I(f"v_mov_b32 v{vt}, {SYNC_LDS + 4*word}\nv_mov_b32 v{vt+1}, 1\ns_mov_b64 exec, 1")
    if rtn: a.I(f"ds_add_rtn_u32 v{vt+1}, v{vt}, v{vt+1}")
    else: a.I(f"ds_add_u32 v{vt}, v{vt+1}")
    a.I("s_mov_b64 exec, -1")

def set_exec(a, nlanes):
    if nlanes >= 64: a.I("s_mov_b64 exec, -1")
    elif nlanes > 32: a.I(f"s_mov_b32 exec_lo, -1\ns_mov_b32 exec_hi, {hx((1 << (nlanes - 32)) - 1)}")
    else: a.I(f"s_mov_b32 exec_lo, {hx((1 << nlanes) - 1)}\ns_mov_b32 exec_hi, 0")
def tag_test(a, regs):
    for k, r in enumerate(regs):
        a.I(f"v_cmp_ne_u32 vcc, s{S_TAG}, v{r}")
        a.I("s_mov_b64 s[94:95], vcc" if k == 0 else "s_or_b64 s[94:95], s[94:95], vcc")
    a.I("s_cmp_lg_u64 s[94:95], 0")
def flag_load(a, voff, vt, w):
    a.I(f"buffer_load_dword{'x2' if w == 2 else ''} {pk(vt) if w == 2 else f'v{vt}'}, v{voff}, {srd(SRD_WS)}, 0 offen {SC}")
def poll(a, voff, vt, nlanes, w, slp):
    l = newlabel("pl"); e = newlabel("ple")
    a.I(f"s_mov_b32 s{S_SPIN}, {SPIN}")
    set_exec(a, nlanes)
    a.L(l)
    flag_load(a, voff, vt, w)
    a.I("s_waitcnt vmcnt(0)")
    tag_test(a, [vt + i for i in range(w)])
    a.I(f"s_cbranch_scc0 {e}")
    a.I(f"s_sleep {slp}\ns_sub_u32 s{S_SPIN}, s{S_SPIN}, 1\ns_cmp_lg_u32 s{S_SPIN}, 0\ns_cbranch_scc1 {l}")
    a.L(e)
    a.I("s_mov_b64 exec, -1")
def poll_issue(a, vm, voff, vt, nlanes, w, tag):
    set_exec(a, nlanes)
    flag_load(a, voff, vt, w)
    a.I("s_mov_b64 exec, -1")
    vm.issue(tag)
def poll_check(a, vm, voff, vt, nlanes, w, tag, slp):
    e = newlabel("pc")
    vm.wait(a, tag)
    set_exec(a, nlanes)
    tag_test(a, [vt + i for i in range(w)])
    a.I(f"s_mov_b64 exec, -1\ns_cbranch_scc0 {e}")
    poll(a, voff, vt, nlanes, w, slp)
    a.L(e)
def tag_ready(a):
    a.I(f"s_waitcnt lgkmcnt(0)\ns_mul_i32 s{S_TAG}, s{S_TAG}, 0x9e3779b1\ns_add_u32 s{S_TAG}, s{S_TAG}, 0x7f4a7c15")

def common(a):
    a.raw(f".globl {KN}\n.p2align 8\n.type {KN},@function")
    a.L(KN)
    a.I("s_cmp_ge_u32 s2, 256\ns_cbranch_scc1 L_end")
    a.I("s_load_dwordx16 s[4:19], s[0:1], 0\ns_load_dwordx4 s[20:23], s[0:1], 64\ns_load_dwordx2 s[24:25], s[0:1], 80")
    a.I(f"v_lshrrev_b32 v1, 6, v0\nv_and_b32 v{V_LANE}, 63, v0")
    a.I(f"v_readfirstlane_b32 s{S_WAVE}, v1\nv_lshlrev_b32 v{V_L16}, 4, v{V_LANE}")
    if CODEPF:
        a.I("s_getpc_b64 s[94:95]\ns_and_b32 s94, s94, 0xffffff00")
        a.I(f"s_and_b32 s92, s2, 0xf8\ns_add_u32 s92, s92, s{S_WAVE}\ns_lshl_b32 s92, s92, 8")
        a.I(f"v_lshlrev_b32 v2, 7, v{V_LANE}\nv_add_u32 v2, s92, v2\ns_mov_b64 exec, 3")
        a.I("global_load_dword v252, v2, s[94:95]\ns_mov_b64 exec, -1")
    a.I(f"s_and_b32 s{S_I}, s{S_WAVE}, 3\ns_mov_b32 s{S_M16}, 0xffff0000")
    a.I(f"s_and_b32 s{T}, s2, 1\ns_lshl_b32 s{T}, s{T}, 3\ns_bfe_u32 s{S_RB}, s2, 0x30003\ns_add_u32 s{S_RB}, s{S_RB}, s{T}")
    a.I(f"s_and_b32 s{T}, s2, 6\ns_bfe_u32 s{S_CG}, s2, 0x10006\ns_add_u32 s{S_CG}, s{S_CG}, s{T}\ns_lshr_b32 s{T}, s2, 7\ns_lshl_b32 s{T}, s{T}, 3\ns_add_u32 s{S_CG}, s{S_CG}, s{T}")
    if G2MAP == 0:
        a.I(f"s_and_b32 s{S_RB2}, s2, 7\ns_lshl_b32 s{S_RB2}, s{S_RB2}, 2\ns_bfe_u32 s{T}, s2, 0x20003\ns_add_u32 s{S_RB2}, s{S_RB2}, s{T}")
        a.I(f"s_lshr_b32 s{S_CG2}, s2, 5")
    else:
        a.I(f"s_and_b32 s{S_RB2}, s2, 6\ns_lshl_b32 s{S_RB2}, s{S_RB2}, 2\ns_bfe_u32 s{T}, s2, 0x30003\ns_add_u32 s{S_RB2}, s{S_RB2}, s{T}")
        a.I(f"s_and_b32 s{S_CG2}, s2, 1\ns_lshl_b32 s{S_CG2}, s{S_CG2}, 2\ns_lshr_b32 s{T}, s2, 6\ns_add_u32 s{S_CG2}, s{S_CG2}, s{T}")
    a.I(f"s_mov_b32 s{S_JA}, 0\ns_mov_b32 s{S_JB}, 0\ns_mov_b32 s{S_STR}, 3840\ns_mov_b32 s{S_CSB}, {CS_OFF}\ns_mov_b32 s{S_NP}, 28")
    a.I(f"s_cmp_lt_u32 s{S_CG}, 8\ns_cbranch_scc1 L_t_kvq\ns_cmp_eq_u32 s{S_CG}, 15\ns_cbranch_scc1 L_t_qx")
    a.I(f"s_mov_b32 s{S_TYPE}, 1\ns_sub_u32 s{T}, s{S_CG}, 8\ns_mul_i32 s{S_BASE}, s{T}, 448\ns_mul_i32 s{S_KS0}, s{T}, 7")
    a.I(f"s_mov_b32 s{S_STR}, 3072\ns_mov_b32 s{S_CSB}, {CS_OFF + 1920*32}\ns_cmp_eq_u32 s{S_CG}, 14\ns_cselect_b32 s{S_NP}, 24, 28\ns_branch L_t_done")
    a.L("L_t_qx")
    a.I(f"s_mov_b32 s{S_TYPE}, 2\ns_mov_b32 s{S_BASE}, 1024\ns_mov_b32 s{S_KS0}, 64\ns_mov_b32 s{S_NP}, 16\ns_branch L_t_done")
    a.L("L_t_kvq")
    a.I(f"s_mov_b32 s{S_TYPE}, 0\ns_mul_i32 s{S_BASE}, s{S_CG}, 160\ns_add_u32 s{S_BASE}, s{S_BASE}, 1280\ns_mov_b32 s{S_JA}, 1120")
    a.I(f"s_lshl_b32 s{S_JB}, s{S_CG}, 5\ns_sub_u32 s{S_JB}, {hx(-2720)}, s{S_JB}")
    a.I(f"s_lshl_b32 s{S_KS0}, s{S_CG}, 1\ns_add_u32 s{S_KS0}, s{S_KS0}, {48-5}")
    a.L("L_t_done")
    a.I(f"s_cmp_lt_u32 s{S_WAVE}, 4\ns_cbranch_scc1 L_M\ns_cmp_ge_u32 s{S_WAVE}, 6\ns_cbranch_scc1 L_AUX")

def base_srds(a):
    a.I("s_waitcnt lgkmcnt(0)")
    mk_srd(a, SRD_X, S_X, 2048 * 1280)
    if WSMB: a.I(f"s_add_u32 s{S_WS}, s{S_WS}, {hx(WSMB << 20)}\ns_addc_u32 s{S_WS+1}, s{S_WS+1}, 0")
    mk_srd(a, SRD_WS, S_WS, WS_SIZE)
    a.I(f"s_mov_b32 s{S_SPIN}, {FLG_OFF}\ns_buffer_load_dword s{S_TAG}, {srd(SRD_WS)}, s{S_SPIN}")

def loader(a):
    ST = Stamp("L")
    vm = Q("vmcnt", 63)
    if CODEPF: vm.issue("code")
    VW, VX, t0, t1, t2 = 4, 12, 16, 17, 18
    S_XK, S_WK, S_XB, S_MW, S_MX, S_W32, S_WEND = T + 2, T + 3, T + 4, T + 5, T + 6, T + 7, T + 8
    a.C("==== loader ====")
    ST(a, "rt0", True); ST(a, "start")
    a.I(f"v_lshrrev_b32 v{t0}, 3, v{V_LANE}\nv_and_b32 v{t1}, 7, v{V_LANE}\nv_lshrrev_b32 v{t2}, 1, v{t0}\nv_xor_b32 v{t1}, v{t1}, v{t2}")
    a.I(f"v_mul_u32_u24 v{t0}, 1280, v{t0}\nv_lshl_add_u32 v{VX}, v{t1}, 4, v{t0}\nv_xor_b32 v{VX+1}, 64, v{VX}")
    if ROT1 == 0: a.I(f"s_mov_b32 s{T}, 0")
    else:
        a.I(f"s_and_b32 s{T}, s{S_RB}, 7\ns_lshr_b32 s{T+1}, s2, 6")
        if ROT1 == 1: a.I(f"s_lshl_b32 s{T+1}, s{T+1}, 1\ns_add_u32 s{T}, s{T}, s{T+1}\ns_and_b32 s{T}, s{T}, 7\ns_mul_i32 s{T}, s{T}, 5\ns_lshr_b32 s{T}, s{T}, 2")
        else: a.I(f"s_add_u32 s{T}, s{T}, s{T+1}\ns_and_b32 s{T}, s{T}, 3\ns_mul_i32 s{T}, s{T}, 5\ns_lshr_b32 s{T}, s{T}, 1")
    a.I(f"s_lshl_b32 s{S_XK}, s{T}, 7\ns_lshl_b32 s{S_W32}, s{S_STR}, 5\ns_mul_i32 s{S_WK}, s{T}, s{S_W32}\ns_lshl_b32 s{S_WK}, s{S_WK}, 1")
    a.I(f"s_mul_i32 s{S_WEND}, s{S_STR}, 640")
    a.I(f"s_lshl_b32 s{S_XB}, s{S_RB}, 1\ns_add_u32 s{S_XB}, s{S_XB}, s{S_I}\ns_mul_i32 s{S_XB}, s{S_XB}, {64*1280}")
    a.I(f"s_mul_i32 s{S_MW}, s{S_I}, 7168\ns_lshl_b32 s{S_MX}, s{S_I}, 13\ns_add_u32 s{S_MX}, s{S_MX}, {XRING}")
    a.I(f"s_lshl_b32 s{T}, s{S_I}, 4\ns_mul_i32 s{T}, s{T}, s{S_STR}\ns_add_u32 s{T}, s{T}, s{S_BASE}")
    a.I(f"v_mov_b32 v20, s{S_JA}\ns_add_u32 s{T+1}, s{S_JA}, s{S_JB}\nv_mov_b32 v21, s{T+1}\nv_mov_b32 v22, 0x40000000")
    R_, P_, J_ = 24, 32, 40
    for it in range(7): a.I(f"v_add_u32 v{P_+it}, {64*it}, v{V_LANE}")
    for it in range(7): a.I(f"v_mul_u32_u24 v{R_+it}, 2341, v{P_+it}")
    for it in range(7): a.I(f"v_lshrrev_b32 v{R_+it}, 16, v{R_+it}")
    for it in range(7): a.I(f"v_mul_u32_u24 v{J_+it}, 28, v{R_+it}")
    for it in range(7): a.I(f"v_sub_u32 v{P_+it}, v{P_+it}, v{J_+it}")
    for it in range(7): a.I(f"v_mul_u32_u24 v{R_+it}, s{S_STR}, v{R_+it}")
    for it in range(7): a.I(f"v_lshl_add_u32 v{R_+it}, v{P_+it}, 4, v{R_+it}")
    for lim, src, first in (("10", 20, True), ("20", 21, False), (f"s{S_NP}", 22, False)):
        for it in range(7): a.I(f"v_cmp_le_u32 s[{S_KK+2*(it%6)}:{S_KK+2*(it%6)+1}], {lim}, v{P_+it}" if it < 6 else f"v_cmp_le_u32 vcc, {lim}, v{P_+it}")
        for it in range(7):
            m = f"s[{S_KK+2*it}:{S_KK+2*it+1}]" if it < 6 else "vcc"
            a.I(f"v_cndmask_b32 v{J_+it}, {'0' if first else f'v{J_+it}'}, v{src}, {m}")
    for it in range(7): a.I(f"v_add3_u32 v{VW+it}, v{R_+it}, v{J_+it}, s{T}")
    base_srds(a)
    def xl(c, half):
        if half == 0: a.I(f"s_add_u32 s{T+9}, s{S_XB}, s{S_XK}")
        for i in range(4 * half, 4 * half + 4):
            a.I(f"s_add_u32 m0, s{S_MX}, {(c%3)*16384 + i*1024}")
            a.I(f"s_add_u32 s{T}, s{T+9}, {i*10240}")
            a.I(f"buffer_load_dwordx4 v{VX+(i&1)}, {srd(SRD_X)}, s{T} offen lds")
            vm.issue(("x", c))
        if half == 0:
            a.I(f"s_add_u32 s{S_XK}, s{S_XK}, 128\ns_cmp_eq_u32 s{S_XK}, 1280\ns_cselect_b32 s{S_XK}, 0, s{S_XK}")
    def wl(h):
        for it in range(7):
            a.I(f"s_add_u32 m0, s{S_MW}, {(h%6)*WSLOT + it*1024}")
            a.I("s_nop 0")
            a.I(f"buffer_load_dwordx4 v{VW+it}, {srd(SRD_W)}, s{S_WK} offen lds")
            vm.issue(("W", h))
        a.I(f"s_add_u32 s{S_WK}, s{S_WK}, s{S_W32}\ns_cmp_eq_u32 s{S_WK}, s{S_WEND}\ns_cselect_b32 s{S_WK}, 0, s{S_WK}")
    xl(0, 0); xl(0, 1)
    a.I(f"s_cmp_eq_u32 s{S_TYPE}, 1\ns_cselect_b32 s{SRD_W}, s{S_W1}, s{S_WQKV}\ns_cselect_b32 s{SRD_W+1}, s{S_W1+1}, s{S_WQKV+1}")
    a.I(f"s_mov_b32 s{SRD_W+2}, s{S_WEND}\ns_mov_b32 s{SRD_W+3}, 0x20000")
    def step(h):
        if h > 19: return
        if h == 0: wl(0)
        elif h & 1:
            wl(h)
            if (h + 1) // 2 < 10: xl((h + 1) // 2, 0)
        else:
            xl(h // 2, 1); wl(h)
    step(0)
    tag_ready(a)
    a.I("s_barrier")
    step(1)
    bg = bg_jobs(a, vm)
    for h in range(20):
        vm.wait(a, ("W", h))
        if h % 2 == 0: ST(a, f"P{h}w")
        a.I("s_barrier")
        step(h + 2)
        if h == 6: h2_setup(a)
        if h > FCHK:
            for _ in range(BGRATE):
                if len(bg) > 30 - BGMAX: bg.pop(0)()
    ST(a, "ringend")
    h_rest(a, bg)
    ST(a, "breg")
    a.I("s_branch L_H2")
    return ST

def aux(a):
    ST = Stamp("A")
    vm = Q("vmcnt", 63)
    if CODEPF: vm.issue("code")
    L = V_LANE
    X, CW, U = 0, 20, 200
    t0, t1, t2, t3 = 60, 61, 62, 63
    BIAS, VXA, VWA, VO, VI, VTRA, CSO, CSOM, VPF = 64, 68, 69, 70, 71, 72, 73, 74, 75
    S_AL, S_ROW, S_L, S_P, S_CB, S_ST, S_WO_, S_UK, S_UC, S_LB = (T + i for i in range(2, 12))
    a.L("L_AUX")
    a.C("==== aux ====")
    ST(a, "rt0", True); ST(a, "start")
    a.I(f"s_sub_u32 s{S_AL}, s{S_WAVE}, 6")
    UN = T + 12
    a.I(f"s_lshl_b32 s{UN}, s{S_AL}, 8\ns_add_u32 s{UN}, s{UN}, s2")
    a.I(f"s_mul_hi_u32 s{S_UK}, s{UN}, {hx((1<<32)//5+1)}\ns_mul_i32 s{S_UC}, s{S_UK}, 5\ns_sub_u32 s{S_UC}, s{UN}, s{S_UC}")
    a.I(f"v_lshrrev_b32 v{t0}, 3, v{L}\nv_and_b32 v{t1}, 7, v{L}")
    SO = T + 13
    a.I(f"s_cmp_ge_u32 s{S_UK}, 48\ns_cbranch_scc1 L_p0_att")
    a.I(f"v_lshrrev_b32 v{t2}, 2, v{t0}\nv_and_b32 v{t3}, 3, v{t0}\nv_lshl_add_u32 v{VO}, v{t2}, 4, v{t3}")
    a.I(f"v_mov_b32 v{VI}, {4*1280}\ns_lshl_b32 s{SO}, s{S_UK}, 5\ns_branch L_p0_cgo")
    a.L("L_p0_att")
    a.I(f"s_sub_u32 s{T}, s{S_UK}, 48\ns_mul_i32 s{T+1}, s{T}, 205\ns_lshr_b32 s{T+1}, s{T+1}, 10")
    a.I(f"s_mul_i32 s{SO}, s{T+1}, 5\ns_sub_u32 s{T}, s{T}, s{SO}\ns_lshl_b32 s{T}, s{T}, 3\ns_mul_i32 s{SO}, s{T+1}, 160")
    a.I(f"v_add_u32 v{t2}, s{T}, v{t0}")
    a.I(f"v_mul_u32_u24 v{t3}, 205, v{t2}\nv_lshrrev_b32 v{t3}, 10, v{t3}")
    a.I(f"v_mul_u32_u24 v{VO}, 5, v{t3}\nv_sub_u32 v{t2}, v{t2}, v{VO}")
    a.I(f"v_cmp_eq_u32 vcc, 4, v{t2}\nv_mov_b32 v{VO}, 16\nv_mov_b32 v{VI}, 1280")
    a.I(f"v_cndmask_b32 v{t2}, v{t2}, v{VO}, vcc\nv_mov_b32 v{VO}, {4*1280}")
    a.I(f"v_cndmask_b32 v{VI}, v{VO}, v{VI}, vcc")
    a.I(f"v_mad_u32_u24 v{VO}, v{t3}, 20, v{t2}")
    a.L("L_p0_cgo")
    a.I(f"v_mul_u32_u24 v{VO}, 1280, v{VO}\nv_lshl_add_u32 v{VO}, v{t1}, 4, v{VO}")
    a.I(f"s_mul_i32 s{SO}, s{SO}, 1280\ns_lshl_b32 s{T}, s{S_UC}, 8\ns_add_u32 s{SO}, s{SO}, s{T}")
    a.I(f"s_lshl_b32 s{S_LB}, s{S_AL}, 13\ns_add_u32 s{S_LB}, s{S_LB}, {P0_LDS}")
    a.I(f"v_mov_b32 v{t2}, 0\nv_lshlrev_b32 v{t3}, 2, v{L}\nv_add_u32 v{t3}, {SYNC_LDS}, v{t3}\nds_write_b32 v{t3}, v{t2}")
    for i in range(4): a.I(f"v_mov_b32 v{76+i}, 0")
    base_srds(a)
    a.I(f"s_cmp_ge_u32 s{S_UK}, 48\ns_cselect_b32 s{SRD_W}, s{S_WO}, s{S_W2}\ns_cselect_b32 s{SRD_W+1}, s{S_WO+1}, s{S_W2+1}")
    a.I(f"s_mov_b32 s{SRD_W+2}, {1536*1280}\ns_cselect_b32 s{SRD_W+2}, {640*1280}, s{SRD_W+2}\ns_mov_b32 s{SRD_W+3}, 0x20000")
    a.I(f"s_cmp_ge_u32 s{UN}, 340\ns_cselect_b32 s{SRD_W+2}, 0, s{SRD_W+2}")
    bar = [-1]
    def B(upto):
        while bar[0] <= upto:
            a.I("s_barrier"); bar[0] += 1
    tag_ready(a)
    B(-1)
    a.I(f"s_add_u32 s{T+1}, s{SO}, 128")
    for it in range(4):
        for ln in range(2):
            a.I(f"s_add_u32 m0, s{S_LB}, {ln*4096 + it*1024}\ns_nop 0")
            a.I(f"buffer_load_dwordx4 v{VO}, {srd(SRD_W)}, s{T+1 if ln else SO} offen lds")
            vm.issue("rl")
        if it < 3: a.I(f"v_add_u32 v{VO}, v{VO}, v{VI}")
    a.I(f"s_sub_u32 s{T}, s{UN}, 340\ns_lshl_b32 s{T+1}, s{T}, 10\ns_add_u32 s{T+1}, s{T+1}, {KV_OFF}\ns_cmp_lt_u32 s{T}, {ZERO_KB}\ns_cselect_b32 s{T+1}, s{T+1}, {WS_SIZE}")
    a.I(f"buffer_store_dwordx4 {q4(76)}, v{V_L16}, {srd(SRD_WS)}, s{T+1} offen {SC}")
    vm.issue("rls")
    LAM, QD = T + 14, T + 15
    a.I(f"s_lshr_b32 s{LAM}, s2, 4\ns_bfe_u32 s{QD}, s2, 0x20001\ns_and_b32 s{S_P}, s2, 1\ns_lshl_b32 s{S_P}, s{S_P}, 1\ns_bfe_u32 s{T}, s2, 0x10003\ns_add_u32 s{S_P}, s{S_P}, s{T}")
    a.I(f"s_lshr_b32 s{T}, s{QD}, 1\ns_mul_i32 s{T}, s{T}, 5\ns_and_b32 s{T+1}, s{QD}, 1\ns_mul_i32 s{S_L}, s{T+1}, 3\ns_add_u32 s{S_L}, s{S_L}, s{T}")
    a.I(f"s_add_u32 s{S_L}, s{S_L}, s{LAM}\ns_add_u32 s{S_L}, s{S_L}, 10")
    a.I(f"s_add_u32 s{T+1}, s{T+1}, s{LAM}\ns_cmp_ge_u32 s{T+1}, 3\ns_cselect_b32 s{T}, 7, 0\ns_add_u32 s{S_L}, s{S_L}, s{T}")
    a.I(f"s_lshl_b32 s{T}, s{QD}, 1\ns_add_u32 s{T}, s{T}, s{LAM}\ns_sub_u32 s{T}, s{T}, 5\ns_cmp_ge_u32 s{LAM}, 5\ns_cselect_b32 s{S_L}, s{T}, s{S_L}")
    a.I(f"s_mul_i32 s{T}, s{QD}, 7\ns_add_u32 s{T}, s{T}, s{LAM}\ns_add_u32 s{T}, s{T}, 23\ns_cmp_ge_u32 s{LAM}, 7\ns_cselect_b32 s{S_L}, s{T}, s{S_L}")
    a.I(f"s_cmp_ge_u32 s{LAM}, 14\ns_cselect_b32 s{S_L}, 64, s{S_L}")
    a.I(f"s_sub_u32 s{T}, s{S_L}, 46\ns_cmp_ge_u32 s{S_L}, 54\ns_cselect_b32 s{T+1}, s{T}, s{S_L}")
    a.I(f"s_cmp_ge_u32 s{S_L}, 56\ns_cselect_b32 s{S_L}, 64, s{T+1}")
    a.I(f"s_cmp_ge_u32 s{S_L}, 30")
    a.I(f"s_cselect_b32 s{SRD_T}, s{S_W1}, s{S_WQKV}\ns_cselect_b32 s{SRD_T+1}, s{S_W1+1}, s{S_WQKV+1}")
    a.I(f"s_mov_b32 s{S_ST}, 3840\ns_cselect_b32 s{S_ST}, 3072, s{S_ST}\ns_cselect_b32 s{S_CB}, 30, 0")
    a.I(f"s_mul_i32 s{SRD_T+2}, s{S_ST}, 640\ns_mov_b32 s{SRD_T+3}, 0x20000")
    a.I(f"s_cmp_ge_u32 s{S_L}, 54\ns_cselect_b32 s{SRD_T+2}, 0, s{SRD_T+2}")
    a.I(f"s_sub_u32 s{S_CB}, s{S_L}, s{S_CB}\ns_lshl_b32 s{S_CB}, s{S_CB}, 7\ns_lshl_b32 s{T}, s{S_AL}, 6\ns_add_u32 s{S_CB}, s{S_CB}, s{T}")
    a.I(f"s_mul_i32 s{S_WO_}, s{S_P}, 160\ns_mul_i32 s{S_WO_}, s{S_WO_}, s{S_ST}\ns_add_u32 s{S_WO_}, s{S_WO_}, s{S_CB}")
    a.I(f"v_lshrrev_b32 v{t1}, 2, v{L}\nv_mul_lo_u32 v{t1}, v{t1}, s{S_ST}\nv_and_b32 v{t2}, 3, v{L}\nv_lshl_add_u32 v{VWA}, v{t2}, 4, v{t1}")
    a.I(f"s_lshl_b32 s{S_ST}, s{S_ST}, 4")
    a.I(f"v_lshrrev_b32 v{t0}, 4, v{L}\nv_bfe_u32 v{t1}, v{L}, 2, 2\nv_and_b32 v{t2}, 3, v{L}")
    a.I(f"v_lshl_add_u32 v{t0}, v{t0}, 3, v{t1}\nv_lshlrev_b32 v{t0}, 7, v{t0}\nv_lshl_add_u32 v{t0}, v{t2}, 3, v{t0}\nv_add_u32 v{VTRA}, s{S_LB}, v{t0}")
    a.I(f"s_lshl_b32 s{S_ROW}, s{S_UC}, 7\ns_add_u32 s{S_ROW}, s{S_ROW}, s{S_UK}\ns_add_u32 s{T}, s{UN}, {5*128-340}\ns_cmp_ge_u32 s{UN}, 340\ns_cselect_b32 s{S_ROW}, s{T}, s{S_ROW}")
    a.I(f"s_lshl_b32 s{S_ROW}, s{S_ROW}, 2\ns_add_u32 s{S_ROW}, s{S_ROW}, {FL1}\ns_cmp_ge_u32 s{UN}, {340+ZERO_KB}\ns_cselect_b32 s{S_ROW}, {WS_SIZE}, s{S_ROW}")
    a.I(f"s_lshl_b32 s{S_UC}, s{S_UC}, 3\ns_mul_i32 s{S_UK}, s{S_UK}, 5")
    a.I(f"s_cmp_ge_u32 s{UN}, 340\ns_cselect_b32 s{S_UK}, 0x4000, s{S_UK}")
    def wloads(i0, i1):
        for it in range(i0, i1):
            a.I(f"buffer_load_dwordx4 {q4(CW+4*it)}, v{VWA}, {srd(SRD_T)}, s{S_WO_} offen")
            vm.issue("w")
            a.I(f"s_add_u32 s{S_WO_}, s{S_WO_}, s{S_ST}")
    def relayout(ln):
        FR = U + 16 * ln
        for i in range(4):
            a.I(f"ds_read_b64_tr_b16 {pk(FR+4*i)}, v{VTRA} offset:{ln*4096+32*i}\nds_read_b64_tr_b16 {pk(FR+4*i+2)}, v{VTRA} offset:{ln*4096+32*i+512}")
        for i in range(4):
            a.I(f"s_mul_i32 s{T}, s{S_UC}, 205\ns_lshr_b32 s{T}, s{T}, 10\ns_mul_i32 s{T}, s{T}, 335\ns_add_u32 s{T}, s{T}, s{S_UC}\ns_add_u32 s{T}, s{T}, s{S_UK}")
            a.I(f"s_lshl_b32 s{T}, s{T}, 10\ns_add_u32 s{T}, s{T}, {B2_OFF}\ns_add_u32 s{S_UC}, s{S_UC}, 1")
            a.I(f"s_waitcnt lgkmcnt({6-2*i})")
            a.I(f"buffer_store_dwordx4 {q4(FR+4*i)}, v{V_L16}, {srd(SRD_WS)}, s{T} offen {SC}")
            vm.issue("rls")
    mark = [0]
    bg = bg_jobs(a, vm)
    PV = 240
    def cost():
        c = 0
        for k, t in a.items[mark[0]:]:
            if k == "i": c += 8 if t.startswith("buffer_") else (0.5 if t.startswith("s_") else 1)
        return c
    def nxt():
        if bar[0] == FCHK + 1:
            ST(a, "prechk")
            poll_check(a, vm, PV, PV + 2, 34, 2, "f0", 8)
            poll_check(a, vm, PV + 1, PV + 4, 34, 2, "f1", 8)
            ST(a, "fchk")
        B(bar[0]); mark[0] = len(a.items)
        if bar[0] == FCHK - 1:
            poll_issue(a, vm, PV, PV + 2, 34, 2, "f0")
            poll_issue(a, vm, PV + 1, PV + 4, 34, 2, "f1")
        if bar[0] - 1 > FCHK:
            for _ in range(BGRATE):
                if len(bg) > 30 - BGMAX: bg.pop(0)()
    def cut():
        if cost() >= BUDGET: nxt()
    def until(k):
        while bar[0] <= k: nxt()
    if APRIO: a.I(f"s_setprio {APRIO}")
    until(0)
    ST(a, "P0")
    vm.wait(a, "rl")
    relayout(0)
    relayout(1)
    nxt()
    wloads(0, 10)
    nxt()
    h2_setup(a)
    a.I(f"s_mul_i32 s{T}, s{S_CG2}, 80\ns_mul_i32 s{T+1}, s{S_AL}, 79\ns_add_u32 s{T}, s{T}, s{T+1}\ns_lshr_b32 s{T}, s{T}, 7\ns_lshl_b32 s{T}, s{T}, 9\ns_add_u32 s{T}, s{T}, {FL1}")
    a.I(f"v_lshlrev_b32 v{PV+1}, 3, v{L}\nv_add_u32 v{PV}, s{T}, v{PV+1}\nv_add_u32 v{PV+1}, {FL1+5*512}, v{PV+1}")
    a.I(f"v_mov_b32 v{t0}, s{S_ROW}\nv_mov_b32 v{t1}, s{S_TAG}")
    vm.wait(a, "rls")
    a.I(f"s_mov_b64 exec, 1\nbuffer_store_dword v{t1}, v{t0}, {srd(SRD_WS)}, 0 offen {SC}\ns_mov_b64 exec, -1")
    vm.issue("sig")
    ST(a, "rlsdone")
    nxt()
    vm.wait(a, "w")
    AC, m0_ = 0, 76
    E = 8
    for it in range(10):
        dst = AC if it == 0 else E
        for i in range(4):
            a.I(f"v_lshlrev_b32 v{dst+2*i}, 16, v{CW+4*it+i}\nv_and_b32 v{dst+2*i+1}, s{S_M16}, v{CW+4*it+i}")
        if it:
            for i in range(8): a.I(f"v_add_f32 v{AC+i}, v{AC+i}, v{E+i}")
        cut()
    for i in range(4): a.I(f"v_permlane32_swap_b32 v{AC+i}, v{AC+i+4}")
    for i in range(4): a.I(f"v_add_f32 v{AC+i}, v{AC+i}, v{AC+i+4}")
    for i in range(2): a.I(f"v_permlane16_swap_b32 v{AC+i}, v{AC+i+2}")
    for i in range(2): a.I(f"v_add_f32 v{AC+i}, v{AC+i}, v{AC+i+2}")
    for m in ("row_ror:8", "row_ror:4"):
        for i in range(2): a.I(f"v_add_f32_dpp v{AC+i}, v{AC+i}, v{AC+i} {m} row_mask:0xf bank_mask:0xf")
    cut()
    a.I(f"v_bfe_u32 v{t0}, v{L}, 2, 1\nv_cmp_eq_u32 vcc, 1, v{t0}\nv_and_b32 v{t1}, 3, v{L}\nv_lshl_add_u32 v{t0}, v{t1}, 3, v{t0}")
    a.I(f"v_cndmask_b32 v{AC}, v{AC}, v{AC+1}, vcc\nv_lshrrev_b32 v{t1}, 4, v{L}\nv_lshl_add_u32 v{t0}, v{t1}, 1, v{t0}\nv_lshlrev_b32 v{t0}, 5, v{t0}")
    a.I(f"v_cvt_pk_bf16_f32 v{t2}, v{AC}, v{AC}\nv_and_b32 v{t2}, s{S_M16}, v{t2}\nv_sub_f32 v{t2}, v{AC}, v{t2}\nv_cvt_pk_bf16_f32 v{t2}, v{AC}, v{t2}")
    a.I(f"s_lshl_b32 s{T}, s{S_L}, 11\ns_lshl_b32 s{T+1}, s{S_AL}, 10\ns_add_u32 s{T}, s{T}, s{T+1}\ns_add_u32 s{T}, s{T}, {CS_OFF}")
    a.I(f"s_cmp_ge_u32 s{S_L}, 54\ns_cselect_b32 s{T}, {WS_SIZE}, s{T}")
    a.I(f"s_lshl_b32 s{T+1}, s{S_P}, 3\ns_add_u32 s{T+1}, s{T+1}, s{T}\nv_mov_b32 v{t3}, s{S_TAG}")
    a.I("s_mov_b32 exec_lo, 0x00ff00ff\ns_mov_b32 exec_hi, 0x00ff00ff")
    a.I(f"buffer_store_dwordx2 {pk(t2)}, v{t0}, {srd(SRD_WS)}, s{T+1} offen {SC}")
    vm.issue("st")
    a.I("s_mov_b64 exec, -1")
    ST(a, "p0done")
    print("aux: phase-0 compute ends in interval", bar[0] - 1)
    nxt()
    VG, VBI, SG = 68, 72, T + 12
    a.I(f"v_and_b32 v{t0}, 7, v{L}\nv_bfe_u32 v{t1}, v{L}, 4, 1\nv_lshl_add_u32 v{t0}, v{t1}, 3, v{t0}")
    a.I(f"v_bfe_u32 v{t1}, v{L}, 3, 1\nv_lshl_add_u32 v{t0}, v{t1}, 4, v{t0}\nv_lshlrev_b32 v{VBI}, 1, v{t0}\nv_lshlrev_b32 v{t0}, 5, v{t0}")
    a.I(f"v_lshrrev_b32 v{t2}, 5, v{L}\nv_lshl_add_u32 v{VG}, v{t2}, 4, v{t0}\nv_mov_b32 v{VG+1}, v{VG}")
    a.I(f"s_cmp_eq_u32 s{S_AL}, 0\ns_cselect_b32 s{T}, s{S_JA}, 0\ns_cselect_b64 vcc, -1, 0\ns_lshl_b32 s{T}, s{T}, 4")
    a.I(f"v_mul_lo_u32 v{t1}, v{t1}, s{T}\nv_add_u32 v{VG+2}, v{VG}, v{t1}\nv_cndmask_b32 v{VG+3}, v{V_L16}, v{VG}, vcc")
    a.I(f"s_add_u32 s{T}, s{S_JA}, 256\ns_mul_i32 s{T}, s{T}, s{S_AL}\ns_add_u32 s{SG}, s{S_BASE}, s{T}")
    a.I(f"s_mul_i32 s{T}, s{S_JB}, s{S_AL}\ns_add_u32 s{SG+1}, s{SG}, 64\ns_add_u32 s{SG+1}, s{SG+1}, s{T}\ns_add_u32 s{SG+2}, s{SG+1}, 64")
    a.I(f"s_add_u32 s{SG+3}, s{SG+2}, 64\ns_add_u32 s{SG+3}, s{SG+3}, s{S_JA}")
    a.I(f"s_mov_b32 s{SRD_U}, s{S_B1}\ns_mov_b32 s{SRD_U+1}, s{S_B1+1}\ns_cmp_eq_u32 s{S_TYPE}, 1\ns_cselect_b32 s{SRD_U+2}, 3072, 0\ns_mov_b32 s{SRD_U+3}, 0x20000")
    for k in range(4):
        a.I(f"buffer_load_ushort v{BIAS+k}, v{VBI}, {srd(SRD_U)}, s{SG+k} offen")
        vm.issue("bias")
    for k in range(4):
        a.I(f"s_lshl_b32 s{SG+k}, s{SG+k}, 4\ns_add_u32 s{SG+k}, s{SG+k}, s{S_CSB}\ns_min_u32 s{SG+k}, s{SG+k}, {CS_OFF + (3456-32)*32}")
    a.I(f"s_lshl_b32 s{T}, s{S_RB}, 10\ns_add_u32 s{T}, s{T}, {STAT_OFF}\ns_cmp_eq_u32 s{S_AL}, 0\ns_cselect_b32 s{SG+3}, s{SG+3}, s{T}")
    a.I(f"s_lshl_b32 s{T}, s{S_AL}, 12\ns_add_u32 s{T}, s{T}, {EXT_LDS}\nv_add_u32 v{t0}, s{T}, v{V_L16}")
    def gload():
        for k in range(4): a.I(f"buffer_load_dwordx4 {q4(X+4*k)}, v{VG+k}, {srd(SRD_WS)}, s{SG+k} offen {SC}")
    gtags = [X + 4 * k + o for k in range(4) for o in (1, 3)]
    until(ECHK)
    gload(); vm.issue("ext")
    until(ECHK + 2)
    ST(a, "preext")
    vm.wait(a, "ext")
    a.I(f"s_mov_b32 s{S_SPIN}, {SPIN}")
    a.L("L_ext_retry")
    tag_test(a, gtags)
    a.I(f"s_cbranch_scc0 L_ext_ok\ns_sleep 8")
    gload()
    a.I(f"s_waitcnt vmcnt(0)\ns_sub_u32 s{S_SPIN}, s{S_SPIN}, 1\ns_cmp_lg_u32 s{S_SPIN}, 0\ns_cbranch_scc1 L_ext_retry")
    a.L("L_ext_ok")
    for k in range(4):
        a.I(f"v_mov_b32 v{X+4*k+1}, v{X+4*k+2}\nv_mov_b32 v{X+4*k+2}, v{BIAS+k}\nv_mov_b32 v{X+4*k+3}, 0")
        a.I(f"ds_write_b128 v{t0}, {q4(X+4*k)} offset:{1024*k}")
    a.I("s_waitcnt lgkmcnt(0)")
    ST(a, "ext")
    assert bar[0] <= 19
    until(19)
    print("aux: background jobs left after the ring:", len(bg))
    if APRIO: a.I("s_setprio 0")
    h_rest(a, bg)
    ST(a, "ringend")
    return ST
BPF = 0
BR, AR = 80, 200

def h2_setup(a):
    g2_common(a)
    if ROT2:
        if G2MAP == 0:
            a.I(f"s_and_b32 s{T}, s{S_RB2}, 3\ns_mul_i32 s{T}, s{T}, 3\ns_mul_i32 s{T+1}, s{S_CG2}, 3\ns_lshr_b32 s{T+1}, s{T+1}, 1\ns_add_u32 s{T}, s{T}, s{T+1}")
        elif ROT2 == 2:
            a.I(f"s_and_b32 s{T}, s{S_CG2}, 1\ns_mul_i32 s{T}, s{T}, 6\ns_and_b32 s{T+1}, s{S_RB2}, 7\ns_mul_i32 s{T+1}, s{T+1}, 3\ns_lshr_b32 s{T+1}, s{T+1}, 1\ns_add_u32 s{T}, s{T}, s{T+1}")
        else:
            a.I(f"s_and_b32 s{T}, s{S_CG2}, 3\ns_mul_i32 s{T}, s{T}, 3\ns_and_b32 s{T+1}, s{S_RB2}, 7\ns_mul_i32 s{T+1}, s{T+1}, 3\ns_lshr_b32 s{T+1}, s{T+1}, 1\ns_add_u32 s{T}, s{T}, s{T+1}")
        a.I(f"s_cmp_ge_u32 s{T}, 12\ns_cselect_b32 s{T+1}, 12, 0\ns_sub_u32 s{T}, s{T}, s{T+1}")
    else: a.I(f"s_mov_b32 s{T}, 0")
    a.I(f"s_mul_i32 s{T+1}, s{S_I}, 12")
    for j in range(12):
        a.I(f"s_add_u32 s{S_KK+j}, s{T}, s{T+1}\ns_lshl_b32 s{S_KK+j}, s{S_KK+j}, 10")
        if j < 11: a.I(f"s_add_u32 s{T}, s{T}, 1\ns_cmp_eq_u32 s{T}, 12\ns_cselect_b32 s{T}, 0, s{T}")
    a.I(f"s_mul_i32 s{S_BB}, s{S_CG2}, {68*5*1024}\ns_add_u32 s{S_BB}, s{S_BB}, {B2_OFF}")

def bg_jobs(a, vm):
    def ld(j, ct):
        def f():
            a.I(f"s_mul_i32 s{T}, s{S_KK+j}, 5\ns_add_u32 s{T}, s{T}, s{S_BB}")
            if ct == 4: a.I(f"s_add_u32 s{T}, s{T}, 4096")
            a.I(f"buffer_load_dwordx4 {q4(BR+20*j+4*ct)}, v{V_L16}, {srd(SRD_WS)}, s{T} offen offset:{(ct&3)*1024} {SC}")
            vm.issue("bg")
        return f
    return [ld(j, ct) for j in range(6) for ct in range(5)]

def h_rest(a, bg):
    n = 0
    while bg:
        if n == N1: lds_wait_ge(a, 7, 4, 248)
        bg.pop(0)(); n += 1
        if THR: a.I(f"s_waitcnt vmcnt({THR})")
    if n == N1: lds_wait_ge(a, 7, 4, 248)

def bload(a, vm, j, regs, tag, thr):
    a.I(f"s_mul_i32 s{T}, s{S_KK+j}, 5\ns_add_u32 s{T}, s{T}, s{S_BB}\ns_add_u32 s{T+1}, s{T}, 4096")
    for ct in range(5):
        a.I(f"buffer_load_dwordx4 {q4(regs[ct])}, v{V_L16}, {srd(SRD_WS)}, s{T + (ct >> 2)} offen offset:{(ct&3)*1024} {SC}")
        if vm: vm.issue(tag)
        if thr: a.I(f"s_waitcnt vmcnt({thr})")


def g2_common(a):
    for sg in range(4):
        a.I(f"s_add_u32 s{T}, s{S_I}, {sg}")
        if ROT2: a.I(f"s_add_u32 s{T}, s{T}, s{S_CG2}")
        a.I(f"s_and_b32 s{T}, s{T}, 3\ns_lshl_b32 s{T+1}, s{S_RB2}, 2\ns_add_u32 s{T}, s{T}, s{T+1}")
        a.I(f"s_mul_i32 s{S_A+sg}, s{T}, {68*1024}")
        if sg == 0: a.I(f"s_mul_i32 s{S_OUTS}, s{T}, {16*1280}\ns_mul_i32 s{S_B2S}, s{S_CG2}, 160\ns_add_u32 s{S_OUTS}, s{S_OUTS}, s{S_B2S}")
S_OUTS, S_B2S, S_BB = 98, 99, 100

def hzone(a, sidx, dst):
    a.I(f"s_sub_u32 s{dst}, s{sidx}, 1\ns_mul_i32 s{dst}, s{dst}, {HZS}\ns_add_u32 s{dst}, s{dst}, {HZ1}\ns_cmp_eq_u32 s{sidx}, 0\ns_cselect_b32 s{dst}, 0, s{dst}")

def out_addr(a, VO, VB, t0):
    a.I(f"v_and_b32 v{t0}, 15, v{V_LANE}\nv_mul_u32_u24 v{t0}, 1280, v{t0}\nv_lshrrev_b32 v{VB}, 4, v{V_LANE}\nv_lshlrev_b32 v{VB}, 3, v{VB}")
    a.I(f"v_add_u32 v{VO}, v{t0}, v{VB}")

def res_issue(a, vm, cts, RES, VO, VB):
    mk_srd(a, SRD_T, S_B2, 1280)
    mk_srd(a, SRD_U, S_OUT, 2048 * 1280)
    for k, ct in enumerate(cts):
        a.I(f"buffer_load_dwordx2 {pk(RES+4*k)}, v{VO}, {srd(SRD_X)}, s{S_OUTS} offen offset:{ct*32}")
        a.I(f"buffer_load_dwordx2 {pk(RES+4*k+2)}, v{VB}, {srd(SRD_T)}, s{S_B2S} offen offset:{ct*32}")
        vm.issue("R"); vm.issue("R")

def res_unpack(cts, RES, OUT):
    o = []
    for k, ct in enumerate(cts):
        for src, d in ((RES + 4 * k, OUT + 8 * k), (RES + 4 * k + 2, OUT + 8 * k + 4)):
            for i in range(2):
                o += [f"v_lshlrev_b32 v{d+2*i}, 16, v{src+i}", f"v_and_b32 v{d+2*i+1}, s{S_M16}, v{src+i}"]
        for i in range(4): o.append(f"v_add_f32 v{OUT+8*k+i}, v{OUT+8*k+i}, v{OUT+8*k+4+i}")
    return o

def red_addrs(a, VM, VH, VX):
    for sg in range(4):
        a.I(f"s_sub_u32 s{T+2}, s{S_I}, {sg}\ns_and_b32 s{T+2}, s{T+2}, 3")
        if sg:
            a.I(f"s_mul_i32 s{T}, s{T+2}, {MZS}\ns_add_u32 s{T}, s{T}, {MZ}\nv_add_u32 v{VM+sg}, s{T}, v{V_L16}")
        hzone(a, T + 2, T)
        a.I(f"v_add_u32 v{VH+sg}, s{T}, v{V_L16}")
    a.I(f"s_lshl_b32 s{T}, s{S_I}, 11\ns_add_u32 s{T}, s{T}, {EXT_LDS}\nv_add_u32 v{VX}, s{T}, v{V_L16}")

def final_sum(a, role, cts, OWN, BUF, VM, VH, VX, VO):
    lg = Q("lgkmcnt", 15)
    srcs = []
    for sg in range(4):
        if sg: srcs.append(lambda ct, sg=sg: (VM + sg, ((sg - 1) * 5 + ct) * 1024))
        elif role == 1: srcs.append(lambda ct: (VX, (ct - 3) * 1024))
        if sg or role == 0: srcs.append(lambda ct, sg=sg: (VH + sg, (sg * 5 + ct) * 1024))
    n = len(cts)
    def rd(j):
        for k, ct in enumerate(cts):
            v, off = srcs[j](ct)
            a.I(f"ds_read_b128 {q4(BUF+(j*n+k)*4)}, v{v} offset:{off}")
            lg.issue(j)
    ahead = 15 // n
    for j in range(min(ahead, 7)): rd(j)
    for j in range(7):
        lg.wait(a, j)
        if j + ahead < 7: rd(j + ahead)
        for k, ct in enumerate(cts):
            for i in (0, 2): a.I(f"v_pk_add_f32 {pk(OWN+4*ct+i)}, {pk(OWN+4*ct+i)}, {pk(BUF+(j*n+k)*4+i)}")
    for ct in cts:
        d = OWN + 4 * ct
        a.I(f"v_cvt_pk_bf16_f32 v{d}, v{d}, v{d+1}\nv_cvt_pk_bf16_f32 v{d+1}, v{d+2}, v{d+3}")
        a.I(f"buffer_store_dwordx2 {pk(d)}, v{VO}, {srd(SRD_U)}, s{S_OUTS} offen offset:{ct*32}")

def h2(a, STs):
    class Both:
        def __call__(self, a_, name, real=False):
            if not STAMPS: return
            n = max(s.n for s in STs)
            for s in STs:
                while s.n < n: s.names.append("-"); s.n += 1
            a_.I(f"{'s_memrealtime' if real else 's_memtime'} s[92:93]\ns_waitcnt lgkmcnt(0)\nv_writelane_b32 v{V_STAMP}, s92, {n}")
            for s in STs: s.names.append(name); s.n += 1
    ST = Both()
    vm = Q("vmcnt", 63); lg = Q("lgkmcnt", 15)
    ACC = 0
    VT = 248
    a.L("L_H2")
    a.C("==== gemm2, FFN part (waves 4..7) ====")
    for j in range(6, 10): bload(a, vm, j, [20 * (j - 6) + 4 * ct for ct in range(5)], ("bl", j), THR)
    ST(a, "bissued")
    lds_wait_ge(a, 0, 4, VT)
    hzone(a, S_I, T)
    VBL = VT + 4
    a.I(f"v_add_u32 v{VBL}, s{T}, v{V_L16}")
    for j in range(6, 10):
        vm.wait(a, ("bl", j))
        for ct in range(5):
            a.I(f"ds_write_b128 v{VBL}, {q4(20*(j-6)+4*ct)} offset:{(5*(j-6)+ct)*1024}")
        a.I("s_waitcnt lgkmcnt(5)")
    a.I("s_waitcnt lgkmcnt(0)")
    ST(a, "bdone")
    if HPRIO: a.I(f"s_setprio {HPRIO}")
    a.I(f"s_cmp_lg_u32 s{S_WAVE}, 7\ns_cbranch_scc1 L_h_nopoll\ns_setprio 3")
    a.I(f"s_lshr_b32 s{T}, s{S_RB2}, 1\ns_lshl_b32 s{T}, s{T}, 8\ns_add_u32 s{T}, s{T}, {FL2F}\nv_lshlrev_b32 v{VT}, 2, v{V_LANE}\nv_add_u32 v{VT}, s{T}, v{VT}")
    poll(a, VT, VT + 2, 7, 1, PSLEEP)
    lds_add(a, 3, VT)
    a.L("L_h_nopoll")
    lds_wait_ge(a, 3, 1, VT)
    a.I(f"s_setprio {HPRIO}")
    ST(a, "S2F")
    def aload(j):
        for sg in range(4):
            a.I(f"s_add_u32 s{T}, s{S_A+sg}, s{S_KK+j}")
            a.I(f"buffer_load_dwordx4 {q4(AR + (j%3)*16 + 4*sg)}, v{V_L16}, {srd(SRD_WS)}, s{T} offen {SC}")
            vm.issue(("A", j))
    def bslot(j): return BR + 20 * (j if j < 6 else (j - 10 if j >= 10 else j - 4))
    for j in range(3): aload(j)
    for j in range(12):
        if 6 <= j + 1 <= 9:
            for ct in range(5):
                a.I(f"ds_read_b128 {q4(bslot(j+1)+4*ct)}, v{VBL} offset:{(5*(j+1-6)+ct)*1024}")
                lg.issue(j + 1)
        vm.wait(a, ("A", j))
        lg.wait(a, j)
        if j in (0, 3, 6, 9): ST(a, f"A{j}")
        fill = []
        if j == 11:
            vm.wait(a, "R")
            fill = res_unpack([3, 4], RES, RU)
        sgs = (1, 2, 3, 0) if j == 11 else range(4)
        wq = []
        for k, sg in enumerate(sgs):
            for ct in range(5):
                d = ACC + (sg * 5 + ct) * 4
                cin = "0" if j == 0 else q4(d)
                a.I(f"v_mfma_f32_16x16x32_bf16 {q4(d)}, {q4(bslot(j)+4*ct)}, {q4(AR+(j%3)*16+4*sg)}, {cin}")
                if j == 11:
                    if not (sg == 0 and ct >= 3): wq.append(f"ds_write_b128 v{VBL}, {q4(d)} offset:{(sg*5+ct)*1024}")
                    if fill: a.I(fill.pop(0))
                    if k * 5 + ct >= 6: a.I(wq.pop(0))
        if j + 3 < 12: aload(j + 3)
        if j in (3, 4): bload(a, vm, j + 7, [bslot(j + 7) + 4 * ct for ct in range(5)], "late", None)
        if j == 9:
            RES, RU = BR + 40, BR + 60
            VM_, VH_, VX_, VO_, VB_ = AR, AR + 4, AR + 8, AR + 9, AR + 10
            out_addr(a, VO_, VB_, VT)
            res_issue(a, vm, [3, 4], RES, VO_, VB_)
            red_addrs(a, VM_, VH_, VX_)
    a.I("s_waitcnt lgkmcnt(8)")
    for x in wq + fill: a.I(x)
    for k, ct in enumerate([3, 4]):
        for i in (0, 2): a.I(f"v_pk_add_f32 {pk(ACC+4*ct+i)}, {pk(ACC+4*ct+i)}, {pk(RU+8*k+i)}")
    ST(a, "ffnend")
    a.I("s_waitcnt lgkmcnt(0)\ns_barrier")
    ST(a, "bar")
    final_sum(a, 1, [3, 4], ACC, BR, VM_, VH_, VX_, VO_)
    if STAMPS: a.I("s_waitcnt vmcnt(0)")
    ST(a, "end")
    ST(a, "rt1", True)
    stamp_dump(a, VT)
    a.I("s_endpgm")

K0C = -2.0 * math.sqrt(2.0 / math.pi) * math.log2(math.e)
K1C = K0C * 0.044715
ACC1, AF, BF = 0, 112, 120
V_E = 144
V_R, V_R2, V_SD, V_C0, V_C1, V_EPS = 160, 162, 164, 166, 168, 170
V_TRA, V_VA, V_HQO, V_KVW = 240, 242, 246, 247

def u_gelu(r0, Tm):
    P = range(0, 8, 2)
    pre = [f"v_pk_mul_f32 {pk(Tm+i)}, {pk(r0+i)}, {pk(r0+i)}" for i in P]
    pre += [f"v_pk_fma_f32 {pk(Tm+i)}, {pk(Tm+i)}, {pk(V_C1)}, {pk(V_C0)} op_sel_hi:[1,0,0]" for i in P]
    pre += [f"v_pk_mul_f32 {pk(Tm+i)}, {pk(Tm+i)}, {pk(r0+i)}" for i in P]
    mid = [f"v_exp_f32_e64 v{Tm+i}, v{Tm+i}" for i in range(8)]
    mid += [f"v_pk_fma_f32 {pk(Tm+i)}, {pk(Tm+i)}, {pk(V_SD)}, {pk(V_SD)} op_sel_hi:[1,0,0]" for i in P]
    mid += [f"v_rcp_f32_e64 v{Tm+i}, v{Tm+i}" for i in range(8)]
    post = [f"v_pk_mul_f32 {pk(Tm+i)}, {pk(Tm+i)}, {pk(r0+i)}" for i in P]
    post += [f"v_cvt_pk_bf16_f32 v{r0+i//2}, v{Tm+i}, v{Tm+i+1}" for i in P]
    return pre, mid, post
def u_phi(r0, Tm, n=8):
    P = range(0, n, 2); R = range(n, 8, 2)
    pre = [f"v_pk_mul_f32 {pk(Tm+i)}, {pk(r0+i)}, {pk(V_R2)} op_sel_hi:[1,0]" for i in P]
    pre += [f"v_pk_fma_f32 {pk(r0+i)}, {pk(r0+i)}, {pk(V_R)}, {pk(V_EPS)} op_sel_hi:[1,0,0]" for i in P]
    pre += [f"v_pk_mul_f32 {pk(Tm+i)}, {pk(r0+i)}, {pk(V_R)} op_sel_hi:[1,0]" for i in R]
    pre += [f"v_max_f32_e64 v{r0+i}, v{r0+i}, v{V_EPS}" for i in range(n)]
    mid = [f"v_exp_f32_e64 v{Tm+i}, v{Tm+i} clamp" for i in range(n)]
    post = [f"v_pk_add_f32 {pk(Tm+i)}, {pk(Tm+i)}, {pk(r0+i)}" for i in P]
    post += [f"v_cvt_pk_bf16_f32 v{r0+i//2}, v{Tm+i}, v{Tm+i+1}" for i in range(0, 8, 2)]
    return pre, mid, post
S_HQ = T + 10
def hq_store(t, u):
    r0 = ACC1 + 16 * t + 8 * u
    o = [f"s_add_u32 s{T+1}, s{S_HQ}, {0x10000 + t*1024}"] if u == 0 else []
    return o + [f"buffer_store_dwordx4 {q4(r0)}, v{V_HQO}, {srd(SRD_WS)}, s{T+1} offen offset:{u*512} {SC}"]
def ep_pipe(a, units, dly=0):
    n = len(units)
    st = [units[i][0](V_E + 8 * (i & 1)) for i in range(n)]
    a.raw(".p2align 3")
    for x in st[0][0]: a.I(x)
    pend = []
    for i in range(n + 1):
        mid = st[i][1] if i < n else []
        plain = []
        if i > 0:
            plain += st[i - 1][2]
            pend += units[i - 1][1]
            if i - 1 >= dly or i == n:
                k = len(pend) if (i == n or len(pend) <= 4) else 4
                if pend[k - 1].startswith("s_add"): k += 1
                plain += pend[:k]; pend = pend[k:]
        if i + 1 < n: plain += st[i + 1][0]
        tot = len(mid) + len(plain); mi = pi = 0
        while mi < len(mid) or pi < len(plain):
            if pi >= len(plain) or (mi < len(mid) and mi * len(plain) <= pi * len(mid)):
                a.I(mid[mi]); mi += 1
            else:
                a.I(plain[pi]); pi += 1

def mwave(a):
    ST = Stamp("M")
    L = V_LANE
    t0, t1, t2, t3 = V_E, V_E + 1, V_E + 2, V_E + 3
    a.L("L_M")
    a.C("==== M waves: phase 0 (re-layout of w2 / wo, zeroing) ====")
    ST(a, "rt0", True); ST(a, "start")
    if DIAG: a.I("s_memrealtime s[76:77]")
    ROW = T + 2
    X, U = 0, 12
    a.I(f"s_and_b32 s{T}, s2, 1\ns_lshl_b32 s{ROW}, s{T}, 10\ns_and_b32 s{T}, s2, 6\ns_lshl_b32 s{T}, s{T}, 7\ns_add_u32 s{ROW}, s{ROW}, s{T}")
    a.I(f"s_and_b32 s{T}, s2, 0xf8\ns_add_u32 s{ROW}, s{ROW}, s{T}\ns_lshl_b32 s{T}, s{S_WAVE}, 1\ns_add_u32 s{ROW}, s{ROW}, s{T}")
    a.I(f"v_lshrrev_b32 v{t0}, 5, v{L}\nv_and_b32 v{t1}, 31, v{L}\nv_mul_u32_u24 v{t0}, 1280, v{t0}")
    a.I(f"v_lshl_add_u32 v{t2}, v{t1}, 4, v{t0}\nv_lshl_add_u32 v{t3}, v{t1}, 3, v{t0}\ns_mul_i32 s{T}, s{ROW}, 1280")
    base_srds(a)
    a.I(f"buffer_load_dwordx4 {q4(X)}, v{t2}, {srd(SRD_X)}, s{T} offen")
    a.I(f"buffer_load_dwordx4 {q4(X+4)}, v{t2}, {srd(SRD_X)}, s{T} offen offset:512")
    a.I(f"buffer_load_dwordx2 {pk(X+8)}, v{t3}, {srd(SRD_X)}, s{T} offen offset:1024")
    a.C("==== gemm1 main loop ====")
    a.I(f"v_lshrrev_b32 v{t0}, 5, v{L}\nv_bfe_u32 v{t1}, v{L}, 2, 2\nv_lshl_add_u32 v{t0}, v{t0}, 3, v{t1}\nv_mul_u32_u24 v{t0}, 448, v{t0}")
    a.I(f"v_and_b32 v{t1}, 1, v{L}\nv_lshl_add_u32 v{t0}, v{t1}, 3, v{t0}\nv_bfe_u32 v{t1}, v{L}, 1, 1\nv_lshl_add_u32 v{t0}, v{t1}, 5, v{t0}")
    a.I(f"v_bfe_u32 v{t1}, v{L}, 4, 1\nv_lshl_add_u32 v{V_TRA}, v{t1}, 4, v{t0}\nv_add_u32 v{V_TRA+1}, {3*WSLOT}, v{V_TRA}")
    a.I(f"v_and_b32 v{t0}, 31, v{L}\nv_bfe_u32 v{t1}, v{L}, 1, 3\nv_lshrrev_b32 v{t2}, 5, v{L}\nv_xor_b32 v{t1}, v{t1}, v{t2}")
    a.I(f"v_lshlrev_b32 v{t0}, 7, v{t0}\nv_lshl_add_u32 v{t0}, v{t1}, 4, v{t0}\ns_lshl_b32 s{T}, s{S_WAVE}, 12\ns_add_u32 s{T}, s{T}, {XRING}")
    a.I(f"v_add_u32 v{V_VA}, s{T}, v{t0}")
    for ks in range(1, 4): a.I(f"v_xor_b32 v{V_VA+ks}, {32*ks}, v{V_VA}")
    a.I("s_barrier")
    def red32(v, tmp):
        for m in ("quad_perm:[1,0,3,2]", "quad_perm:[2,3,0,1]", "row_half_mirror", "row_mirror"):
            a.I(f"v_add_f32_dpp v{v}, v{v}, v{v} {m} row_mask:0xf bank_mask:0xf")
        a.I(f"v_mov_b32 v{tmp}, v{v}\nv_permlane16_swap_b32 v{v}, v{tmp}\nv_add_f32 v{v}, v{v}, v{tmp}")
    tag_ready(a)
    a.I("s_waitcnt vmcnt(0)")
    ST(a, "xin")
    for i in range(10):
        a.I(f"v_lshlrev_b32 v{U+2*i}, 16, v{X+i}\nv_and_b32 v{U+2*i+1}, s{S_M16}, v{X+i}")
    a.I(f"v_pk_add_f32 {pk(t0)}, {pk(U)}, {pk(U+2)}\nv_pk_add_f32 {pk(t2)}, {pk(U+4)}, {pk(U+6)}")
    for i in range(4, 10):
        r = t0 if i % 2 == 0 else t2
        a.I(f"v_pk_add_f32 {pk(r)}, {pk(r)}, {pk(U+2*i)}")
    a.I(f"v_pk_add_f32 {pk(t0)}, {pk(t0)}, {pk(t2)}\nv_add_f32 v{t0}, v{t0}, v{t1}")
    red32(t0, t1)
    a.I(f"v_mul_f32 v{t0}, {hx(f32(-1.0/640))}, v{t0}")
    for i in range(10):
        a.I(f"v_pk_add_f32 {pk(U+2*i)}, {pk(U+2*i)}, {pk(t0)} op_sel_hi:[1,0]")
    a.I(f"v_pk_mul_f32 {pk(t2)}, {pk(U)}, {pk(U)}\nv_pk_mul_f32 {pk(X)}, {pk(U+2)}, {pk(U+2)}")
    for i in range(2, 10):
        r = t2 if i % 2 == 0 else X
        a.I(f"v_pk_fma_f32 {pk(r)}, {pk(U+2*i)}, {pk(U+2*i)}, {pk(r)}")
    a.I(f"v_pk_add_f32 {pk(t2)}, {pk(t2)}, {pk(X)}\nv_add_f32 v{t2}, v{t2}, v{t3}")
    red32(t2, t3)
    a.I(f"v_mul_f32 v{t2}, {hx(f32(1.0/640))}, v{t2}")
    a.I(f"v_cvt_pk_bf16_f32 v{t2}, v{t2}, v{t2}\nv_and_b32 v{t2}, s{S_M16}, v{t2}")
    a.I(f"v_add_f32 v{t2}, {hx(f32(1e-5))}, v{t2}")
    a.I(f"v_cvt_pk_bf16_f32 v{t2}, v{t2}, v{t2}\nv_and_b32 v{t2}, s{S_M16}, v{t2}")
    a.I(f"v_sqrt_f32 v{t2}, v{t2}")
    a.I(f"v_cvt_pk_bf16_f32 v{V_E+4}, v{t0}, v{t2}")
    a.I(f"v_mov_b32 v{V_E+5}, s{S_TAG}")
    a.I(f"v_lshrrev_b32 v{t1}, 2, v{L}\ns_lshl_b32 s{T}, s{ROW}, 3\ns_add_u32 s{T}, s{T}, {STAT_OFF}")
    a.I("s_mov_b32 exec_lo, 1\ns_mov_b32 exec_hi, 1")
    a.I(f"buffer_store_dwordx2 {pk(V_E+4)}, v{t1}, {srd(SRD_WS)}, s{T} offen {SC}")
    a.I("s_mov_b64 exec, -1")
    if MPRIO: a.I(f"s_setprio {MPRIO}")
    ST(a, "p0done")
    lg = Q("lgkmcnt", 15)
    NM = 280
    def reads(m):
        h, r = divmod(m, 14); ks2, t = divmod(r, 7); g = m // 7
        if t == 0:
            c, ks = divmod(g, 4)
            a.I(f"ds_read_b128 {q4(AF+4*(g&1))}, v{V_VA+ks} offset:{(c%3)*16384}")
            lg.issue(m)
        slot = h % 6
        off = (slot % 3) * WSLOT + ks2 * 7168 + t * 64
        b = BF + (m % NB) * 4
        a.I(f"ds_read_b64_tr_b16 {pk(b)}, v{V_TRA + slot//3} offset:{off}")
        a.I(f"ds_read_b64_tr_b16 {pk(b+2)}, v{V_TRA + slot//3} offset:{off+1792}")
        lg.issue(m); lg.issue(m)
    def P(h):
        a.I("s_barrier")
        if h % 2 == 0: ST(a, f"P{h}")
    P(0)
    for m in range(PD): reads(m)
    for m in range(NM):
        t = m % 7; g = m // 7
        lg.wait(a, m)
        d = ACC1 + 16 * t
        cin = "0" if m < 7 else f"v[{d}:{d+15}]"
        a.I(f"v_mfma_f32_32x32x16_bf16 v[{d}:{d+15}], {q4(BF+(m%NB)*4)}, {q4(AF+4*(g&1))}, {cin}")
        if m + PD < NM:
            if (m + PD) % 14 == 0: P((m + PD) // 14)
            reads(m + PD)
        elif m + PD == NM:
            a.I(f"v_and_b32 v{t0}, 31, v{L}\ns_lshl_b32 s{T}, s{S_WAVE}, 8\ns_add_u32 s{T}, s{T}, {EXT_LDS+7168}")
            a.I(f"v_and_b32 v{t1}, 1, v{t0}\nv_lshlrev_b32 v{t1}, 2, v{t1}\nv_lshl_add_u32 v{t0}, v{t0}, 3, s{T}\nv_sub_u32 v{t0}, v{t0}, v{t1}\nv_add_u32 v{t1}, {EXT_LDS}, v{V_L16}")
            a.I(f"ds_read_b32 v{t2}, v{t0}"); lg.issue("st")
        elif m + PD == NM + 1:
            for tt in (5, 6, 0, 1, 2, 3, 4):
                a.I(f"ds_read_b128 {q4(172+4*tt)}, v{t1} offset:{tt*1024}"); lg.issue(("e", tt))
    lds_add(a, 0, V_E + 4)
    lg.issue("add")
    ST(a, "mainend")
    XE = 200
    lg.wait(a, "st")
    a.I(f"v_cmp_gt_u32 vcc, 32, v{L}")
    a.I(f"v_and_b32 v{XE}, 0xffff, v{t2}\nv_lshl_or_b32 v{XE}, v{XE}, 16, v{XE}\nv_lshrrev_b32 v{XE+2}, 16, v{t2}")
    a.I(f"v_mov_b32 v{XE+1}, v{XE}\nv_cndmask_b32 v{XE+2}, 0, v{XE+2}, vcc\nv_mov_b32 v{XE+3}, 0")
    a.I(f"v_and_b32 v{V_SD}, s{S_M16}, v{t2}\nv_rcp_f32 v{V_R}, v{V_SD}")
    for t in (5, 6, 0, 1, 2, 3, 4):
        d = ACC1 + 16 * t
        lg.wait(a, ("e", t))
        a.I(f"v_mfma_f32_32x32x16_bf16 v[{d}:{d+15}], {q4(172+4*t)}, {q4(XE)}, v[{d}:{d+15}]")
        if t == 0:
            a.I(f"v_mul_f32 v{V_R2}, {hx(f32(math.log2(math.e)))}, v{V_R}\nv_mul_f32 v{V_C0}, {hx(f32(K0C))}, v{V_R}")
            a.I(f"v_mul_f32 v{V_C1}, v{V_R}, v{V_R}\nv_mul_f32 v{V_C1}, v{V_C1}, v{V_R}")
        if t == 1:
            a.I(f"v_mul_f32 v{V_C1}, {hx(f32(K1C))}, v{V_C1}\nv_mov_b32 v{V_EPS}, {hx(f32(1e-6))}")
            a.I(f"v_bfe_u32 v{t0}, v{L}, 4, 1\nv_mul_u32_u24 v{t0}, {68*1024}, v{t0}")
        if t == 2:
            a.I(f"v_and_b32 v{t1}, 15, v{L}\nv_lshl_add_u32 v{t0}, v{t1}, 4, v{t0}")
            a.I(f"v_lshrrev_b32 v{t1}, 5, v{L}\nv_lshl_add_u32 v{V_HQO}, v{t1}, 8, v{t0}")
    a.I(f"s_lshl_b32 s{T}, s{S_RB}, 2\ns_add_u32 s{T}, s{T}, s{S_WAVE}\ns_mul_i32 s{T}, s{T}, {2*68}")
    a.I(f"s_add_u32 s{T}, s{T}, s{S_KS0}\ns_lshl_b32 s{S_HQ}, s{T}, 10\ns_sub_u32 s{S_HQ}, s{S_HQ}, 0x10000")
    ST(a, "ext")
    SIG, SIGX = T + 11, T + 12
    a.I(f"s_lshl_b32 s{SIG}, s{S_RB}, 8\ns_lshl_b32 s{T}, s{S_CG}, 2\ns_add_u32 s{SIG}, s{SIG}, s{T}\ns_add_u32 s{SIG}, s{SIG}, {FL2F-32}\ns_mov_b32 s{SIGX}, 1")
    def tile_units(t, fn):
        return [((lambda Tm, r0=ACC1+16*t+8*u: fn(r0, Tm)), hq_store(t, u)) for u in range(2)]
    a.I(f"s_cmp_eq_u32 s{S_TYPE}, 0\ns_cbranch_scc1 L_ep_kvq\ns_cmp_eq_u32 s{S_TYPE}, 2\ns_cbranch_scc1 L_ep_qx")
    a.I(f"s_cmp_eq_u32 s{S_CG}, 14\ns_cselect_b32 s{T+2}, {WS_SIZE}, s{S_HQ}")
    un = []
    for t in (5, 6, 0, 1, 2, 3, 4):
        uu = tile_units(t, u_gelu)
        if t == 6: uu = [(f, [x.replace(f"s{S_HQ},", f"s{T+2},") for x in tl]) for f, tl in uu]
        un += uu
    ep_pipe(a, un, DLY)
    a.I("s_branch L_ep_done")
    a.L("L_ep_qx")
    a.I(f"s_add_u32 s{SIG}, s{SIG}, {FL2Q-FL2F+32-28}\ns_nop 3")
    ep_pipe(a, [x for t in range(4) for x in tile_units(t, u_phi)])
    a.I("s_branch L_ep_done")
    a.L("L_ep_kvq")
    a.I(f"s_add_u32 s{SIG}, s{SIG}, {FL2Q-FL2F+32}\ns_mov_b32 s{SIGX}, 0x1fe")
    a.I(f"v_and_b32 v{t0}, 31, v{L}\ns_lshl_b32 s{T}, s{S_WAVE}, 5\nv_add_u32 v{t0}, s{T}, v{t0}")
    a.I(f"v_mul_u32_u24 v{t0}, {KV_RS}, v{t0}\nv_lshrrev_b32 v{t1}, 5, v{L}\nv_lshl_add_u32 v{V_KVW}, v{t1}, 3, v{t0}\nv_add_u32 v{V_KVW}, {KVIMG}, v{V_KVW}")
    a.I(f"v_mov_b32 v{XE}, 0x3f803f80\nv_mov_b32 v{XE+1}, 0x3f803f80")
    a.I(f"ds_write_b64 v{V_KVW}, {pk(XE)} offset:320")
    un = [x for t in (5, 6) for x in tile_units(t, u_phi)] if QFIRST else []
    if not QFIRST: a.I(f"s_mov_b32 s{SIGX}, 0x1ff")
    for t in range(5):
        for u in range(2):
            r0 = ACC1 + 16 * t + 8 * u
            o = 8 * t + 2 * u
            n = 8 if t < 2 else (4 if t == 2 else 0)
            un.append(((lambda Tm, r0=r0, n=n: u_phi(r0, Tm, n)), [f"ds_write2_b64 v{V_KVW}, {pk(r0)}, {pk(r0+2)} offset0:{o} offset1:{o+4}"]))
    ep_pipe(a, un)
    a.I("s_waitcnt vmcnt(0) lgkmcnt(0)")
    lds_add(a, 1, 112)
    AK, AV, C = 114, 115, 116
    a.I(f"v_lshrrev_b32 v{AK}, 5, v{L}\nv_bfe_u32 v{AV}, v{L}, 2, 2\nv_lshl_add_u32 v{AK}, v{AK}, 3, v{AV}\nv_mul_u32_u24 v{AK}, {KV_RS}, v{AK}")
    a.I(f"v_add_u32 v{AK}, {KVIMG}, v{AK}")
    a.I(f"v_bfe_u32 v{C}, v{L}, 4, 1\nv_and_b32 v{AV}, 3, v{L}\nv_lshl_add_u32 v{C}, v{C}, 2, v{AV}")
    a.I(f"s_mul_i32 s{T}, s{S_WAVE}, 40\nv_lshlrev_b32 v{C+1}, 3, v{C}\nv_add_u32 v{C+1}, s{T}, v{C+1}")
    a.I(f"v_cmp_gt_u32 vcc, 5, v{C}\nv_add_u32 v{C+2}, 160, v{C+1}\nv_mov_b32 v{C+3}, 320")
    a.I(f"v_cndmask_b32 v{C+2}, v{C+3}, v{C+2}, vcc")
    a.I(f"v_add_u32 v{AV}, v{AK}, v{C+2}\nv_add_u32 v{AK}, v{AK}, v{C+1}")
    a.I(f"v_lshrrev_b32 v{C}, 5, v{L}\nv_mul_u32_u24 v{C}, 320, v{C}\nv_and_b32 v{C+1}, 31, v{L}\nv_lshl_add_u32 v{C}, v{C+1}, 2, v{C}")
    lds_wait_ge(a, 1, 4, 112)
    if QFIRST:
        a.I(f"s_cmp_eq_u32 s{S_WAVE}, 0\ns_cselect_b32 s{T}, s{SIG}, {WS_SIZE}\nv_mov_b32 v112, s{T}\nv_mov_b32 v113, s{S_TAG}\ns_mov_b64 exec, 1")
        a.I(f"buffer_store_dword v113, v112, {srd(SRD_WS)}, 0 offen {SC}\ns_mov_b64 exec, -1")
    FK, FV, D = 0, 32, 64
    for kp in range(8):
        o = kp * 16 * KV_RS
        a.I(f"ds_read_b64_tr_b16 {pk(FK+4*kp)}, v{AK} offset:{o}\nds_read_b64_tr_b16 {pk(FK+4*kp+2)}, v{AK} offset:{o+4*KV_RS}")
        a.I(f"ds_read_b64_tr_b16 {pk(FV+4*kp)}, v{AV} offset:{o}\nds_read_b64_tr_b16 {pk(FV+4*kp+2)}, v{AV} offset:{o+4*KV_RS}")
        if kp >= 2:
            a.I("s_waitcnt lgkmcnt(8)")
            k2 = kp - 2
            a.I(f"v_mfma_f32_32x32x16_bf16 v[{D}:{D+15}], {q4(FV+4*k2)}, {q4(FK+4*k2)}, {'0' if k2 == 0 else f'v[{D}:{D+15}]'}")
    for k2 in (6, 7):
        a.I(f"s_waitcnt lgkmcnt({4*(7-k2)})")
        a.I(f"v_mfma_f32_32x32x16_bf16 v[{D}:{D+15}], {q4(FV+4*k2)}, {q4(FK+4*k2)}, v[{D}:{D+15}]")
    a.I(f"s_lshl_b32 s{T+2}, s{S_CG}, 2\ns_add_u32 s{T+2}, s{T+2}, s{S_WAVE}\ns_mul_i32 s{T+2}, s{T+2}, 1680\ns_add_u32 s{T+2}, s{T+2}, {KV_OFF}")
    a.I("s_mov_b32 exec_lo, 0xfffff\ns_mov_b32 exec_hi, 0xfffff")
    for r in range(12):
        if r == 9: a.I("s_mov_b32 exec_hi, 0")
        e = 8 * (r >> 2) + (r & 3)
        if not NOATOM: a.I(f"buffer_atomic_add_f32 v{D+r}, v{C}, {srd(SRD_WS)}, s{T+2} offen offset:{e*80}")
    a.I("s_mov_b64 exec, -1")
    if not QFIRST: ep_pipe(a, [x for t in (5, 6) for x in tile_units(t, u_phi)])
    a.L("L_ep_done")
    lds_add(a, 7, 112)
    ST(a, "epi")
    a.C("---- publish ----")
    vm = Q("vmcnt", 63)
    PQ, AC2, WO = 0, 80, 160
    VT = 240
    W_KVW, W_KT0, W_KT1, W_MZ = 250, 251, 252, 249
    u0, u1, u2, u3 = VT, VT + 1, VT + 2, VT + 3
    a.I(f"s_lshl_b32 s{T}, s{S_CG}, 4\ns_add_u32 s{T}, s{T}, s{S_RB}\ns_lshl_b32 s{T}, s{T}, 2\ns_add_u32 s{T}, s{T}, {FL3-1024}\nv_lshlrev_b32 v114, 10, v{L}\nv_add_u32 v114, s{T}, v114\nv_mov_b32 v115, s{S_TAG}")
    a.I(f"v_writelane_b32 v114, s{SIG}, 0")
    g2_common(a)
    a.I(f"s_mul_i32 s{S_BB}, s{S_CG2}, {68*5*1024}\ns_mul_i32 s{T}, s{S_WAVE}, {25*1024}\ns_add_u32 s{S_BB}, s{S_BB}, s{T}\ns_add_u32 s{S_BB}, s{S_BB}, {B2_OFF + 48*5*1024}")
    WO4 = AC2 + 60
    def wor(t): return WO4 if t == 4 else WO + 20 * t
    def woload(t):
        a.I(f"s_add_u32 s{T}, s{S_BB}, {t*5120}\ns_add_u32 s{T+1}, s{T}, 4096")
        for ct in range(5):
            a.I(f"buffer_load_dwordx4 {q4(wor(t)+4*ct)}, v{V_L16}, {srd(SRD_WS)}, s{T+(ct>>2)} offen offset:{(ct&3)*1024} {SC}")
            vm.issue(("wo", t))
    vm.issue("stores")
    a.I(f"s_lshr_b32 s{T}, s{S_RB2}, 1\ns_lshl_b32 s{T}, s{T}, 8\ns_add_u32 s{T}, s{T}, {FL2Q}\nv_lshlrev_b32 v116, 2, v{L}\nv_add_u32 v116, s{T}, v116")
    if QFIRST: poll_issue(a, vm, 116, 118, 9, 1, "pq?")
    for t in range(WODRAIN): woload(t)
    KB = T + 13
    a.I(f"s_mul_i32 s{KB}, s{S_WAVE}, {MZS}\ns_add_u32 s{KB}, s{KB}, {MZ}\nv_add_u32 v{W_MZ}, s{KB}, v{V_L16}")
    a.I(f"v_mul_u32_u24 v{u0}, 205, v{L}\nv_lshrrev_b32 v{u0}, 10, v{u0}\nv_mul_u32_u24 v{u1}, 5, v{u0}\nv_sub_u32 v{u1}, v{L}, v{u1}")
    a.I(f"v_lshlrev_b32 v{u0}, 6, v{u0}\nv_lshl_add_u32 v{u0}, v{u1}, 3, v{u0}")
    a.I(f"v_add_u32 v{W_KVW}, s{KB}, v{u0}")
    a.I(f"v_and_b32 v{u0}, 15, v{L}\nv_lshrrev_b32 v{u1}, 4, v{L}\nv_lshlrev_b32 v{u1}, 3, v{u1}\nv_add_u32 v{u1}, s{KB}, v{u1}")
    a.I(f"v_lshl_add_u32 v{W_KT0}, v{u0}, 6, v{u1}")
    a.I(f"v_and_b32 v{u2}, 3, v{L}\nv_cmp_eq_u32 vcc, 0, v{u2}\nv_lshrrev_b32 v{u0}, 2, v{u0}\nv_add_u32 v{u0}, 16, v{u0}\nv_mov_b32 v{u2}, 20")
    a.I(f"v_cndmask_b32 v{u0}, v{u2}, v{u0}, vcc")
    a.I(f"v_lshl_add_u32 v{W_KT1}, v{u0}, 6, v{u1}")
    vm.wait(a, "pq?" if QFIRST else "stores")
    ST(a, "drain")
    lds_add(a, 2, 112, rtn=True)
    a.I(f"s_waitcnt lgkmcnt(0)\nv_readfirstlane_b32 s{T}, v113\ns_cmp_lg_u32 s{T}, 3\ns_cbranch_scc1 L_nosig")
    a.I(f"s_mov_b32 exec_lo, s{SIGX}\ns_mov_b32 exec_hi, 0")
    a.I(f"buffer_store_dword v115, v114, {srd(SRD_WS)}, 0 offen {SC}\ns_mov_b64 exec, -1")
    a.L("L_nosig")
    a.C("==== gemm2, attention part (waves 0..3) ====")
    def pqload():
        for sg in range(4):
            a.I(f"s_mul_i32 s{T}, s{S_WAVE}, {5*1024}\ns_add_u32 s{T}, s{T}, {48*1024}\ns_add_u32 s{T}, s{T}, s{S_A+sg}\ns_add_u32 s{T+1}, s{T}, 4096")
            for t in range(5):
                a.I(f"buffer_load_dwordx4 {q4(PQ+20*sg+4*t)}, v{V_L16}, {srd(SRD_WS)}, s{T+(t>>2)} offen offset:{(t&3)*1024} {SC}")
                vm.issue(("pq", sg))
    def s2q():
        a.I(f"s_cmp_lg_u32 s{S_WAVE}, 0\ns_cbranch_scc1 L_m_nopoll\ns_setprio 3")
        poll(a, 116, 118, 9, 1, PSLEEP)
        lds_add(a, 5, VT)
        a.L("L_m_nopoll")
        lds_wait_ge(a, 5, 1, VT)
        ST(a, "S2Q")
    def zero_img():
        lds_wait_ge(a, 7, 4, VT)
        for i in range(4): a.I(f"v_mov_b32 v{AC2+i}, 0")
        for i in range(11): a.I(f"ds_write_b128 v{W_MZ}, {q4(AC2)} offset:{i*1024}")
    if QFIRST:
        a.I(f"s_setprio {PQPRIO}")
        poll_check(a, vm, 116, 118, 9, 1, "pq?", 8)
        ST(a, "S2Q")
        pqload(); zero_img()
        for t in range(WODRAIN, WOEARLY): woload(t)
    else:
        for t in range(WODRAIN, WOEARLY): woload(t)
        zero_img(); s2q(); a.I(f"s_setprio {PQPRIO}"); pqload()
    ST(a, "pqiss")
    a.I("s_setprio 3")
    a.I(f"s_cmp_lg_u32 s{S_WAVE}, 0\ns_cbranch_scc1 L_m_nopoll2")
    a.I(f"s_and_b32 s{T}, s2, 7\ns_lshl_b32 s{T}, s{T}, 10\ns_add_u32 s{T}, s{T}, {FL3}\nv_lshlrev_b32 v{u0}, 3, v{L}\nv_add_u32 v{u0}, s{T}, v{u0}")
    poll(a, u0, u2, 64, 2, PSLEEP)
    lds_add(a, 4, VT)
    a.L("L_m_nopoll2")
    lds_wait_ge(a, 4, 1, VT)
    ST(a, "S3")
    KVRAW = AC2
    for i in range(14):
        if i % 4 == 0: a.I(f"s_mul_i32 s{T}, s{S_WAVE}, {8*1680}\ns_add_u32 s{T}, s{T}, {KV_OFF + i*960}")
        a.I(f"buffer_load_dwordx4 {q4(KVRAW+4*i)}, v{V_L16}, {srd(SRD_WS)}, s{T} offen offset:{(i%4)*960} {SC}")
        vm.issue(("kv", i))
    EPSC = VT + 4
    a.I(f"v_mov_b32 v{EPSC}, 0\nv_mov_b32 v{EPSC+1}, {hx(f32(1e-6))}\nv_mov_b32 v{EPSC+2}, 0\nv_mov_b32 v{EPSC+3}, 0")
    for i in range(14):
        r = KVRAW + 4 * i
        vm.wait(a, ("kv", i))
        a.I(f"v_cvt_pk_bf16_f32 v{r}, v{r}, v{r+1}\nv_cvt_pk_bf16_f32 v{r+1}, v{r+2}, v{r+3}")
        a.I(f"ds_write_b64 v{W_KVW}, {pk(r)} offset:{24 + i*768}")
    for t in range(WOEARLY, 4): woload(t)
    a.I("s_waitcnt lgkmcnt(0)")
    ST(a, "kvlds")
    ND, KT = AC2, AC2 + 48
    def ktread(qd, pr):
        o = []
        for hh in range(2):
            hq = 2 * pr + hh; h = 4 * qd + hq
            for tau in range(2):
                for b in range(2):
                    o.append(f"ds_read_b64 {pk(KT+(hq*2+tau)*4+2*b)}, v{W_KT1 if tau else W_KT0} offset:{h*1344 + 24 - 8*hq + 32*b}")
        return o
    groups = [(qd, sg, pr) for qd in range(2) for sg in range(4) for pr in range(2)]
    def nmf(gi):
        qd, sg, pr = groups[gi]
        nd = ND + 16 * (gi % 3)
        o = []
        for hh in range(2):
            hq = 2 * pr + hh
            for tau in (1, 0):
                o.append(f"v_mfma_f32_16x16x32_bf16 {q4(nd+8*hh+4*tau)}, {q4(KT+(hq*2+tau)*4)}, {q4(PQ+20*sg+10*qd+2*hq)}, {q4(EPSC) if tau else '0'}")
        return o
    def nva(gi):
        qd, sg, pr = groups[gi]
        D = [ND + 16 * (gi % 3), ND + 16 * (gi % 3) + 8]
        o = [f"v_rcp_f32_e64 v{d+6}, v{d+5}" for d in D]
        o += [f"v_mul_f32 v{d+i}, v{d+i}, v{d+6}" for d in D for i in range(5)]
        vals = [d + i for d in D for i in range(5)]
        o += [f"v_cvt_pk_bf16_f32 v{PQ+20*sg+10*qd+5*pr+i}, v{vals[2*i]}, v{vals[2*i+1]}" for i in range(5)]
        return o
    for x in ktread(0, 0): a.I(x)
    a.I("s_waitcnt lgkmcnt(7)")
    for x in ktread(0, 1): a.I(x)
    a.I("s_waitcnt lgkmcnt(8)")
    for x in nmf(0): a.I(x)
    a.I("s_waitcnt lgkmcnt(0)")
    for x in nmf(1): a.I(x)
    for gi in range(16):
        m = nmf(gi + 2) if gi + 2 < 16 else []
        v = nva(gi)
        if gi + 2 == 8: a.I("s_waitcnt lgkmcnt(8)")
        if gi + 2 == 9: a.I("s_waitcnt lgkmcnt(0)")
        for k, x in enumerate(v):
            a.I(x)
            if k % 4 == 1 and m: a.I(m.pop(0))
        if gi + 2 == 6:
            for x in ktread(1, 0): a.I(x)
        if gi + 2 == 7:
            a.I("s_waitcnt lgkmcnt(7)")
            for x in ktread(1, 1): a.I(x)
        if gi == 13: woload(4)
    ST(a, "odone")
    VM_, VH_, VX_, VO_, VB_ = VT, VT + 4, VT + 8, 250, 251
    RES, RU = 20, 40
    order = (1, 2, 3, 0)
    for k, sg in enumerate(order):
        A_ = AC2 + 20 * (k % 3); P_ = AC2 + 20 * ((k - 1) % 3)
        fill = []
        if k == 3:
            vm.wait(a, "R"); fill = res_unpack([0, 1, 2], RES, RU)
        for t in range(5):
            if k == 0: vm.wait(a, ("wo", t))
            for ct in ((3, 4, 0, 1, 2) if k == 3 else range(5)):
                d = A_ + 4 * ct
                a.I(f"v_mfma_f32_16x16x32_bf16 {q4(d)}, {q4(wor(t)+4*ct)}, {q4(PQ+20*sg+4*t)}, {'0' if t == 0 else q4(d)}")
                n = t * 5 + ct
                if k > 0 and n >= 8 and n % 3 == 2 and (n - 8) // 3 < 5:
                    c2 = (n - 8) // 3
                    a.I(f"ds_write_b128 v{W_MZ}, {q4(P_+4*c2)} offset:{((order[k-1]-1)*5+c2)*1024}")
                for _ in range(2):
                    if fill: a.I(fill.pop(0))
        if k == 0:
            out_addr(a, VO_, VB_, 252)
            res_issue(a, vm, [0, 1, 2], RES, VO_, VB_)
        if k == 1: red_addrs(a, VM_, VH_, VX_)
    for c2 in (3, 4): a.I(f"ds_write_b128 v{VX_}, {q4(AC2+4*c2)} offset:{(c2-3)*1024}")
    for k, ct in enumerate([0, 1, 2]):
        for i in (0, 2): a.I(f"v_pk_add_f32 {pk(AC2+4*ct+i)}, {pk(AC2+4*ct+i)}, {pk(RU+8*k+i)}")
    ST(a, "attend")
    a.I("s_waitcnt lgkmcnt(0)\ns_barrier")
    ST(a, "bar")
    final_sum(a, 0, [0, 1, 2], AC2, 100, VM_, VH_, VX_, VO_)
    a.I(f"s_or_b32 s{T}, s2, s{S_WAVE}\ns_cmp_eq_u32 s{T}, 0\ns_cselect_b32 s{T}, 0, {WS_SIZE}\ns_add_u32 s{T}, s{T}, {FLG_OFF}")
    a.I(f"v_mov_b32 v0, s{T}\nv_mov_b32 v1, s{S_TAG}\ns_mov_b64 exec, 1")
    a.I(f"buffer_store_dword v1, v0, {srd(SRD_WS)}, 0 offen\ns_mov_b64 exec, -1")
    ST(a, "end")
    if STAMPS: a.I("s_waitcnt vmcnt(0)")
    ST(a, "rt1", True)
    stamp_dump(a, 0)
    if DIAG:
        a.I("s_waitcnt vmcnt(0)\ns_memrealtime s[92:93]\ns_waitcnt lgkmcnt(0)")
        if DIAG == 1: a.I("s_sub_u32 s78, s92, s76")
        a.I("s_min_u32 s78, s78, 20000\ns_mov_b32 s76, s92")
        a.L("L_diag")
        a.I("s_memrealtime s[92:93]\ns_waitcnt lgkmcnt(0)\ns_sub_u32 s92, s92, s76\ns_cmp_lt_u32 s92, s78\ns_cbranch_scc1 L_diag")
    a.L("L_end")
    a.I("s_endpgm")

def header(launches):
    ref = open(f"cdna_kernels/{NAME}.s.ref").read().split("\n")
    out = [l for l in ref if l.startswith(";") and "@launch" not in l]
    out += launches
    out += ['.amdgcn_target "amdgcn-amd-amdhsa--gfx950"', ".text"]
    return "\n".join(out) + "\n"

def build(path, listform):
    ln = f"; @launch kernel={KN} grid=(256,1,1) block=(512,1,1) lds=163840" if listform else "; @launch grid=(256,1,1) block=(512,1,1) lds=163840"
    txt = header([ln])
    a = Asm()
    common(a)
    s1 = loader(a)
    s2 = aux(a)
    h2(a, [s1, s2])
    mwave(a)
    t, n = a.fixed()
    if NOSCL: t = "\n".join(l.replace(" sc1", "") if "load_dwordx4" in l else l for l in t.split("\n"))
    if NOSCS: t = "\n".join(l.replace(" sc1", "") if "store_dwordx4" in l else l for l in t.split("\n"))
    txt += t
    txt += ".p2align 8\n.fill 16384, 4, 0xbf800000\n"
    txt += f""".section .rodata,"a"
.p2align 6
.amdhsa_kernel {KN}
  .amdhsa_next_free_vgpr 256
  .amdhsa_next_free_sgpr 102
  .amdhsa_accum_offset 256
  .amdhsa_group_segment_fixed_size 0
  .amdhsa_kernarg_size 88
  .amdhsa_user_sgpr_count 2
  .amdhsa_user_sgpr_kernarg_segment_ptr 1
  .amdhsa_system_sgpr_workgroup_id_x 1
.end_amdhsa_kernel
"""
    open(path, "w").write(txt)
    if STAMPS: open(path + ".names", "w").write(repr(STAMP_NAMES))
    print("written", path, "nops inserted:", n)

if __name__ == "__main__":
    LIST = 0
    for arg in list(sys.argv):
        if "=" in arg:
            k_, v_ = arg.split("="); globals()[k_] = int(v_); sys.argv.remove(arg)
    build(sys.argv[1] if len(sys.argv) > 1 else f"cdna_kernels/{NAME}.s", LIST)
```

```python
import sys, math, struct
sys.path.insert(0, "gen")
from asmlib import Asm

NAME = "parallel_sum__linear_attn_block__dense_activation_gelu__prompt"
KN = NAME + "_kernel"
HQ_OFF   = 0x000000
B2_OFF   = 0x900000
STAT_OFF = 0xC00000
CS_OFF   = 0xC10000
KV_OFF   = 0xC40000
FLG_OFF  = 0xC58000
FL1, FL2F, FL2Q, FL3 = FLG_OFF + 0x1000, FLG_OFF + 0x2000, FLG_OFF + 0x3000, FLG_OFF + 0x4000
ZERO_KB  = 68
STAMP_OFF = 0xC80000
WS_SIZE  = 0xE00000

STAMPS = 0
CODEPF = 1
ROT1 = 0
ROT2 = 2
PD = 4
NB = 6
MPRIO = 1
SPIN = 8000
NOATOM = 0
NOSCL = 0
NOSCS = 0
THR = 0
PSLEEP = 4
G2MAP = 1
DLY = 6
N1 = 99
WOEARLY = 4
HPRIO = 2
QFIRST = 1
NOS1 = 0
WSMB = 0
WODRAIN = 2
PQPRIO = 3
FCHK, ECHK, BUDGET, BGRATE, BGMAX, APRIO = 12, 14, 48, 0, 15, 0
DIAG = 0

def f32(x): return struct.unpack("<I", struct.pack("<f", x))[0]
def hx(x): return hex(x & 0xFFFFFFFF)
def srd(n): return f"s[{n}:{n+3}]"
def pk(r): return f"v[{r}:{r+1}]"
def q4(r): return f"v[{r}:{r+3}]"
SC = "sc1"

S_X, S_WQKV, S_WO, S_W1, S_B1, S_W2, S_B2, S_OUT, S_DBG, S_WS = 4, 6, 8, 12, 14, 16, 18, 20, 22, 24
S_WAVE, S_I = 26, 27
SRD_X, SRD_W, SRD_WS, SRD_T, SRD_U = 28, 32, 36, 40, 44
S_RB, S_CG, S_TYPE, S_STR, S_BASE, S_JA, S_JB, S_NP, S_KS0, S_CSB, S_RB2, S_CG2 = range(48, 60)
T = 60
S_KK = 76
S_A = 88
S_SPIN = 96
S_TAG = 101
S_M16 = 97
V_LANE, V_L16, V_STAMP = 255, 254, 253

WSLOT = 14336
XRING = 6 * WSLOT
P0_LDS = XRING + 3 * 16384
EXT_LDS = P0_LDS + 16384
SYNC_LDS = EXT_LDS + 8192
KVIMG = 2 * WSLOT
KV_RS = 344
MZ, MZS = 28672, 15360
HZ1, HZS = 90112, 20480

class Q:
    def __init__(self, name, mx): self.q = []; self.name = name; self.mx = mx
    def issue(self, tag): self.q.append(tag)
    def wait(self, a, tag):
        idx = [i for i, t in enumerate(self.q) if t == tag]
        if not idx: return
        n = len(self.q) - 1 - idx[-1]
        assert n <= self.mx, (self.name, n)
        a.I(f"s_waitcnt {self.name}({n})")
        self.q = self.q[idx[-1] + 1:]
    def drain(self, a):
        a.I(f"s_waitcnt {self.name}(0)"); self.q = []

STAMP_NAMES = {}
DIAGN = {1: ('start', 'end'), 2: ('start', 'P0'), 3: ('P0', 'P4'), 4: ('P4', 'mainend'), 5: ('mainend', 'epi'), 6: ('epi', 'drain'), 7: ('drain', 'S3'), 8: ('S3', 'odone'), 9: ('odone', 'end'), 10: ('start', 'mainend'), 11: ('mainend', 'S3'), 12: ('S3', 'end')}
DIAGWG = -1
class Stamp:
    def __init__(self, role): self.role = role; self.n = 0; self.names = []; STAMP_NAMES[role] = self.names
    def __call__(self, a, name, real=False):
        if DIAG and self.role == "M" and name == DIAGN[DIAG][0]:
            a.I("s_memrealtime s[76:77]\ns_waitcnt lgkmcnt(0)")
        if DIAG and self.role == "M" and name == DIAGN[DIAG][1]:
            a.I("s_memrealtime s[92:93]\ns_waitcnt lgkmcnt(0)\ns_sub_u32 s78, s92, s76")
        if not STAMPS: return
        a.I(f"{'s_memrealtime' if real else 's_memtime'} s[92:93]\ns_waitcnt lgkmcnt(0)\nv_writelane_b32 v{V_STAMP}, s92, {self.n}")
        self.names.append(name); self.n += 1
def stamp_dump(a, vt):
    if not STAMPS: return
    a.I(f"s_lshl_b32 s92, s2, 3\ns_add_u32 s92, s92, s{S_WAVE}\ns_lshl_b32 s92, s92, 8\ns_add_u32 s92, s92, {STAMP_OFF}\nv_lshlrev_b32 v{vt}, 2, v{V_LANE}")
    a.I(f"buffer_store_dword v{V_STAMP}, v{vt}, {srd(SRD_WS)}, s92 offen")

def mk_srd(a, d, ptr, size):
    a.I(f"s_mov_b32 s{d}, s{ptr}\ns_mov_b32 s{d+1}, s{ptr+1}")
    a.I(f"s_mov_b32 s{d+2}, {hx(size)}\ns_mov_b32 s{d+3}, 0x20000")

_lbl = [0]
def newlabel(p):
    _lbl[0] += 1; return f"L_{p}{_lbl[0]}"

def lds_wait_ge(a, word, val, vt):
    l = newlabel("lw"); e = newlabel("lwe")
    a.I(f"s_mov_b32 s{S_SPIN}, {SPIN*8}\nv_mov_b32 v{vt}, {SYNC_LDS + 4*word}")
    a.L(l)
    a.I(f"ds_read_b32 v{vt+1}, v{vt}\ns_waitcnt lgkmcnt(0)\nv_readfirstlane_b32 s{T}, v{vt+1}")
    a.I(f"s_cmp_ge_u32 s{T}, {val}\ns_cbranch_scc1 {e}\ns_sleep 1\ns_sub_u32 s{S_SPIN}, s{S_SPIN}, 1\ns_cmp_lg_u32 s{S_SPIN}, 0\ns_cbranch_scc1 {l}")
    a.L(e)

def lds_add(a, word, vt, rtn=False):
    a.I(f"v_mov_b32 v{vt}, {SYNC_LDS + 4*word}\nv_mov_b32 v{vt+1}, 1\ns_mov_b64 exec, 1")
    if rtn: a.I(f"ds_add_rtn_u32 v{vt+1}, v{vt}, v{vt+1}")
    else: a.I(f"ds_add_u32 v{vt}, v{vt+1}")
    a.I("s_mov_b64 exec, -1")

def set_exec(a, nlanes):
    if nlanes >= 64: a.I("s_mov_b64 exec, -1")
    elif nlanes > 32: a.I(f"s_mov_b32 exec_lo, -1\ns_mov_b32 exec_hi, {hx((1 << (nlanes - 32)) - 1)}")
    else: a.I(f"s_mov_b32 exec_lo, {hx((1 << nlanes) - 1)}\ns_mov_b32 exec_hi, 0")
def tag_test(a, regs):
    for k, r in enumerate(regs):
        a.I(f"v_cmp_ne_u32 vcc, s{S_TAG}, v{r}")
        a.I("s_mov_b64 s[94:95], vcc" if k == 0 else "s_or_b64 s[94:95], s[94:95], vcc")
    a.I("s_cmp_lg_u64 s[94:95], 0")
def flag_load(a, voff, vt, w):
    a.I(f"buffer_load_dword{'x2' if w == 2 else ''} {pk(vt) if w == 2 else f'v{vt}'}, v{voff}, {srd(SRD_WS)}, 0 offen {SC}")
def poll(a, voff, vt, nlanes, w, slp):
    l = newlabel("pl"); e = newlabel("ple")
    a.I(f"s_mov_b32 s{S_SPIN}, {SPIN}")
    set_exec(a, nlanes)
    a.L(l)
    flag_load(a, voff, vt, w)
    a.I("s_waitcnt vmcnt(0)")
    tag_test(a, [vt + i for i in range(w)])
    a.I(f"s_cbranch_scc0 {e}")
    a.I(f"s_sleep {slp}\ns_sub_u32 s{S_SPIN}, s{S_SPIN}, 1\ns_cmp_lg_u32 s{S_SPIN}, 0\ns_cbranch_scc1 {l}")
    a.L(e)
    a.I("s_mov_b64 exec, -1")
def poll_issue(a, vm, voff, vt, nlanes, w, tag):
    set_exec(a, nlanes)
    flag_load(a, voff, vt, w)
    a.I("s_mov_b64 exec, -1")
    vm.issue(tag)
def poll_check(a, vm, voff, vt, nlanes, w, tag, slp):
    e = newlabel("pc")
    vm.wait(a, tag)
    set_exec(a, nlanes)
    tag_test(a, [vt + i for i in range(w)])
    a.I(f"s_mov_b64 exec, -1\ns_cbranch_scc0 {e}")
    poll(a, voff, vt, nlanes, w, slp)
    a.L(e)
def tag_ready(a):
    a.I(f"s_waitcnt lgkmcnt(0)\ns_mul_i32 s{S_TAG}, s{S_TAG}, 0x9e3779b1\ns_add_u32 s{S_TAG}, s{S_TAG}, 0x7f4a7c15")

def common(a):
    a.raw(f".globl {KN}\n.p2align 8\n.type {KN},@function")
    a.L(KN)
    a.I("s_cmp_ge_u32 s2, 256\ns_cbranch_scc1 L_end")
    a.I("s_load_dwordx16 s[4:19], s[0:1], 0\ns_load_dwordx4 s[20:23], s[0:1], 64\ns_load_dwordx2 s[24:25], s[0:1], 80")
    a.I(f"v_lshrrev_b32 v1, 6, v0\nv_and_b32 v{V_LANE}, 63, v0")
    a.I(f"v_readfirstlane_b32 s{S_WAVE}, v1\nv_lshlrev_b32 v{V_L16}, 4, v{V_LANE}")
    if CODEPF:
        a.I("s_getpc_b64 s[94:95]\ns_and_b32 s94, s94, 0xffffff00")
        a.I(f"s_and_b32 s92, s2, 0xf8\ns_add_u32 s92, s92, s{S_WAVE}\ns_lshl_b32 s92, s92, 8")
        a.I(f"v_lshlrev_b32 v2, 7, v{V_LANE}\nv_add_u32 v2, s92, v2\ns_mov_b64 exec, 3")
        a.I("global_load_dword v252, v2, s[94:95]\ns_mov_b64 exec, -1")
    a.I(f"s_and_b32 s{S_I}, s{S_WAVE}, 3\ns_mov_b32 s{S_M16}, 0xffff0000")
    a.I(f"s_and_b32 s{T}, s2, 1\ns_lshl_b32 s{T}, s{T}, 3\ns_bfe_u32 s{S_RB}, s2, 0x30003\ns_add_u32 s{S_RB}, s{S_RB}, s{T}")
    a.I(f"s_and_b32 s{T}, s2, 6\ns_bfe_u32 s{S_CG}, s2, 0x10006\ns_add_u32 s{S_CG}, s{S_CG}, s{T}\ns_lshr_b32 s{T}, s2, 7\ns_lshl_b32 s{T}, s{T}, 3\ns_add_u32 s{S_CG}, s{S_CG}, s{T}")
    if G2MAP == 0:
        a.I(f"s_and_b32 s{S_RB2}, s2, 7\ns_lshl_b32 s{S_RB2}, s{S_RB2}, 2\ns_bfe_u32 s{T}, s2, 0x20003\ns_add_u32 s{S_RB2}, s{S_RB2}, s{T}")
        a.I(f"s_lshr_b32 s{S_CG2}, s2, 5")
    else:
        a.I(f"s_and_b32 s{S_RB2}, s2, 6\ns_lshl_b32 s{S_RB2}, s{S_RB2}, 2\ns_bfe_u32 s{T}, s2, 0x30003\ns_add_u32 s{S_RB2}, s{S_RB2}, s{T}")
        a.I(f"s_and_b32 s{S_CG2}, s2, 1\ns_lshl_b32 s{S_CG2}, s{S_CG2}, 2\ns_lshr_b32 s{T}, s2, 6\ns_add_u32 s{S_CG2}, s{S_CG2}, s{T}")
    a.I(f"s_mov_b32 s{S_JA}, 0\ns_mov_b32 s{S_JB}, 0\ns_mov_b32 s{S_STR}, 3840\ns_mov_b32 s{S_CSB}, {CS_OFF}\ns_mov_b32 s{S_NP}, 28")
    a.I(f"s_cmp_lt_u32 s{S_CG}, 8\ns_cbranch_scc1 L_t_kvq\ns_cmp_eq_u32 s{S_CG}, 15\ns_cbranch_scc1 L_t_qx")
    a.I(f"s_mov_b32 s{S_TYPE}, 1\ns_sub_u32 s{T}, s{S_CG}, 8\ns_mul_i32 s{S_BASE}, s{T}, 448\ns_mul_i32 s{S_KS0}, s{T}, 7")
    a.I(f"s_mov_b32 s{S_STR}, 3072\ns_mov_b32 s{S_CSB}, {CS_OFF + 1920*32}\ns_cmp_eq_u32 s{S_CG}, 14\ns_cselect_b32 s{S_NP}, 24, 28\ns_branch L_t_done")
    a.L("L_t_qx")
    a.I(f"s_mov_b32 s{S_TYPE}, 2\ns_mov_b32 s{S_BASE}, 1024\ns_mov_b32 s{S_KS0}, 64\ns_mov_b32 s{S_NP}, 16\ns_branch L_t_done")
    a.L("L_t_kvq")
    a.I(f"s_mov_b32 s{S_TYPE}, 0\ns_mul_i32 s{S_BASE}, s{S_CG}, 160\ns_add_u32 s{S_BASE}, s{S_BASE}, 1280\ns_mov_b32 s{S_JA}, 1120")
    a.I(f"s_lshl_b32 s{S_JB}, s{S_CG}, 5\ns_sub_u32 s{S_JB}, {hx(-2720)}, s{S_JB}")
    a.I(f"s_lshl_b32 s{S_KS0}, s{S_CG}, 1\ns_add_u32 s{S_KS0}, s{S_KS0}, {48-5}")
    a.L("L_t_done")
    a.I(f"s_cmp_lt_u32 s{S_WAVE}, 4\ns_cbranch_scc1 L_M\ns_cmp_ge_u32 s{S_WAVE}, 6\ns_cbranch_scc1 L_AUX")

def base_srds(a):
    a.I("s_waitcnt lgkmcnt(0)")
    mk_srd(a, SRD_X, S_X, 2048 * 1280)
    if WSMB: a.I(f"s_add_u32 s{S_WS}, s{S_WS}, {hx(WSMB << 20)}\ns_addc_u32 s{S_WS+1}, s{S_WS+1}, 0")
    mk_srd(a, SRD_WS, S_WS, WS_SIZE)
    a.I(f"s_mov_b32 s{S_SPIN}, {FLG_OFF}\ns_buffer_load_dword s{S_TAG}, {srd(SRD_WS)}, s{S_SPIN}")

def loader(a):
    ST = Stamp("L")
    vm = Q("vmcnt", 63)
    if CODEPF: vm.issue("code")
    VW, VX, t0, t1, t2 = 4, 12, 16, 17, 18
    S_XK, S_WK, S_XB, S_MW, S_MX, S_W32, S_WEND = T + 2, T + 3, T + 4, T + 5, T + 6, T + 7, T + 8
    a.C("==== loader ====")
    ST(a, "rt0", True); ST(a, "start")
    a.I(f"v_lshrrev_b32 v{t0}, 3, v{V_LANE}\nv_and_b32 v{t1}, 7, v{V_LANE}\nv_lshrrev_b32 v{t2}, 1, v{t0}\nv_xor_b32 v{t1}, v{t1}, v{t2}")
    a.I(f"v_mul_u32_u24 v{t0}, 1280, v{t0}\nv_lshl_add_u32 v{VX}, v{t1}, 4, v{t0}\nv_xor_b32 v{VX+1}, 64, v{VX}")
    if ROT1 == 0: a.I(f"s_mov_b32 s{T}, 0")
    else:
        a.I(f"s_and_b32 s{T}, s{S_RB}, 7\ns_lshr_b32 s{T+1}, s2, 6")
        if ROT1 == 1: a.I(f"s_lshl_b32 s{T+1}, s{T+1}, 1\ns_add_u32 s{T}, s{T}, s{T+1}\ns_and_b32 s{T}, s{T}, 7\ns_mul_i32 s{T}, s{T}, 5\ns_lshr_b32 s{T}, s{T}, 2")
        else: a.I(f"s_add_u32 s{T}, s{T}, s{T+1}\ns_and_b32 s{T}, s{T}, 3\ns_mul_i32 s{T}, s{T}, 5\ns_lshr_b32 s{T}, s{T}, 1")
    a.I(f"s_lshl_b32 s{S_XK}, s{T}, 7\ns_lshl_b32 s{S_W32}, s{S_STR}, 5\ns_mul_i32 s{S_WK}, s{T}, s{S_W32}\ns_lshl_b32 s{S_WK}, s{S_WK}, 1")
    a.I(f"s_mul_i32 s{S_WEND}, s{S_STR}, 640")
    a.I(f"s_lshl_b32 s{S_XB}, s{S_RB}, 1\ns_add_u32 s{S_XB}, s{S_XB}, s{S_I}\ns_mul_i32 s{S_XB}, s{S_XB}, {64*1280}")
    a.I(f"s_mul_i32 s{S_MW}, s{S_I}, 7168\ns_lshl_b32 s{S_MX}, s{S_I}, 13\ns_add_u32 s{S_MX}, s{S_MX}, {XRING}")
    a.I(f"s_lshl_b32 s{T}, s{S_I}, 4\ns_mul_i32 s{T}, s{T}, s{S_STR}\ns_add_u32 s{T}, s{T}, s{S_BASE}")
    a.I(f"v_mov_b32 v20, s{S_JA}\ns_add_u32 s{T+1}, s{S_JA}, s{S_JB}\nv_mov_b32 v21, s{T+1}\nv_mov_b32 v22, 0x40000000")
    R_, P_, J_ = 24, 32, 40
    for it in range(7): a.I(f"v_add_u32 v{P_+it}, {64*it}, v{V_LANE}")
    for it in range(7): a.I(f"v_mul_u32_u24 v{R_+it}, 2341, v{P_+it}")
    for it in range(7): a.I(f"v_lshrrev_b32 v{R_+it}, 16, v{R_+it}")
    for it in range(7): a.I(f"v_mul_u32_u24 v{J_+it}, 28, v{R_+it}")
    for it in range(7): a.I(f"v_sub_u32 v{P_+it}, v{P_+it}, v{J_+it}")
    for it in range(7): a.I(f"v_mul_u32_u24 v{R_+it}, s{S_STR}, v{R_+it}")
    for it in range(7): a.I(f"v_lshl_add_u32 v{R_+it}, v{P_+it}, 4, v{R_+it}")
    for lim, src, first in (("10", 20, True), ("20", 21, False), (f"s{S_NP}", 22, False)):
        for it in range(7): a.I(f"v_cmp_le_u32 s[{S_KK+2*(it%6)}:{S_KK+2*(it%6)+1}], {lim}, v{P_+it}" if it < 6 else f"v_cmp_le_u32 vcc, {lim}, v{P_+it}")
        for it in range(7):
            m = f"s[{S_KK+2*it}:{S_KK+2*it+1}]" if it < 6 else "vcc"
            a.I(f"v_cndmask_b32 v{J_+it}, {'0' if first else f'v{J_+it}'}, v{src}, {m}")
    for it in range(7): a.I(f"v_add3_u32 v{VW+it}, v{R_+it}, v{J_+it}, s{T}")
    base_srds(a)
    def xl(c, half):
        if half == 0: a.I(f"s_add_u32 s{T+9}, s{S_XB}, s{S_XK}")
        for i in range(4 * half, 4 * half + 4):
            a.I(f"s_add_u32 m0, s{S_MX}, {(c%3)*16384 + i*1024}")
            a.I(f"s_add_u32 s{T}, s{T+9}, {i*10240}")
            a.I(f"buffer_load_dwordx4 v{VX+(i&1)}, {srd(SRD_X)}, s{T} offen lds")
            vm.issue(("x", c))
        if half == 0:
            a.I(f"s_add_u32 s{S_XK}, s{S_XK}, 128\ns_cmp_eq_u32 s{S_XK}, 1280\ns_cselect_b32 s{S_XK}, 0, s{S_XK}")
    def wl(h):
        for it in range(7):
            a.I(f"s_add_u32 m0, s{S_MW}, {(h%6)*WSLOT + it*1024}")
            a.I("s_nop 0")
            a.I(f"buffer_load_dwordx4 v{VW+it}, {srd(SRD_W)}, s{S_WK} offen lds")
            vm.issue(("W", h))
        a.I(f"s_add_u32 s{S_WK}, s{S_WK}, s{S_W32}\ns_cmp_eq_u32 s{S_WK}, s{S_WEND}\ns_cselect_b32 s{S_WK}, 0, s{S_WK}")
    xl(0, 0); xl(0, 1)
    a.I(f"s_cmp_eq_u32 s{S_TYPE}, 1\ns_cselect_b32 s{SRD_W}, s{S_W1}, s{S_WQKV}\ns_cselect_b32 s{SRD_W+1}, s{S_W1+1}, s{S_WQKV+1}")
    a.I(f"s_mov_b32 s{SRD_W+2}, s{S_WEND}\ns_mov_b32 s{SRD_W+3}, 0x20000")
    def step(h):
        if h > 19: return
        if h == 0: wl(0)
        elif h & 1:
            wl(h)
            if (h + 1) // 2 < 10: xl((h + 1) // 2, 0)
        else:
            xl(h // 2, 1); wl(h)
    step(0)
    tag_ready(a)
    a.I("s_barrier")
    step(1)
    bg = bg_jobs(a, vm)
    for h in range(20):
        vm.wait(a, ("W", h))
        if h % 2 == 0: ST(a, f"P{h}w")
        a.I("s_barrier")
        step(h + 2)
        if h == 6: h2_setup(a)
        if h > FCHK:
            for _ in range(BGRATE):
                if len(bg) > 30 - BGMAX: bg.pop(0)()
    ST(a, "ringend")
    h_rest(a, bg)
    ST(a, "breg")
    a.I("s_branch L_H2")
    return ST

def aux(a):
    ST = Stamp("A")
    vm = Q("vmcnt", 63)
    if CODEPF: vm.issue("code")
    L = V_LANE
    X, CW, U = 0, 20, 200
    t0, t1, t2, t3 = 60, 61, 62, 63
    BIAS, VXA, VWA, VO, VI, VTRA, CSO, CSOM, VPF = 64, 68, 69, 70, 71, 72, 73, 74, 75
    S_AL, S_ROW, S_L, S_P, S_CB, S_ST, S_WO_, S_UK, S_UC, S_LB = (T + i for i in range(2, 12))
    a.L("L_AUX")
    a.C("==== aux ====")
    ST(a, "rt0", True); ST(a, "start")
    a.I(f"s_sub_u32 s{S_AL}, s{S_WAVE}, 6")
    UN = T + 12
    a.I(f"s_lshl_b32 s{UN}, s{S_AL}, 8\ns_add_u32 s{UN}, s{UN}, s2")
    a.I(f"s_mul_hi_u32 s{S_UK}, s{UN}, {hx((1<<32)//5+1)}\ns_mul_i32 s{S_UC}, s{S_UK}, 5\ns_sub_u32 s{S_UC}, s{UN}, s{S_UC}")
    a.I(f"v_lshrrev_b32 v{t0}, 3, v{L}\nv_and_b32 v{t1}, 7, v{L}")
    SO = T + 13
    a.I(f"s_cmp_ge_u32 s{S_UK}, 48\ns_cbranch_scc1 L_p0_att")
    a.I(f"v_lshrrev_b32 v{t2}, 2, v{t0}\nv_and_b32 v{t3}, 3, v{t0}\nv_lshl_add_u32 v{VO}, v{t2}, 4, v{t3}")
    a.I(f"v_mov_b32 v{VI}, {4*1280}\ns_lshl_b32 s{SO}, s{S_UK}, 5\ns_branch L_p0_cgo")
    a.L("L_p0_att")
    a.I(f"s_sub_u32 s{T}, s{S_UK}, 48\ns_mul_i32 s{T+1}, s{T}, 205\ns_lshr_b32 s{T+1}, s{T+1}, 10")
    a.I(f"s_mul_i32 s{SO}, s{T+1}, 5\ns_sub_u32 s{T}, s{T}, s{SO}\ns_lshl_b32 s{T}, s{T}, 3\ns_mul_i32 s{SO}, s{T+1}, 160")
    a.I(f"v_add_u32 v{t2}, s{T}, v{t0}")
    a.I(f"v_mul_u32_u24 v{t3}, 205, v{t2}\nv_lshrrev_b32 v{t3}, 10, v{t3}")
    a.I(f"v_mul_u32_u24 v{VO}, 5, v{t3}\nv_sub_u32 v{t2}, v{t2}, v{VO}")
    a.I(f"v_cmp_eq_u32 vcc, 4, v{t2}\nv_mov_b32 v{VO}, 16\nv_mov_b32 v{VI}, 1280")
    a.I(f"v_cndmask_b32 v{t2}, v{t2}, v{VO}, vcc\nv_mov_b32 v{VO}, {4*1280}")
    a.I(f"v_cndmask_b32 v{VI}, v{VO}, v{VI}, vcc")
    a.I(f"v_mad_u32_u24 v{VO}, v{t3}, 20, v{t2}")
    a.L("L_p0_cgo")
    a.I(f"v_mul_u32_u24 v{VO}, 1280, v{VO}\nv_lshl_add_u32 v{VO}, v{t1}, 4, v{VO}")
    a.I(f"s_mul_i32 s{SO}, s{SO}, 1280\ns_lshl_b32 s{T}, s{S_UC}, 8\ns_add_u32 s{SO}, s{SO}, s{T}")
    a.I(f"s_lshl_b32 s{S_LB}, s{S_AL}, 13\ns_add_u32 s{S_LB}, s{S_LB}, {P0_LDS}")
    a.I(f"v_mov_b32 v{t2}, 0\nv_lshlrev_b32 v{t3}, 2, v{L}\nv_add_u32 v{t3}, {SYNC_LDS}, v{t3}\nds_write_b32 v{t3}, v{t2}")
    for i in range(4): a.I(f"v_mov_b32 v{76+i}, 0")
    base_srds(a)
    a.I(f"s_cmp_ge_u32 s{S_UK}, 48\ns_cselect_b32 s{SRD_W}, s{S_WO}, s{S_W2}\ns_cselect_b32 s{SRD_W+1}, s{S_WO+1}, s{S_W2+1}")
    a.I(f"s_mov_b32 s{SRD_W+2}, {1536*1280}\ns_cselect_b32 s{SRD_W+2}, {640*1280}, s{SRD_W+2}\ns_mov_b32 s{SRD_W+3}, 0x20000")
    a.I(f"s_cmp_ge_u32 s{UN}, 340\ns_cselect_b32 s{SRD_W+2}, 0, s{SRD_W+2}")
    bar = [-1]
    def B(upto):
        while bar[0] <= upto:
            a.I("s_barrier"); bar[0] += 1
    tag_ready(a)
    B(-1)
    a.I(f"s_add_u32 s{T+1}, s{SO}, 128")
    for it in range(4):
        for ln in range(2):
            a.I(f"s_add_u32 m0, s{S_LB}, {ln*4096 + it*1024}\ns_nop 0")
            a.I(f"buffer_load_dwordx4 v{VO}, {srd(SRD_W)}, s{T+1 if ln else SO} offen lds")
            vm.issue("rl")
        if it < 3: a.I(f"v_add_u32 v{VO}, v{VO}, v{VI}")
    a.I(f"s_sub_u32 s{T}, s{UN}, 340\ns_lshl_b32 s{T+1}, s{T}, 10\ns_add_u32 s{T+1}, s{T+1}, {KV_OFF}\ns_cmp_lt_u32 s{T}, {ZERO_KB}\ns_cselect_b32 s{T+1}, s{T+1}, {WS_SIZE}")
    a.I(f"buffer_store_dwordx4 {q4(76)}, v{V_L16}, {srd(SRD_WS)}, s{T+1} offen {SC}")
    vm.issue("rls")
    LAM, QD = T + 14, T + 15
    a.I(f"s_lshr_b32 s{LAM}, s2, 4\ns_bfe_u32 s{QD}, s2, 0x20001\ns_and_b32 s{S_P}, s2, 1\ns_lshl_b32 s{S_P}, s{S_P}, 1\ns_bfe_u32 s{T}, s2, 0x10003\ns_add_u32 s{S_P}, s{S_P}, s{T}")
    a.I(f"s_lshr_b32 s{T}, s{QD}, 1\ns_mul_i32 s{T}, s{T}, 5\ns_and_b32 s{T+1}, s{QD}, 1\ns_mul_i32 s{S_L}, s{T+1}, 3\ns_add_u32 s{S_L}, s{S_L}, s{T}")
    a.I(f"s_add_u32 s{S_L}, s{S_L}, s{LAM}\ns_add_u32 s{S_L}, s{S_L}, 10")
    a.I(f"s_add_u32 s{T+1}, s{T+1}, s{LAM}\ns_cmp_ge_u32 s{T+1}, 3\ns_cselect_b32 s{T}, 7, 0\ns_add_u32 s{S_L}, s{S_L}, s{T}")
    a.I(f"s_lshl_b32 s{T}, s{QD}, 1\ns_add_u32 s{T}, s{T}, s{LAM}\ns_sub_u32 s{T}, s{T}, 5\ns_cmp_ge_u32 s{LAM}, 5\ns_cselect_b32 s{S_L}, s{T}, s{S_L}")
    a.I(f"s_mul_i32 s{T}, s{QD}, 7\ns_add_u32 s{T}, s{T}, s{LAM}\ns_add_u32 s{T}, s{T}, 23\ns_cmp_ge_u32 s{LAM}, 7\ns_cselect_b32 s{S_L}, s{T}, s{S_L}")
    a.I(f"s_cmp_ge_u32 s{LAM}, 14\ns_cselect_b32 s{S_L}, 64, s{S_L}")
    a.I(f"s_sub_u32 s{T}, s{S_L}, 46\ns_cmp_ge_u32 s{S_L}, 54\ns_cselect_b32 s{T+1}, s{T}, s{S_L}")
    a.I(f"s_cmp_ge_u32 s{S_L}, 56\ns_cselect_b32 s{S_L}, 64, s{T+1}")
    a.I(f"s_cmp_ge_u32 s{S_L}, 30")
    a.I(f"s_cselect_b32 s{SRD_T}, s{S_W1}, s{S_WQKV}\ns_cselect_b32 s{SRD_T+1}, s{S_W1+1}, s{S_WQKV+1}")
    a.I(f"s_mov_b32 s{S_ST}, 3840\ns_cselect_b32 s{S_ST}, 3072, s{S_ST}\ns_cselect_b32 s{S_CB}, 30, 0")
    a.I(f"s_mul_i32 s{SRD_T+2}, s{S_ST}, 640\ns_mov_b32 s{SRD_T+3}, 0x20000")
    a.I(f"s_cmp_ge_u32 s{S_L}, 54\ns_cselect_b32 s{SRD_T+2}, 0, s{SRD_T+2}")
    a.I(f"s_sub_u32 s{S_CB}, s{S_L}, s{S_CB}\ns_lshl_b32 s{S_CB}, s{S_CB}, 7\ns_lshl_b32 s{T}, s{S_AL}, 6\ns_add_u32 s{S_CB}, s{S_CB}, s{T}")
    a.I(f"s_mul_i32 s{S_WO_}, s{S_P}, 160\ns_mul_i32 s{S_WO_}, s{S_WO_}, s{S_ST}\ns_add_u32 s{S_WO_}, s{S_WO_}, s{S_CB}")
    a.I(f"v_lshrrev_b32 v{t1}, 2, v{L}\nv_mul_lo_u32 v{t1}, v{t1}, s{S_ST}\nv_and_b32 v{t2}, 3, v{L}\nv_lshl_add_u32 v{VWA}, v{t2}, 4, v{t1}")
    a.I(f"s_lshl_b32 s{S_ST}, s{S_ST}, 4")
    a.I(f"v_lshrrev_b32 v{t0}, 4, v{L}\nv_bfe_u32 v{t1}, v{L}, 2, 2\nv_and_b32 v{t2}, 3, v{L}")
    a.I(f"v_lshl_add_u32 v{t0}, v{t0}, 3, v{t1}\nv_lshlrev_b32 v{t0}, 7, v{t0}\nv_lshl_add_u32 v{t0}, v{t2}, 3, v{t0}\nv_add_u32 v{VTRA}, s{S_LB}, v{t0}")
    a.I(f"s_lshl_b32 s{S_ROW}, s{S_UC}, 7\ns_add_u32 s{S_ROW}, s{S_ROW}, s{S_UK}\ns_add_u32 s{T}, s{UN}, {5*128-340}\ns_cmp_ge_u32 s{UN}, 340\ns_cselect_b32 s{S_ROW}, s{T}, s{S_ROW}")
    a.I(f"s_lshl_b32 s{S_ROW}, s{S_ROW}, 2\ns_add_u32 s{S_ROW}, s{S_ROW}, {FL1}\ns_cmp_ge_u32 s{UN}, {340+ZERO_KB}\ns_cselect_b32 s{S_ROW}, {WS_SIZE}, s{S_ROW}")
    a.I(f"s_lshl_b32 s{S_UC}, s{S_UC}, 3\ns_mul_i32 s{S_UK}, s{S_UK}, 5")
    a.I(f"s_cmp_ge_u32 s{UN}, 340\ns_cselect_b32 s{S_UK}, 0x4000, s{S_UK}")
    def wloads(i0, i1):
        for it in range(i0, i1):
            a.I(f"buffer_load_dwordx4 {q4(CW+4*it)}, v{VWA}, {srd(SRD_T)}, s{S_WO_} offen")
            vm.issue("w")
            a.I(f"s_add_u32 s{S_WO_}, s{S_WO_}, s{S_ST}")
    def relayout(ln):
        FR = U + 16 * ln
        for i in range(4):
            a.I(f"ds_read_b64_tr_b16 {pk(FR+4*i)}, v{VTRA} offset:{ln*4096+32*i}\nds_read_b64_tr_b16 {pk(FR+4*i+2)}, v{VTRA} offset:{ln*4096+32*i+512}")
        for i in range(4):
            a.I(f"s_mul_i32 s{T}, s{S_UC}, 205\ns_lshr_b32 s{T}, s{T}, 10\ns_mul_i32 s{T}, s{T}, 335\ns_add_u32 s{T}, s{T}, s{S_UC}\ns_add_u32 s{T}, s{T}, s{S_UK}")
            a.I(f"s_lshl_b32 s{T}, s{T}, 10\ns_add_u32 s{T}, s{T}, {B2_OFF}\ns_add_u32 s{S_UC}, s{S_UC}, 1")
            a.I(f"s_waitcnt lgkmcnt({6-2*i})")
            a.I(f"buffer_store_dwordx4 {q4(FR+4*i)}, v{V_L16}, {srd(SRD_WS)}, s{T} offen {SC}")
            vm.issue("rls")
    mark = [0]
    bg = bg_jobs(a, vm)
    PV = 240
    def cost():
        c = 0
        for k, t in a.items[mark[0]:]:
            if k == "i": c += 8 if t.startswith("buffer_") else (0.5 if t.startswith("s_") else 1)
        return c
    def nxt():
        if bar[0] == FCHK + 1:
            ST(a, "prechk")
            poll_check(a, vm, PV, PV + 2, 34, 2, "f0", 8)
            poll_check(a, vm, PV + 1, PV + 4, 34, 2, "f1", 8)
            ST(a, "fchk")
        B(bar[0]); mark[0] = len(a.items)
        if bar[0] == FCHK - 1:
            poll_issue(a, vm, PV, PV + 2, 34, 2, "f0")
            poll_issue(a, vm, PV + 1, PV + 4, 34, 2, "f1")
        if bar[0] - 1 > FCHK:
            for _ in range(BGRATE):
                if len(bg) > 30 - BGMAX: bg.pop(0)()
    def cut():
        if cost() >= BUDGET: nxt()
    def until(k):
        while bar[0] <= k: nxt()
    if APRIO: a.I(f"s_setprio {APRIO}")
    until(0)
    ST(a, "P0")
    vm.wait(a, "rl")
    relayout(0)
    relayout(1)
    nxt()
    wloads(0, 10)
    nxt()
    h2_setup(a)
    a.I(f"s_mul_i32 s{T}, s{S_CG2}, 80\ns_mul_i32 s{T+1}, s{S_AL}, 79\ns_add_u32 s{T}, s{T}, s{T+1}\ns_lshr_b32 s{T}, s{T}, 7\ns_lshl_b32 s{T}, s{T}, 9\ns_add_u32 s{T}, s{T}, {FL1}")
    a.I(f"v_lshlrev_b32 v{PV+1}, 3, v{L}\nv_add_u32 v{PV}, s{T}, v{PV+1}\nv_add_u32 v{PV+1}, {FL1+5*512}, v{PV+1}")
    a.I(f"v_mov_b32 v{t0}, s{S_ROW}\nv_mov_b32 v{t1}, s{S_TAG}")
    vm.wait(a, "rls")
    a.I(f"s_mov_b64 exec, 1\nbuffer_store_dword v{t1}, v{t0}, {srd(SRD_WS)}, 0 offen {SC}\ns_mov_b64 exec, -1")
    vm.issue("sig")
    ST(a, "rlsdone")
    nxt()
    vm.wait(a, "w")
    AC, m0_ = 0, 76
    E = 8
    for it in range(10):
        dst = AC if it == 0 else E
        for i in range(4):
            a.I(f"v_lshlrev_b32 v{dst+2*i}, 16, v{CW+4*it+i}\nv_and_b32 v{dst+2*i+1}, s{S_M16}, v{CW+4*it+i}")
        if it:
            for i in range(8): a.I(f"v_add_f32 v{AC+i}, v{AC+i}, v{E+i}")
        cut()
    for i in range(4): a.I(f"v_permlane32_swap_b32 v{AC+i}, v{AC+i+4}")
    for i in range(4): a.I(f"v_add_f32 v{AC+i}, v{AC+i}, v{AC+i+4}")
    for i in range(2): a.I(f"v_permlane16_swap_b32 v{AC+i}, v{AC+i+2}")
    for i in range(2): a.I(f"v_add_f32 v{AC+i}, v{AC+i}, v{AC+i+2}")
    for m in ("row_ror:8", "row_ror:4"):
        for i in range(2): a.I(f"v_add_f32_dpp v{AC+i}, v{AC+i}, v{AC+i} {m} row_mask:0xf bank_mask:0xf")
    cut()
    a.I(f"v_bfe_u32 v{t0}, v{L}, 2, 1\nv_cmp_eq_u32 vcc, 1, v{t0}\nv_and_b32 v{t1}, 3, v{L}\nv_lshl_add_u32 v{t0}, v{t1}, 3, v{t0}")
    a.I(f"v_cndmask_b32 v{AC}, v{AC}, v{AC+1}, vcc\nv_lshrrev_b32 v{t1}, 4, v{L}\nv_lshl_add_u32 v{t0}, v{t1}, 1, v{t0}\nv_lshlrev_b32 v{t0}, 5, v{t0}")
    a.I(f"v_cvt_pk_bf16_f32 v{t2}, v{AC}, v{AC}\nv_and_b32 v{t2}, s{S_M16}, v{t2}\nv_sub_f32 v{t2}, v{AC}, v{t2}\nv_cvt_pk_bf16_f32 v{t2}, v{AC}, v{t2}")
    a.I(f"s_lshl_b32 s{T}, s{S_L}, 11\ns_lshl_b32 s{T+1}, s{S_AL}, 10\ns_add_u32 s{T}, s{T}, s{T+1}\ns_add_u32 s{T}, s{T}, {CS_OFF}")
    a.I(f"s_cmp_ge_u32 s{S_L}, 54\ns_cselect_b32 s{T}, {WS_SIZE}, s{T}")
    a.I(f"s_lshl_b32 s{T+1}, s{S_P}, 3\ns_add_u32 s{T+1}, s{T+1}, s{T}\nv_mov_b32 v{t3}, s{S_TAG}")
    a.I("s_mov_b32 exec_lo, 0x00ff00ff\ns_mov_b32 exec_hi, 0x00ff00ff")
    a.I(f"buffer_store_dwordx2 {pk(t2)}, v{t0}, {srd(SRD_WS)}, s{T+1} offen {SC}")
    vm.issue("st")
    a.I("s_mov_b64 exec, -1")
    ST(a, "p0done")
    print("aux: phase-0 compute ends in interval", bar[0] - 1)
    nxt()
    VG, VBI, SG = 68, 72, T + 12
    a.I(f"v_and_b32 v{t0}, 7, v{L}\nv_bfe_u32 v{t1}, v{L}, 4, 1\nv_lshl_add_u32 v{t0}, v{t1}, 3, v{t0}")
    a.I(f"v_bfe_u32 v{t1}, v{L}, 3, 1\nv_lshl_add_u32 v{t0}, v{t1}, 4, v{t0}\nv_lshlrev_b32 v{VBI}, 1, v{t0}\nv_lshlrev_b32 v{t0}, 5, v{t0}")
    a.I(f"v_lshrrev_b32 v{t2}, 5, v{L}\nv_lshl_add_u32 v{VG}, v{t2}, 4, v{t0}\nv_mov_b32 v{VG+1}, v{VG}")
    a.I(f"s_cmp_eq_u32 s{S_AL}, 0\ns_cselect_b32 s{T}, s{S_JA}, 0\ns_cselect_b64 vcc, -1, 0\ns_lshl_b32 s{T}, s{T}, 4")
    a.I(f"v_mul_lo_u32 v{t1}, v{t1}, s{T}\nv_add_u32 v{VG+2}, v{VG}, v{t1}\nv_cndmask_b32 v{VG+3}, v{V_L16}, v{VG}, vcc")
    a.I(f"s_add_u32 s{T}, s{S_JA}, 256\ns_mul_i32 s{T}, s{T}, s{S_AL}\ns_add_u32 s{SG}, s{S_BASE}, s{T}")
    a.I(f"s_mul_i32 s{T}, s{S_JB}, s{S_AL}\ns_add_u32 s{SG+1}, s{SG}, 64\ns_add_u32 s{SG+1}, s{SG+1}, s{T}\ns_add_u32 s{SG+2}, s{SG+1}, 64")
    a.I(f"s_add_u32 s{SG+3}, s{SG+2}, 64\ns_add_u32 s{SG+3}, s{SG+3}, s{S_JA}")
    a.I(f"s_mov_b32 s{SRD_U}, s{S_B1}\ns_mov_b32 s{SRD_U+1}, s{S_B1+1}\ns_cmp_eq_u32 s{S_TYPE}, 1\ns_cselect_b32 s{SRD_U+2}, 3072, 0\ns_mov_b32 s{SRD_U+3}, 0x20000")
    for k in range(4):
        a.I(f"buffer_load_ushort v{BIAS+k}, v{VBI}, {srd(SRD_U)}, s{SG+k} offen")
        vm.issue("bias")
    for k in range(4):
        a.I(f"s_lshl_b32 s{SG+k}, s{SG+k}, 4\ns_add_u32 s{SG+k}, s{SG+k}, s{S_CSB}\ns_min_u32 s{SG+k}, s{SG+k}, {CS_OFF + (3456-32)*32}")
    a.I(f"s_lshl_b32 s{T}, s{S_RB}, 10\ns_add_u32 s{T}, s{T}, {STAT_OFF}\ns_cmp_eq_u32 s{S_AL}, 0\ns_cselect_b32 s{SG+3}, s{SG+3}, s{T}")
    a.I(f"s_lshl_b32 s{T}, s{S_AL}, 12\ns_add_u32 s{T}, s{T}, {EXT_LDS}\nv_add_u32 v{t0}, s{T}, v{V_L16}")
    def gload():
        for k in range(4): a.I(f"buffer_load_dwordx4 {q4(X+4*k)}, v{VG+k}, {srd(SRD_WS)}, s{SG+k} offen {SC}")
    gtags = [X + 4 * k + o for k in range(4) for o in (1, 3)]
    until(ECHK)
    gload(); vm.issue("ext")
    until(ECHK + 2)
    ST(a, "preext")
    vm.wait(a, "ext")
    a.I(f"s_mov_b32 s{S_SPIN}, {SPIN}")
    a.L("L_ext_retry")
    tag_test(a, gtags)
    a.I(f"s_cbranch_scc0 L_ext_ok\ns_sleep 8")
    gload()
    a.I(f"s_waitcnt vmcnt(0)\ns_sub_u32 s{S_SPIN}, s{S_SPIN}, 1\ns_cmp_lg_u32 s{S_SPIN}, 0\ns_cbranch_scc1 L_ext_retry")
    a.L("L_ext_ok")
    for k in range(4):
        a.I(f"v_mov_b32 v{X+4*k+1}, v{X+4*k+2}\nv_mov_b32 v{X+4*k+2}, v{BIAS+k}\nv_mov_b32 v{X+4*k+3}, 0")
        a.I(f"ds_write_b128 v{t0}, {q4(X+4*k)} offset:{1024*k}")
    a.I("s_waitcnt lgkmcnt(0)")
    ST(a, "ext")
    assert bar[0] <= 19
    until(19)
    print("aux: background jobs left after the ring:", len(bg))
    if APRIO: a.I("s_setprio 0")
    h_rest(a, bg)
    ST(a, "ringend")
    return ST
BPF = 0
BR, AR = 80, 200

def h2_setup(a):
    g2_common(a)
    if ROT2:
        if G2MAP == 0:
            a.I(f"s_and_b32 s{T}, s{S_RB2}, 3\ns_mul_i32 s{T}, s{T}, 3\ns_mul_i32 s{T+1}, s{S_CG2}, 3\ns_lshr_b32 s{T+1}, s{T+1}, 1\ns_add_u32 s{T}, s{T}, s{T+1}")
        elif ROT2 == 2:
            a.I(f"s_and_b32 s{T}, s{S_CG2}, 1\ns_mul_i32 s{T}, s{T}, 6\ns_and_b32 s{T+1}, s{S_RB2}, 7\ns_mul_i32 s{T+1}, s{T+1}, 3\ns_lshr_b32 s{T+1}, s{T+1}, 1\ns_add_u32 s{T}, s{T}, s{T+1}")
        else:
            a.I(f"s_and_b32 s{T}, s{S_CG2}, 3\ns_mul_i32 s{T}, s{T}, 3\ns_and_b32 s{T+1}, s{S_RB2}, 7\ns_mul_i32 s{T+1}, s{T+1}, 3\ns_lshr_b32 s{T+1}, s{T+1}, 1\ns_add_u32 s{T}, s{T}, s{T+1}")
        a.I(f"s_cmp_ge_u32 s{T}, 12\ns_cselect_b32 s{T+1}, 12, 0\ns_sub_u32 s{T}, s{T}, s{T+1}")
    else: a.I(f"s_mov_b32 s{T}, 0")
    a.I(f"s_mul_i32 s{T+1}, s{S_I}, 12")
    for j in range(12):
        a.I(f"s_add_u32 s{S_KK+j}, s{T}, s{T+1}\ns_lshl_b32 s{S_KK+j}, s{S_KK+j}, 10")
        if j < 11: a.I(f"s_add_u32 s{T}, s{T}, 1\ns_cmp_eq_u32 s{T}, 12\ns_cselect_b32 s{T}, 0, s{T}")
    a.I(f"s_mul_i32 s{S_BB}, s{S_CG2}, {68*5*1024}\ns_add_u32 s{S_BB}, s{S_BB}, {B2_OFF}")

def bg_jobs(a, vm):
    def ld(j, ct):
        def f():
            a.I(f"s_mul_i32 s{T}, s{S_KK+j}, 5\ns_add_u32 s{T}, s{T}, s{S_BB}")
            if ct == 4: a.I(f"s_add_u32 s{T}, s{T}, 4096")
            a.I(f"buffer_load_dwordx4 {q4(BR+20*j+4*ct)}, v{V_L16}, {srd(SRD_WS)}, s{T} offen offset:{(ct&3)*1024} {SC}")
            vm.issue("bg")
        return f
    return [ld(j, ct) for j in range(6) for ct in range(5)]

def h_rest(a, bg):
    n = 0
    while bg:
        if n == N1: lds_wait_ge(a, 7, 4, 248)
        bg.pop(0)(); n += 1
        if THR: a.I(f"s_waitcnt vmcnt({THR})")
    if n == N1: lds_wait_ge(a, 7, 4, 248)

def bload(a, vm, j, regs, tag, thr):
    a.I(f"s_mul_i32 s{T}, s{S_KK+j}, 5\ns_add_u32 s{T}, s{T}, s{S_BB}\ns_add_u32 s{T+1}, s{T}, 4096")
    for ct in range(5):
        a.I(f"buffer_load_dwordx4 {q4(regs[ct])}, v{V_L16}, {srd(SRD_WS)}, s{T + (ct >> 2)} offen offset:{(ct&3)*1024} {SC}")
        if vm: vm.issue(tag)
        if thr: a.I(f"s_waitcnt vmcnt({thr})")


def g2_common(a):
    for sg in range(4):
        a.I(f"s_add_u32 s{T}, s{S_I}, {sg}")
        if ROT2: a.I(f"s_add_u32 s{T}, s{T}, s{S_CG2}")
        a.I(f"s_and_b32 s{T}, s{T}, 3\ns_lshl_b32 s{T+1}, s{S_RB2}, 2\ns_add_u32 s{T}, s{T}, s{T+1}")
        a.I(f"s_mul_i32 s{S_A+sg}, s{T}, {68*1024}")
        if sg == 0: a.I(f"s_mul_i32 s{S_OUTS}, s{T}, {16*1280}\ns_mul_i32 s{S_B2S}, s{S_CG2}, 160\ns_add_u32 s{S_OUTS}, s{S_OUTS}, s{S_B2S}")
S_OUTS, S_B2S, S_BB = 98, 99, 100

def hzone(a, sidx, dst):
    a.I(f"s_sub_u32 s{dst}, s{sidx}, 1\ns_mul_i32 s{dst}, s{dst}, {HZS}\ns_add_u32 s{dst}, s{dst}, {HZ1}\ns_cmp_eq_u32 s{sidx}, 0\ns_cselect_b32 s{dst}, 0, s{dst}")

def out_addr(a, VO, VB, t0):
    a.I(f"v_and_b32 v{t0}, 15, v{V_LANE}\nv_mul_u32_u24 v{t0}, 1280, v{t0}\nv_lshrrev_b32 v{VB}, 4, v{V_LANE}\nv_lshlrev_b32 v{VB}, 3, v{VB}")
    a.I(f"v_add_u32 v{VO}, v{t0}, v{VB}")

def res_issue(a, vm, cts, RES, VO, VB):
    mk_srd(a, SRD_T, S_B2, 1280)
    mk_srd(a, SRD_U, S_OUT, 2048 * 1280)
    for k, ct in enumerate(cts):
        a.I(f"buffer_load_dwordx2 {pk(RES+4*k)}, v{VO}, {srd(SRD_X)}, s{S_OUTS} offen offset:{ct*32}")
        a.I(f"buffer_load_dwordx2 {pk(RES+4*k+2)}, v{VB}, {srd(SRD_T)}, s{S_B2S} offen offset:{ct*32}")
        vm.issue("R"); vm.issue("R")

def res_unpack(cts, RES, OUT):
    o = []
    for k, ct in enumerate(cts):
        for src, d in ((RES + 4 * k, OUT + 8 * k), (RES + 4 * k + 2, OUT + 8 * k + 4)):
            for i in range(2):
                o += [f"v_lshlrev_b32 v{d+2*i}, 16, v{src+i}", f"v_and_b32 v{d+2*i+1}, s{S_M16}, v{src+i}"]
        for i in range(4): o.append(f"v_add_f32 v{OUT+8*k+i}, v{OUT+8*k+i}, v{OUT+8*k+4+i}")
    return o

def red_addrs(a, VM, VH, VX):
    for sg in range(4):
        a.I(f"s_sub_u32 s{T+2}, s{S_I}, {sg}\ns_and_b32 s{T+2}, s{T+2}, 3")
        if sg:
            a.I(f"s_mul_i32 s{T}, s{T+2}, {MZS}\ns_add_u32 s{T}, s{T}, {MZ}\nv_add_u32 v{VM+sg}, s{T}, v{V_L16}")
        hzone(a, T + 2, T)
        a.I(f"v_add_u32 v{VH+sg}, s{T}, v{V_L16}")
    a.I(f"s_lshl_b32 s{T}, s{S_I}, 11\ns_add_u32 s{T}, s{T}, {EXT_LDS}\nv_add_u32 v{VX}, s{T}, v{V_L16}")

def final_sum(a, role, cts, OWN, BUF, VM, VH, VX, VO):
    lg = Q("lgkmcnt", 15)
    srcs = []
    for sg in range(4):
        if sg: srcs.append(lambda ct, sg=sg: (VM + sg, ((sg - 1) * 5 + ct) * 1024))
        elif role == 1: srcs.append(lambda ct: (VX, (ct - 3) * 1024))
        if sg or role == 0: srcs.append(lambda ct, sg=sg: (VH + sg, (sg * 5 + ct) * 1024))
    n = len(cts)
    def rd(j):
        for k, ct in enumerate(cts):
            v, off = srcs[j](ct)
            a.I(f"ds_read_b128 {q4(BUF+(j*n+k)*4)}, v{v} offset:{off}")
            lg.issue(j)
    ahead = 15 // n
    for j in range(min(ahead, 7)): rd(j)
    for j in range(7):
        lg.wait(a, j)
        if j + ahead < 7: rd(j + ahead)
        for k, ct in enumerate(cts):
            for i in (0, 2): a.I(f"v_pk_add_f32 {pk(OWN+4*ct+i)}, {pk(OWN+4*ct+i)}, {pk(BUF+(j*n+k)*4+i)}")
    for ct in cts:
        d = OWN + 4 * ct
        a.I(f"v_cvt_pk_bf16_f32 v{d}, v{d}, v{d+1}\nv_cvt_pk_bf16_f32 v{d+1}, v{d+2}, v{d+3}")
        a.I(f"buffer_store_dwordx2 {pk(d)}, v{VO}, {srd(SRD_U)}, s{S_OUTS} offen offset:{ct*32}")

def h2(a, STs):
    class Both:
        def __call__(self, a_, name, real=False):
            if not STAMPS: return
            n = max(s.n for s in STs)
            for s in STs:
                while s.n < n: s.names.append("-"); s.n += 1
            a_.I(f"{'s_memrealtime' if real else 's_memtime'} s[92:93]\ns_waitcnt lgkmcnt(0)\nv_writelane_b32 v{V_STAMP}, s92, {n}")
            for s in STs: s.names.append(name); s.n += 1
    ST = Both()
    vm = Q("vmcnt", 63); lg = Q("lgkmcnt", 15)
    ACC = 0
    VT = 248
    a.L("L_H2")
    a.C("==== gemm2, FFN part (waves 4..7) ====")
    for j in range(6, 10): bload(a, vm, j, [20 * (j - 6) + 4 * ct for ct in range(5)], ("bl", j), THR)
    ST(a, "bissued")
    lds_wait_ge(a, 0, 4, VT)
    hzone(a, S_I, T)
    VBL = VT + 4
    a.I(f"v_add_u32 v{VBL}, s{T}, v{V_L16}")
    for j in range(6, 10):
        vm.wait(a, ("bl", j))
        for ct in range(5):
            a.I(f"ds_write_b128 v{VBL}, {q4(20*(j-6)+4*ct)} offset:{(5*(j-6)+ct)*1024}")
        a.I("s_waitcnt lgkmcnt(5)")
    a.I("s_waitcnt lgkmcnt(0)")
    ST(a, "bdone")
    if HPRIO: a.I(f"s_setprio {HPRIO}")
    a.I(f"s_cmp_lg_u32 s{S_WAVE}, 7\ns_cbranch_scc1 L_h_nopoll\ns_setprio 3")
    a.I(f"s_lshr_b32 s{T}, s{S_RB2}, 1\ns_lshl_b32 s{T}, s{T}, 8\ns_add_u32 s{T}, s{T}, {FL2F}\nv_lshlrev_b32 v{VT}, 2, v{V_LANE}\nv_add_u32 v{VT}, s{T}, v{VT}")
    poll(a, VT, VT + 2, 7, 1, PSLEEP)
    lds_add(a, 3, VT)
    a.L("L_h_nopoll")
    lds_wait_ge(a, 3, 1, VT)
    a.I(f"s_setprio {HPRIO}")
    ST(a, "S2F")
    def aload(j):
        for sg in range(4):
            a.I(f"s_add_u32 s{T}, s{S_A+sg}, s{S_KK+j}")
            a.I(f"buffer_load_dwordx4 {q4(AR + (j%3)*16 + 4*sg)}, v{V_L16}, {srd(SRD_WS)}, s{T} offen {SC}")
            vm.issue(("A", j))
    def bslot(j): return BR + 20 * (j if j < 6 else (j - 10 if j >= 10 else j - 4))
    for j in range(3): aload(j)
    for j in range(12):
        if 6 <= j + 1 <= 9:
            for ct in range(5):
                a.I(f"ds_read_b128 {q4(bslot(j+1)+4*ct)}, v{VBL} offset:{(5*(j+1-6)+ct)*1024}")
                lg.issue(j + 1)
        vm.wait(a, ("A", j))
        lg.wait(a, j)
        if j in (0, 3, 6, 9): ST(a, f"A{j}")
        fill = []
        if j == 11:
            vm.wait(a, "R")
            fill = res_unpack([3, 4], RES, RU)
        sgs = (1, 2, 3, 0) if j == 11 else range(4)
        wq = []
        for k, sg in enumerate(sgs):
            for ct in range(5):
                d = ACC + (sg * 5 + ct) * 4
                cin = "0" if j == 0 else q4(d)
                a.I(f"v_mfma_f32_16x16x32_bf16 {q4(d)}, {q4(bslot(j)+4*ct)}, {q4(AR+(j%3)*16+4*sg)}, {cin}")
                if j == 11:
                    if not (sg == 0 and ct >= 3): wq.append(f"ds_write_b128 v{VBL}, {q4(d)} offset:{(sg*5+ct)*1024}")
                    if fill: a.I(fill.pop(0))
                    if k * 5 + ct >= 6: a.I(wq.pop(0))
        if j + 3 < 12: aload(j + 3)
        if j in (3, 4): bload(a, vm, j + 7, [bslot(j + 7) + 4 * ct for ct in range(5)], "late", None)
        if j == 9:
            RES, RU = BR + 40, BR + 60
            VM_, VH_, VX_, VO_, VB_ = AR, AR + 4, AR + 8, AR + 9, AR + 10
            out_addr(a, VO_, VB_, VT)
            res_issue(a, vm, [3, 4], RES, VO_, VB_)
            red_addrs(a, VM_, VH_, VX_)
    a.I("s_waitcnt lgkmcnt(8)")
    for x in wq + fill: a.I(x)
    for k, ct in enumerate([3, 4]):
        for i in (0, 2): a.I(f"v_pk_add_f32 {pk(ACC+4*ct+i)}, {pk(ACC+4*ct+i)}, {pk(RU+8*k+i)}")
    ST(a, "ffnend")
    a.I("s_waitcnt lgkmcnt(0)\ns_barrier")
    ST(a, "bar")
    final_sum(a, 1, [3, 4], ACC, BR, VM_, VH_, VX_, VO_)
    if STAMPS: a.I("s_waitcnt vmcnt(0)")
    ST(a, "end")
    ST(a, "rt1", True)
    stamp_dump(a, VT)
    a.I("s_endpgm")

K0C = -2.0 * math.sqrt(2.0 / math.pi) * math.log2(math.e)
K1C = K0C * 0.044715
ACC1, AF, BF = 0, 112, 120
V_E = 144
V_R, V_R2, V_SD, V_C0, V_C1, V_EPS = 160, 162, 164, 166, 168, 170
V_TRA, V_VA, V_HQO, V_KVW = 240, 242, 246, 247

def u_gelu(r0, Tm):
    P = range(0, 8, 2)
    pre = [f"v_pk_mul_f32 {pk(Tm+i)}, {pk(r0+i)}, {pk(r0+i)}" for i in P]
    pre += [f"v_pk_fma_f32 {pk(Tm+i)}, {pk(Tm+i)}, {pk(V_C1)}, {pk(V_C0)} op_sel_hi:[1,0,0]" for i in P]
    pre += [f"v_pk_mul_f32 {pk(Tm+i)}, {pk(Tm+i)}, {pk(r0+i)}" for i in P]
    mid = [f"v_exp_f32_e64 v{Tm+i}, v{Tm+i}" for i in range(8)]
    mid += [f"v_pk_fma_f32 {pk(Tm+i)}, {pk(Tm+i)}, {pk(V_SD)}, {pk(V_SD)} op_sel_hi:[1,0,0]" for i in P]
    mid += [f"v_rcp_f32_e64 v{Tm+i}, v{Tm+i}" for i in range(8)]
    post = [f"v_pk_mul_f32 {pk(Tm+i)}, {pk(Tm+i)}, {pk(r0+i)}" for i in P]
    post += [f"v_cvt_pk_bf16_f32 v{r0+i//2}, v{Tm+i}, v{Tm+i+1}" for i in P]
    return pre, mid, post
def u_phi(r0, Tm, n=8):
    P = range(0, n, 2); R = range(n, 8, 2)
    pre = [f"v_pk_mul_f32 {pk(Tm+i)}, {pk(r0+i)}, {pk(V_R2)} op_sel_hi:[1,0]" for i in P]
    pre += [f"v_pk_fma_f32 {pk(r0+i)}, {pk(r0+i)}, {pk(V_R)}, {pk(V_EPS)} op_sel_hi:[1,0,0]" for i in P]
    pre += [f"v_pk_mul_f32 {pk(Tm+i)}, {pk(r0+i)}, {pk(V_R)} op_sel_hi:[1,0]" for i in R]
    pre += [f"v_max_f32_e64 v{r0+i}, v{r0+i}, v{V_EPS}" for i in range(n)]
    mid = [f"v_exp_f32_e64 v{Tm+i}, v{Tm+i} clamp" for i in range(n)]
    post = [f"v_pk_add_f32 {pk(Tm+i)}, {pk(Tm+i)}, {pk(r0+i)}" for i in P]
    post += [f"v_cvt_pk_bf16_f32 v{r0+i//2}, v{Tm+i}, v{Tm+i+1}" for i in range(0, 8, 2)]
    return pre, mid, post
S_HQ = T + 10
def hq_store(t, u):
    r0 = ACC1 + 16 * t + 8 * u
    o = [f"s_add_u32 s{T+1}, s{S_HQ}, {0x10000 + t*1024}"] if u == 0 else []
    return o + [f"buffer_store_dwordx4 {q4(r0)}, v{V_HQO}, {srd(SRD_WS)}, s{T+1} offen offset:{u*512} {SC}"]
def ep_pipe(a, units, dly=0):
    n = len(units)
    st = [units[i][0](V_E + 8 * (i & 1)) for i in range(n)]
    a.raw(".p2align 3")
    for x in st[0][0]: a.I(x)
    pend = []
    for i in range(n + 1):
        mid = st[i][1] if i < n else []
        plain = []
        if i > 0:
            plain += st[i - 1][2]
            pend += units[i - 1][1]
            if i - 1 >= dly or i == n:
                k = len(pend) if (i == n or len(pend) <= 4) else 4
                if pend[k - 1].startswith("s_add"): k += 1
                plain += pend[:k]; pend = pend[k:]
        if i + 1 < n: plain += st[i + 1][0]
        tot = len(mid) + len(plain); mi = pi = 0
        while mi < len(mid) or pi < len(plain):
            if pi >= len(plain) or (mi < len(mid) and mi * len(plain) <= pi * len(mid)):
                a.I(mid[mi]); mi += 1
            else:
                a.I(plain[pi]); pi += 1

def mwave(a):
    ST = Stamp("M")
    L = V_LANE
    t0, t1, t2, t3 = V_E, V_E + 1, V_E + 2, V_E + 3
    a.L("L_M")
    a.C("==== M waves: phase 0 (re-layout of w2 / wo, zeroing) ====")
    ST(a, "rt0", True); ST(a, "start")
    ROW = T + 2
    X, U = 0, 12
    a.I(f"s_and_b32 s{T}, s2, 1\ns_lshl_b32 s{ROW}, s{T}, 10\ns_and_b32 s{T}, s2, 6\ns_lshl_b32 s{T}, s{T}, 7\ns_add_u32 s{ROW}, s{ROW}, s{T}")
    a.I(f"s_and_b32 s{T}, s2, 0xf8\ns_add_u32 s{ROW}, s{ROW}, s{T}\ns_lshl_b32 s{T}, s{S_WAVE}, 1\ns_add_u32 s{ROW}, s{ROW}, s{T}")
    a.I(f"v_lshrrev_b32 v{t0}, 5, v{L}\nv_and_b32 v{t1}, 31, v{L}\nv_mul_u32_u24 v{t0}, 1280, v{t0}")
    a.I(f"v_lshl_add_u32 v{t2}, v{t1}, 4, v{t0}\nv_lshl_add_u32 v{t3}, v{t1}, 3, v{t0}\ns_mul_i32 s{T}, s{ROW}, 1280")
    base_srds(a)
    a.I(f"buffer_load_dwordx4 {q4(X)}, v{t2}, {srd(SRD_X)}, s{T} offen")
    a.I(f"buffer_load_dwordx4 {q4(X+4)}, v{t2}, {srd(SRD_X)}, s{T} offen offset:512")
    a.I(f"buffer_load_dwordx2 {pk(X+8)}, v{t3}, {srd(SRD_X)}, s{T} offen offset:1024")
    a.C("==== gemm1 main loop ====")
    a.I(f"v_lshrrev_b32 v{t0}, 5, v{L}\nv_bfe_u32 v{t1}, v{L}, 2, 2\nv_lshl_add_u32 v{t0}, v{t0}, 3, v{t1}\nv_mul_u32_u24 v{t0}, 448, v{t0}")
    a.I(f"v_and_b32 v{t1}, 1, v{L}\nv_lshl_add_u32 v{t0}, v{t1}, 3, v{t0}\nv_bfe_u32 v{t1}, v{L}, 1, 1\nv_lshl_add_u32 v{t0}, v{t1}, 5, v{t0}")
    a.I(f"v_bfe_u32 v{t1}, v{L}, 4, 1\nv_lshl_add_u32 v{V_TRA}, v{t1}, 4, v{t0}\nv_add_u32 v{V_TRA+1}, {3*WSLOT}, v{V_TRA}")
    a.I(f"v_and_b32 v{t0}, 31, v{L}\nv_bfe_u32 v{t1}, v{L}, 1, 3\nv_lshrrev_b32 v{t2}, 5, v{L}\nv_xor_b32 v{t1}, v{t1}, v{t2}")
    a.I(f"v_lshlrev_b32 v{t0}, 7, v{t0}\nv_lshl_add_u32 v{t0}, v{t1}, 4, v{t0}\ns_lshl_b32 s{T}, s{S_WAVE}, 12\ns_add_u32 s{T}, s{T}, {XRING}")
    a.I(f"v_add_u32 v{V_VA}, s{T}, v{t0}")
    for ks in range(1, 4): a.I(f"v_xor_b32 v{V_VA+ks}, {32*ks}, v{V_VA}")
    a.I("s_barrier")
    def red32(v, tmp):
        for m in ("quad_perm:[1,0,3,2]", "quad_perm:[2,3,0,1]", "row_half_mirror", "row_mirror"):
            a.I(f"v_add_f32_dpp v{v}, v{v}, v{v} {m} row_mask:0xf bank_mask:0xf")
        a.I(f"v_mov_b32 v{tmp}, v{v}\nv_permlane16_swap_b32 v{v}, v{tmp}\nv_add_f32 v{v}, v{v}, v{tmp}")
    tag_ready(a)
    a.I("s_waitcnt vmcnt(0)")
    ST(a, "xin")
    for i in range(10):
        a.I(f"v_lshlrev_b32 v{U+2*i}, 16, v{X+i}\nv_and_b32 v{U+2*i+1}, s{S_M16}, v{X+i}")
    a.I(f"v_pk_add_f32 {pk(t0)}, {pk(U)}, {pk(U+2)}\nv_pk_add_f32 {pk(t2)}, {pk(U+4)}, {pk(U+6)}")
    for i in range(4, 10):
        r = t0 if i % 2 == 0 else t2
        a.I(f"v_pk_add_f32 {pk(r)}, {pk(r)}, {pk(U+2*i)}")
    a.I(f"v_pk_add_f32 {pk(t0)}, {pk(t0)}, {pk(t2)}\nv_add_f32 v{t0}, v{t0}, v{t1}")
    red32(t0, t1)
    a.I(f"v_mul_f32 v{t0}, {hx(f32(-1.0/640))}, v{t0}")
    for i in range(10):
        a.I(f"v_pk_add_f32 {pk(U+2*i)}, {pk(U+2*i)}, {pk(t0)} op_sel_hi:[1,0]")
    a.I(f"v_pk_mul_f32 {pk(t2)}, {pk(U)}, {pk(U)}\nv_pk_mul_f32 {pk(X)}, {pk(U+2)}, {pk(U+2)}")
    for i in range(2, 10):
        r = t2 if i % 2 == 0 else X
        a.I(f"v_pk_fma_f32 {pk(r)}, {pk(U+2*i)}, {pk(U+2*i)}, {pk(r)}")
    a.I(f"v_pk_add_f32 {pk(t2)}, {pk(t2)}, {pk(X)}\nv_add_f32 v{t2}, v{t2}, v{t3}")
    red32(t2, t3)
    a.I(f"v_mul_f32 v{t2}, {hx(f32(1.0/640))}, v{t2}")
    a.I(f"v_cvt_pk_bf16_f32 v{t2}, v{t2}, v{t2}\nv_and_b32 v{t2}, s{S_M16}, v{t2}")
    a.I(f"v_add_f32 v{t2}, {hx(f32(1e-5))}, v{t2}")
    a.I(f"v_cvt_pk_bf16_f32 v{t2}, v{t2}, v{t2}\nv_and_b32 v{t2}, s{S_M16}, v{t2}")
    a.I(f"v_sqrt_f32 v{t2}, v{t2}")
    a.I(f"v_cvt_pk_bf16_f32 v{V_E+4}, v{t0}, v{t2}")
    a.I(f"v_mov_b32 v{V_E+5}, s{S_TAG}")
    a.I(f"v_lshrrev_b32 v{t1}, 2, v{L}\ns_lshl_b32 s{T}, s{ROW}, 3\ns_add_u32 s{T}, s{T}, {STAT_OFF}")
    a.I("s_mov_b32 exec_lo, 1\ns_mov_b32 exec_hi, 1")
    a.I(f"buffer_store_dwordx2 {pk(V_E+4)}, v{t1}, {srd(SRD_WS)}, s{T} offen {SC}")
    a.I("s_mov_b64 exec, -1")
    if MPRIO: a.I(f"s_setprio {MPRIO}")
    ST(a, "p0done")
    lg = Q("lgkmcnt", 15)
    NM = 280
    def reads(m):
        h, r = divmod(m, 14); ks2, t = divmod(r, 7); g = m // 7
        if t == 0:
            c, ks = divmod(g, 4)
            a.I(f"ds_read_b128 {q4(AF+4*(g&1))}, v{V_VA+ks} offset:{(c%3)*16384}")
            lg.issue(m)
        slot = h % 6
        off = (slot % 3) * WSLOT + ks2 * 7168 + t * 64
        b = BF + (m % NB) * 4
        a.I(f"ds_read_b64_tr_b16 {pk(b)}, v{V_TRA + slot//3} offset:{off}")
        a.I(f"ds_read_b64_tr_b16 {pk(b+2)}, v{V_TRA + slot//3} offset:{off+1792}")
        lg.issue(m); lg.issue(m)
    def P(h):
        a.I("s_barrier")
        if h % 2 == 0: ST(a, f"P{h}")
    P(0)
    for m in range(PD): reads(m)
    for m in range(NM):
        t = m % 7; g = m // 7
        lg.wait(a, m)
        d = ACC1 + 16 * t
        cin = "0" if m < 7 else f"v[{d}:{d+15}]"
        a.I(f"v_mfma_f32_32x32x16_bf16 v[{d}:{d+15}], {q4(BF+(m%NB)*4)}, {q4(AF+4*(g&1))}, {cin}")
        if m + PD < NM:
            if (m + PD) % 14 == 0: P((m + PD) // 14)
            reads(m + PD)
        elif m + PD == NM:
            a.I(f"v_and_b32 v{t0}, 31, v{L}\ns_lshl_b32 s{T}, s{S_WAVE}, 8\ns_add_u32 s{T}, s{T}, {EXT_LDS+7168}")
            a.I(f"v_and_b32 v{t1}, 1, v{t0}\nv_lshlrev_b32 v{t1}, 2, v{t1}\nv_lshl_add_u32 v{t0}, v{t0}, 3, s{T}\nv_sub_u32 v{t0}, v{t0}, v{t1}\nv_add_u32 v{t1}, {EXT_LDS}, v{V_L16}")
            a.I(f"ds_read_b32 v{t2}, v{t0}"); lg.issue("st")
        elif m + PD == NM + 1:
            for tt in (5, 6, 0, 1, 2, 3, 4):
                a.I(f"ds_read_b128 {q4(172+4*tt)}, v{t1} offset:{tt*1024}"); lg.issue(("e", tt))
    lds_add(a, 0, V_E + 4)
    lg.issue("add")
    ST(a, "mainend")
    XE = 200
    lg.wait(a, "st")
    a.I(f"v_cmp_gt_u32 vcc, 32, v{L}")
    a.I(f"v_and_b32 v{XE}, 0xffff, v{t2}\nv_lshl_or_b32 v{XE}, v{XE}, 16, v{XE}\nv_lshrrev_b32 v{XE+2}, 16, v{t2}")
    a.I(f"v_mov_b32 v{XE+1}, v{XE}\nv_cndmask_b32 v{XE+2}, 0, v{XE+2}, vcc\nv_mov_b32 v{XE+3}, 0")
    a.I(f"v_and_b32 v{V_SD}, s{S_M16}, v{t2}\nv_rcp_f32 v{V_R}, v{V_SD}")
    for t in (5, 6, 0, 1, 2, 3, 4):
        d = ACC1 + 16 * t
        lg.wait(a, ("e", t))
        a.I(f"v_mfma_f32_32x32x16_bf16 v[{d}:{d+15}], {q4(172+4*t)}, {q4(XE)}, v[{d}:{d+15}]")
        if t == 0:
            a.I(f"v_mul_f32 v{V_R2}, {hx(f32(math.log2(math.e)))}, v{V_R}\nv_mul_f32 v{V_C0}, {hx(f32(K0C))}, v{V_R}")
            a.I(f"v_mul_f32 v{V_C1}, v{V_R}, v{V_R}\nv_mul_f32 v{V_C1}, v{V_C1}, v{V_R}")
        if t == 1:
            a.I(f"v_mul_f32 v{V_C1}, {hx(f32(K1C))}, v{V_C1}\nv_mov_b32 v{V_EPS}, {hx(f32(1e-6))}")
            a.I(f"v_bfe_u32 v{t0}, v{L}, 4, 1\nv_mul_u32_u24 v{t0}, {68*1024}, v{t0}")
        if t == 2:
            a.I(f"v_and_b32 v{t1}, 15, v{L}\nv_lshl_add_u32 v{t0}, v{t1}, 4, v{t0}")
            a.I(f"v_lshrrev_b32 v{t1}, 5, v{L}\nv_lshl_add_u32 v{V_HQO}, v{t1}, 8, v{t0}")
    a.I(f"s_lshl_b32 s{T}, s{S_RB}, 2\ns_add_u32 s{T}, s{T}, s{S_WAVE}\ns_mul_i32 s{T}, s{T}, {2*68}")
    a.I(f"s_add_u32 s{T}, s{T}, s{S_KS0}\ns_lshl_b32 s{S_HQ}, s{T}, 10\ns_sub_u32 s{S_HQ}, s{S_HQ}, 0x10000")
    ST(a, "ext")
    SIG, SIGX = T + 11, T + 12
    a.I(f"s_lshl_b32 s{SIG}, s{S_RB}, 8\ns_lshl_b32 s{T}, s{S_CG}, 2\ns_add_u32 s{SIG}, s{SIG}, s{T}\ns_add_u32 s{SIG}, s{SIG}, {FL2F-32}\ns_mov_b32 s{SIGX}, 1")
    def tile_units(t, fn):
        return [((lambda Tm, r0=ACC1+16*t+8*u: fn(r0, Tm)), hq_store(t, u)) for u in range(2)]
    a.I(f"s_cmp_eq_u32 s{S_TYPE}, 0\ns_cbranch_scc1 L_ep_kvq\ns_cmp_eq_u32 s{S_TYPE}, 2\ns_cbranch_scc1 L_ep_qx")
    a.I(f"s_cmp_eq_u32 s{S_CG}, 14\ns_cselect_b32 s{T+2}, {WS_SIZE}, s{S_HQ}")
    un = []
    for t in (5, 6, 0, 1, 2, 3, 4):
        uu = tile_units(t, u_gelu)
        if t == 6: uu = [(f, [x.replace(f"s{S_HQ},", f"s{T+2},") for x in tl]) for f, tl in uu]
        un += uu
    ep_pipe(a, un, DLY)
    a.I("s_branch L_ep_done")
    a.L("L_ep_qx")
    a.I(f"s_add_u32 s{SIG}, s{SIG}, {FL2Q-FL2F+32-28}\ns_nop 3")
    ep_pipe(a, [x for t in range(4) for x in tile_units(t, u_phi)])
    a.I("s_branch L_ep_done")
    a.L("L_ep_kvq")
    a.I(f"s_add_u32 s{SIG}, s{SIG}, {FL2Q-FL2F+32}\ns_mov_b32 s{SIGX}, 0x1fe")
    a.I(f"v_and_b32 v{t0}, 31, v{L}\ns_lshl_b32 s{T}, s{S_WAVE}, 5\nv_add_u32 v{t0}, s{T}, v{t0}")
    a.I(f"v_mul_u32_u24 v{t0}, {KV_RS}, v{t0}\nv_lshrrev_b32 v{t1}, 5, v{L}\nv_lshl_add_u32 v{V_KVW}, v{t1}, 3, v{t0}\nv_add_u32 v{V_KVW}, {KVIMG}, v{V_KVW}")
    a.I(f"v_mov_b32 v{XE}, 0x3f803f80\nv_mov_b32 v{XE+1}, 0x3f803f80")
    a.I(f"ds_write_b64 v{V_KVW}, {pk(XE)} offset:320")
    un = [x for t in (5, 6) for x in tile_units(t, u_phi)] if QFIRST else []
    if not QFIRST: a.I(f"s_mov_b32 s{SIGX}, 0x1ff")
    for t in range(5):
        for u in range(2):
            r0 = ACC1 + 16 * t + 8 * u
            o = 8 * t + 2 * u
            n = 8 if t < 2 else (4 if t == 2 else 0)
            un.append(((lambda Tm, r0=r0, n=n: u_phi(r0, Tm, n)), [f"ds_write2_b64 v{V_KVW}, {pk(r0)}, {pk(r0+2)} offset0:{o} offset1:{o+4}"]))
    ep_pipe(a, un)
    a.I("s_waitcnt vmcnt(0) lgkmcnt(0)")
    lds_add(a, 1, 112)
    AK, AV, C = 114, 115, 116
    a.I(f"v_lshrrev_b32 v{AK}, 5, v{L}\nv_bfe_u32 v{AV}, v{L}, 2, 2\nv_lshl_add_u32 v{AK}, v{AK}, 3, v{AV}\nv_mul_u32_u24 v{AK}, {KV_RS}, v{AK}")
    a.I(f"v_add_u32 v{AK}, {KVIMG}, v{AK}")
    a.I(f"v_bfe_u32 v{C}, v{L}, 4, 1\nv_and_b32 v{AV}, 3, v{L}\nv_lshl_add_u32 v{C}, v{C}, 2, v{AV}")
    a.I(f"s_mul_i32 s{T}, s{S_WAVE}, 40\nv_lshlrev_b32 v{C+1}, 3, v{C}\nv_add_u32 v{C+1}, s{T}, v{C+1}")
    a.I(f"v_cmp_gt_u32 vcc, 5, v{C}\nv_add_u32 v{C+2}, 160, v{C+1}\nv_mov_b32 v{C+3}, 320")
    a.I(f"v_cndmask_b32 v{C+2}, v{C+3}, v{C+2}, vcc")
    a.I(f"v_add_u32 v{AV}, v{AK}, v{C+2}\nv_add_u32 v{AK}, v{AK}, v{C+1}")
    a.I(f"v_lshrrev_b32 v{C}, 5, v{L}\nv_mul_u32_u24 v{C}, 320, v{C}\nv_and_b32 v{C+1}, 31, v{L}\nv_lshl_add_u32 v{C}, v{C+1}, 2, v{C}")
    lds_wait_ge(a, 1, 4, 112)
    if QFIRST:
        a.I(f"s_cmp_eq_u32 s{S_WAVE}, 0\ns_cselect_b32 s{T}, s{SIG}, {WS_SIZE}\nv_mov_b32 v112, s{T}\nv_mov_b32 v113, s{S_TAG}\ns_mov_b64 exec, 1")
        a.I(f"buffer_store_dword v113, v112, {srd(SRD_WS)}, 0 offen {SC}\ns_mov_b64 exec, -1")
    FK, FV, D = 0, 32, 64
    for kp in range(8):
        o = kp * 16 * KV_RS
        a.I(f"ds_read_b64_tr_b16 {pk(FK+4*kp)}, v{AK} offset:{o}\nds_read_b64_tr_b16 {pk(FK+4*kp+2)}, v{AK} offset:{o+4*KV_RS}")
        a.I(f"ds_read_b64_tr_b16 {pk(FV+4*kp)}, v{AV} offset:{o}\nds_read_b64_tr_b16 {pk(FV+4*kp+2)}, v{AV} offset:{o+4*KV_RS}")
        if kp >= 2:
            a.I("s_waitcnt lgkmcnt(8)")
            k2 = kp - 2
            a.I(f"v_mfma_f32_32x32x16_bf16 v[{D}:{D+15}], {q4(FV+4*k2)}, {q4(FK+4*k2)}, {'0' if k2 == 0 else f'v[{D}:{D+15}]'}")
    for k2 in (6, 7):
        a.I(f"s_waitcnt lgkmcnt({4*(7-k2)})")
        a.I(f"v_mfma_f32_32x32x16_bf16 v[{D}:{D+15}], {q4(FV+4*k2)}, {q4(FK+4*k2)}, v[{D}:{D+15}]")
    a.I(f"s_lshl_b32 s{T+2}, s{S_CG}, 2\ns_add_u32 s{T+2}, s{T+2}, s{S_WAVE}\ns_mul_i32 s{T+2}, s{T+2}, 1680\ns_add_u32 s{T+2}, s{T+2}, {KV_OFF}")
    a.I("s_mov_b32 exec_lo, 0xfffff\ns_mov_b32 exec_hi, 0xfffff")
    for r in range(12):
        if r == 9: a.I("s_mov_b32 exec_hi, 0")
        e = 8 * (r >> 2) + (r & 3)
        if not NOATOM: a.I(f"buffer_atomic_add_f32 v{D+r}, v{C}, {srd(SRD_WS)}, s{T+2} offen offset:{e*80}")
    a.I("s_mov_b64 exec, -1")
    if not QFIRST: ep_pipe(a, [x for t in (5, 6) for x in tile_units(t, u_phi)])
    a.L("L_ep_done")
    lds_add(a, 7, 112)
    ST(a, "epi")
    a.C("---- publish ----")
    vm = Q("vmcnt", 63)
    PQ, AC2, WO = 0, 80, 160
    VT = 240
    W_KVW, W_KT0, W_KT1, W_MZ = 250, 251, 252, 249
    u0, u1, u2, u3 = VT, VT + 1, VT + 2, VT + 3
    a.I(f"s_lshl_b32 s{T}, s{S_CG}, 4\ns_add_u32 s{T}, s{T}, s{S_RB}\ns_lshl_b32 s{T}, s{T}, 2\ns_add_u32 s{T}, s{T}, {FL3-1024}\nv_lshlrev_b32 v114, 10, v{L}\nv_add_u32 v114, s{T}, v114\nv_mov_b32 v115, s{S_TAG}")
    a.I(f"v_writelane_b32 v114, s{SIG}, 0")
    g2_common(a)
    a.I(f"s_mul_i32 s{S_BB}, s{S_CG2}, {68*5*1024}\ns_mul_i32 s{T}, s{S_WAVE}, {25*1024}\ns_add_u32 s{S_BB}, s{S_BB}, s{T}\ns_add_u32 s{S_BB}, s{S_BB}, {B2_OFF + 48*5*1024}")
    WO4 = AC2 + 60
    def wor(t): return WO4 if t == 4 else WO + 20 * t
    def woload(t):
        a.I(f"s_add_u32 s{T}, s{S_BB}, {t*5120}\ns_add_u32 s{T+1}, s{T}, 4096")
        for ct in range(5):
            a.I(f"buffer_load_dwordx4 {q4(wor(t)+4*ct)}, v{V_L16}, {srd(SRD_WS)}, s{T+(ct>>2)} offen offset:{(ct&3)*1024} {SC}")
            vm.issue(("wo", t))
    vm.issue("stores")
    a.I(f"s_lshr_b32 s{T}, s{S_RB2}, 1\ns_lshl_b32 s{T}, s{T}, 8\ns_add_u32 s{T}, s{T}, {FL2Q}\nv_lshlrev_b32 v116, 2, v{L}\nv_add_u32 v116, s{T}, v116")
    if QFIRST: poll_issue(a, vm, 116, 118, 9, 1, "pq?")
    for t in range(WODRAIN): woload(t)
    KB = T + 13
    a.I(f"s_mul_i32 s{KB}, s{S_WAVE}, {MZS}\ns_add_u32 s{KB}, s{KB}, {MZ}\nv_add_u32 v{W_MZ}, s{KB}, v{V_L16}")
    a.I(f"v_mul_u32_u24 v{u0}, 205, v{L}\nv_lshrrev_b32 v{u0}, 10, v{u0}\nv_mul_u32_u24 v{u1}, 5, v{u0}\nv_sub_u32 v{u1}, v{L}, v{u1}")
    a.I(f"v_lshlrev_b32 v{u0}, 6, v{u0}\nv_lshl_add_u32 v{u0}, v{u1}, 3, v{u0}")
    a.I(f"v_add_u32 v{W_KVW}, s{KB}, v{u0}")
    a.I(f"v_and_b32 v{u0}, 15, v{L}\nv_lshrrev_b32 v{u1}, 4, v{L}\nv_lshlrev_b32 v{u1}, 3, v{u1}\nv_add_u32 v{u1}, s{KB}, v{u1}")
    a.I(f"v_lshl_add_u32 v{W_KT0}, v{u0}, 6, v{u1}")
    a.I(f"v_and_b32 v{u2}, 3, v{L}\nv_cmp_eq_u32 vcc, 0, v{u2}\nv_lshrrev_b32 v{u0}, 2, v{u0}\nv_add_u32 v{u0}, 16, v{u0}\nv_mov_b32 v{u2}, 20")
    a.I(f"v_cndmask_b32 v{u0}, v{u2}, v{u0}, vcc")
    a.I(f"v_lshl_add_u32 v{W_KT1}, v{u0}, 6, v{u1}")
    vm.wait(a, "pq?" if QFIRST else "stores")
    ST(a, "drain")
    lds_add(a, 2, 112, rtn=True)
    a.I(f"s_waitcnt lgkmcnt(0)\nv_readfirstlane_b32 s{T}, v113\ns_cmp_lg_u32 s{T}, 3\ns_cbranch_scc1 L_nosig")
    a.I(f"s_mov_b32 exec_lo, s{SIGX}\ns_mov_b32 exec_hi, 0")
    a.I(f"buffer_store_dword v115, v114, {srd(SRD_WS)}, 0 offen {SC}\ns_mov_b64 exec, -1")
    a.L("L_nosig")
    a.C("==== gemm2, attention part (waves 0..3) ====")
    def pqload():
        for sg in range(4):
            a.I(f"s_mul_i32 s{T}, s{S_WAVE}, {5*1024}\ns_add_u32 s{T}, s{T}, {48*1024}\ns_add_u32 s{T}, s{T}, s{S_A+sg}\ns_add_u32 s{T+1}, s{T}, 4096")
            for t in range(5):
                a.I(f"buffer_load_dwordx4 {q4(PQ+20*sg+4*t)}, v{V_L16}, {srd(SRD_WS)}, s{T+(t>>2)} offen offset:{(t&3)*1024} {SC}")
                vm.issue(("pq", sg))
    def s2q():
        a.I(f"s_cmp_lg_u32 s{S_WAVE}, 0\ns_cbranch_scc1 L_m_nopoll\ns_setprio 3")
        poll(a, 116, 118, 9, 1, PSLEEP)
        lds_add(a, 5, VT)
        a.L("L_m_nopoll")
        lds_wait_ge(a, 5, 1, VT)
        ST(a, "S2Q")
    def zero_img():
        lds_wait_ge(a, 7, 4, VT)
        for i in range(4): a.I(f"v_mov_b32 v{AC2+i}, 0")
        for i in range(11): a.I(f"ds_write_b128 v{W_MZ}, {q4(AC2)} offset:{i*1024}")
    if QFIRST:
        a.I(f"s_setprio {PQPRIO}")
        poll_check(a, vm, 116, 118, 9, 1, "pq?", 8)
        ST(a, "S2Q")
        pqload(); zero_img()
        for t in range(WODRAIN, WOEARLY): woload(t)
    else:
        for t in range(WODRAIN, WOEARLY): woload(t)
        zero_img(); s2q(); a.I(f"s_setprio {PQPRIO}"); pqload()
    ST(a, "pqiss")
    a.I("s_setprio 3")
    a.I(f"s_cmp_lg_u32 s{S_WAVE}, 0\ns_cbranch_scc1 L_m_nopoll2")
    a.I(f"s_and_b32 s{T}, s2, 7\ns_lshl_b32 s{T}, s{T}, 10\ns_add_u32 s{T}, s{T}, {FL3}\nv_lshlrev_b32 v{u0}, 3, v{L}\nv_add_u32 v{u0}, s{T}, v{u0}")
    poll(a, u0, u2, 64, 2, PSLEEP)
    lds_add(a, 4, VT)
    a.L("L_m_nopoll2")
    lds_wait_ge(a, 4, 1, VT)
    ST(a, "S3")
    KVRAW = AC2
    for i in range(14):
        if i % 4 == 0: a.I(f"s_mul_i32 s{T}, s{S_WAVE}, {8*1680}\ns_add_u32 s{T}, s{T}, {KV_OFF + i*960}")
        a.I(f"buffer_load_dwordx4 {q4(KVRAW+4*i)}, v{V_L16}, {srd(SRD_WS)}, s{T} offen offset:{(i%4)*960} {SC}")
        vm.issue(("kv", i))
    EPSC = VT + 4
    a.I(f"v_mov_b32 v{EPSC}, 0\nv_mov_b32 v{EPSC+1}, {hx(f32(1e-6))}\nv_mov_b32 v{EPSC+2}, 0\nv_mov_b32 v{EPSC+3}, 0")
    for i in range(14):
        r = KVRAW + 4 * i
        vm.wait(a, ("kv", i))
        a.I(f"v_cvt_pk_bf16_f32 v{r}, v{r}, v{r+1}\nv_cvt_pk_bf16_f32 v{r+1}, v{r+2}, v{r+3}")
        a.I(f"ds_write_b64 v{W_KVW}, {pk(r)} offset:{24 + i*768}")
    for t in range(WOEARLY, 4): woload(t)
    a.I("s_waitcnt lgkmcnt(0)")
    ST(a, "kvlds")
    ND, KT = AC2, AC2 + 48
    def ktread(qd, pr):
        o = []
        for hh in range(2):
            hq = 2 * pr + hh; h = 4 * qd + hq
            for tau in range(2):
                for b in range(2):
                    o.append(f"ds_read_b64 {pk(KT+(hq*2+tau)*4+2*b)}, v{W_KT1 if tau else W_KT0} offset:{h*1344 + 24 - 8*hq + 32*b}")
        return o
    groups = [(qd, sg, pr) for qd in range(2) for sg in range(4) for pr in range(2)]
    def nmf(gi):
        qd, sg, pr = groups[gi]
        nd = ND + 16 * (gi % 3)
        o = []
        for hh in range(2):
            hq = 2 * pr + hh
            for tau in (1, 0):
                o.append(f"v_mfma_f32_16x16x32_bf16 {q4(nd+8*hh+4*tau)}, {q4(KT+(hq*2+tau)*4)}, {q4(PQ+20*sg+10*qd+2*hq)}, {q4(EPSC) if tau else '0'}")
        return o
    def nva(gi):
        qd, sg, pr = groups[gi]
        D = [ND + 16 * (gi % 3), ND + 16 * (gi % 3) + 8]
        o = [f"v_rcp_f32_e64 v{d+6}, v{d+5}" for d in D]
        o += [f"v_mul_f32 v{d+i}, v{d+i}, v{d+6}" for d in D for i in range(5)]
        vals = [d + i for d in D for i in range(5)]
        o += [f"v_cvt_pk_bf16_f32 v{PQ+20*sg+10*qd+5*pr+i}, v{vals[2*i]}, v{vals[2*i+1]}" for i in range(5)]
        return o
    for x in ktread(0, 0): a.I(x)
    a.I("s_waitcnt lgkmcnt(7)")
    for x in ktread(0, 1): a.I(x)
    a.I("s_waitcnt lgkmcnt(8)")
    for x in nmf(0): a.I(x)
    a.I("s_waitcnt lgkmcnt(0)")
    for x in nmf(1): a.I(x)
    for gi in range(16):
        m = nmf(gi + 2) if gi + 2 < 16 else []
        v = nva(gi)
        if gi + 2 == 8: a.I("s_waitcnt lgkmcnt(8)")
        if gi + 2 == 9: a.I("s_waitcnt lgkmcnt(0)")
        for k, x in enumerate(v):
            a.I(x)
            if k % 4 == 1 and m: a.I(m.pop(0))
        if gi + 2 == 6:
            for x in ktread(1, 0): a.I(x)
        if gi + 2 == 7:
            a.I("s_waitcnt lgkmcnt(7)")
            for x in ktread(1, 1): a.I(x)
        if gi == 13: woload(4)
    ST(a, "odone")
    VM_, VH_, VX_, VO_, VB_ = VT, VT + 4, VT + 8, 250, 251
    RES, RU = 20, 40
    order = (1, 2, 3, 0)
    for k, sg in enumerate(order):
        A_ = AC2 + 20 * (k % 3); P_ = AC2 + 20 * ((k - 1) % 3)
        fill = []
        if k == 3:
            vm.wait(a, "R"); fill = res_unpack([0, 1, 2], RES, RU)
        for t in range(5):
            if k == 0: vm.wait(a, ("wo", t))
            for ct in ((3, 4, 0, 1, 2) if k == 3 else range(5)):
                d = A_ + 4 * ct
                a.I(f"v_mfma_f32_16x16x32_bf16 {q4(d)}, {q4(wor(t)+4*ct)}, {q4(PQ+20*sg+4*t)}, {'0' if t == 0 else q4(d)}")
                n = t * 5 + ct
                if k > 0 and n >= 8 and n % 3 == 2 and (n - 8) // 3 < 5:
                    c2 = (n - 8) // 3
                    a.I(f"ds_write_b128 v{W_MZ}, {q4(P_+4*c2)} offset:{((order[k-1]-1)*5+c2)*1024}")
                for _ in range(2):
                    if fill: a.I(fill.pop(0))
        if k == 0:
            out_addr(a, VO_, VB_, 252)
            res_issue(a, vm, [0, 1, 2], RES, VO_, VB_)
        if k == 1: red_addrs(a, VM_, VH_, VX_)
    for c2 in (3, 4): a.I(f"ds_write_b128 v{VX_}, {q4(AC2+4*c2)} offset:{(c2-3)*1024}")
    for k, ct in enumerate([0, 1, 2]):
        for i in (0, 2): a.I(f"v_pk_add_f32 {pk(AC2+4*ct+i)}, {pk(AC2+4*ct+i)}, {pk(RU+8*k+i)}")
    ST(a, "attend")
    a.I("s_waitcnt lgkmcnt(0)\ns_barrier")
    ST(a, "bar")
    final_sum(a, 0, [0, 1, 2], AC2, 100, VM_, VH_, VX_, VO_)
    a.I(f"s_or_b32 s{T}, s2, s{S_WAVE}\ns_cmp_eq_u32 s{T}, 0\ns_cselect_b32 s{T}, 0, {WS_SIZE}\ns_add_u32 s{T}, s{T}, {FLG_OFF}")
    a.I(f"v_mov_b32 v0, s{T}\nv_mov_b32 v1, s{S_TAG}\ns_mov_b64 exec, 1")
    a.I(f"buffer_store_dword v1, v0, {srd(SRD_WS)}, 0 offen\ns_mov_b64 exec, -1")
    ST(a, "end")
    if STAMPS: a.I("s_waitcnt vmcnt(0)")
    ST(a, "rt1", True)
    stamp_dump(a, 0)
    if DIAG:
        a.I("s_waitcnt vmcnt(0)\ns_memrealtime s[92:93]\ns_waitcnt lgkmcnt(0)")
        a.I("s_lshl_b32 s78, s78, 3\ns_min_u32 s78, s78, 40000\ns_mov_b32 s76, s92")
        if DIAGWG >= 0: a.I(f"s_cmp_eq_u32 s2, {DIAGWG}\ns_cselect_b32 s78, s78, 0")
        a.L("L_diag")
        a.I("s_memrealtime s[92:93]\ns_waitcnt lgkmcnt(0)\ns_sub_u32 s92, s92, s76\ns_cmp_lt_u32 s92, s78\ns_cbranch_scc1 L_diag")
    a.L("L_end")
    a.I("s_endpgm")

def header(launches):
    ref = open(f"cdna_kernels/{NAME}.s.ref").read().split("\n")
    out = [l for l in ref if l.startswith(";") and "@launch" not in l]
    out += launches
    out += ['.amdgcn_target "amdgcn-amd-amdhsa--gfx950"', ".text"]
    return "\n".join(out) + "\n"

def build(path, listform):
    ln = f"; @launch kernel={KN} grid=(256,1,1) block=(512,1,1) lds=163840" if listform else "; @launch grid=(256,1,1) block=(512,1,1) lds=163840"
    txt = header([ln])
    a = Asm()
    common(a)
    s1 = loader(a)
    s2 = aux(a)
    h2(a, [s1, s2])
    mwave(a)
    t, n = a.fixed()
    if NOSCL: t = "\n".join(l.replace(" sc1", "") if "load_dwordx4" in l else l for l in t.split("\n"))
    if NOSCS: t = "\n".join(l.replace(" sc1", "") if "store_dwordx4" in l else l for l in t.split("\n"))
    txt += t
    txt += ".p2align 8\n.fill 16384, 4, 0xbf800000\n"
    txt += f""".section .rodata,"a"
.p2align 6
.amdhsa_kernel {KN}
  .amdhsa_next_free_vgpr 256
  .amdhsa_next_free_sgpr 102
  .amdhsa_accum_offset 256
  .amdhsa_group_segment_fixed_size 0
  .amdhsa_kernarg_size 88
  .amdhsa_user_sgpr_count 2
  .amdhsa_user_sgpr_kernarg_segment_ptr 1
  .amdhsa_system_sgpr_workgroup_id_x 1
.end_amdhsa_kernel
"""
    open(path, "w").write(txt)
    if STAMPS: open(path + ".names", "w").write(repr(STAMP_NAMES))
    print("written", path, "nops inserted:", n)

if __name__ == "__main__":
    LIST = 0
    for arg in list(sys.argv):
        if "=" in arg:
            k_, v_ = arg.split("="); globals()[k_] = int(v_); sys.argv.remove(arg)
    build(sys.argv[1] if len(sys.argv) > 1 else f"cdna_kernels/{NAME}.s", LIST)
```

```python
import sys, math, struct
sys.path.insert(0, "gen")
from asmlib import Asm

NAME = "parallel_sum__linear_attn_block__dense_activation_gelu__prompt"
KN = NAME + "_kernel"
HQ_OFF   = 0x000000
B2_OFF   = 0x900000
STAT_OFF = 0xC00000
CS_OFF   = 0xC10000
KV_OFF   = 0xC40000
FLG_OFF  = 0xC58000
FL0, FL2, FL3, FL1 = FLG_OFF + 0x1000, FLG_OFF + 0x2000, FLG_OFF + 0xA000, FLG_OFF + 0x18000
ZERO_KB  = 53 + 32 + 3 + 8
C2F      = KV_OFF + 53 * 1024
C4       = C2F + 35 * 1024
C3       = C2F + 256 * 128
STAMP_OFF = 0xC80000
WS_SIZE  = 0xE00000

STAMPS = 0
CODEPF = 1
ROT1 = 0
ROT2 = 0
PD = 4
NB = 6
MPRIO = 1
SPIN = 8000
NOATOM = 0
NOSCL = 0
NOSCS = 0
THR = 0
PSLEEP = 4
PSLEEP3 = 4
G2MAP = 1
DLY = 0
N1 = 99
WOEARLY = 4
HPRIO = 2
QFIRST = 0
NUMPRIO = 3
R3 = 32
VPUSHF = 0
VPUSHQ = 1
VBC = 1
SPOLL2 = 1
SPOLL3 = 1
WOPRIO = 0
LEAD = 3
RLAT = 1
CSAT = -1
CSPLIT = 10
NOST = 0
NOS1 = 0
WSMB = 0
WODRAIN = 0
PQPRIO = 3
LCHK, FCHK, ECHK, BUDGET, BGRATE, BGMAX, APRIO = 11, 18, 16, 48, 0, 15, 0
DIAG = 0

def f32(x): return struct.unpack("<I", struct.pack("<f", x))[0]
def hx(x): return hex(x & 0xFFFFFFFF)
def srd(n): return f"s[{n}:{n+3}]"
def pk(r): return f"v[{r}:{r+1}]"
def q4(r): return f"v[{r}:{r+3}]"
SC = "sc1"

S_X, S_WQKV, S_WO, S_W1, S_B1, S_W2, S_B2, S_OUT, S_DBG, S_WS = 4, 6, 8, 12, 14, 16, 18, 20, 22, 24
S_WAVE, S_I = 26, 27
SRD_X, SRD_W, SRD_WS, SRD_T, SRD_U = 28, 32, 36, 40, 44
S_RB, S_CG, S_TYPE, S_STR, S_BASE, S_JA, S_JB, S_NP, S_KS0, S_CSB, S_RB2, S_CG2 = range(48, 60)
T = 60
S_KK = 76
S_A = 88
S_SPIN = 96
S_TAG = 101
S_M16 = 97
V_LANE, V_L16, V_STAMP = 255, 254, 253

WSLOT = 14336
XRING = 6 * WSLOT
P0_LDS = XRING + 3 * 16384
EXT_LDS = P0_LDS + 16384
STAT_LDS = EXT_LDS + 8192 + 256
SYNC_LDS = EXT_LDS + 8192
KVIMG = 2 * WSLOT
KV_RS = 344
MZ, MZS = 28672, 15360
HZ1, HZS = 90112, 20480

class Q:
    def __init__(self, name, mx): self.q = []; self.name = name; self.mx = mx
    def issue(self, tag): self.q.append(tag)
    def wait(self, a, tag):
        idx = [i for i, t in enumerate(self.q) if t == tag]
        if not idx: return
        n = len(self.q) - 1 - idx[-1]
        assert n <= self.mx, (self.name, n)
        a.I(f"s_waitcnt {self.name}({n})")
        self.q = self.q[idx[-1] + 1:]
    def drain(self, a):
        a.I(f"s_waitcnt {self.name}(0)"); self.q = []

STAMP_NAMES = {}
DIAGN = {1: ('start', 'end'), 2: ('start', 'P0'), 3: ('P0', 'P4'), 4: ('P4', 'mainend'), 5: ('mainend', 'epi'), 6: ('epi', 'drain'), 7: ('drain', 'S3'), 8: ('S3', 'odone'), 9: ('odone', 'end'), 10: ('start', 'mainend'), 11: ('mainend', 'S3'), 12: ('S3', 'end')}
DIAGWG = -1
class Stamp:
    def __init__(self, role): self.role = role; self.n = 0; self.names = []; STAMP_NAMES[role] = self.names
    def __call__(self, a, name, real=False):
        if DIAG and self.role == "M" and name == DIAGN[DIAG][0]:
            a.I("s_memrealtime s[86:87]\ns_waitcnt lgkmcnt(0)")
        if DIAG and self.role == "M" and name == DIAGN[DIAG][1]:
            a.I("s_memrealtime s[92:93]\ns_waitcnt lgkmcnt(0)\ns_sub_u32 s85, s92, s86")
        if not STAMPS: return
        a.I(f"{'s_memrealtime' if real else 's_memtime'} s[92:93]\ns_waitcnt lgkmcnt(0)\nv_writelane_b32 v{V_STAMP}, s92, {self.n}")
        self.names.append(name); self.n += 1
def stamp_dump(a, vt):
    if not STAMPS: return
    a.I(f"s_lshl_b32 s92, s2, 3\ns_add_u32 s92, s92, s{S_WAVE}\ns_lshl_b32 s92, s92, 8\ns_add_u32 s92, s92, {STAMP_OFF}\nv_lshlrev_b32 v{vt}, 2, v{V_LANE}")
    a.I(f"buffer_store_dword v{V_STAMP}, v{vt}, {srd(SRD_WS)}, s92 offen")

def mk_srd(a, d, ptr, size):
    a.I(f"s_mov_b32 s{d}, s{ptr}\ns_mov_b32 s{d+1}, s{ptr+1}")
    a.I(f"s_mov_b32 s{d+2}, {hx(size)}\ns_mov_b32 s{d+3}, 0x20000")

_lbl = [0]
def newlabel(p):
    _lbl[0] += 1; return f"L_{p}{_lbl[0]}"

def lds_wait_ge(a, word, val, vt):
    l = newlabel("lw"); e = newlabel("lwe")
    a.I(f"s_mov_b32 s{S_SPIN}, {SPIN*8}\nv_mov_b32 v{vt}, {SYNC_LDS + 4*word}")
    a.L(l)
    a.I(f"ds_read_b32 v{vt+1}, v{vt}\ns_waitcnt lgkmcnt(0)\nv_readfirstlane_b32 s{T}, v{vt+1}")
    a.I(f"s_cmp_ge_u32 s{T}, {val}\ns_cbranch_scc1 {e}\ns_sleep 1\ns_sub_u32 s{S_SPIN}, s{S_SPIN}, 1\ns_cmp_lg_u32 s{S_SPIN}, 0\ns_cbranch_scc1 {l}")
    a.L(e)

def lds_add(a, word, vt, rtn=False):
    a.I(f"v_mov_b32 v{vt}, {SYNC_LDS + 4*word}\nv_mov_b32 v{vt+1}, 1\ns_mov_b64 exec, 1")
    if rtn: a.I(f"ds_add_rtn_u32 v{vt+1}, v{vt}, v{vt+1}")
    else: a.I(f"ds_add_u32 v{vt}, v{vt+1}")
    a.I("s_mov_b64 exec, -1")

def set_exec(a, nlanes):
    if nlanes >= 64: a.I("s_mov_b64 exec, -1")
    elif nlanes > 32: a.I(f"s_mov_b32 exec_lo, -1\ns_mov_b32 exec_hi, {hx((1 << (nlanes - 32)) - 1)}")
    else: a.I(f"s_mov_b32 exec_lo, {hx((1 << nlanes) - 1)}\ns_mov_b32 exec_hi, 0")
def tag_test(a, regs):
    for k, r in enumerate(regs):
        a.I(f"v_cmp_ne_u32 vcc, s{S_TAG}, v{r}")
        a.I("s_mov_b64 s[94:95], vcc" if k == 0 else "s_or_b64 s[94:95], s[94:95], vcc")
    a.I("s_cmp_lg_u64 s[94:95], 0")
def flag_load(a, voff, vt, w):
    a.I(f"buffer_load_dword{'x2' if w == 2 else ''} {pk(vt) if w == 2 else f'v{vt}'}, v{voff}, {srd(SRD_WS)}, 0 offen {SC}")
def poll(a, voff, vt, nlanes, w, slp):
    l = newlabel("pl"); e = newlabel("ple")
    a.I(f"s_mov_b32 s{S_SPIN}, {SPIN}")
    set_exec(a, nlanes)
    a.L(l)
    flag_load(a, voff, vt, w)
    a.I("s_waitcnt vmcnt(0)")
    tag_test(a, [vt + i for i in range(w)])
    a.I(f"s_cbranch_scc0 {e}")
    a.I(f"s_sleep {slp}\ns_sub_u32 s{S_SPIN}, s{S_SPIN}, 1\ns_cmp_lg_u32 s{S_SPIN}, 0\ns_cbranch_scc1 {l}")
    a.L(e)
    a.I("s_mov_b64 exec, -1")
def poll_issue(a, vm, voff, vt, nlanes, w, tag):
    set_exec(a, nlanes)
    flag_load(a, voff, vt, w)
    a.I("s_mov_b64 exec, -1")
    vm.issue(tag)
def poll_check(a, vm, voff, vt, nlanes, w, tag, slp):
    e = newlabel("pc")
    vm.wait(a, tag)
    set_exec(a, nlanes)
    tag_test(a, [vt + i for i in range(w)])
    a.I(f"s_mov_b64 exec, -1\ns_cbranch_scc0 {e}")
    poll(a, voff, vt, nlanes, w, slp)
    a.L(e)
def cpoll(a, soff, n, stride, val, vt, slp, scalar):
    l = newlabel("cp"); e = newlabel("cpe")
    a.I(f"s_mov_b32 s{S_SPIN}, {SPIN}")
    if scalar:
        a.I(f"s_add_u32 s{T+4}, s{S_WS}, s{soff}\ns_addc_u32 s{T+5}, s{S_WS+1}, 0")
        a.L(l)
        for i in range(n): a.I(f"s_load_dword s{T+6+i}, s[{T+4}:{T+5}], {i*stride} glc")
        a.I("s_waitcnt lgkmcnt(0)")
        for i in range(1, n): a.I(f"s_min_u32 s{T+6}, s{T+6}, s{T+6+i}")
        a.I(f"s_cmp_ge_u32 s{T+6}, {val}\ns_cbranch_scc1 {e}")
    else:
        a.I(f"v_mul_u32_u24 v{vt}, {stride}, v{V_LANE}\nv_add_u32 v{vt}, s{soff}, v{vt}")
        set_exec(a, n)
        a.L(l)
        a.I(f"buffer_load_dword v{vt+1}, v{vt}, {srd(SRD_WS)}, 0 offen {SC}\ns_waitcnt vmcnt(0)\nv_cmp_gt_u32 vcc, {val}, v{vt+1}\ns_nop 4\ns_cbranch_vccz {e}")
    a.I(f"s_sleep {slp}\ns_sub_u32 s{S_SPIN}, s{S_SPIN}, 1\ns_cmp_lg_u32 s{S_SPIN}, 0\ns_cbranch_scc1 {l}")
    a.L(e)
    if not scalar: a.I("s_mov_b64 exec, -1")
def push16(a, w, vec=0):
    if vec:
        a.I(f"s_lshl_b32 s{T}, s{S_RB}, 11\ns_add_u32 s{T}, s{T}, {C2F+w}\nv_lshlrev_b32 v120, 7, v{V_LANE}\nv_mov_b32 v121, 1\ns_mov_b64 exec, 0xffff")
        a.I(f"buffer_atomic_add v121, v120, {srd(SRD_WS)}, s{T} offen\ns_mov_b64 exec, -1")
        return
    a.I(f"s_mov_b32 s{T+8}, 1\ns_lshl_b32 s{T}, s{S_RB}, 11\ns_add_u32 s{T}, s{T}, {C2F+w}\ns_add_u32 s{S_KK}, s{S_WS}, s{T}\ns_addc_u32 s{S_KK+1}, s{S_WS+1}, 0")
    for r in range(16): a.I(f"s_atomic_add s{T+8}, s[{S_KK}:{S_KK+1}], {128*r}")
def tag_ready(a):
    a.I(f"s_waitcnt lgkmcnt(0)\ns_mul_i32 s{S_TAG}, s{S_TAG}, 0x9e3779b1\ns_add_u32 s{S_TAG}, s{S_TAG}, 0x7f4a7c15")

def common(a):
    a.raw(f".globl {KN}\n.p2align 8\n.type {KN},@function")
    a.L(KN)
    a.I("s_cmp_ge_u32 s2, 256\ns_cbranch_scc1 L_end")
    a.I("s_load_dwordx16 s[4:19], s[0:1], 0\ns_load_dwordx4 s[20:23], s[0:1], 64\ns_load_dwordx2 s[24:25], s[0:1], 80")
    a.I(f"v_lshrrev_b32 v1, 6, v0\nv_and_b32 v{V_LANE}, 63, v0")
    a.I(f"v_readfirstlane_b32 s{S_WAVE}, v1\nv_lshlrev_b32 v{V_L16}, 4, v{V_LANE}")
    if CODEPF:
        a.I("s_getpc_b64 s[94:95]\ns_and_b32 s94, s94, 0xffffff00")
        a.I(f"s_and_b32 s92, s2, 0xf8\ns_add_u32 s92, s92, s{S_WAVE}\ns_lshl_b32 s92, s92, 8")
        a.I(f"v_lshlrev_b32 v2, 7, v{V_LANE}\nv_add_u32 v2, s92, v2\ns_mov_b64 exec, 3")
        a.I("global_load_dword v252, v2, s[94:95]\ns_mov_b64 exec, -1")
    a.I(f"s_and_b32 s{S_I}, s{S_WAVE}, 3\ns_mov_b32 s{S_M16}, 0xffff0000")
    a.I(f"s_and_b32 s{T}, s2, 1\ns_lshl_b32 s{T}, s{T}, 3\ns_bfe_u32 s{S_RB}, s2, 0x30003\ns_add_u32 s{S_RB}, s{S_RB}, s{T}")
    a.I(f"s_and_b32 s{T}, s2, 6\ns_bfe_u32 s{S_CG}, s2, 0x10006\ns_add_u32 s{S_CG}, s{S_CG}, s{T}\ns_lshr_b32 s{T}, s2, 7\ns_lshl_b32 s{T}, s{T}, 3\ns_add_u32 s{S_CG}, s{S_CG}, s{T}")
    if G2MAP == 0:
        a.I(f"s_and_b32 s{S_RB2}, s2, 7\ns_lshl_b32 s{S_RB2}, s{S_RB2}, 2\ns_bfe_u32 s{T}, s2, 0x20003\ns_add_u32 s{S_RB2}, s{S_RB2}, s{T}")
        a.I(f"s_lshr_b32 s{S_CG2}, s2, 5")
    else:
        a.I(f"s_and_b32 s{S_RB2}, s2, 6\ns_lshl_b32 s{S_RB2}, s{S_RB2}, 2\ns_bfe_u32 s{T}, s2, 0x30003\ns_add_u32 s{S_RB2}, s{S_RB2}, s{T}")
        a.I(f"s_and_b32 s{S_CG2}, s2, 1\ns_lshl_b32 s{S_CG2}, s{S_CG2}, 2\ns_lshr_b32 s{T}, s2, 6\ns_add_u32 s{S_CG2}, s{S_CG2}, s{T}")
    a.I(f"s_mov_b32 s{S_JA}, 0\ns_mov_b32 s{S_JB}, 0\ns_mov_b32 s{S_STR}, 3840\ns_mov_b32 s{S_CSB}, 0\ns_mov_b32 s{S_NP}, 28")
    a.I(f"s_cmp_lt_u32 s{S_CG}, 8\ns_cbranch_scc1 L_t_kvq\ns_cmp_eq_u32 s{S_CG}, 15\ns_cbranch_scc1 L_t_qx")
    a.I(f"s_mov_b32 s{S_TYPE}, 1\ns_sub_u32 s{T}, s{S_CG}, 8\ns_mul_i32 s{S_BASE}, s{T}, 448\ns_mul_i32 s{S_KS0}, s{T}, 7")
    a.I(f"s_mov_b32 s{S_STR}, 3072\ns_mov_b32 s{S_CSB}, 1920\ns_cmp_eq_u32 s{S_CG}, 14\ns_cselect_b32 s{S_NP}, 24, 28\ns_branch L_t_done")
    a.L("L_t_qx")
    a.I(f"s_mov_b32 s{S_TYPE}, 2\ns_mov_b32 s{S_BASE}, 1024\ns_mov_b32 s{S_KS0}, 64\ns_mov_b32 s{S_NP}, 16\ns_branch L_t_done")
    a.L("L_t_kvq")
    a.I(f"s_mov_b32 s{S_TYPE}, 0\ns_mul_i32 s{S_BASE}, s{S_CG}, 160\ns_add_u32 s{S_BASE}, s{S_BASE}, 1280\ns_mov_b32 s{S_JA}, 1120")
    a.I(f"s_lshl_b32 s{S_JB}, s{S_CG}, 5\ns_sub_u32 s{S_JB}, {hx(-2720)}, s{S_JB}")
    a.I(f"s_lshl_b32 s{S_KS0}, s{S_CG}, 1\ns_add_u32 s{S_KS0}, s{S_KS0}, {48-5}")
    a.L("L_t_done")
    a.I(f"s_cmp_lt_u32 s{S_WAVE}, 4\ns_cbranch_scc1 L_M\ns_cmp_ge_u32 s{S_WAVE}, 6\ns_cbranch_scc1 L_AUX")

def base_srds(a):
    a.I("s_waitcnt lgkmcnt(0)")
    mk_srd(a, SRD_X, S_X, 2048 * 1280)
    if WSMB: a.I(f"s_add_u32 s{S_WS}, s{S_WS}, {hx(WSMB << 20)}\ns_addc_u32 s{S_WS+1}, s{S_WS+1}, 0")
    mk_srd(a, SRD_WS, S_WS, WS_SIZE)
    a.I(f"s_mov_b32 s{S_SPIN}, {FLG_OFF}\ns_buffer_load_dword s{S_TAG}, {srd(SRD_WS)}, s{S_SPIN}")

def loader(a):
    ST = Stamp("L")
    vm = Q("vmcnt", 63)
    if CODEPF: vm.issue("code")
    VW, VX, t0, t1, t2 = 4, 12, 16, 17, 18
    S_XK, S_WK, S_XB, S_MW, S_MX, S_W32, S_WEND = T + 2, T + 3, T + 4, T + 5, T + 6, T + 7, T + 8
    a.C("==== loader ====")
    ST(a, "rt0", True); ST(a, "start")
    a.I(f"v_lshrrev_b32 v{t0}, 3, v{V_LANE}\nv_and_b32 v{t1}, 7, v{V_LANE}\nv_lshrrev_b32 v{t2}, 1, v{t0}\nv_xor_b32 v{t1}, v{t1}, v{t2}")
    a.I(f"v_mul_u32_u24 v{t0}, 1280, v{t0}\nv_lshl_add_u32 v{VX}, v{t1}, 4, v{t0}\nv_xor_b32 v{VX+1}, 64, v{VX}")
    if ROT1 == 0: a.I(f"s_mov_b32 s{T}, 0")
    else:
        a.I(f"s_and_b32 s{T}, s{S_RB}, 7\ns_lshr_b32 s{T+1}, s2, 6")
        if ROT1 == 1: a.I(f"s_lshl_b32 s{T+1}, s{T+1}, 1\ns_add_u32 s{T}, s{T}, s{T+1}\ns_and_b32 s{T}, s{T}, 7\ns_mul_i32 s{T}, s{T}, 5\ns_lshr_b32 s{T}, s{T}, 2")
        else: a.I(f"s_add_u32 s{T}, s{T}, s{T+1}\ns_and_b32 s{T}, s{T}, 3\ns_mul_i32 s{T}, s{T}, 5\ns_lshr_b32 s{T}, s{T}, 1")
    a.I(f"s_lshl_b32 s{S_XK}, s{T}, 7\ns_lshl_b32 s{S_W32}, s{S_STR}, 5\ns_mul_i32 s{S_WK}, s{T}, s{S_W32}\ns_lshl_b32 s{S_WK}, s{S_WK}, 1")
    a.I(f"s_mul_i32 s{S_WEND}, s{S_STR}, 640")
    a.I(f"s_lshl_b32 s{S_XB}, s{S_RB}, 1\ns_add_u32 s{S_XB}, s{S_XB}, s{S_I}\ns_mul_i32 s{S_XB}, s{S_XB}, {64*1280}")
    a.I(f"s_mul_i32 s{S_MW}, s{S_I}, 7168\ns_lshl_b32 s{S_MX}, s{S_I}, 13\ns_add_u32 s{S_MX}, s{S_MX}, {XRING}")
    a.I(f"s_lshl_b32 s{T}, s{S_I}, 4\ns_mul_i32 s{T}, s{T}, s{S_STR}\ns_add_u32 s{T}, s{T}, s{S_BASE}")
    a.I(f"v_mov_b32 v20, s{S_JA}\ns_add_u32 s{T+1}, s{S_JA}, s{S_JB}\nv_mov_b32 v21, s{T+1}\nv_mov_b32 v22, 0x40000000")
    R_, P_, J_ = 24, 32, 40
    for it in range(7): a.I(f"v_add_u32 v{P_+it}, {64*it}, v{V_LANE}")
    for it in range(7): a.I(f"v_mul_u32_u24 v{R_+it}, 2341, v{P_+it}")
    for it in range(7): a.I(f"v_lshrrev_b32 v{R_+it}, 16, v{R_+it}")
    for it in range(7): a.I(f"v_mul_u32_u24 v{J_+it}, 28, v{R_+it}")
    for it in range(7): a.I(f"v_sub_u32 v{P_+it}, v{P_+it}, v{J_+it}")
    for it in range(7): a.I(f"v_mul_u32_u24 v{R_+it}, s{S_STR}, v{R_+it}")
    for it in range(7): a.I(f"v_lshl_add_u32 v{R_+it}, v{P_+it}, 4, v{R_+it}")
    for lim, src, first in (("10", 20, True), ("20", 21, False), (f"s{S_NP}", 22, False)):
        for it in range(7): a.I(f"v_cmp_le_u32 s[{S_KK+2*(it%6)}:{S_KK+2*(it%6)+1}], {lim}, v{P_+it}" if it < 6 else f"v_cmp_le_u32 vcc, {lim}, v{P_+it}")
        for it in range(7):
            m = f"s[{S_KK+2*it}:{S_KK+2*it+1}]" if it < 6 else "vcc"
            a.I(f"v_cndmask_b32 v{J_+it}, {'0' if first else f'v{J_+it}'}, v{src}, {m}")
    for it in range(7): a.I(f"v_add3_u32 v{VW+it}, v{R_+it}, v{J_+it}, s{T}")
    base_srds(a)
    def xl(c, half):
        if half == 0: a.I(f"s_add_u32 s{T+9}, s{S_XB}, s{S_XK}")
        for i in range(4 * half, 4 * half + 4):
            a.I(f"s_add_u32 m0, s{S_MX}, {(c%3)*16384 + i*1024}")
            a.I(f"s_add_u32 s{T}, s{T+9}, {i*10240}")
            a.I(f"buffer_load_dwordx4 v{VX+(i&1)}, {srd(SRD_X)}, s{T} offen lds")
            vm.issue(("x", c))
        if half == 0:
            a.I(f"s_add_u32 s{S_XK}, s{S_XK}, 128\ns_cmp_eq_u32 s{S_XK}, 1280\ns_cselect_b32 s{S_XK}, 0, s{S_XK}")
    def wl(h):
        for it in range(7):
            a.I(f"s_add_u32 m0, s{S_MW}, {(h%6)*WSLOT + it*1024}")
            a.I("s_nop 0")
            a.I(f"buffer_load_dwordx4 v{VW+it}, {srd(SRD_W)}, s{S_WK} offen lds")
            vm.issue(("W", h))
        a.I(f"s_add_u32 s{S_WK}, s{S_WK}, s{S_W32}\ns_cmp_eq_u32 s{S_WK}, s{S_WEND}\ns_cselect_b32 s{S_WK}, 0, s{S_WK}")
    xl(0, 0); xl(0, 1)
    a.I(f"s_cmp_eq_u32 s{S_TYPE}, 1\ns_cselect_b32 s{SRD_W}, s{S_W1}, s{S_WQKV}\ns_cselect_b32 s{SRD_W+1}, s{S_W1+1}, s{S_WQKV+1}")
    a.I(f"s_mov_b32 s{SRD_W+2}, s{S_WEND}\ns_mov_b32 s{SRD_W+3}, 0x20000")
    def step(h):
        if h > 19: return
        if h == 0: wl(0)
        elif LEAD == 3:
            if h % 2 == 0: xl(h // 2, 0); xl(h // 2, 1)
            wl(h)
        elif h & 1:
            wl(h)
            if (h + 1) // 2 < 10: xl((h + 1) // 2, 0)
        else:
            xl(h // 2, 1); wl(h)
    step(0)
    tag_ready(a)
    a.I("s_barrier")
    step(1)
    bg = bg_jobs(a, vm)
    for h in range(20):
        vm.wait(a, ("W", h))
        if h % 2 == 0: ST(a, f"P{h}w")
        a.I("s_barrier")
        if LEAD == 3 and h == 0: step(2)
        step(h + LEAD)
        if h == 6: h2_setup(a)
        if h > FCHK:
            for _ in range(BGRATE):
                if len(bg) > 30 - BGMAX: bg.pop(0)()
    ST(a, "ringend")
    h_rest(a, bg)
    ST(a, "breg")
    a.I("s_branch L_H2")
    return ST

def aux(a):
    ST = Stamp("A")
    vm = Q("vmcnt", 63)
    if CODEPF: vm.issue("code")
    L = V_LANE
    X, CW, U = 0, 20, 200
    t0, t1, t2, t3 = 60, 61, 62, 63
    BIAS, VXA, VWA, VO, VI, VTRA, CSO, CSOM, VPF = 64, 68, 69, 70, 71, 72, 73, 74, 75
    S_AL, S_ROW, S_L, S_P, S_CB, S_ST, S_WO_, S_UK, S_UC, S_LB = (T + i for i in range(2, 12))
    a.L("L_AUX")
    a.C("==== aux ====")
    ST(a, "rt0", True); ST(a, "start")
    a.I(f"s_sub_u32 s{S_AL}, s{S_WAVE}, 6")
    UN = T + 12
    a.I(f"s_lshl_b32 s{UN}, s{S_AL}, 8\ns_add_u32 s{UN}, s{UN}, s2")
    a.I(f"s_mul_hi_u32 s{S_UK}, s{UN}, {hx((1<<32)//5+1)}\ns_mul_i32 s{S_UC}, s{S_UK}, 5\ns_sub_u32 s{S_UC}, s{UN}, s{S_UC}")
    a.I(f"v_lshrrev_b32 v{t0}, 3, v{L}\nv_and_b32 v{t1}, 7, v{L}")
    SO = T + 13
    a.I(f"s_cmp_ge_u32 s{S_UK}, 48\ns_cbranch_scc1 L_p0_att")
    a.I(f"v_lshrrev_b32 v{t2}, 2, v{t0}\nv_and_b32 v{t3}, 3, v{t0}\nv_lshl_add_u32 v{VO}, v{t2}, 4, v{t3}")
    a.I(f"v_mov_b32 v{VI}, {4*1280}\ns_lshl_b32 s{SO}, s{S_UK}, 5\ns_branch L_p0_cgo")
    a.L("L_p0_att")
    a.I(f"s_sub_u32 s{T}, s{S_UK}, 48\ns_mul_i32 s{T+1}, s{T}, 205\ns_lshr_b32 s{T+1}, s{T+1}, 10")
    a.I(f"s_mul_i32 s{SO}, s{T+1}, 5\ns_sub_u32 s{T}, s{T}, s{SO}\ns_lshl_b32 s{T}, s{T}, 3\ns_mul_i32 s{SO}, s{T+1}, 160")
    a.I(f"v_add_u32 v{t2}, s{T}, v{t0}")
    a.I(f"v_mul_u32_u24 v{t3}, 205, v{t2}\nv_lshrrev_b32 v{t3}, 10, v{t3}")
    a.I(f"v_mul_u32_u24 v{VO}, 5, v{t3}\nv_sub_u32 v{t2}, v{t2}, v{VO}")
    a.I(f"v_cmp_eq_u32 vcc, 4, v{t2}\nv_mov_b32 v{VO}, 16\nv_mov_b32 v{VI}, 1280")
    a.I(f"v_cndmask_b32 v{t2}, v{t2}, v{VO}, vcc\nv_mov_b32 v{VO}, {4*1280}")
    a.I(f"v_cndmask_b32 v{VI}, v{VO}, v{VI}, vcc")
    a.I(f"v_mad_u32_u24 v{VO}, v{t3}, 20, v{t2}")
    a.L("L_p0_cgo")
    a.I(f"v_mul_u32_u24 v{VO}, 1280, v{VO}\nv_lshl_add_u32 v{VO}, v{t1}, 4, v{VO}")
    a.I(f"s_mul_i32 s{SO}, s{SO}, 1280\ns_lshl_b32 s{T}, s{S_UC}, 8\ns_add_u32 s{SO}, s{SO}, s{T}")
    a.I(f"s_lshl_b32 s{S_LB}, s{S_AL}, 13\ns_add_u32 s{S_LB}, s{S_LB}, {P0_LDS}")
    a.I(f"v_mov_b32 v{t2}, 0\nv_lshlrev_b32 v{t3}, 2, v{L}\nv_add_u32 v{t3}, {SYNC_LDS}, v{t3}\nds_write_b32 v{t3}, v{t2}")
    for i in range(4): a.I(f"v_mov_b32 v{76+i}, 0")
    base_srds(a)
    a.I(f"s_cmp_ge_u32 s{S_UK}, 48\ns_cselect_b32 s{SRD_W}, s{S_WO}, s{S_W2}\ns_cselect_b32 s{SRD_W+1}, s{S_WO+1}, s{S_W2+1}")
    a.I(f"s_mov_b32 s{SRD_W+2}, {1536*1280}\ns_cselect_b32 s{SRD_W+2}, {640*1280}, s{SRD_W+2}\ns_mov_b32 s{SRD_W+3}, 0x20000")
    a.I(f"s_cmp_ge_u32 s{UN}, 340\ns_cselect_b32 s{SRD_W+2}, 0, s{SRD_W+2}")
    bar = [-1]
    def B(upto):
        while bar[0] <= upto:
            a.I("s_barrier"); bar[0] += 1
    tag_ready(a)
    B(-1)
    def rl_loads():
        a.I(f"s_add_u32 s{T+1}, s{SO}, 128")
        for it in range(4):
            for ln in range(2):
                a.I(f"s_add_u32 m0, s{S_LB}, {ln*4096 + it*1024}\ns_nop 0")
                a.I(f"buffer_load_dwordx4 v{VO}, {srd(SRD_W)}, s{T+1 if ln else SO} offen lds")
                vm.issue("rl")
            if it < 3: a.I(f"v_add_u32 v{VO}, v{VO}, v{VI}")
    if RLAT < 0: rl_loads()
    a.I(f"s_sub_u32 s{T}, s{UN}, 340\ns_lshl_b32 s{T+1}, s{T}, 10\ns_add_u32 s{T+1}, s{T+1}, {KV_OFF}\ns_cmp_lt_u32 s{T}, {ZERO_KB}\ns_cselect_b32 s{T+1}, s{T+1}, {WS_SIZE}")
    a.I(f"buffer_store_dwordx4 {q4(76)}, v{V_L16}, {srd(SRD_WS)}, s{T+1} offen {SC}")
    vm.issue("rls")
    LAM, QD = T + 14, T + 15
    a.I(f"s_lshr_b32 s{LAM}, s2, 4\ns_bfe_u32 s{QD}, s2, 0x20001\ns_and_b32 s{S_P}, s2, 1\ns_lshl_b32 s{S_P}, s{S_P}, 1\ns_bfe_u32 s{T}, s2, 0x10003\ns_add_u32 s{S_P}, s{S_P}, s{T}")
    a.I(f"s_lshr_b32 s{T}, s{QD}, 1\ns_mul_i32 s{T}, s{T}, 5\ns_and_b32 s{T+1}, s{QD}, 1\ns_mul_i32 s{S_L}, s{T+1}, 3\ns_add_u32 s{S_L}, s{S_L}, s{T}")
    a.I(f"s_add_u32 s{S_L}, s{S_L}, s{LAM}\ns_add_u32 s{S_L}, s{S_L}, 10")
    a.I(f"s_add_u32 s{T+1}, s{T+1}, s{LAM}\ns_cmp_ge_u32 s{T+1}, 3\ns_cselect_b32 s{T}, 7, 0\ns_add_u32 s{S_L}, s{S_L}, s{T}")
    a.I(f"s_lshl_b32 s{T}, s{QD}, 1\ns_add_u32 s{T}, s{T}, s{LAM}\ns_sub_u32 s{T}, s{T}, 5\ns_cmp_ge_u32 s{LAM}, 5\ns_cselect_b32 s{S_L}, s{T}, s{S_L}")
    a.I(f"s_mul_i32 s{T}, s{QD}, 7\ns_add_u32 s{T}, s{T}, s{LAM}\ns_add_u32 s{T}, s{T}, 23\ns_cmp_ge_u32 s{LAM}, 7\ns_cselect_b32 s{S_L}, s{T}, s{S_L}")
    a.I(f"s_cmp_ge_u32 s{LAM}, 14\ns_cselect_b32 s{S_L}, 64, s{S_L}")
    a.I(f"s_sub_u32 s{T}, s{S_L}, 46\ns_cmp_ge_u32 s{S_L}, 54\ns_cselect_b32 s{T+1}, s{T}, s{S_L}")
    a.I(f"s_cmp_ge_u32 s{S_L}, 56\ns_cselect_b32 s{S_L}, 64, s{T+1}")
    a.I(f"s_cmp_ge_u32 s{S_L}, 30")
    a.I(f"s_cselect_b32 s{SRD_T}, s{S_W1}, s{S_WQKV}\ns_cselect_b32 s{SRD_T+1}, s{S_W1+1}, s{S_WQKV+1}")
    a.I(f"s_mov_b32 s{S_ST}, 3840\ns_cselect_b32 s{S_ST}, 3072, s{S_ST}\ns_cselect_b32 s{S_CB}, 30, 0")
    a.I(f"s_mul_i32 s{SRD_T+2}, s{S_ST}, 640\ns_mov_b32 s{SRD_T+3}, 0x20000")
    a.I(f"s_cmp_ge_u32 s{S_L}, 54\ns_cselect_b32 s{SRD_T+2}, 0, s{SRD_T+2}")
    a.I(f"s_sub_u32 s{S_CB}, s{S_L}, s{S_CB}\ns_lshl_b32 s{S_CB}, s{S_CB}, 7\ns_lshl_b32 s{T}, s{S_AL}, 6\ns_add_u32 s{S_CB}, s{S_CB}, s{T}")
    a.I(f"s_mul_i32 s{S_WO_}, s{S_P}, 160\ns_mul_i32 s{S_WO_}, s{S_WO_}, s{S_ST}\ns_add_u32 s{S_WO_}, s{S_WO_}, s{S_CB}")
    a.I(f"v_lshrrev_b32 v{t1}, 2, v{L}\nv_mul_lo_u32 v{t1}, v{t1}, s{S_ST}\nv_and_b32 v{t2}, 3, v{L}\nv_lshl_add_u32 v{VWA}, v{t2}, 4, v{t1}")
    a.I(f"s_lshl_b32 s{S_ST}, s{S_ST}, 4")
    a.I(f"v_lshrrev_b32 v{t0}, 4, v{L}\nv_bfe_u32 v{t1}, v{L}, 2, 2\nv_and_b32 v{t2}, 3, v{L}")
    a.I(f"v_lshl_add_u32 v{t0}, v{t0}, 3, v{t1}\nv_lshlrev_b32 v{t0}, 7, v{t0}\nv_lshl_add_u32 v{t0}, v{t2}, 3, v{t0}\nv_add_u32 v{VTRA}, s{S_LB}, v{t0}")
    a.I(f"s_lshl_b32 s{S_UC}, s{S_UC}, 3\ns_mul_i32 s{S_UK}, s{S_UK}, 5")
    a.I(f"s_cmp_ge_u32 s{UN}, 340\ns_cselect_b32 s{S_UK}, 0x4000, s{S_UK}")
    def wloads(i0, i1):
        for it in range(i0, i1):
            a.I(f"buffer_load_dwordx4 {q4(CW+4*it)}, v{VWA}, {srd(SRD_T)}, s{S_WO_} offen")
            vm.issue("w")
            a.I(f"s_add_u32 s{S_WO_}, s{S_WO_}, s{S_ST}")
    def relayout(ln):
        FR = U + 16 * ln
        for i in range(4):
            a.I(f"ds_read_b64_tr_b16 {pk(FR+4*i)}, v{VTRA} offset:{ln*4096+32*i}\nds_read_b64_tr_b16 {pk(FR+4*i+2)}, v{VTRA} offset:{ln*4096+32*i+512}")
        for i in range(4):
            a.I(f"s_mul_i32 s{T}, s{S_UC}, 205\ns_lshr_b32 s{T}, s{T}, 10\ns_mul_i32 s{T}, s{T}, 335\ns_add_u32 s{T}, s{T}, s{S_UC}\ns_add_u32 s{T}, s{T}, s{S_UK}")
            a.I(f"s_lshl_b32 s{T}, s{T}, 10\ns_add_u32 s{T}, s{T}, {B2_OFF}\ns_add_u32 s{S_UC}, s{S_UC}, 1")
            a.I(f"s_waitcnt lgkmcnt({6-2*i})")
            a.I(f"buffer_store_dwordx4 {q4(FR+4*i)}, v{V_L16}, {srd(SRD_WS)}, s{T} offen {SC}")
            vm.issue("rls")
    mark = [0]; fa = [99]
    bg = bg_jobs(a, vm)
    PV = 240
    def cost():
        c = 0
        for k, t in a.items[mark[0]:]:
            if k == "i": c += 8 if t.startswith("buffer_") else (0.5 if t.startswith("s_") else 1)
        return c
    def nxt():
        if bar[0] == LCHK + 1:
            ST(a, "prelchk")
            a.I(f"s_sub_u32 s{S_SPIN}, s{S_CG}, s{S_AL}\ns_cmp_lg_u32 s{S_SPIN}, 15\ns_cbranch_scc1 L_noleader")
            vq = list(vm.q)
            poll_check(a, vm, PV, PV + 2, 16, 1, "f0", 8)
            a.I(f"s_lshl_b32 s{S_SPIN}, s{S_RB}, 7\ns_add_u32 s{S_SPIN}, s{S_SPIN}, {FL0}\nv_mov_b32 v{PV+6}, s{S_SPIN}")
            a.I(f"s_mov_b64 exec, 1\nbuffer_store_dword v{PV+7}, v{PV+6}, {srd(SRD_WS)}, 0 offen {SC}\ns_mov_b64 exec, -1")
            vm.q = vq
            a.L("L_noleader")
        if bar[0] == FCHK + 1:
            ST(a, "prechk")
            a.I(f"s_cmp_lg_u32 s{S_AL}, 0\ns_cbranch_scc1 L_nochk")
            vq = list(vm.q)
            poll_check(a, vm, PV + 1, PV + 3, 16, 1, "f1", 8)
            vm.q = vq
            a.L("L_nochk")
            ST(a, "fchk")
        if bar[0] == fa[0]: vm.wait(a, "rls"); ST(a, "rlsdone")
        B(bar[0]); mark[0] = len(a.items)
        if bar[0] == fa[0] + 1: rl_flag()
        if bar[0] == LCHK: poll_issue(a, vm, PV, PV + 2, 16, 1, "f0")
        if bar[0] == FCHK - 1: poll_issue(a, vm, PV + 1, PV + 3, 16, 1, "f1")
        if bar[0] - 1 > FCHK:
            for _ in range(BGRATE):
                if len(bg) > 30 - BGMAX: bg.pop(0)()
    def cut():
        if cost() >= BUDGET: nxt()
    def until(k):
        while bar[0] <= k: nxt()
    if APRIO: a.I(f"s_setprio {APRIO}")
    def rl_process():
        vm.wait(a, "rl")
        relayout(0)
        nxt()
        relayout(1)
    def rl_flag():
        a.I(f"s_lshl_b32 s{T}, s{S_ROW}, 7\ns_add_u32 s{T}, s{T}, {FL1}\ns_cmp_lg_u32 s{S_AL}, 0\ns_cselect_b32 s{T}, {WS_SIZE}, s{T}\nv_mov_b32 v{PV+6}, s{T}")
        a.I(f"s_mov_b64 exec, 1\nbuffer_store_dword v{PV+7}, v{PV+6}, {srd(SRD_WS)}, 0 offen {SC}\ns_mov_b64 exec, -1")
        vm.issue("sig")
        print("aux: re-layout flag in interval", bar[0] - 1)
        assert bar[0] < LCHK
    def setup2():
        h2_setup(a)
        a.I(f"s_lshl_b32 s{S_ROW}, s{S_AL}, 8\ns_add_u32 s{S_ROW}, s{S_ROW}, s2")
        a.I(f"s_lshl_b32 s{T}, s{S_RB}, 11\ns_add_u32 s{T}, s{T}, {FL1}\ns_sub_u32 s{T+1}, s{S_CG}, s{S_AL}\ns_cmp_lg_u32 s{T+1}, 15\ns_cselect_b32 s{T}, {WS_SIZE}, s{T}")
        a.I(f"s_cmp_lg_u32 s{S_AL}, 0\ns_cselect_b32 s{T+1}, {WS_SIZE}, 0\ns_add_u32 s{T+1}, s{T+1}, {FL0}")
        a.I(f"v_lshlrev_b32 v{PV+1}, 7, v{L}\nv_add_u32 v{PV}, s{T}, v{PV+1}\nv_add_u32 v{PV+1}, s{T+1}, v{PV+1}\nv_mov_b32 v{PV+7}, s{S_TAG}")
    def stat_store():
        a.I(f"v_add_u32 v{PV+4}, {STAT_LDS}, v{V_L16}\nds_read_b128 {q4(76)}, v{PV+4}")
        a.I(f"s_and_b32 s{T}, s2, 1\ns_lshl_b32 s{T}, s{T}, 7\ns_and_b32 s{T+1}, s2, 6\ns_lshl_b32 s{T+1}, s{T+1}, 4\ns_add_u32 s{T}, s{T}, s{T+1}")
        a.I(f"s_lshr_b32 s{T+1}, s2, 3\ns_add_u32 s{T}, s{T}, s{T+1}\ns_lshl_b32 s{T}, s{T}, 7\ns_add_u32 s{T}, s{T}, {STAT_OFF}")
        a.I(f"s_cmp_eq_u32 s{S_AL}, 0\ns_cselect_b32 s{T}, {WS_SIZE}, s{T}\ns_waitcnt lgkmcnt(0)\ns_mov_b64 exec, 15")
        a.I(f"buffer_store_dwordx4 {q4(76)}, v{V_L16}, {srd(SRD_WS)}, s{T} offen {SC}\ns_mov_b64 exec, -1")
        vm.issue("st")
    VG, VBI, SG = 64 + 12, 73, 24
    def bias_loads():
        SGt = [T, T + 1, S_SPIN, 24]
        a.I(f"v_and_b32 v{VBI}, 7, v{L}\nv_bfe_u32 v{t1}, v{L}, 4, 1\nv_lshl_add_u32 v{VBI}, v{t1}, 3, v{VBI}")
        a.I(f"v_bfe_u32 v{t1}, v{L}, 3, 1\nv_lshl_add_u32 v{VBI}, v{t1}, 4, v{VBI}\nv_lshlrev_b32 v{VBI}, 1, v{VBI}")
        a.I(f"s_mov_b32 s{SRD_U}, s{S_B1}\ns_mov_b32 s{SRD_U+1}, s{S_B1+1}\ns_cmp_eq_u32 s{S_TYPE}, 1\ns_cselect_b32 s{SRD_U+2}, 3072, 0\ns_mov_b32 s{SRD_U+3}, 0x20000")
        a.I(f"s_lshl_b32 s{T}, s{S_AL}, 8\ns_add_u32 s{T}, s{T}, s{S_BASE}")
        for k in range(4):
            a.I(f"buffer_load_ushort v{BIAS+k}, v{VBI}, {srd(SRD_U)}, s{T} offen offset:{64*k}")
            vm.issue("w")
    k = 0
    if CSAT >= 0: until(CSAT)
    while k < 10:
        wloads(k, min(10, k + CSPLIT)); k += CSPLIT
        if k >= 10: bias_loads()
        nxt()
    ST(a, "P0")
    setup2()
    stat_store()
    if RLAT >= 0:
        until(RLAT)
        rl_loads()
        nxt(); nxt()
    rl_process()
    nxt()
    fa[0] = bar[0] + 1
    vm.wait(a, "w")
    AC, m0_ = 0, 76
    E = 8
    for it in range(10):
        dst = AC if it == 0 else E
        for i in range(4):
            a.I(f"v_lshlrev_b32 v{dst+2*i}, 16, v{CW+4*it+i}\nv_and_b32 v{dst+2*i+1}, s{S_M16}, v{CW+4*it+i}")
        if it:
            for i in range(8): a.I(f"v_add_f32 v{AC+i}, v{AC+i}, v{E+i}")
        cut()
    for i in range(4): a.I(f"v_permlane32_swap_b32 v{AC+i}, v{AC+i+4}")
    for i in range(4): a.I(f"v_add_f32 v{AC+i}, v{AC+i}, v{AC+i+4}")
    for i in range(2): a.I(f"v_permlane16_swap_b32 v{AC+i}, v{AC+i+2}")
    for i in range(2): a.I(f"v_add_f32 v{AC+i}, v{AC+i}, v{AC+i+2}")
    for m in ("row_ror:8", "row_ror:4"):
        for i in range(2): a.I(f"v_add_f32_dpp v{AC+i}, v{AC+i}, v{AC+i} {m} row_mask:0xf bank_mask:0xf")
    cut()
    a.I(f"v_bfe_u32 v{t0}, v{L}, 2, 1\nv_cmp_eq_u32 vcc, 1, v{t0}\nv_and_b32 v{t1}, 3, v{L}\nv_lshl_add_u32 v{t0}, v{t1}, 3, v{t0}")
    a.I(f"v_cndmask_b32 v{AC}, v{AC}, v{AC+1}, vcc\nv_lshrrev_b32 v{t1}, 4, v{L}\nv_lshl_add_u32 v{t0}, v{t1}, 1, v{t0}\nv_lshlrev_b32 v{t0}, 3, v{t0}")
    a.I(f"v_cvt_pk_bf16_f32 v{t2}, v{AC}, v{AC}\nv_and_b32 v{t2}, s{S_M16}, v{t2}\nv_sub_f32 v{t2}, v{AC}, v{t2}\nv_cvt_pk_bf16_f32 v{t2}, v{AC}, v{t2}")
    a.I(f"s_lshl_b32 s{T}, s{S_L}, 11\ns_lshl_b32 s{T+1}, s{S_AL}, 10\ns_add_u32 s{T}, s{T}, s{T+1}\ns_add_u32 s{T}, s{T}, {CS_OFF}")
    a.I(f"s_cmp_ge_u32 s{S_L}, 54\ns_cselect_b32 s{T}, {WS_SIZE}, s{T}")
    a.I(f"s_lshl_b32 s{T+1}, s{S_P}, 8\ns_add_u32 s{T+1}, s{T+1}, s{T}\nv_mov_b32 v{t3}, s{S_TAG}")
    a.I("s_mov_b32 exec_lo, 0x00ff00ff\ns_mov_b32 exec_hi, 0x00ff00ff")
    a.I(f"buffer_store_dwordx2 {pk(t2)}, v{t0}, {srd(SRD_WS)}, s{T+1} offen {SC}")
    vm.issue("st")
    a.I("s_mov_b64 exec, -1")
    ST(a, "p0done")
    print("aux: phase-0 compute ends in interval", bar[0] - 1)
    nxt()
    VG, SG = 68, T + 12
    while bar[0] <= fa[0]: nxt()
    a.I(f"v_lshrrev_b32 v{t0}, 1, v{VBI}\nv_bfe_u32 v{t1}, v{L}, 3, 1")
    a.I(f"s_add_u32 s{T}, s{S_JA}, 256\ns_mul_i32 s{T}, s{T}, s{S_AL}\ns_add_u32 s{SG}, s{S_BASE}, s{T}")
    a.I(f"s_mul_i32 s{T}, s{S_JB}, s{S_AL}\ns_add_u32 s{SG+1}, s{SG}, 64\ns_add_u32 s{SG+1}, s{SG+1}, s{T}\ns_add_u32 s{SG+2}, s{SG+1}, 64")
    a.I(f"s_add_u32 s{SG+3}, s{SG+2}, 64\ns_add_u32 s{SG+3}, s{SG+3}, s{S_JA}")
    a.I(f"s_cmp_eq_u32 s{S_AL}, 0\ns_cselect_b32 s{T}, s{S_JA}, 0\ns_lshr_b32 s{T}, s{T}, 1\nv_mul_lo_u32 v{t1}, v{t1}, s{T}")
    a.I(f"v_lshrrev_b32 v{t2}, 5, v{L}\nv_lshlrev_b32 v{t2}, 9, v{t2}\nv_add_u32 v{t2}, {CS_OFF}, v{t2}")
    for k in range(4):
        a.I(f"s_lshr_b32 s{T}, s{SG+k}, 1\ns_add_u32 s{T}, s{T}, s{S_CSB}\ns_min_u32 s{T}, s{T}, {3456-32}\nv_add_u32 v{VG+k}, s{T}, v{t0}")
        if k == 2: a.I(f"v_add_u32 v{VG+k}, v{VG+k}, v{t1}")
        a.I(f"v_lshrrev_b32 v{t3}, 5, v{VG+k}\nv_and_b32 v{VG+k}, 31, v{VG+k}\nv_lshl_add_u32 v{VG+k}, v{VG+k}, 3, v{t2}\nv_lshl_add_u32 v{VG+k}, v{t3}, 10, v{VG+k}")
    a.I(f"s_lshl_b32 s{T}, s{S_RB}, 11\ns_add_u32 s{T}, s{T}, {STAT_OFF}\nv_bfe_u32 v{t3}, v{L}, 3, 1\nv_lshrrev_b32 v{t1}, 4, v{L}\nv_lshl_add_u32 v{t3}, v{t1}, 2, v{t3}")
    a.I(f"v_and_b32 v{t1}, 7, v{L}\nv_lshlrev_b32 v{t1}, 3, v{t1}\nv_lshl_add_u32 v{t1}, v{t3}, 7, v{t1}\nv_add_u32 v{t1}, s{T}, v{t1}")
    a.I(f"s_cmp_eq_u32 s{S_AL}, 0\ns_cselect_b64 vcc, -1, 0\nv_cndmask_b32 v{VG+3}, v{t1}, v{VG+3}, vcc")
    a.I(f"s_lshl_b32 s{T}, s{S_AL}, 12\ns_add_u32 s{T}, s{T}, {EXT_LDS}\nv_add_u32 v{t0}, s{T}, v{V_L16}")
    def gload():
        for k in range(4):
            a.I(f"buffer_load_dwordx2 {pk(X+4*k)}, v{VG+k}, {srd(SRD_WS)}, 0 offen {SC}")
            a.I(f"buffer_load_dwordx2 {pk(X+4*k+2)}, v{VG+k}, {srd(SRD_WS)}, 0 offen offset:256 {SC}")
    gtags = [X + 4 * k + o for k in range(4) for o in (1, 3)]
    until(ECHK)
    gload(); vm.issue("ext")
    until(ECHK + 1)
    ST(a, "preext")
    vm.wait(a, "ext")
    a.I(f"s_mov_b32 s{S_SPIN}, {SPIN}")
    a.L("L_ext_retry")
    tag_test(a, gtags)
    a.I(f"s_cbranch_scc0 L_ext_ok\ns_sleep 8")
    gload()
    a.I(f"s_waitcnt vmcnt(0)\ns_sub_u32 s{S_SPIN}, s{S_SPIN}, 1\ns_cmp_lg_u32 s{S_SPIN}, 0\ns_cbranch_scc1 L_ext_retry")
    a.L("L_ext_ok")
    nxt()
    for k in range(4):
        a.I(f"v_mov_b32 v{X+4*k+1}, v{X+4*k+2}\nv_mov_b32 v{X+4*k+2}, v{BIAS+k}\nv_mov_b32 v{X+4*k+3}, 0")
        a.I(f"ds_write_b128 v{t0}, {q4(X+4*k)} offset:{1024*k}")
    a.I("s_waitcnt lgkmcnt(0)")
    ST(a, "ext")
    assert bar[0] <= 19
    until(19)
    print("aux: background jobs left after the ring:", len(bg))
    if APRIO: a.I("s_setprio 0")
    h_rest(a, bg)
    ST(a, "ringend")
    return ST
BPF = 0
BR, AR = 80, 200

def h2_setup(a):
    g2_common(a)
    if ROT2:
        if G2MAP == 0:
            a.I(f"s_and_b32 s{T}, s{S_RB2}, 3\ns_mul_i32 s{T}, s{T}, 3\ns_mul_i32 s{T+1}, s{S_CG2}, 3\ns_lshr_b32 s{T+1}, s{T+1}, 1\ns_add_u32 s{T}, s{T}, s{T+1}")
        elif ROT2 == 2:
            a.I(f"s_and_b32 s{T}, s{S_CG2}, 1\ns_mul_i32 s{T}, s{T}, 6\ns_and_b32 s{T+1}, s{S_RB2}, 7\ns_mul_i32 s{T+1}, s{T+1}, 3\ns_lshr_b32 s{T+1}, s{T+1}, 1\ns_add_u32 s{T}, s{T}, s{T+1}")
        else:
            a.I(f"s_and_b32 s{T}, s{S_CG2}, 3\ns_mul_i32 s{T}, s{T}, 3\ns_and_b32 s{T+1}, s{S_RB2}, 7\ns_mul_i32 s{T+1}, s{T+1}, 3\ns_lshr_b32 s{T+1}, s{T+1}, 1\ns_add_u32 s{T}, s{T}, s{T+1}")
        a.I(f"s_cmp_ge_u32 s{T}, 12\ns_cselect_b32 s{T+1}, 12, 0\ns_sub_u32 s{T}, s{T}, s{T+1}")
    else: a.I(f"s_mov_b32 s{T}, 0")
    a.I(f"s_mul_i32 s{T+1}, s{S_I}, 12")
    for j in range(12):
        a.I(f"s_add_u32 s{S_KK+j}, s{T}, s{T+1}\ns_lshl_b32 s{S_KK+j}, s{S_KK+j}, 10")
        if j < 11: a.I(f"s_add_u32 s{T}, s{T}, 1\ns_cmp_eq_u32 s{T}, 12\ns_cselect_b32 s{T}, 0, s{T}")
    a.I(f"s_mul_i32 s{S_BB}, s{S_CG2}, {68*5*1024}\ns_add_u32 s{S_BB}, s{S_BB}, {B2_OFF}")

def bg_jobs(a, vm):
    def ld(j, ct):
        def f():
            a.I(f"s_mul_i32 s{T}, s{S_KK+j}, 5\ns_add_u32 s{T}, s{T}, s{S_BB}")
            if ct == 4: a.I(f"s_add_u32 s{T}, s{T}, 4096")
            a.I(f"buffer_load_dwordx4 {q4(BR+20*j+4*ct)}, v{V_L16}, {srd(SRD_WS)}, s{T} offen offset:{(ct&3)*1024} {SC}")
            vm.issue("bg")
        return f
    return [ld(j, ct) for j in range(6) for ct in range(5)]

def h_rest(a, bg):
    n = 0
    while bg:
        if n == N1: lds_wait_ge(a, 7, 4, 248)
        bg.pop(0)(); n += 1
        if THR: a.I(f"s_waitcnt vmcnt({THR})")
    if n == N1: lds_wait_ge(a, 7, 4, 248)

def bload(a, vm, j, regs, tag, thr):
    a.I(f"s_mul_i32 s{T}, s{S_KK+j}, 5\ns_add_u32 s{T}, s{T}, s{S_BB}\ns_add_u32 s{T+1}, s{T}, 4096")
    for ct in range(5):
        a.I(f"buffer_load_dwordx4 {q4(regs[ct])}, v{V_L16}, {srd(SRD_WS)}, s{T + (ct >> 2)} offen offset:{(ct&3)*1024} {SC}")
        if vm: vm.issue(tag)
        if thr: a.I(f"s_waitcnt vmcnt({thr})")


def g2_common(a):
    for sg in range(4):
        a.I(f"s_add_u32 s{T}, s{S_I}, {sg}")
        if ROT2: a.I(f"s_add_u32 s{T}, s{T}, s{S_CG2}")
        a.I(f"s_and_b32 s{T}, s{T}, 3\ns_lshl_b32 s{T+1}, s{S_RB2}, 2\ns_add_u32 s{T}, s{T}, s{T+1}")
        a.I(f"s_mul_i32 s{S_A+sg}, s{T}, {68*1024}")
        if sg == 0: a.I(f"s_mul_i32 s{S_OUTS}, s{T}, {16*1280}\ns_mul_i32 s{S_B2S}, s{S_CG2}, 160\ns_add_u32 s{S_OUTS}, s{S_OUTS}, s{S_B2S}")
S_OUTS, S_B2S, S_BB = 98, 99, 100

def hzone(a, sidx, dst):
    a.I(f"s_sub_u32 s{dst}, s{sidx}, 1\ns_mul_i32 s{dst}, s{dst}, {HZS}\ns_add_u32 s{dst}, s{dst}, {HZ1}\ns_cmp_eq_u32 s{sidx}, 0\ns_cselect_b32 s{dst}, 0, s{dst}")

def out_addr(a, VO, VB, t0):
    a.I(f"v_and_b32 v{t0}, 15, v{V_LANE}\nv_mul_u32_u24 v{t0}, 1280, v{t0}\nv_lshrrev_b32 v{VB}, 4, v{V_LANE}\nv_lshlrev_b32 v{VB}, 3, v{VB}")
    a.I(f"v_add_u32 v{VO}, v{t0}, v{VB}")

def res_issue(a, vm, cts, RES, VO, VB):
    mk_srd(a, SRD_T, S_B2, 1280)
    mk_srd(a, SRD_U, S_OUT, 2048 * 1280)
    for k, ct in enumerate(cts):
        a.I(f"buffer_load_dwordx2 {pk(RES+4*k)}, v{VO}, {srd(SRD_X)}, s{S_OUTS} offen offset:{ct*32}")
        a.I(f"buffer_load_dwordx2 {pk(RES+4*k+2)}, v{VB}, {srd(SRD_T)}, s{S_B2S} offen offset:{ct*32}")
        vm.issue("R"); vm.issue("R")

def res_unpack(cts, RES, OUT):
    o = []
    for k, ct in enumerate(cts):
        for src, d in ((RES + 4 * k, OUT + 8 * k), (RES + 4 * k + 2, OUT + 8 * k + 4)):
            for i in range(2):
                o += [f"v_lshlrev_b32 v{d+2*i}, 16, v{src+i}", f"v_and_b32 v{d+2*i+1}, s{S_M16}, v{src+i}"]
        for i in range(4): o.append(f"v_add_f32 v{OUT+8*k+i}, v{OUT+8*k+i}, v{OUT+8*k+4+i}")
    return o

def red_addrs(a, VM, VH, VX):
    for sg in range(4):
        a.I(f"s_sub_u32 s{T+2}, s{S_I}, {sg}\ns_and_b32 s{T+2}, s{T+2}, 3")
        if sg:
            a.I(f"s_mul_i32 s{T}, s{T+2}, {MZS}\ns_add_u32 s{T}, s{T}, {MZ}\nv_add_u32 v{VM+sg}, s{T}, v{V_L16}")
        hzone(a, T + 2, T)
        a.I(f"v_add_u32 v{VH+sg}, s{T}, v{V_L16}")
    a.I(f"s_lshl_b32 s{T}, s{S_I}, 11\ns_add_u32 s{T}, s{T}, {EXT_LDS}\nv_add_u32 v{VX}, s{T}, v{V_L16}")

def final_sum(a, role, cts, OWN, BUF, VM, VH, VX, VO):
    lg = Q("lgkmcnt", 15)
    srcs = []
    for sg in range(4):
        if sg: srcs.append(lambda ct, sg=sg: (VM + sg, ((sg - 1) * 5 + ct) * 1024))
        elif role == 1: srcs.append(lambda ct: (VX, (ct - 3) * 1024))
        if sg or role == 0: srcs.append(lambda ct, sg=sg: (VH + sg, (sg * 5 + ct) * 1024))
    n = len(cts)
    def rd(j):
        for k, ct in enumerate(cts):
            v, off = srcs[j](ct)
            a.I(f"ds_read_b128 {q4(BUF+(j*n+k)*4)}, v{v} offset:{off}")
            lg.issue(j)
    ahead = 15 // n
    for j in range(min(ahead, 7)): rd(j)
    for j in range(7):
        lg.wait(a, j)
        if j + ahead < 7: rd(j + ahead)
        for k, ct in enumerate(cts):
            for i in (0, 2): a.I(f"v_pk_add_f32 {pk(OWN+4*ct+i)}, {pk(OWN+4*ct+i)}, {pk(BUF+(j*n+k)*4+i)}")
    for ct in cts:
        d = OWN + 4 * ct
        a.I(f"v_cvt_pk_bf16_f32 v{d}, v{d}, v{d+1}\nv_cvt_pk_bf16_f32 v{d+1}, v{d+2}, v{d+3}")
        a.I(f"buffer_store_dwordx2 {pk(d)}, v{VO}, {srd(SRD_U)}, s{S_OUTS} offen offset:{ct*32}")

def h2(a, STs):
    class Both:
        def __call__(self, a_, name, real=False):
            if not STAMPS: return
            n = max(s.n for s in STs)
            for s in STs:
                while s.n < n: s.names.append("-"); s.n += 1
            a_.I(f"{'s_memrealtime' if real else 's_memtime'} s[92:93]\ns_waitcnt lgkmcnt(0)\nv_writelane_b32 v{V_STAMP}, s92, {n}")
            for s in STs: s.names.append(name); s.n += 1
    ST = Both()
    vm = Q("vmcnt", 63); lg = Q("lgkmcnt", 15)
    ACC = 0
    VT = 248
    a.L("L_H2")
    a.C("==== gemm2, FFN part (waves 4..7) ====")
    for j in range(6, 10): bload(a, vm, j, [20 * (j - 6) + 4 * ct for ct in range(5)], ("bl", j), THR)
    ST(a, "bissued")
    lds_wait_ge(a, 0, 4, VT)
    hzone(a, S_I, T)
    VBL = VT + 4
    a.I(f"v_add_u32 v{VBL}, s{T}, v{V_L16}")
    for j in range(6, 10):
        vm.wait(a, ("bl", j))
        for ct in range(5):
            a.I(f"ds_write_b128 v{VBL}, {q4(20*(j-6)+4*ct)} offset:{(5*(j-6)+ct)*1024}")
        a.I("s_waitcnt lgkmcnt(5)")
    a.I("s_waitcnt lgkmcnt(0)")
    ST(a, "bdone")
    if HPRIO: a.I(f"s_setprio {HPRIO}")
    a.I(f"s_cmp_lg_u32 s{S_WAVE}, 7\ns_cbranch_scc1 L_h_nopoll\ns_setprio 3")
    a.I(f"s_lshl_b32 s{T}, s{S_RB2}, 3\ns_add_u32 s{T}, s{T}, s{S_CG2}\ns_lshl_b32 s{T}, s{T}, 7\ns_add_u32 s{T}, s{T}, {C2F}")
    cpoll(a, T, 1, 256, 7, VT, PSLEEP, SPOLL2)
    lds_add(a, 3, VT)
    a.L("L_h_nopoll")
    lds_wait_ge(a, 3, 1, VT)
    a.I(f"s_setprio {HPRIO}")
    ST(a, "S2F")
    def aload(j):
        for sg in range(4):
            a.I(f"s_add_u32 s{T}, s{S_A+sg}, s{S_KK+j}")
            a.I(f"buffer_load_dwordx4 {q4(AR + (j%3)*16 + 4*sg)}, v{V_L16}, {srd(SRD_WS)}, s{T} offen {SC}")
            vm.issue(("A", j))
    def bslot(j): return BR + 20 * (j if j < 6 else (j - 10 if j >= 10 else j - 4))
    for j in range(3): aload(j)
    for j in range(12):
        if 6 <= j + 1 <= 9:
            for ct in range(5):
                a.I(f"ds_read_b128 {q4(bslot(j+1)+4*ct)}, v{VBL} offset:{(5*(j+1-6)+ct)*1024}")
                lg.issue(j + 1)
        vm.wait(a, ("A", j))
        lg.wait(a, j)
        if j in (0, 3, 6, 9): ST(a, f"A{j}")
        fill = []
        if j == 11:
            vm.wait(a, "R")
            fill = res_unpack([3, 4], RES, RU)
        sgs = (1, 2, 3, 0) if j == 11 else range(4)
        wq = []
        for k, sg in enumerate(sgs):
            for ct in range(5):
                d = ACC + (sg * 5 + ct) * 4
                cin = "0" if j == 0 else q4(d)
                a.I(f"v_mfma_f32_16x16x32_bf16 {q4(d)}, {q4(bslot(j)+4*ct)}, {q4(AR+(j%3)*16+4*sg)}, {cin}")
                if j == 11:
                    if not (sg == 0 and ct >= 3): wq.append(f"ds_write_b128 v{VBL}, {q4(d)} offset:{(sg*5+ct)*1024}")
                    if fill: a.I(fill.pop(0))
                    if k * 5 + ct >= 6: a.I(wq.pop(0))
        if j + 3 < 12: aload(j + 3)
        if j in (3, 4): bload(a, vm, j + 7, [bslot(j + 7) + 4 * ct for ct in range(5)], "late", None)
        if j == 9:
            RES, RU = BR + 40, BR + 60
            VM_, VH_, VX_, VO_, VB_ = AR, AR + 4, AR + 8, AR + 9, AR + 10
            out_addr(a, VO_, VB_, VT)
            res_issue(a, vm, [3, 4], RES, VO_, VB_)
            red_addrs(a, VM_, VH_, VX_)
    a.I("s_waitcnt lgkmcnt(8)")
    for x in wq + fill: a.I(x)
    for k, ct in enumerate([3, 4]):
        for i in (0, 2): a.I(f"v_pk_add_f32 {pk(ACC+4*ct+i)}, {pk(ACC+4*ct+i)}, {pk(RU+8*k+i)}")
    ST(a, "ffnend")
    a.I("s_waitcnt lgkmcnt(0)\ns_barrier")
    ST(a, "bar")
    final_sum(a, 1, [3, 4], ACC, BR, VM_, VH_, VX_, VO_)
    if STAMPS: a.I("s_waitcnt vmcnt(0)")
    ST(a, "end")
    ST(a, "rt1", True)
    stamp_dump(a, VT)
    a.I("s_endpgm")

K0C = -2.0 * math.sqrt(2.0 / math.pi) * math.log2(math.e)
K1C = K0C * 0.044715
ACC1, AF, BF = 0, 112, 120
V_E = 144
V_R, V_R2, V_SD, V_C0, V_C1, V_EPS = 160, 162, 164, 166, 168, 170
V_TRA, V_VA, V_HQO, V_KVW = 240, 242, 246, 247

def u_gelu(r0, Tm):
    P = range(0, 8, 2)
    pre = [f"v_pk_mul_f32 {pk(Tm+i)}, {pk(r0+i)}, {pk(r0+i)}" for i in P]
    pre += [f"v_pk_fma_f32 {pk(Tm+i)}, {pk(Tm+i)}, {pk(V_C1)}, {pk(V_C0)} op_sel_hi:[1,0,0]" for i in P]
    pre += [f"v_pk_mul_f32 {pk(Tm+i)}, {pk(Tm+i)}, {pk(r0+i)}" for i in P]
    mid = [f"v_exp_f32_e64 v{Tm+i}, v{Tm+i}" for i in range(8)]
    mid += [f"v_pk_fma_f32 {pk(Tm+i)}, {pk(Tm+i)}, {pk(V_SD)}, {pk(V_SD)} op_sel_hi:[1,0,0]" for i in P]
    mid += [f"v_rcp_f32_e64 v{Tm+i}, v{Tm+i}" for i in range(8)]
    post = [f"v_pk_mul_f32 {pk(Tm+i)}, {pk(Tm+i)}, {pk(r0+i)}" for i in P]
    post += [f"v_cvt_pk_bf16_f32 v{r0+i//2}, v{Tm+i}, v{Tm+i+1}" for i in P]
    return pre, mid, post
def u_phi(r0, Tm, n=8):
    P = range(0, n, 2); R = range(n, 8, 2)
    pre = [f"v_pk_mul_f32 {pk(Tm+i)}, {pk(r0+i)}, {pk(V_R2)} op_sel_hi:[1,0]" for i in P]
    pre += [f"v_pk_fma_f32 {pk(r0+i)}, {pk(r0+i)}, {pk(V_R)}, {pk(V_EPS)} op_sel_hi:[1,0,0]" for i in P]
    pre += [f"v_pk_mul_f32 {pk(Tm+i)}, {pk(r0+i)}, {pk(V_R)} op_sel_hi:[1,0]" for i in R]
    pre += [f"v_max_f32_e64 v{r0+i}, v{r0+i}, v{V_EPS}" for i in range(n)]
    mid = [f"v_exp_f32_e64 v{Tm+i}, v{Tm+i} clamp" for i in range(n)]
    post = [f"v_pk_add_f32 {pk(Tm+i)}, {pk(Tm+i)}, {pk(r0+i)}" for i in P]
    post += [f"v_cvt_pk_bf16_f32 v{r0+i//2}, v{Tm+i}, v{Tm+i+1}" for i in range(0, 8, 2)]
    return pre, mid, post
S_HQ = T + 10
def hq_store(t, u):
    r0 = ACC1 + 16 * t + 8 * u
    o = [f"s_add_u32 s{T+1}, s{S_HQ}, {0x10000 + t*1024}"] if u == 0 else []
    if NOST: return o + ["s_nop 0"]
    return o + [f"buffer_store_dwordx4 {q4(r0)}, v{V_HQO}, {srd(SRD_WS)}, s{T+1} offen offset:{u*512} {SC}"]
def ep_pipe(a, units, dly=0):
    n = len(units)
    st = [units[i][0](V_E + 8 * (i & 1)) for i in range(n)]
    a.raw(".p2align 3")
    for x in st[0][0]: a.I(x)
    pend = []
    for i in range(n + 1):
        mid = st[i][1] if i < n else []
        plain = []
        if i > 0:
            plain += st[i - 1][2]
            pend += units[i - 1][1]
            if i - 1 >= dly or i == n:
                k = len(pend) if (i == n or len(pend) <= 4) else 4
                if pend[k - 1].startswith("s_add"): k += 1
                plain += pend[:k]; pend = pend[k:]
        if i + 1 < n: plain += st[i + 1][0]
        tot = len(mid) + len(plain); mi = pi = 0
        while mi < len(mid) or pi < len(plain):
            if pi >= len(plain) or (mi < len(mid) and mi * len(plain) <= pi * len(mid)):
                a.I(mid[mi]); mi += 1
            else:
                a.I(plain[pi]); pi += 1

def mwave(a):
    ST = Stamp("M")
    L = V_LANE
    t0, t1, t2, t3 = V_E, V_E + 1, V_E + 2, V_E + 3
    a.L("L_M")
    a.C("==== M waves: phase 0 (re-layout of w2 / wo, zeroing) ====")
    ST(a, "rt0", True); ST(a, "start")
    ROW = T + 2
    X, U = 0, 12
    a.I(f"s_and_b32 s{T}, s2, 1\ns_lshl_b32 s{ROW}, s{T}, 10\ns_and_b32 s{T}, s2, 6\ns_lshl_b32 s{T}, s{T}, 7\ns_add_u32 s{ROW}, s{ROW}, s{T}")
    a.I(f"s_and_b32 s{T}, s2, 0xf8\ns_add_u32 s{ROW}, s{ROW}, s{T}\ns_lshl_b32 s{T}, s{S_WAVE}, 1\ns_add_u32 s{ROW}, s{ROW}, s{T}")
    a.I(f"v_lshrrev_b32 v{t0}, 5, v{L}\nv_and_b32 v{t1}, 31, v{L}\nv_mul_u32_u24 v{t0}, 1280, v{t0}")
    a.I(f"v_lshl_add_u32 v{t2}, v{t1}, 4, v{t0}\nv_lshl_add_u32 v{t3}, v{t1}, 3, v{t0}\ns_mul_i32 s{T}, s{ROW}, 1280")
    base_srds(a)
    a.I(f"buffer_load_dwordx4 {q4(X)}, v{t2}, {srd(SRD_X)}, s{T} offen")
    a.I(f"buffer_load_dwordx4 {q4(X+4)}, v{t2}, {srd(SRD_X)}, s{T} offen offset:512")
    a.I(f"buffer_load_dwordx2 {pk(X+8)}, v{t3}, {srd(SRD_X)}, s{T} offen offset:1024")
    a.C("==== gemm1 main loop ====")
    a.I(f"v_lshrrev_b32 v{t0}, 5, v{L}\nv_bfe_u32 v{t1}, v{L}, 2, 2\nv_lshl_add_u32 v{t0}, v{t0}, 3, v{t1}\nv_mul_u32_u24 v{t0}, 448, v{t0}")
    a.I(f"v_and_b32 v{t1}, 1, v{L}\nv_lshl_add_u32 v{t0}, v{t1}, 3, v{t0}\nv_bfe_u32 v{t1}, v{L}, 1, 1\nv_lshl_add_u32 v{t0}, v{t1}, 5, v{t0}")
    a.I(f"v_bfe_u32 v{t1}, v{L}, 4, 1\nv_lshl_add_u32 v{V_TRA}, v{t1}, 4, v{t0}\nv_add_u32 v{V_TRA+1}, {3*WSLOT}, v{V_TRA}")
    a.I(f"v_and_b32 v{t0}, 31, v{L}\nv_bfe_u32 v{t1}, v{L}, 1, 3\nv_lshrrev_b32 v{t2}, 5, v{L}\nv_xor_b32 v{t1}, v{t1}, v{t2}")
    a.I(f"v_lshlrev_b32 v{t0}, 7, v{t0}\nv_lshl_add_u32 v{t0}, v{t1}, 4, v{t0}\ns_lshl_b32 s{T}, s{S_WAVE}, 12\ns_add_u32 s{T}, s{T}, {XRING}")
    a.I(f"v_add_u32 v{V_VA}, s{T}, v{t0}")
    for ks in range(1, 4): a.I(f"v_xor_b32 v{V_VA+ks}, {32*ks}, v{V_VA}")
    a.I("s_barrier")
    def red32(v, tmp):
        for m in ("quad_perm:[1,0,3,2]", "quad_perm:[2,3,0,1]", "row_half_mirror", "row_mirror"):
            a.I(f"v_add_f32_dpp v{v}, v{v}, v{v} {m} row_mask:0xf bank_mask:0xf")
        a.I(f"v_mov_b32 v{tmp}, v{v}\nv_permlane16_swap_b32 v{v}, v{tmp}\nv_add_f32 v{v}, v{v}, v{tmp}")
    tag_ready(a)
    a.I("s_waitcnt vmcnt(0)")
    ST(a, "xin")
    for i in range(10):
        a.I(f"v_lshlrev_b32 v{U+2*i}, 16, v{X+i}\nv_and_b32 v{U+2*i+1}, s{S_M16}, v{X+i}")
    a.I(f"v_pk_add_f32 {pk(t0)}, {pk(U)}, {pk(U+2)}\nv_pk_add_f32 {pk(t2)}, {pk(U+4)}, {pk(U+6)}")
    for i in range(4, 10):
        r = t0 if i % 2 == 0 else t2
        a.I(f"v_pk_add_f32 {pk(r)}, {pk(r)}, {pk(U+2*i)}")
    a.I(f"v_pk_add_f32 {pk(t0)}, {pk(t0)}, {pk(t2)}\nv_add_f32 v{t0}, v{t0}, v{t1}")
    red32(t0, t1)
    a.I(f"v_mul_f32 v{t0}, {hx(f32(-1.0/640))}, v{t0}")
    for i in range(10):
        a.I(f"v_pk_add_f32 {pk(U+2*i)}, {pk(U+2*i)}, {pk(t0)} op_sel_hi:[1,0]")
    a.I(f"v_pk_mul_f32 {pk(t2)}, {pk(U)}, {pk(U)}\nv_pk_mul_f32 {pk(X)}, {pk(U+2)}, {pk(U+2)}")
    for i in range(2, 10):
        r = t2 if i % 2 == 0 else X
        a.I(f"v_pk_fma_f32 {pk(r)}, {pk(U+2*i)}, {pk(U+2*i)}, {pk(r)}")
    a.I(f"v_pk_add_f32 {pk(t2)}, {pk(t2)}, {pk(X)}\nv_add_f32 v{t2}, v{t2}, v{t3}")
    red32(t2, t3)
    a.I(f"v_mul_f32 v{t2}, {hx(f32(1.0/640))}, v{t2}")
    a.I(f"v_cvt_pk_bf16_f32 v{t2}, v{t2}, v{t2}\nv_and_b32 v{t2}, s{S_M16}, v{t2}")
    a.I(f"v_add_f32 v{t2}, {hx(f32(1e-5))}, v{t2}")
    a.I(f"v_cvt_pk_bf16_f32 v{t2}, v{t2}, v{t2}\nv_and_b32 v{t2}, s{S_M16}, v{t2}")
    a.I(f"v_sqrt_f32 v{t2}, v{t2}")
    a.I(f"v_cvt_pk_bf16_f32 v{V_E+4}, v{t0}, v{t2}")
    a.I(f"v_mov_b32 v{V_E+5}, s{S_TAG}")
    a.I(f"s_lshl_b32 s{T}, s{S_WAVE}, 4\ns_add_u32 s{T}, s{T}, {STAT_LDS}\nv_lshrrev_b32 v{t1}, 2, v{L}\nv_add_u32 v{t1}, s{T}, v{t1}")
    a.I("s_mov_b32 exec_lo, 1\ns_mov_b32 exec_hi, 1")
    a.I(f"ds_write_b64 v{t1}, {pk(V_E+4)}")
    a.I("s_mov_b64 exec, -1\ns_waitcnt lgkmcnt(0)")
    if MPRIO: a.I(f"s_setprio {MPRIO}")
    ST(a, "p0done")
    lg = Q("lgkmcnt", 15)
    NM = 280
    def reads(m):
        h, r = divmod(m, 14); ks2, t = divmod(r, 7); g = m // 7
        if t == 0:
            c, ks = divmod(g, 4)
            a.I(f"ds_read_b128 {q4(AF+4*(g&1))}, v{V_VA+ks} offset:{(c%3)*16384}")
            lg.issue(m)
        slot = h % 6
        off = (slot % 3) * WSLOT + ks2 * 7168 + t * 64
        b = BF + (m % NB) * 4
        a.I(f"ds_read_b64_tr_b16 {pk(b)}, v{V_TRA + slot//3} offset:{off}")
        a.I(f"ds_read_b64_tr_b16 {pk(b+2)}, v{V_TRA + slot//3} offset:{off+1792}")
        lg.issue(m); lg.issue(m)
    def P(h):
        a.I("s_barrier")
        if h % 2 == 0: ST(a, f"P{h}")
    P(0)
    for m in range(PD): reads(m)
    for m in range(NM):
        t = m % 7; g = m // 7
        lg.wait(a, m)
        d = ACC1 + 16 * t
        cin = "0" if m < 7 else f"v[{d}:{d+15}]"
        a.I(f"v_mfma_f32_32x32x16_bf16 v[{d}:{d+15}], {q4(BF+(m%NB)*4)}, {q4(AF+4*(g&1))}, {cin}")
        if m + PD < NM:
            if (m + PD) % 14 == 0: P((m + PD) // 14)
            reads(m + PD)
        elif m + PD == NM:
            a.I(f"v_and_b32 v{t0}, 31, v{L}\ns_lshl_b32 s{T}, s{S_WAVE}, 8\ns_add_u32 s{T}, s{T}, {EXT_LDS+7168}")
            a.I(f"v_lshrrev_b32 v{t1}, 4, v{t0}\nv_and_b32 v{t0}, 15, v{t0}\nv_lshl_add_u32 v{t0}, v{t0}, 4, s{T}\nv_lshl_add_u32 v{t0}, v{t1}, 2, v{t0}\nv_add_u32 v{t1}, {EXT_LDS}, v{V_L16}")
            a.I(f"ds_read_b32 v{t2}, v{t0}"); lg.issue("st")
        elif m + PD == NM + 1:
            for tt in (5, 6, 0, 1, 2, 3, 4):
                a.I(f"ds_read_b128 {q4(172+4*tt)}, v{t1} offset:{tt*1024}"); lg.issue(("e", tt))
    lds_add(a, 0, V_E + 4)
    lg.issue("add")
    ST(a, "mainend")
    XE = 200
    lg.wait(a, "st")
    a.I(f"v_cmp_gt_u32 vcc, 32, v{L}")
    a.I(f"v_and_b32 v{XE}, 0xffff, v{t2}\nv_lshl_or_b32 v{XE}, v{XE}, 16, v{XE}\nv_lshrrev_b32 v{XE+2}, 16, v{t2}")
    a.I(f"v_mov_b32 v{XE+1}, v{XE}\nv_cndmask_b32 v{XE+2}, 0, v{XE+2}, vcc\nv_mov_b32 v{XE+3}, 0")
    a.I(f"v_and_b32 v{V_SD}, s{S_M16}, v{t2}\nv_rcp_f32 v{V_R}, v{V_SD}")
    for t in (5, 6, 0, 1, 2, 3, 4):
        d = ACC1 + 16 * t
        lg.wait(a, ("e", t))
        a.I(f"v_mfma_f32_32x32x16_bf16 v[{d}:{d+15}], {q4(172+4*t)}, {q4(XE)}, v[{d}:{d+15}]")
        if t == 0:
            a.I(f"v_mul_f32 v{V_R2}, {hx(f32(math.log2(math.e)))}, v{V_R}\nv_mul_f32 v{V_C0}, {hx(f32(K0C))}, v{V_R}")
            a.I(f"v_mul_f32 v{V_C1}, v{V_R}, v{V_R}\nv_mul_f32 v{V_C1}, v{V_C1}, v{V_R}")
        if t == 1:
            a.I(f"v_mul_f32 v{V_C1}, {hx(f32(K1C))}, v{V_C1}\nv_mov_b32 v{V_EPS}, {hx(f32(1e-6))}")
            a.I(f"v_bfe_u32 v{t0}, v{L}, 4, 1\nv_mul_u32_u24 v{t0}, {68*1024}, v{t0}")
        if t == 2:
            a.I(f"v_and_b32 v{t1}, 15, v{L}\nv_lshl_add_u32 v{t0}, v{t1}, 4, v{t0}")
            a.I(f"v_lshrrev_b32 v{t1}, 5, v{L}\nv_lshl_add_u32 v{V_HQO}, v{t1}, 8, v{t0}")
    a.I(f"s_lshl_b32 s{T}, s{S_RB}, 2\ns_add_u32 s{T}, s{T}, s{S_WAVE}\ns_mul_i32 s{T}, s{T}, {2*68}")
    a.I(f"s_add_u32 s{T}, s{T}, s{S_KS0}\ns_lshl_b32 s{S_HQ}, s{T}, 10\ns_sub_u32 s{S_HQ}, s{S_HQ}, 0x10000")
    ST(a, "ext")
    SIG, SIGX = T + 11, T + 12
    a.I(f"s_lshl_b32 s{SIG}, s{S_RB}, 11\ns_lshl_b32 s{T}, s{S_CG}, 7\ns_add_u32 s{SIG}, s{SIG}, s{T}\ns_add_u32 s{SIG}, s{SIG}, {FL2}\ns_mov_b32 s{SIGX}, 1")
    def tile_units(t, fn):
        return [((lambda Tm, r0=ACC1+16*t+8*u: fn(r0, Tm)), hq_store(t, u)) for u in range(2)]
    a.I(f"s_cmp_eq_u32 s{S_TYPE}, 0\ns_cbranch_scc1 L_ep_kvq\ns_cmp_eq_u32 s{S_TYPE}, 2\ns_cbranch_scc1 L_ep_qx")
    a.I(f"s_cmp_eq_u32 s{S_CG}, 14\ns_cselect_b32 s{T+2}, {WS_SIZE}, s{S_HQ}")
    un = []
    for t in (5, 6, 0, 1, 2, 3, 4):
        uu = tile_units(t, u_gelu)
        if t == 6: uu = [(f, [x.replace(f"s{S_HQ},", f"s{T+2},") for x in tl]) for f, tl in uu]
        un += uu
    ep_pipe(a, un, DLY)
    a.I("s_branch L_ep_done")
    a.L("L_ep_qx")
    a.I(f"s_nop 4")
    ep_pipe(a, [x for t in range(4) for x in tile_units(t, u_phi)])
    a.I("s_branch L_ep_done")
    a.L("L_ep_kvq")
    a.I(f"s_mov_b32 s{SIGX}, 2")
    a.I(f"v_and_b32 v{t0}, 31, v{L}\ns_lshl_b32 s{T}, s{S_WAVE}, 5\nv_add_u32 v{t0}, s{T}, v{t0}")
    a.I(f"v_mul_u32_u24 v{t0}, {KV_RS}, v{t0}\nv_lshrrev_b32 v{t1}, 5, v{L}\nv_lshl_add_u32 v{V_KVW}, v{t1}, 3, v{t0}\nv_add_u32 v{V_KVW}, {KVIMG}, v{V_KVW}")
    a.I(f"v_mov_b32 v{XE}, 0x3f803f80\nv_mov_b32 v{XE+1}, 0x3f803f80")
    a.I(f"ds_write_b64 v{V_KVW}, {pk(XE)} offset:320")
    un = [x for t in (5, 6) for x in tile_units(t, u_phi)] if QFIRST else []
    if not QFIRST: a.I(f"s_mov_b32 s{SIGX}, 3")
    for t in range(5):
        for u in range(2):
            r0 = ACC1 + 16 * t + 8 * u
            o = 8 * t + 2 * u
            n = 8 if t < 2 else (4 if t == 2 else 0)
            un.append(((lambda Tm, r0=r0, n=n: u_phi(r0, Tm, n)), [f"ds_write2_b64 v{V_KVW}, {pk(r0)}, {pk(r0+2)} offset0:{o} offset1:{o+4}"]))
    ep_pipe(a, un)
    ST(a, "k1")
    a.I("s_waitcnt vmcnt(0) lgkmcnt(0)")
    ST(a, "k2")
    lds_add(a, 1, 112)
    AK, AV, C = 114, 115, 116
    a.I(f"v_lshrrev_b32 v{AK}, 5, v{L}\nv_bfe_u32 v{AV}, v{L}, 2, 2\nv_lshl_add_u32 v{AK}, v{AK}, 3, v{AV}\nv_mul_u32_u24 v{AK}, {KV_RS}, v{AK}")
    a.I(f"v_add_u32 v{AK}, {KVIMG}, v{AK}")
    a.I(f"v_bfe_u32 v{C}, v{L}, 4, 1\nv_and_b32 v{AV}, 3, v{L}\nv_lshl_add_u32 v{C}, v{C}, 2, v{AV}")
    a.I(f"s_mul_i32 s{T}, s{S_WAVE}, 40\nv_lshlrev_b32 v{C+1}, 3, v{C}\nv_add_u32 v{C+1}, s{T}, v{C+1}")
    a.I(f"v_cmp_gt_u32 vcc, 5, v{C}\nv_add_u32 v{C+2}, 160, v{C+1}\nv_mov_b32 v{C+3}, 320")
    a.I(f"v_cndmask_b32 v{C+2}, v{C+3}, v{C+2}, vcc")
    a.I(f"v_add_u32 v{AV}, v{AK}, v{C+2}\nv_add_u32 v{AK}, v{AK}, v{C+1}")
    a.I(f"v_lshrrev_b32 v{C}, 5, v{L}\nv_mul_u32_u24 v{C}, 320, v{C}\nv_and_b32 v{C+1}, 31, v{L}\nv_lshl_add_u32 v{C}, v{C+1}, 2, v{C}")
    lds_wait_ge(a, 1, 4, 112)
    if QFIRST:
        a.I(f"s_cmp_lg_u32 s{S_WAVE}, 0\ns_cbranch_scc1 L_noq1")
        push16(a, 64, VPUSHQ)
        a.L("L_noq1")
    ST(a, "k3")
    FK, FV, D = 0, 32, 64
    for kp in range(8):
        o = kp * 16 * KV_RS
        a.I(f"ds_read_b64_tr_b16 {pk(FK+4*kp)}, v{AK} offset:{o}\nds_read_b64_tr_b16 {pk(FK+4*kp+2)}, v{AK} offset:{o+4*KV_RS}")
        a.I(f"ds_read_b64_tr_b16 {pk(FV+4*kp)}, v{AV} offset:{o}\nds_read_b64_tr_b16 {pk(FV+4*kp+2)}, v{AV} offset:{o+4*KV_RS}")
        if kp >= 2:
            a.I("s_waitcnt lgkmcnt(8)")
            k2 = kp - 2
            a.I(f"v_mfma_f32_32x32x16_bf16 v[{D}:{D+15}], {q4(FV+4*k2)}, {q4(FK+4*k2)}, {'0' if k2 == 0 else f'v[{D}:{D+15}]'}")
    for k2 in (6, 7):
        a.I(f"s_waitcnt lgkmcnt({4*(7-k2)})")
        a.I(f"v_mfma_f32_32x32x16_bf16 v[{D}:{D+15}], {q4(FV+4*k2)}, {q4(FK+4*k2)}, v[{D}:{D+15}]")
    a.I(f"s_lshl_b32 s{T+2}, s{S_CG}, 2\ns_add_u32 s{T+2}, s{T+2}, s{S_WAVE}\ns_mul_i32 s{T+2}, s{T+2}, 1680\ns_add_u32 s{T+2}, s{T+2}, {KV_OFF}")
    ST(a, "k4")
    a.I("s_mov_b32 exec_lo, 0xfffff\ns_mov_b32 exec_hi, 0xfffff")
    for r in range(12):
        if r == 9: a.I("s_mov_b32 exec_hi, 0")
        e = 8 * (r >> 2) + (r & 3)
        if not NOATOM: a.I(f"buffer_atomic_add_f32 v{D+r}, v{C}, {srd(SRD_WS)}, s{T+2} offen offset:{e*80}")
    a.I("s_mov_b64 exec, -1")
    ST(a, "k5")
    if not QFIRST: ep_pipe(a, [x for t in (5, 6) for x in tile_units(t, u_phi)])
    a.L("L_ep_done")
    lds_add(a, 7, 112)
    ST(a, "epi")
    a.C("---- publish ----")
    vm = Q("vmcnt", 63)
    PQ, AC2, WO = 0, 80, 160
    VT = 240
    W_KVW, W_KT0, W_KT1, W_MZ = 250, 251, 252, 249
    u0, u1, u2, u3 = VT, VT + 1, VT + 2, VT + 3
    a.I(f"v_mov_b32 v115, s{S_TAG}")
    g2_common(a)
    a.I(f"s_mul_i32 s{S_BB}, s{S_CG2}, {68*5*1024}\ns_mul_i32 s{T}, s{S_WAVE}, {25*1024}\ns_add_u32 s{S_BB}, s{S_BB}, s{T}\ns_add_u32 s{S_BB}, s{S_BB}, {B2_OFF + 48*5*1024}")
    WO4 = AC2 + 60
    def wor(t): return WO4 if t == 4 else WO + 20 * t
    def woload(t):
        a.I(f"s_add_u32 s{T}, s{S_BB}, {t*5120}\ns_add_u32 s{T+1}, s{T}, 4096")
        for ct in range(5):
            a.I(f"buffer_load_dwordx4 {q4(wor(t)+4*ct)}, v{V_L16}, {srd(SRD_WS)}, s{T+(ct>>2)} offen offset:{(ct&3)*1024} {SC}")
            vm.issue(("wo", t))
    vm.issue("stores")
    for t in range(WODRAIN): woload(t)
    KB = T + 15
    a.I(f"s_mul_i32 s{KB}, s{S_WAVE}, {MZS}\ns_add_u32 s{KB}, s{KB}, {MZ}\nv_add_u32 v{W_MZ}, s{KB}, v{V_L16}")
    a.I(f"v_mul_u32_u24 v{u0}, 205, v{L}\nv_lshrrev_b32 v{u0}, 10, v{u0}\nv_mul_u32_u24 v{u1}, 5, v{u0}\nv_sub_u32 v{u1}, v{L}, v{u1}")
    a.I(f"v_lshlrev_b32 v{u0}, 6, v{u0}\nv_lshl_add_u32 v{u0}, v{u1}, 3, v{u0}")
    a.I(f"v_add_u32 v{W_KVW}, s{KB}, v{u0}")
    a.I(f"v_and_b32 v{u0}, 15, v{L}\nv_lshrrev_b32 v{u1}, 4, v{L}\nv_lshlrev_b32 v{u1}, 3, v{u1}\nv_add_u32 v{u1}, s{KB}, v{u1}")
    a.I(f"v_lshl_add_u32 v{W_KT0}, v{u0}, 6, v{u1}")
    a.I(f"v_and_b32 v{u2}, 3, v{L}\nv_cmp_eq_u32 vcc, 0, v{u2}\nv_lshrrev_b32 v{u0}, 2, v{u0}\nv_add_u32 v{u0}, 16, v{u0}\nv_mov_b32 v{u2}, 20")
    a.I(f"v_cndmask_b32 v{u0}, v{u2}, v{u0}, vcc")
    a.I(f"v_lshl_add_u32 v{W_KT1}, v{u0}, 6, v{u1}")
    vm.wait(a, "stores")
    ST(a, "drain")
    lds_add(a, 2, 112, rtn=True)
    a.I(f"s_waitcnt lgkmcnt(0)\nv_readfirstlane_b32 s{T}, v113\ns_cmp_lg_u32 s{T}, 3\ns_cbranch_scc1 L_nosig")
    a.I(f"s_cmp_eq_u32 s{S_TYPE}, 1\ns_cbranch_scc0 L_sig_att")
    push16(a, 0, VPUSHF)
    a.I("s_branch L_nosig")
    a.L("L_sig_att")
    a.I(f"s_cmp_eq_u32 s{S_TYPE}, 2\ns_cbranch_scc1 L_sig_q")
    a.I(f"s_mov_b32 s{T+2}, 1\ns_lshl_b32 s{T}, s{S_CG}, 8\ns_add_u32 s{T}, s{T}, {C3}\ns_add_u32 s{T+4}, s{S_WS}, s{T}\ns_addc_u32 s{T+5}, s{S_WS+1}, 0")
    a.I(f"s_atomic_add s{T+2}, s[{T+4}:{T+5}], 0 glc\ns_mov_b32 s{T+3}, 1")
    a.I(f"s_add_u32 s{T+6}, s{S_WS}, {C4}\ns_addc_u32 s{T+7}, s{S_WS+1}, 0")
    a.I("s_setprio 3")
    if not QFIRST: push16(a, 64, VPUSHQ)
    a.I(f"s_waitcnt lgkmcnt(0)\ns_cmp_lg_u32 s{T+2}, 15\ns_cbranch_scc1 L_nosig")
    if VBC:
        a.I(f"s_mov_b32 s{T}, {C4}\nv_lshlrev_b32 v122, 8, v{L}\nv_mov_b32 v123, 1")
        set_exec(a, R3)
        a.I(f"buffer_atomic_add v123, v122, {srd(SRD_WS)}, s{T} offen\ns_mov_b64 exec, -1")
    else:
        for r in range(R3): a.I(f"s_atomic_add s{T+3}, s[{T+6}:{T+7}], {256*r}")
    a.I("s_branch L_nosig")
    a.L("L_sig_q")
    push16(a, 64)
    a.L("L_nosig")
    a.C("==== gemm2, attention part (waves 0..3) ====")
    def pqload():
        for sg in range(4):
            a.I(f"s_mul_i32 s{T}, s{S_WAVE}, {5*1024}\ns_add_u32 s{T}, s{T}, {48*1024}\ns_add_u32 s{T}, s{T}, s{S_A+sg}\ns_add_u32 s{T+1}, s{T}, 4096")
            for t in range(5):
                a.I(f"buffer_load_dwordx4 {q4(PQ+20*sg+4*t)}, v{V_L16}, {srd(SRD_WS)}, s{T+(t>>2)} offen offset:{(t&3)*1024} {SC}")
                vm.issue(("pq", sg))
    def zero_img():
        lds_wait_ge(a, 7, 4, VT + 2)
        for i in range(4): a.I(f"v_mov_b32 v{AC2+i}, 0")
        for i in range(11): a.I(f"ds_write_b128 v{W_MZ}, {q4(AC2)} offset:{i*1024}")
    def pq1(sg, t):
        if t == 0: a.I(f"s_mul_i32 s{T+2}, s{S_WAVE}, {5*1024}\ns_add_u32 s{T+2}, s{T+2}, {48*1024}\ns_add_u32 s{T+2}, s{T+2}, s{S_A+sg}\ns_add_u32 s{T+3}, s{T+2}, 4096")
        a.I(f"buffer_load_dwordx4 {q4(PQ+20*sg+4*t)}, v{V_L16}, {srd(SRD_WS)}, s{T+2+(t>>2)} offen offset:{(t&3)*1024} {SC}")
        vm.issue(("pq", sg))
    def qwait():
        a.I(f"s_cmp_lg_u32 s{S_WAVE}, 0\ns_cbranch_scc1 L_m_noq")
        a.I(f"s_lshl_b32 s{T}, s{S_RB2}, 3\ns_add_u32 s{T}, s{T}, s{S_CG2}\ns_lshl_b32 s{T}, s{T}, 7\ns_add_u32 s{T}, s{T}, {C2F+64}")
        cpoll(a, T, 1, 256, 9, u0, PSLEEP, 1)
        lds_add(a, 5, VT)
        a.L("L_m_noq")
        lds_wait_ge(a, 5, 1, VT)
        ST(a, "S2Q")
        a.I(f"s_setprio {PQPRIO}")
        pqload()
    if QFIRST: qwait()
    a.I(f"s_setprio {WOPRIO}")
    for t in range(WODRAIN, WOEARLY): woload(t)
    zero_img()
    if not QFIRST: qwait()
    ST(a, "pqiss")
    a.I(f"s_setprio 3\ns_cmp_lg_u32 s{S_WAVE}, 0\ns_cbranch_scc1 L_m_nopoll")
    a.I(f"s_and_b32 s{T}, s2, {R3-1}\ns_lshl_b32 s{T}, s{T}, 8\ns_add_u32 s{T}, s{T}, {C4}")
    cpoll(a, T, 1, 256, 8, u0, PSLEEP3, SPOLL3)
    lds_add(a, 4, VT)
    a.L("L_m_nopoll")
    lds_wait_ge(a, 4, 1, VT)
    pqs = []
    ST(a, "S3")
    KVRAW = AC2
    for i in range(14):
        if i % 4 == 0: a.I(f"s_mul_i32 s{T}, s{S_WAVE}, {8*1680}\ns_add_u32 s{T}, s{T}, {KV_OFF + i*960}")
        a.I(f"buffer_load_dwordx4 {q4(KVRAW+4*i)}, v{V_L16}, {srd(SRD_WS)}, s{T} offen offset:{(i%4)*960} {SC}")
        vm.issue(("kv", i))
    for _ in range(6):
        if pqs: pq1(*pqs.pop(0))
    EPSC = VT + 4
    a.I(f"v_mov_b32 v{EPSC}, 0\nv_mov_b32 v{EPSC+1}, {hx(f32(1e-6))}\nv_mov_b32 v{EPSC+2}, 0\nv_mov_b32 v{EPSC+3}, 0")
    for i in range(14):
        r = KVRAW + 4 * i
        vm.wait(a, ("kv", i))
        a.I(f"v_cvt_pk_bf16_f32 v{r}, v{r}, v{r+1}\nv_cvt_pk_bf16_f32 v{r+1}, v{r+2}, v{r+3}")
        a.I(f"ds_write_b64 v{W_KVW}, {pk(r)} offset:{24 + i*768}")
        if pqs: pq1(*pqs.pop(0))
    for t in range(WOEARLY, 4): woload(t)
    a.I(f"s_waitcnt lgkmcnt(0)\ns_setprio {NUMPRIO}")
    ST(a, "kvlds")
    ND, KT = AC2, AC2 + 48
    def ktread(qd, pr):
        o = []
        for hh in range(2):
            hq = 2 * pr + hh; h = 4 * qd + hq
            for tau in range(2):
                for b in range(2):
                    o.append(f"ds_read_b64 {pk(KT+(hq*2+tau)*4+2*b)}, v{W_KT1 if tau else W_KT0} offset:{h*1344 + 24 - 8*hq + 32*b}")
        return o
    groups = [(qd, sg, pr) for qd in range(2) for sg in range(4) for pr in range(2)]
    def nmf(gi):
        qd, sg, pr = groups[gi]
        nd = ND + 16 * (gi % 3)
        o = []
        for hh in range(2):
            hq = 2 * pr + hh
            for tau in (1, 0):
                o.append(f"v_mfma_f32_16x16x32_bf16 {q4(nd+8*hh+4*tau)}, {q4(KT+(hq*2+tau)*4)}, {q4(PQ+20*sg+10*qd+2*hq)}, {q4(EPSC) if tau else '0'}")
        return o
    def nva(gi):
        qd, sg, pr = groups[gi]
        D = [ND + 16 * (gi % 3), ND + 16 * (gi % 3) + 8]
        o = [f"v_rcp_f32_e64 v{d+6}, v{d+5}" for d in D]
        o += [f"v_mul_f32 v{d+i}, v{d+i}, v{d+6}" for d in D for i in range(5)]
        vals = [d + i for d in D for i in range(5)]
        o += [f"v_cvt_pk_bf16_f32 v{PQ+20*sg+10*qd+5*pr+i}, v{vals[2*i]}, v{vals[2*i+1]}" for i in range(5)]
        return o
    for x in ktread(0, 0): a.I(x)
    a.I("s_waitcnt lgkmcnt(7)")
    for x in ktread(0, 1): a.I(x)
    a.I("s_waitcnt lgkmcnt(8)")
    vm.wait(a, ("pq", 0))
    for x in nmf(0): a.I(x)
    a.I("s_waitcnt lgkmcnt(0)")
    for x in nmf(1): a.I(x)
    for gi in range(16):
        m = nmf(gi + 2) if gi + 2 < 16 else []
        v = nva(gi)
        if gi + 2 < 8: vm.wait(a, ("pq", groups[gi + 2][1]))
        if gi + 2 == 8: a.I("s_waitcnt lgkmcnt(8)")
        if gi + 2 == 9: a.I("s_waitcnt lgkmcnt(0)")
        for k, x in enumerate(v):
            a.I(x)
            if k % 4 == 1 and m: a.I(m.pop(0))
        if gi + 2 == 6:
            for x in ktread(1, 0): a.I(x)
        if gi + 2 == 7:
            a.I("s_waitcnt lgkmcnt(7)")
            for x in ktread(1, 1): a.I(x)
        if gi == 13: woload(4)
    ST(a, "odone")
    VM_, VH_, VX_, VO_, VB_ = VT, VT + 4, VT + 8, 250, 251
    RES, RU = 20, 40
    order = (1, 2, 3, 0)
    for k, sg in enumerate(order):
        A_ = AC2 + 20 * (k % 3); P_ = AC2 + 20 * ((k - 1) % 3)
        fill = []
        if k == 3:
            vm.wait(a, "R"); fill = res_unpack([0, 1, 2], RES, RU)
        for t in range(5):
            if k == 0: vm.wait(a, ("wo", t))
            for ct in ((3, 4, 0, 1, 2) if k == 3 else range(5)):
                d = A_ + 4 * ct
                a.I(f"v_mfma_f32_16x16x32_bf16 {q4(d)}, {q4(wor(t)+4*ct)}, {q4(PQ+20*sg+4*t)}, {'0' if t == 0 else q4(d)}")
                n = t * 5 + ct
                if k > 0 and n >= 8 and n % 3 == 2 and (n - 8) // 3 < 5:
                    c2 = (n - 8) // 3
                    a.I(f"ds_write_b128 v{W_MZ}, {q4(P_+4*c2)} offset:{((order[k-1]-1)*5+c2)*1024}")
                for _ in range(2):
                    if fill: a.I(fill.pop(0))
        if k == 0:
            out_addr(a, VO_, VB_, 252)
            res_issue(a, vm, [0, 1, 2], RES, VO_, VB_)
        if k == 1: red_addrs(a, VM_, VH_, VX_)
    for c2 in (3, 4): a.I(f"ds_write_b128 v{VX_}, {q4(AC2+4*c2)} offset:{(c2-3)*1024}")
    for k, ct in enumerate([0, 1, 2]):
        for i in (0, 2): a.I(f"v_pk_add_f32 {pk(AC2+4*ct+i)}, {pk(AC2+4*ct+i)}, {pk(RU+8*k+i)}")
    ST(a, "attend")
    a.I("s_waitcnt lgkmcnt(0)\ns_barrier")
    ST(a, "bar")
    final_sum(a, 0, [0, 1, 2], AC2, 100, VM_, VH_, VX_, VO_)
    a.I(f"s_or_b32 s{T}, s2, s{S_WAVE}\ns_cmp_eq_u32 s{T}, 0\ns_cselect_b32 s{T}, 0, {WS_SIZE}\ns_add_u32 s{T}, s{T}, {FLG_OFF}")
    a.I(f"v_mov_b32 v0, s{T}\nv_mov_b32 v1, s{S_TAG}\ns_mov_b64 exec, 1")
    a.I(f"buffer_store_dword v1, v0, {srd(SRD_WS)}, 0 offen\ns_mov_b64 exec, -1")
    ST(a, "end")
    if STAMPS: a.I("s_waitcnt vmcnt(0)")
    ST(a, "rt1", True)
    stamp_dump(a, 0)
    if DIAG:
        a.I("s_waitcnt vmcnt(0)\ns_memrealtime s[92:93]\ns_waitcnt lgkmcnt(0)")
        a.I("s_lshl_b32 s85, s85, 3\ns_min_u32 s85, s85, 40000\ns_mov_b32 s86, s92")
        if DIAGWG >= 0: a.I(f"s_cmp_eq_u32 s2, {DIAGWG}\ns_cselect_b32 s85, s85, 0")
        a.L("L_diag")
        a.I("s_memrealtime s[92:93]\ns_waitcnt lgkmcnt(0)\ns_sub_u32 s92, s92, s86\ns_cmp_lt_u32 s92, s85\ns_cbranch_scc1 L_diag")
    a.L("L_end")
    a.I("s_endpgm")

def header(launches):
    ref = open(f"cdna_kernels/{NAME}.s.ref").read().split("\n")
    out = [l for l in ref if l.startswith(";") and "@launch" not in l]
    out += launches
    out += ['.amdgcn_target "amdgcn-amd-amdhsa--gfx950"', ".text"]
    return "\n".join(out) + "\n"

def build(path, listform):
    ln = f"; @launch kernel={KN} grid=(256,1,1) block=(512,1,1) lds=163840" if listform else "; @launch grid=(256,1,1) block=(512,1,1) lds=163840"
    txt = header([ln])
    a = Asm()
    common(a)
    s1 = loader(a)
    s2 = aux(a)
    h2(a, [s1, s2])
    mwave(a)
    t, n = a.fixed()
    if NOSCL: t = "\n".join(l.replace(" sc1", "") if "load_dwordx4" in l else l for l in t.split("\n"))
    if NOSCS: t = "\n".join(l.replace(" sc1", "") if "store_dwordx4" in l else l for l in t.split("\n"))
    txt += t
    txt += ".p2align 8\n.fill 16384, 4, 0xbf800000\n"
    txt += f""".section .rodata,"a"
.p2align 6
.amdhsa_kernel {KN}
  .amdhsa_next_free_vgpr 256
  .amdhsa_next_free_sgpr 102
  .amdhsa_accum_offset 256
  .amdhsa_group_segment_fixed_size 0
  .amdhsa_kernarg_size 88
  .amdhsa_user_sgpr_count 2
  .amdhsa_user_sgpr_kernarg_segment_ptr 1
  .amdhsa_system_sgpr_workgroup_id_x 1
.end_amdhsa_kernel
"""
    open(path, "w").write(txt)
    if STAMPS: open(path + ".names", "w").write(repr(STAMP_NAMES))
    print("written", path, "nops inserted:", n)

if __name__ == "__main__":
    LIST = 0
    for arg in list(sys.argv):
        if "=" in arg:
            k_, v_ = arg.split("="); globals()[k_] = int(v_); sys.argv.remove(arg)
    build(sys.argv[1] if len(sys.argv) > 1 else f"cdna_kernels/{NAME}.s", LIST)
```
